```python
import torch

def _softmax(x, axis=-1):
    return torch.softmax(x, dim=axis)
def _gelu(x):
    return torch.nn.functional.gelu(x, approximate="tanh")
def _silu(x):
    return torch.nn.functional.silu(x)
def _sigmoid(x):
    return torch.sigmoid(x)
def _layernorm(x, axis=-1, eps=1e-5):
    m = x.mean(dim=axis, keepdim=True)
    v = x.var(dim=axis, keepdim=True, unbiased=False)
    return (x - m) / torch.sqrt(v + eps)
def _scatter_add(tgt, idx, src, axis=0):
    return tgt.clone().index_add_(axis, idx, src)
def _segment_sum(src, seg, n):
    out = torch.zeros((n,) + src.shape[1:], dtype=src.dtype)
    return out.index_add_(0, seg, src)
def _pad(x, pw):
    flat = tuple(v for pair in reversed(pw) for v in pair)
    return torch.nn.functional.pad(x, flat)

kernel_name = 'recurrent_scan__grouped_kv_mqa__moe_arch_mod__prompt'

def setup_inputs():

    _w = (lambda a: (lambda t: t.to(torch.bfloat16) if t.is_floating_point() else t)(torch.as_tensor(a)))
    def _A_setup():
        B, S, D, H = 1, 2048, 512, 32
        Dh = D // H
        return {
            "x": _w((lambda *s: torch.randn(*s, dtype=torch.bfloat16) * 0.05)(B, S, D)),
            "wq": _w((lambda *s: torch.randn(*s, dtype=torch.bfloat16) * 0.05)(D, H * Dh)),
            "wk": _w((lambda *s: torch.randn(*s, dtype=torch.bfloat16) * 0.05)(D, Dh)),
            "wv": _w((lambda *s: torch.randn(*s, dtype=torch.bfloat16) * 0.05)(D, Dh)),
            "wo": _w((lambda *s: torch.randn(*s, dtype=torch.bfloat16) * 0.05)(H * Dh, D)),
        }
    _A_in = _A_setup()

    def _B_setup():
        B, S, D, F, C = 1, 2048, 512, 1792, 2
        return {
            "x": _w((lambda *s: torch.randn(*s, dtype=torch.bfloat16) * 0.05)(B, S, D)),
            "w_r": _w((lambda *s: torch.randn(*s, dtype=torch.bfloat16) * 1.6)(D)),
            "w_gate": _w((lambda *s: torch.randn(*s, dtype=torch.bfloat16) * 0.1)(D, F)),
            "w_up": _w((lambda *s: torch.randn(*s, dtype=torch.bfloat16) * 0.1)(D, F)),
            "w_down": _w((lambda *s: torch.randn(*s, dtype=torch.bfloat16) * 0.1)(F, D)),
        }
    _B_in = _B_setup()

    return {
        "A_x": _A_in["x"],
        "A_wq": _A_in["wq"],
        "A_wk": _A_in["wk"],
        "A_wv": _A_in["wv"],
        "A_wo": _A_in["wo"],
        "B_x": _B_in["x"],
        "B_w_r": _B_in["w_r"],
        "B_w_gate": _B_in["w_gate"],
        "B_w_up": _B_in["w_up"],
        "B_w_down": _B_in["w_down"],
    }

def reference(A_x, A_wq, A_wk, A_wv, A_wo, B_x, B_w_r, B_w_gate, B_w_up, B_w_down):
    def _A_ref(x, wq, wk, wv, wo):
        B, S, D = x.shape
        H = 32
        Dh = D // H
        q = (lambda x, *d: x.permute(*d))((x @ wq).reshape(B, S, H, Dh), 0, 2, 1, 3)
        k = x @ wk
        v = x @ wv
        scores = torch.einsum("bhqd,bkd->bhqk", q, k) * (Dh ** -0.5)
        p = _softmax(scores, axis=-1)
        o = torch.einsum("bhqk,bkd->bhqd", p, v)
        return (lambda x, *d: x.permute(*d))(o, 0, 2, 1, 3).reshape(B, S, H * Dh) @ wo

    def _B_ref(x, w_r, w_gate, w_up, w_down):
        B, S, D = x.shape
        C = 2
        r = x @ w_r
        idx = torch.argsort(-r, axis=-1)[:, :C]
        idx_e = (lambda x, n, axis: torch.repeat_interleave(x, n, dim=axis))(idx.reshape(B, C, 1), D, axis=2)
        x_sel = (lambda x, i, axis: torch.take_along_dim(x, i, dim=axis))(x, idx_e, axis=1)
        g = _silu(x_sel @ w_gate)
        u = x_sel @ w_up
        y = (g * u) @ w_down
        r_sel = _sigmoid((lambda x, i, axis: torch.take_along_dim(x, i, dim=axis))(r, idx, axis=1))
        y = y * r_sel.reshape(B, C, 1)
        b_off = (torch.arange(B) * S).reshape(B, 1)
        flat_idx = (idx + b_off).reshape(B * C)
        zero = (x * 0.0).reshape(B * S, D)
        upd = _scatter_add(zero, flat_idx, y.reshape(B * C, D), axis=0)
        return x + upd.reshape(B, S, D)

    x = A_x
    xn = _layernorm(x, axis=-1)
    s = _A_ref(xn, A_wq, A_wk, A_wv, A_wo)
    g = _silu(_B_ref(xn, B_w_r, B_w_gate, B_w_up, B_w_down))
    return x + s * g
```

```python
import sys

NAME = "recurrent_scan__grouped_kv_mqa__moe_arch_mod__prompt"

WS_QF = 0x000000
WS_KV = 0x200000
WS_KEYS = 0x220000
WS_STATS = 0x221000
WS_OF = 0x300000
WS_YP = 0x500000
WS_SIZE = 0x600000

QSCALE = 0x3eb8aa3b
NLOG2E = 0xbfb8aa3b
ONES = 0x3f803f80
EPS = 0x3727c5ac
INV512 = 0x3b000000

NFFN = 56


class Asm:
    def __init__(self):
        self.lines = []
        self.vm = []

    def __call__(self, s):
        self.lines.append("    " + s)

    def label(self, l):
        self.lines.append(l + ":")

    def c(self, s):
        self.lines.append("    ; " + s)

    def raw(self, s):
        self.lines.append(s)

    def vmem(self, s, tag=None):
        self(s)
        self.vm.append(tag)
        assert len(self.vm) <= 63, "too many outstanding vmem ops"

    def vwait(self, tag=None):
        if tag is None:
            self("s_waitcnt vmcnt(0)")
            self.vm = []
            return
        idx = max(i for i, t in enumerate(self.vm) if t == tag)
        n = len(self.vm) - 1 - idx
        self(f"s_waitcnt vmcnt({n})")
        self.vm = self.vm[idx + 1:]

    def text(self):
        return "\n".join(self.lines) + "\n"


def vr(a, n=1):
    return f"v{a}" if n == 1 else f"v[{a}:{a + n - 1}]"


def sr(a, n=1):
    return f"s{a}" if n == 1 else f"s[{a}:{a + n - 1}]"


def srd(e, d, base, size):
    e(f"s_mov_b32 s{d}, s{base}")
    e(f"s_and_b32 s{d + 1}, s{base + 1}, 0xffff")
    e(f"s_mov_b32 s{d + 2}, {hex(size)}")
    e(f"s_mov_b32 s{d + 3}, 0x00020000")


def rbf(e, d, s):
    e(f"v_cvt_pk_bf16_f32 v{d}, v{s}, v{s}")
    e(f"v_and_b32 v{d}, 0xffff0000, v{d}")


def mfma32(e, d, a, b, c=None):
    cs = "0" if c is None else vr(c, 16)
    e(f"v_mfma_f32_32x32x16_bf16 {vr(d, 16)}, {vr(a, 4)}, {vr(b, 4)}, {cs}")


def mfma16(e, d, a, b, c=None):
    cs = "0" if c is None else vr(c, 4)
    e(f"v_mfma_f32_16x16x32_bf16 {vr(d, 4)}, {vr(a, 4)}, {vr(b, 4)}, {cs}")


def dpp_umax_reduce(e, v):
    for mod in ("row_shr:1 row_mask:0xf bank_mask:0xf bound_ctrl:0",
                "row_shr:2 row_mask:0xf bank_mask:0xf bound_ctrl:0",
                "row_shr:4 row_mask:0xf bank_mask:0xf bound_ctrl:0",
                "row_shr:8 row_mask:0xf bank_mask:0xf bound_ctrl:0",
                "row_bcast:15 row_mask:0xa bank_mask:0xf",
                "row_bcast:31 row_mask:0xc bank_mask:0xf"):
        e("s_nop 1")
        e(f"v_max_u32_dpp v{v}, v{v}, v{v} {mod}")
    e("s_nop 1")


def token_stats(e, sx, sq, mb, db, inv, t0, t1):
    e(f"v_mul_f32 v{t0}, {hex(INV512)}, v{sx}")
    e(f"v_mul_f32 v{t1}, {hex(INV512)}, v{sq}")
    rbf(e, mb, t0)
    e(f"v_fma_f32 v{t1}, -v{t0}, v{t0}, v{t1}")
    e(f"v_max_f32 v{t1}, 0, v{t1}")
    rbf(e, t1, t1)
    e(f"v_add_f32 v{t1}, {hex(EPS)}, v{t1}")
    rbf(e, t1, t1)
    e(f"v_sqrt_f32 v{t1}, v{t1}")
    e("s_nop 0")
    rbf(e, db, t1)
    e(f"v_rcp_f32 v{inv}, v{db}")
    e("s_nop 0")


def gen_k1(e):
    kn = "mqa_proj_kernel"
    e.raw(".p2align 8")
    e.raw(f".globl {kn}")
    e.raw(f".type {kn},@function")
    e.label(kn)
    e("s_cmp_ge_u32 s2, 320")
    e("s_cbranch_scc1 K1_END")
    e("s_load_dwordx4 s[4:7], s[0:1], 0")
    e("s_load_dwordx4 s[8:11], s[0:1], 16")
    e("s_load_dwordx2 s[12:13], s[0:1], 48")
    e("s_load_dwordx2 s[14:15], s[0:1], 96")
    e("v_and_b32 v1, 63, v0")
    e("v_lshrrev_b32 v6, 6, v0")
    e("v_and_b32 v2, 31, v1")
    e("v_lshrrev_b32 v3, 5, v1")
    e("v_readfirstlane_b32 s38, v6")
    e("s_mov_b32 s40, 0x05040100")
    e("s_mov_b32 s41, 0x07060302")
    e(f"v_mov_b32 v158, {hex(ONES)}")
    e("v_lshlrev_b32 v4, 10, v2")
    e("v_lshl_add_u32 v4, v3, 4, v4")
    e("s_waitcnt lgkmcnt(0)")
    srd(e, 16, 4, 2048 * 512 * 2)
    srd(e, 20, 6, 512 * 512 * 2)
    srd(e, 24, 14, WS_SIZE)
    srd(e, 28, 12, 512 * 2)
    e("s_and_b32 s33, s2, 7")
    e("s_cmp_ge_u32 s2, 256")
    e("s_cbranch_scc1 K1_KV")

    X = lambda tt, ks: 16 + (tt * 8 + ks) * 4
    R = lambda ks, i: 80 + ks * 8 + i
    F = [144, 148]
    SX, SQ, CS = [152, 153], [154, 155], [156, 157]
    ACC = lambda tt, ct: 160 + (tt * 2 + ct) * 16
    L_STAT, L_CSP, L_CSUM, L_ACC = 0, 4096, 4096 + 2048, 8192
    e("s_lshr_b32 s34, s2, 3")
    e("s_lshr_b32 s35, s34, 3")
    e("s_lshl_b32 s36, s33, 2")
    e("s_add_u32 s36, s36, s35")
    e("s_and_b32 s37, s34, 7")
    e("s_lshl_b32 s42, s36, 16")
    e("s_lshl_b32 s39, s38, 8")
    e("s_add_u32 s42, s42, s39")
    e("s_add_u32 s43, s42, 32768")
    e("s_lshl_b32 s44, s38, 17")
    e("s_lshl_b32 s39, s37, 7")
    e("s_add_u32 s44, s44, s39")
    e("v_lshlrev_b32 v5, 13, v3")
    e("v_lshl_add_u32 v5, v2, 2, v5")
    for r in SX + SQ + CS:
        e(f"v_mov_b32 v{r}, 0")

    def q_loads(ks):
        e.vmem(f"buffer_load_dwordx4 {vr(X(0, ks), 4)}, v4, s[16:19], s42 offen offset:{32 * ks}", ("k", ks))
        e.vmem(f"buffer_load_dwordx4 {vr(X(1, ks), 4)}, v4, s[16:19], s43 offen offset:{32 * ks}", ("k", ks))
        for half in range(2):
            s = 45 + half
            e(f"s_add_u32 s{s}, s44, {(16 * ks + 4 * half) * 1024}")
            for i in range(4):
                e.vmem(f"buffer_load_dword v{R(ks, 4 * half + i)}, v5, s[20:23], s{s} offen offset:{i * 1024}", ("k", ks))

    for ks in range(6):
        q_loads(ks)
    for ks in range(8):
        e.vwait(("k", ks))
        if ks + 6 < 8:
            q_loads(ks + 6)
        for c in range(4):
            e(f"v_perm_b32 v{F[0] + c}, v{R(ks, 2 * c + 1)}, v{R(ks, 2 * c)}, s40")
            e(f"v_perm_b32 v{F[1] + c}, v{R(ks, 2 * c + 1)}, v{R(ks, 2 * c)}, s41")
        for tt in range(2):
            for c in range(4):
                e(f"v_dot2_f32_bf16 v{SX[tt]}, v{X(tt, ks) + c}, v158, v{SX[tt]}")
                e(f"v_dot2_f32_bf16 v{SQ[tt]}, v{X(tt, ks) + c}, v{X(tt, ks) + c}, v{SQ[tt]}")
            for ct in range(2):
                mfma32(e, ACC(tt, ct), F[ct], X(tt, ks), None if ks == 0 else ACC(tt, ct))
        for ct in range(2):
            for c in range(4):
                e(f"v_dot2_f32_bf16 v{CS[ct]}, v{F[ct] + c}, v158, v{CS[ct]}")
    e("v_lshlrev_b32 v6, 4, v1")
    e("s_lshl_b32 s39, s38, 14")
    e("v_add_u32 v7, s39, v6")
    e("s_lshl_b32 s39, s38, 3")
    e("v_lshlrev_b32 v8, 5, v2")
    e("v_lshl_add_u32 v8, v3, 2, v8")
    e("v_add_u32 v8, s39, v8")
    e("s_nop 3")
    for q, regs in enumerate((SX, SQ)):
        for tt in range(2):
            e(f"ds_write_b32 v8, v{regs[tt]} offset:{L_STAT + (q * 2 + tt) * 1024}")
    for ct in range(2):
        e(f"ds_write_b32 v8, v{CS[ct]} offset:{L_CSP + ct * 1024}")
    e("s_nop 7")
    for tt in range(2):
        for ct in range(2):
            for rq in range(4):
                e(f"ds_write_b128 v7, {vr(ACC(tt, ct) + 4 * rq, 4)} offset:{L_ACC + ((tt * 2 + ct) * 4 + rq) * 1024}")
            e("s_waitcnt lgkmcnt(8)")
    e("s_waitcnt lgkmcnt(0)")
    e("s_barrier")
    e("s_lshr_b32 s46, s38, 1")
    e("s_and_b32 s47, s38, 1")
    e("s_lshl_b32 s39, s46, 10")
    e("v_lshlrev_b32 v8, 5, v2")
    e("v_add_u32 v8, s39, v8")
    e(f"ds_read_b128 v[16:19], v8 offset:{L_STAT}")
    e(f"ds_read_b128 v[20:23], v8 offset:{L_STAT + 16}")
    e(f"ds_read_b128 v[24:27], v8 offset:{L_STAT + 2048}")
    e(f"ds_read_b128 v[28:31], v8 offset:{L_STAT + 2048 + 16}")
    e("v_lshlrev_b32 v9, 5, v1")
    e(f"ds_read_b128 v[32:35], v9 offset:{L_CSP}")
    e(f"ds_read_b128 v[36:39], v9 offset:{L_CSP + 16}")
    e("s_lshl_b32 s39, s46, 13")
    e("s_lshl_b32 s48, s47, 11")
    e("s_add_u32 s39, s39, s48")
    e("v_add_u32 v10, s39, v6")
    AR = lambda wp, ct, gi: 80 + ((wp * 2 + ct) * 2 + gi) * 4
    for wp in range(2):
        for ct in range(2):
            for gi in range(2):
                e(f"ds_read_b128 {vr(AR(wp, ct, gi), 4)}, v10 offset:{L_ACC + wp * 16384 + ct * 4096 + gi * 1024}")
    e("s_waitcnt lgkmcnt(8)")
    e("v_add_f32 v32, v32, v33")
    e("v_add_f32 v34, v34, v35")
    e("v_add_f32 v36, v36, v37")
    e("v_add_f32 v38, v38, v39")
    e("v_add_f32 v32, v32, v34")
    e("v_add_f32 v36, v36, v38")
    e("v_add_f32 v32, v32, v36")
    e("s_lshl_b32 s39, s38, 8")
    e("v_lshl_add_u32 v11, v1, 2, s39")
    e(f"ds_write_b32 v11, v32 offset:{L_CSUM}")
    e("s_waitcnt lgkmcnt(5)")
    for wp in range(2, 4):
        for ct in range(2):
            for gi in range(2):
                e(f"ds_read_b128 {vr(AR(wp, ct, gi), 4)}, v10 offset:{L_ACC + wp * 16384 + ct * 4096 + gi * 1024}")
    for base in (16, 24):
        e(f"v_add_f32 v{base}, v{base}, v{base + 1}")
        e(f"v_add_f32 v{base + 2}, v{base + 2}, v{base + 3}")
        e(f"v_add_f32 v{base + 4}, v{base + 4}, v{base + 5}")
        e(f"v_add_f32 v{base + 6}, v{base + 6}, v{base + 7}")
        e(f"v_add_f32 v{base}, v{base}, v{base + 2}")
        e(f"v_add_f32 v{base + 4}, v{base + 4}, v{base + 6}")
        e(f"v_add_f32 v{base}, v{base}, v{base + 4}")
    token_stats(e, 16, 24, 40, 41, 42, 43, 44)
    e(f"v_mul_f32 v42, {hex(QSCALE)}, v42")
    e("s_waitcnt lgkmcnt(0)")
    e("s_lshl_b32 s48, s47, 6")
    e("s_add_u32 s39, s39, s48")
    e("v_lshl_add_u32 v11, v3, 4, s39")
    CSR = lambda ct, gi: 48 + (ct * 2 + gi) * 4
    for ct in range(2):
        for gi in range(2):
            e(f"ds_read_b128 {vr(CSR(ct, gi), 4)}, v11 offset:{L_CSUM + ct * 128 + gi * 32}")
    for ct in range(2):
        for gi in range(2):
            for c in range(4):
                a = AR(0, ct, gi) + c
                e(f"v_add_f32 v{a}, v{a}, v{AR(1, ct, gi) + c}")
                e(f"v_add_f32 v{AR(2, ct, gi) + c}, v{AR(2, ct, gi) + c}, v{AR(3, ct, gi) + c}")
                e(f"v_add_f32 v{a}, v{a}, v{AR(2, ct, gi) + c}")
    e("s_waitcnt lgkmcnt(0)")
    for ct in range(2):
        for gi in range(2):
            for c in range(4):
                a = AR(0, ct, gi) + c
                e(f"v_fma_f32 v{a}, -v40, v{CSR(ct, gi) + c}, v{a}")
                e(f"v_mul_f32 v{a}, v42, v{a}")
    for gi in range(2):
        for c in range(4):
            e(f"v_cvt_pk_bf16_f32 v{64 + gi * 4 + c}, v{AR(0, 0, gi) + c}, v{AR(0, 1, gi) + c}")
    e("s_lshl_b32 s39, s37, 2")
    e("s_lshl_b32 s48, s47, 1")
    e("s_add_u32 s39, s39, s48")
    e("s_lshl_b32 s39, s39, 6")
    e("s_lshl_b32 s48, s36, 1")
    e("s_add_u32 s39, s39, s48")
    e("s_add_u32 s39, s39, s46")
    e("s_lshl_b32 s39, s39, 10")
    e("s_add_u32 s48, s39, 65536")
    e(f"buffer_store_dwordx4 v[64:67], v6, s[24:27], s39 offen")
    e(f"buffer_store_dwordx4 v[68:71], v6, s[24:27], s48 offen")
    e("s_endpgm")
    e.vm = []

    e.label("K1_KV")
    XK = lambda ks: 16 + ks * 4
    WR = lambda ks: 48 + ks * 4
    FK = 144
    sx, sq, srr, cs, csr = 152, 153, 154, 155, 156
    AK, AV = 160, 176
    L_AK, L_AV, L_ST, L_CP, L_CR, L_PRIV = 0, 8192, 24576, 24576 + 3072, 24576 + 4096, 24576 + 4096 + 64
    e("s_sub_u32 s34, s2, 256")
    e("s_lshr_b32 s34, s34, 3")
    e("s_lshl_b32 s36, s33, 3")
    e("s_add_u32 s36, s36, s34")
    e("s_lshl_b32 s42, s36, 15")
    e("s_lshl_b32 s39, s38, 8")
    e("s_add_u32 s42, s42, s39")
    e("v_bfe_u32 v5, v2, 2, 1")
    e("v_lshlrev_b32 v5, 3, v5")
    e("v_bfe_u32 v6, v2, 3, 1")
    e("v_lshl_add_u32 v5, v6, 2, v5")
    e("v_and_b32 v6, 3, v2")
    e("v_add_u32 v5, v5, v6")
    e("v_and_b32 v6, 15, v2")
    e("v_cmp_gt_u32 vcc, 16, v2")
    e("v_mov_b32 v8, s10")
    e("v_mov_b32 v9, s11")
    e("v_mov_b32 v10, s8")
    e("v_mov_b32 v11, s9")
    e("v_cndmask_b32 v5, v6, v5, vcc")
    e("v_cndmask_b32 v8, v8, v10, vcc")
    e("v_cndmask_b32 v9, v9, v11, vcc")
    e("v_lshlrev_b32 v5, 1, v5")
    e("v_lshl_add_u32 v5, v3, 8, v5")
    e("s_lshl_b32 s43, s38, 12")
    e("v_add_u32 v5, s43, v5")
    e("v_add_co_u32 v8, vcc, v8, v5")
    e("s_nop 1")
    e("v_addc_co_u32 v9, vcc, 0, v9, vcc")
    e("v_lshlrev_b32 v12, 4, v3")
    for r in (sx, sq, srr, cs, csr):
        e(f"v_mov_b32 v{r}, 0")

    def kv_loads(ks):
        e.vmem(f"buffer_load_dwordx4 {vr(XK(ks), 4)}, v4, s[16:19], s42 offen offset:{32 * ks}", ("k", ks))
        e.vmem(f"buffer_load_dwordx4 {vr(WR(ks), 4)}, v12, s[28:31], s39 offen offset:{32 * ks}", ("k", ks))
        for i in range(8):
            e.vmem(f"global_load_ushort v{R(ks, i)}, v[8:9], off offset:{(16 * ks + i) * 32}", ("k", ks))

    for ks in range(6):
        kv_loads(ks)
    for ks in range(8):
        e.vwait(("k", ks))
        if ks + 6 < 8:
            kv_loads(ks + 6)
        for c in range(4):
            e(f"v_perm_b32 v{FK + c}, v{R(ks, 2 * c + 1)}, v{R(ks, 2 * c)}, s40")
        for c in range(4):
            e(f"v_dot2_f32_bf16 v{sx}, v{XK(ks) + c}, v158, v{sx}")
            e(f"v_dot2_f32_bf16 v{sq}, v{XK(ks) + c}, v{XK(ks) + c}, v{sq}")
            e(f"v_dot2_f32_bf16 v{srr}, v{XK(ks) + c}, v{WR(ks) + c}, v{srr}")
        mfma32(e, AK, FK, XK(ks), None if ks == 0 else AK)
        for c in range(4):
            e(f"v_dot2_f32_bf16 v{cs}, v{FK + c}, v158, v{cs}")
            e(f"v_dot2_f32_bf16 v{csr}, v{WR(ks) + c}, v158, v{csr}")
        mfma32(e, AV, XK(ks), FK, None if ks == 0 else AV)
    e("v_lshlrev_b32 v6, 4, v1")
    e("s_lshl_b32 s43, s38, 11")
    e("v_add_u32 v7, s43, v6")
    e("s_lshl_b32 s43, s38, 12")
    e("v_add_u32 v13, s43, v6")
    e("s_lshl_b32 s43, s38, 3")
    e("v_lshlrev_b32 v8, 5, v2")
    e("v_lshl_add_u32 v8, v3, 2, v8")
    e("v_add_u32 v8, s43, v8")
    e("v_lshlrev_b32 v9, 2, v3")
    e("v_add_u32 v9, s43, v9")
    e("s_nop 3")
    for q, r in enumerate((sx, sq, srr)):
        e(f"ds_write_b32 v8, v{r} offset:{L_ST + q * 1024}")
    e(f"ds_write_b32 v8, v{cs} offset:{L_CP}")
    e(f"ds_write_b32 v9, v{csr} offset:{L_CR}")
    e("s_nop 7")
    for rq in range(2):
        e(f"ds_write_b128 v7, {vr(AK + 4 * rq, 4)} offset:{L_AK + rq * 1024}")
    for rq in range(4):
        e(f"ds_write_b128 v13, {vr(AV + 4 * rq, 4)} offset:{L_AV + rq * 1024}")
    e("s_waitcnt lgkmcnt(0)")
    e("s_barrier")
    e("v_lshlrev_b32 v8, 5, v2")
    for q in range(3):
        e(f"ds_read_b128 {vr(16 + q * 8, 4)}, v8 offset:{L_ST + q * 1024}")
        e(f"ds_read_b128 {vr(20 + q * 8, 4)}, v8 offset:{L_ST + q * 1024 + 16}")
    e(f"ds_read_b128 v[40:43], v8 offset:{L_CP}")
    e(f"ds_read_b128 v[44:47], v8 offset:{L_CP + 16}")
    e("v_mov_b32 v9, 0")
    e(f"ds_read_b128 v[48:51], v9 offset:{L_CR}")
    e(f"ds_read_b128 v[52:55], v9 offset:{L_CR + 16}")
    e("s_waitcnt lgkmcnt(0)")
    for base in (16, 24, 32, 40, 48):
        e(f"v_add_f32 v{base}, v{base}, v{base + 1}")
        e(f"v_add_f32 v{base + 2}, v{base + 2}, v{base + 3}")
        e(f"v_add_f32 v{base + 4}, v{base + 4}, v{base + 5}")
        e(f"v_add_f32 v{base + 6}, v{base + 6}, v{base + 7}")
        e(f"v_add_f32 v{base}, v{base}, v{base + 2}")
        e(f"v_add_f32 v{base + 4}, v{base + 4}, v{base + 6}")
        e(f"v_add_f32 v{base}, v{base}, v{base + 4}")
    MB, DB, INV = 56, 57, 58
    token_stats(e, 16, 24, MB, DB, INV, 59, 60)
    e("s_mul_i32 s43, s38, 384")
    e("v_lshl_add_u32 v9, v2, 2, s43")
    e(f"ds_write_b32 v9, v40 offset:{L_PRIV}")
    e(f"ds_write_b32 v9, v{MB} offset:{L_PRIV + 128}")
    e(f"ds_write_b32 v9, v{INV} offset:{L_PRIV + 256}")
    e("v_lshl_add_u32 v9, v3, 4, s43")
    e("s_lshl_b32 s44, s36, 11")
    e(f"s_add_u32 s44, s44, {WS_KV}")
    e("s_cmp_eq_u32 s38, 0")
    e("s_cbranch_scc1 K1_KV_K")
    e("s_cmp_eq_u32 s38, 3")
    e("s_cbranch_scc1 K1_KV_R")
    e("s_sub_u32 s45, s38, 1")
    e("s_lshl_b32 s46, s45, 11")
    e("v_add_u32 v10, s46, v6")
    for wp in range(4):
        for rr in range(2):
            e(f"ds_read_b128 {vr(80 + (wp * 2 + rr) * 4, 4)}, v10 offset:{L_AV + wp * 4096 + rr * 1024}")
    e("s_lshl_b32 s46, s45, 6")
    e("v_add_u32 v11, s46, v9")
    for rr in range(2):
        e(f"ds_read_b128 {vr(64 + rr * 4, 4)}, v11 offset:{L_PRIV + 128 + rr * 32}")
        e(f"ds_read_b128 {vr(72 + rr * 4, 4)}, v11 offset:{L_PRIV + 256 + rr * 32}")
    e("s_waitcnt lgkmcnt(0)")
    for i in range(8):
        a = 80 + i
        e(f"v_add_f32 v{a}, v{a}, v{a + 8}")
        e(f"v_add_f32 v{a + 16}, v{a + 16}, v{a + 24}")
        e(f"v_add_f32 v{a}, v{a}, v{a + 16}")
        e(f"v_fma_f32 v{a}, -v{64 + i}, v40, v{a}")
        e(f"v_mul_f32 v{a}, v{72 + i}, v{a}")
    for c in range(4):
        e(f"v_cvt_pk_bf16_f32 v{112 + c}, v{80 + 2 * c}, v{81 + 2 * c}")
    e("v_and_b32 v10, 15, v2")
    e("v_lshlrev_b32 v10, 4, v10")
    e("v_lshl_add_u32 v10, v3, 8, v10")
    e("s_lshl_b32 s46, s45, 9")
    e("s_add_u32 s46, s46, s44")
    e("s_mov_b32 exec_lo, 0xffff0000")
    e("s_mov_b32 exec_hi, 0xffff0000")
    e("buffer_store_dwordx4 v[112:115], v10, s[24:27], s46 offen offset:1024")
    e("s_endpgm")
    e.label("K1_KV_K")
    for wp in range(4):
        for rr in range(2):
            e(f"ds_read_b128 {vr(80 + (wp * 2 + rr) * 4, 4)}, v6 offset:{L_AK + wp * 2048 + rr * 1024}")
    for rr in range(2):
        e(f"ds_read_b128 {vr(64 + rr * 4, 4)}, v9 offset:{L_PRIV + rr * 32}")
    e("s_waitcnt lgkmcnt(0)")
    for i in range(8):
        a = 80 + i
        e(f"v_add_f32 v{a}, v{a}, v{a + 8}")
        e(f"v_add_f32 v{a + 16}, v{a + 16}, v{a + 24}")
        e(f"v_add_f32 v{a}, v{a}, v{a + 16}")
        e(f"v_fma_f32 v{a}, -v{MB}, v{64 + i}, v{a}")
        e(f"v_mul_f32 v{a}, v{INV}, v{a}")
    for c in range(4):
        e(f"v_cvt_pk_bf16_f32 v{112 + c}, v{80 + 2 * c}, v{81 + 2 * c}")
    e("buffer_store_dwordx4 v[112:115], v6, s[24:27], s44 offen")
    e("s_endpgm")
    e.label("K1_KV_R")
    e(f"v_fma_f32 v32, -v{MB}, v48, v32")
    e(f"v_mul_f32 v32, v{INV}, v32")
    rbf(e, 32, 32)
    e("v_ashrrev_i32 v33, 31, v32")
    e("v_or_b32 v33, 0x80000000, v33")
    e("v_xor_b32 v32, v32, v33")
    e("v_and_b32 v32, 0xffff0000, v32")
    e("s_lshl_b32 s45, s36, 5")
    e("v_add_u32 v34, s45, v2")
    e("v_sub_u32 v33, 0xffff, v34")
    e("v_or_b32 v32, v32, v33")
    e("v_cmp_eq_u32 vcc, 0, v3")
    e("s_nop 1")
    e("v_cndmask_b32 v32, 0, v32, vcc")
    e("v_mov_b32 v35, v32")
    dpp_umax_reduce(e, 35)
    e("v_readlane_b32 s46, v35, 63")
    e("s_nop 1")
    e("v_cmp_ne_u32 vcc, s46, v32")
    e("s_nop 1")
    e("v_cndmask_b32 v35, 0, v32, vcc")
    dpp_umax_reduce(e, 35)
    e("v_readlane_b32 s47, v35, 63")
    e("s_nop 1")
    e("v_mov_b32 v36, s46")
    e("v_mov_b32 v37, s47")
    e("v_lshlrev_b32 v38, 3, v34")
    e("s_mov_b32 exec_hi, 0")
    e(f"s_mov_b32 s48, {hex(WS_STATS)}")
    e(f"buffer_store_dwordx2 v[{MB}:{DB}], v38, s[24:27], s48 offen")
    e("s_lshl_b32 s48, s36, 3")
    e(f"s_add_u32 s48, s48, {hex(WS_KEYS)}")
    e("v_mov_b32 v39, 0")
    e("s_mov_b32 exec_lo, 1")
    e("buffer_store_dwordx2 v[36:37], v39, s[24:27], s48 offen")
    e.label("K1_END")
    e("s_endpgm")
    e.vm = []
    return kn, 224, 73 * 1024


def gen_k2(e):
    kn = "mqa_attn_kernel"
    L_XS = 0
    L_FP = L_XS + 2048
    L_Y = L_FP + 16384
    L_SEL = L_Y + 512
    L_CNT = L_SEL + 16
    L_MX = L_CNT + 16
    L_REDB = 24576
    assert L_MX + 4096 <= L_REDB
    L_RED = 0
    LDS_SIZE = L_REDB + 73728

    e.raw(".p2align 8")
    e.raw(f".globl {kn}")
    e.raw(f".type {kn},@function")
    e.label(kn)
    e("s_cmp_ge_u32 s2, 256")
    e("s_cbranch_scc1 K2_END")
    e("s_load_dwordx2 s[4:5], s[0:1], 0")
    e("s_load_dwordx2 s[6:7], s[0:1], 32")
    e("s_load_dwordx4 s[8:11], s[0:1], 56")
    e("s_load_dwordx4 s[12:15], s[0:1], 72")
    e("s_load_dwordx4 s[16:19], s[0:1], 88")
    e("v_and_b32 v1, 63, v0")
    e("v_lshrrev_b32 v6, 6, v0")
    e("v_and_b32 v2, 31, v1")
    e("v_lshrrev_b32 v3, 5, v1")
    e("v_readfirstlane_b32 s60, v6")
    e("v_lshlrev_b32 v4, 4, v1")
    e("s_mov_b32 s64, 0x05040100")
    e("s_mov_b32 s65, 0x07060302")
    e("s_and_b32 s56, s2, 7")
    e("s_lshr_b32 s57, s2, 3")
    e("s_lshr_b32 s58, s57, 3")
    e("s_lshl_b32 s61, s56, 2")
    e("s_add_u32 s61, s61, s58")
    e("s_and_b32 s62, s57, 7")
    e("s_mov_b32 s63, 0")
    e("v_and_b32 v5, 15, v2")
    e("v_lshlrev_b32 v5, 4, v5")
    e("v_lshl_add_u32 v5, v3, 8, v5")
    e("v_add_u32 v5, 1024, v5")
    e("s_waitcnt lgkmcnt(0)")
    srd(e, 20, 4, 2048 * 512 * 2)
    srd(e, 24, 6, 512 * 512 * 2)
    srd(e, 28, 8, 512 * 1792 * 2)
    srd(e, 32, 10, 512 * 1792 * 2)
    srd(e, 36, 12, 512 * 1792 * 2)
    srd(e, 40, 14, 2048 * 512 * 2)
    srd(e, 44, 18, WS_SIZE)
    e("s_cmp_ge_u32 s60, 4")
    e("s_cbranch_scc1 K2_H")

    ACC = lambda q: 128 + 16 * q
    Q = lambda q: 96 + 4 * q
    S = [64, 80]
    P = 56
    KB = [32, 36]
    VB = [40, 48]
    e("s_lshl_b32 s66, s62, 8")
    e("s_lshl_b32 s67, s61, 1")
    e("s_add_u32 s66, s66, s67")
    e("s_lshl_b32 s66, s66, 10")
    e("s_lshl_b32 s68, s60, 15")
    e(f"s_add_u32 s68, s68, {hex(WS_KV)}")

    def load_q():
        for q in range(8):
            hl, tt = q >> 1, q & 1
            e(f"s_add_u32 s67, s66, {hl * 65536 + tt * 1024}")
            e.vmem(f"buffer_load_dwordx4 {vr(Q(q), 4)}, v4, s[44:47], s67 offen", "q")

    def init_v():
        e("v_and_b32 v6, 27, v2")
        e("v_cmp_eq_u32 vcc, 16, v6")
        e(f"v_mov_b32 v7, {hex(ONES)}")
        e("s_nop 0")
        e("v_cndmask_b32 v7, 0, v7, vcc")
        for r in range(40, 56):
            e(f"v_mov_b32 v{r}, v7")

    def load_kv(buf, soff, imm=0, tag="kv"):
        e.vmem(f"buffer_load_dwordx4 {vr(KB[buf], 4)}, v4, s[44:47], {soff} offen offset:{imm}", tag + "k")
        e("s_mov_b32 exec_lo, 0x0000ffff")
        e("s_mov_b32 exec_hi, 0x0000ffff")
        e.vmem(f"buffer_load_dwordx4 {vr(VB[buf], 4)}, v5, s[44:47], {soff} offen offset:{imm}", tag + "v")
        e.vmem(f"buffer_load_dwordx4 {vr(VB[buf] + 4, 4)}, v5, s[44:47], {soff} offen offset:{imm + 512}", tag + "v")
        e("s_mov_b64 exec, -1")

    init_v()
    load_kv(0, "s68", 0, "a")
    load_q()
    for r in range(P, P + 8):
        e(f"v_mov_b32 v{r}, 0")
    for r in range(128, 256):
        e(f"v_mov_b32 v{r}, 0")
    e("s_barrier")
    e.vwait(None)
    mfma32(e, S[0], KB[0], Q(0))
    e("s_mov_b32 s69, s68")
    e("s_mov_b32 s70, 8")
    e("s_nop 7")
    e("s_nop 1")

    def slot(kb, q, first_loads=None, waits=None):
        t = q
        Sc, Sn = S[t & 1], S[(t + 1) & 1]
        if q < 7:
            if waits and "pre" in waits:
                e(waits["pre"])
            mfma32(e, Sn, KB[kb], Q(q + 1))
        else:
            if waits and "pre" in waits:
                e(waits["pre"])
            mfma32(e, Sn, KB[kb ^ 1], Q(0))
        for i in range(6):
            e(f"v_exp_f32 v{Sc + i}, v{Sc + i}")
        if q == 0:
            mfma32(e, ACC(7), VB[kb ^ 1] + 4, P + 4, ACC(7))
        else:
            mfma32(e, ACC(q - 1), VB[kb] + 4, P + 4, ACC(q - 1))
        for i in range(6, 8):
            e(f"v_exp_f32 v{Sc + i}, v{Sc + i}")
        if first_loads:
            first_loads()
        for c in range(4):
            e(f"v_cvt_pk_bf16_f32 v{P + c}, v{Sc + 2 * c}, v{Sc + 2 * c + 1}")
        e(f"v_exp_f32 v{Sc + 8}, v{Sc + 8}")
        if waits and "pv" in waits:
            e(waits["pv"])
        e(f"v_exp_f32 v{Sc + 9}, v{Sc + 9}")
        mfma32(e, ACC(q), VB[kb], P, ACC(q))
        for i in range(10, 16):
            e(f"v_exp_f32 v{Sc + i}, v{Sc + i}")
        for c in range(4, 8):
            e(f"v_cvt_pk_bf16_f32 v{P + c}, v{Sc + 2 * c}, v{Sc + 2 * c + 1}")

    e.raw(".p2align 6")
    e.label("K2_LOOP")
    for kb in range(2):
        for q in range(8):
            fl = None
            waits = {}
            if q == 0:
                def fl(kb=kb):
                    load_kv(kb ^ 1, "s69", 2048 * (kb + 1) if kb == 0 else 0, "l")
                if kb == 1:
                    pass
                waits["pv"] = None
            if q == 7:
                waits["pre"] = "s_waitcnt vmcnt(2)"
            if q == 0:
                waits["pv"] = "s_waitcnt vmcnt(3)"
            if kb == 1 and q == 0:
                def fl(kb=kb):
                    e("s_add_u32 s69, s69, 4096")
                    load_kv(kb ^ 1, "s69", 0, "l")
            slot(kb, q, fl, {k: v for k, v in waits.items() if v})
            e.vm = []
    e("s_sub_u32 s70, s70, 1")
    e("s_cmp_lg_u32 s70, 0")
    e("s_cbranch_scc1 K2_LOOP")
    e("s_nop 1")
    mfma32(e, ACC(7), VB[1] + 4, P + 4, ACC(7))
    e("s_waitcnt vmcnt(0)")

    e.label("K2_DUMP")
    e(f"s_mul_i32 s67, s60, {8 * 2304}")
    e(f"s_add_u32 s67, s67, {L_REDB}")
    e("v_add_u32 v6, s67, v4")
    e("v_lshl_add_u32 v7, v1, 2, s67")
    e("s_nop 15")
    for q in range(8):
        e(f"ds_write_b128 v6, {vr(ACC(q), 4)} offset:{L_RED + q * 2304}")
        e(f"ds_write_b128 v6, {vr(ACC(q) + 4, 4)} offset:{L_RED + q * 2304 + 1024}")
        e(f"ds_write_b32 v7, v{ACC(q) + 8} offset:{L_RED + q * 2304 + 2048}")
        if q >= 3:
            e("s_waitcnt lgkmcnt(9)")
    e("s_waitcnt lgkmcnt(0)")
    e.label("K2_BAR1")
    e("s_barrier")
    e("s_mul_i32 s67, s60, 2304")
    e(f"s_add_u32 s67, s67, {L_REDB}")
    e("v_add_u32 v6, s67, v4")
    e("v_lshl_add_u32 v7, v1, 2, s67")
    for wp in range(4):
        e(f"ds_read_b128 {vr(8 + wp * 8, 4)}, v6 offset:{L_RED + wp * 18432}")
        e(f"ds_read_b128 {vr(12 + wp * 8, 4)}, v6 offset:{L_RED + wp * 18432 + 1024}")
        e(f"ds_read_b32 v{40 + wp}, v7 offset:{L_RED + wp * 18432 + 2048}")
    e("s_and_b32 s67, s60, 1")
    e("s_lshl_b32 s71, s61, 1")
    e("s_add_u32 s67, s67, s71")
    e("s_lshl_b32 s67, s67, 5")
    e("s_lshl_b32 s71, s62, 2")
    e("s_add_u32 s67, s67, s71")
    e("s_lshr_b32 s71, s60, 1")
    e("s_add_u32 s67, s67, s71")
    e("s_lshl_b32 s67, s67, 10")
    e(f"s_add_u32 s67, s67, {hex(WS_OF)}")
    e("s_waitcnt lgkmcnt(0)")
    e("v_add_f32 v40, v40, v41")
    e("v_add_f32 v42, v42, v43")
    e("v_add_f32 v40, v40, v42")
    e("v_rcp_f32 v41, v40")
    for i in range(8):
        e(f"v_add_f32 v{8 + i}, v{8 + i}, v{16 + i}")
        e(f"v_add_f32 v{24 + i}, v{24 + i}, v{32 + i}")
        e(f"v_add_f32 v{8 + i}, v{8 + i}, v{24 + i}")
    e("v_mul_f32 v42, 0, v8")
    for i in range(1, 8):
        e(f"v_fma_f32 v42, v{8 + i}, 0, v42")
    e("v_add_f32 v42, v42, v40")
    e("v_mov_b32 v43, 0x37800000")
    e("v_mov_b32 v44, 0x5f800000")
    e("v_cmp_nle_f32 vcc, v43, v42")
    e("v_cmp_nle_f32 s[72:73], v42, v44")
    for i in range(8):
        e(f"v_mul_f32 v{8 + i}, v41, v{8 + i}")
    e("s_or_b64 vcc, vcc, s[72:73]")
    for c in range(4):
        e(f"v_cvt_pk_bf16_f32 v{16 + c}, v{8 + 2 * c}, v{9 + 2 * c}")
    e("buffer_store_dwordx4 v[16:19], v4, s[44:47], s67 offen sc1")
    e("s_cmp_eq_u64 vcc, 0")
    e("s_cbranch_scc1 K2_NOFAIL")
    e("v_mov_b32 v6, 1")
    e(f"v_mov_b32 v7, {L_CNT + 4}")
    e("ds_write_b32 v7, v6")
    e.label("K2_NOFAIL")
    e("s_waitcnt vmcnt(0) lgkmcnt(0)")
    e("s_barrier")
    e("s_cmp_lg_u32 s63, 0")
    e("s_cbranch_scc1 K2_POST")
    e(f"v_mov_b32 v7, {L_CNT + 4}")
    e("ds_read_b32 v6, v7")
    e("s_waitcnt lgkmcnt(0)")
    e("v_readfirstlane_b32 s67, v6")
    e("s_nop 3")
    e("s_cmp_lg_u32 s67, 0")
    e("s_cbranch_scc1 K2_SLOW")
    e.label("K2_POST")
    e("s_cmp_ge_u32 s60, 4")
    e("s_cbranch_scc1 K2_H2")
    e("s_cmp_lg_u32 s60, 0")
    e("s_cbranch_scc1 K2_NOSIG")
    e("s_lshl_b32 s67, s61, 2")
    e("v_mov_b32 v6, s67")
    e("v_mov_b32 v7, 1")
    e("s_mov_b64 exec, 1")
    e("global_atomic_add v6, v7, s[16:17] sc1")
    e("s_mov_b64 exec, -1")
    e.label("K2_NOSIG")
    e("s_lshr_b32 s71, s60, 1")
    e("s_and_b32 s72, s60, 1")
    e("s_lshl_b32 s73, s61, 6")
    e("s_lshl_b32 s67, s71, 5")
    e("s_add_u32 s73, s73, s67")
    e("v_add_u32 v8, s73, v2")
    e("v_lshlrev_b32 v9, 10, v8")
    e("v_lshl_add_u32 v9, v3, 6, v9")
    e("s_lshl_b32 s74, s62, 7")
    e("s_lshl_b32 s67, s72, 5")
    e("s_add_u32 s74, s74, s67")
    e("buffer_load_dwordx4 v[16:19], v9, s[20:23], s74 offen")
    e("buffer_load_dwordx4 v[20:23], v9, s[20:23], s74 offen offset:16")
    e("v_lshlrev_b32 v10, 3, v8")
    e(f"s_mov_b32 s67, {hex(WS_STATS)}")
    e("buffer_load_dwordx2 v[12:13], v10, s[44:47], s67 offen")
    e(f"v_mov_b32 v7, {L_SEL}")
    e("ds_read_b64 v[14:15], v7")
    for i in range(16):
        e(f"v_mov_b32 v{64 + i}, 0")
    e("s_waitcnt lgkmcnt(0)")
    e("v_lshlrev_b32 v11, 7, v3")
    e("s_lshl_b32 s67, s72, 6")
    e("v_add_u32 v11, s67, v11")
    for sl in range(2):
        e(f"v_cmp_eq_u32 vcc, v{14 + sl}, v8")
        e("s_and_saveexec_b64 s[76:77], vcc")
        e(f"s_cbranch_execz K2_NOY{sl}")
        for i in range(4):
            e(f"ds_read_b128 {vr(64 + 4 * i, 4)}, v11 offset:{L_Y + sl * 256 + i * 16}")
        e("s_waitcnt lgkmcnt(0)")
        e.label(f"K2_NOY{sl}")
        e("s_mov_b64 exec, -1")
    e("s_waitcnt vmcnt(0)")
    e("v_rcp_f32 v13, v13")
    for dw in range(8):
        e(f"v_lshlrev_b32 v{32 + 2 * dw}, 16, v{16 + dw}")
        e(f"v_and_b32 v{33 + 2 * dw}, 0xffff0000, v{16 + dw}")
    for dw in range(8):
        a, b = 48 + 2 * dw, 49 + 2 * dw
        e(f"v_sub_f32 v{a}, v{32 + 2 * dw}, v12")
        e(f"v_sub_f32 v{b}, v{33 + 2 * dw}, v12")
        e(f"v_cvt_pk_bf16_f32 v24, v{a}, v{b}")
        e(f"v_lshlrev_b32 v{a}, 16, v24")
        e(f"v_and_b32 v{b}, 0xffff0000, v24")
        e(f"v_mul_f32 v{a}, v13, v{a}")
        e(f"v_mul_f32 v{b}, v13, v{b}")
        e(f"v_cvt_pk_bf16_f32 v24, v{a}, v{b}")
        e(f"v_lshlrev_b32 v{a}, 16, v24")
        e(f"v_and_b32 v{b}, 0xffff0000, v24")
        e(f"v_add_f32 v{a}, v{a}, v{64 + 2 * dw}")
        e(f"v_add_f32 v{b}, v{b}, v{65 + 2 * dw}")
        e(f"v_cvt_pk_bf16_f32 v24, v{a}, v{b}")
        e(f"v_lshlrev_b32 v{a}, 16, v24")
        e(f"v_and_b32 v{b}, 0xffff0000, v24")
        e(f"v_mul_f32 v25, {hex(NLOG2E)}, v{a}")
        e(f"v_mul_f32 v26, {hex(NLOG2E)}, v{b}")
        e("v_exp_f32 v25, v25")
        e("v_exp_f32 v26, v26")
        e("s_nop 0")
        e("v_add_f32 v25, 1.0, v25")
        e("v_add_f32 v26, 1.0, v26")
        e("v_rcp_f32 v25, v25")
        e("v_rcp_f32 v26, v26")
        e("s_nop 0")
        e(f"v_mul_f32 v{a}, v25, v{a}")
        e(f"v_mul_f32 v{b}, v26, v{b}")
        e(f"v_cvt_pk_bf16_f32 v24, v{a}, v{b}")
        e(f"v_lshlrev_b32 v{a}, 16, v24")
        e(f"v_and_b32 v{b}, 0xffff0000, v24")
    e("s_lshl_b32 s67, s71, 13")
    e("s_lshl_b32 s75, s72, 11")
    e("s_add_u32 s67, s67, s75")
    e(f"s_add_u32 s67, s67, {L_REDB}")
    e("v_add_u32 v10, s67, v4")
    e("s_barrier")
    AR = lambda hq, nt, gi: 64 + ((hq * 2 + nt) * 2 + gi) * 4
    for hq in range(4):
        for nt in range(2):
            for gi in range(2):
                e(f"ds_read_b128 {vr(AR(hq, nt, gi), 4)}, v10 offset:{L_RED + hq * 16384 + nt * 4096 + gi * 1024}")
        if hq == 2:
            e("s_waitcnt lgkmcnt(4)")
    e("s_waitcnt lgkmcnt(0)")
    for gi in range(2):
        for c in range(4):
            dw = gi * 4 + c
            for nt in range(2):
                a = AR(0, nt, gi) + c
                e(f"v_add_f32 v{a}, v{a}, v{AR(1, nt, gi) + c}")
                e(f"v_add_f32 v{AR(2, nt, gi) + c}, v{AR(2, nt, gi) + c}, v{AR(3, nt, gi) + c}")
                e(f"v_add_f32 v{a}, v{a}, v{AR(2, nt, gi) + c}")
                e(f"v_fma_f32 v{a}, v{a}, v{48 + 2 * dw + nt}, v{32 + 2 * dw + nt}")
            e(f"v_cvt_pk_bf16_f32 v{16 + dw}, v{AR(0, 0, gi) + c}, v{AR(0, 1, gi) + c}")
    e("buffer_store_dwordx4 v[16:19], v9, s[40:43], s74 offen")
    e("buffer_store_dwordx4 v[20:23], v9, s[40:43], s74 offen offset:16")
    e("s_endpgm")

    e.label("K2_SLOW")
    e("s_mov_b32 s63, 1")
    e("s_cmp_ge_u32 s60, 4")
    e("s_cbranch_scc1 K2_SLOW_H")
    e.vm = []
    init_v()
    load_q()
    MXR = 8
    for q in range(8):
        e(f"v_mov_b32 v{MXR + q}, 0xff7fffff")
    for r in range(128, 256):
        e(f"v_mov_b32 v{r}, 0")
    e("s_mov_b32 s69, s68")
    e("s_mov_b32 s70, 16")
    e.label("K2_SLOW_P1")
    e.vmem(f"buffer_load_dwordx4 {vr(KB[0], 4)}, v4, s[44:47], s69 offen", "k")
    e.vwait(None)
    for q in range(8):
        mfma32(e, S[0], KB[0], Q(q))
        e("s_nop 15")
        for i in range(8):
            e(f"v_max3_f32 v{MXR + q}, v{S[0] + 2 * i}, v{S[0] + 2 * i + 1}, v{MXR + q}")
    e("s_add_u32 s69, s69, 2048")
    e("s_sub_u32 s70, s70, 1")
    e("s_cmp_lg_u32 s70, 0")
    e("s_cbranch_scc1 K2_SLOW_P1")
    for q in range(8):
        e(f"v_mov_b32 v16, v{MXR + q}")
        e("s_nop 1")
        e(f"v_permlane32_swap_b32 v{MXR + q}, v16")
        e("s_nop 1")
        e(f"v_max_f32 v{MXR + q}, v{MXR + q}, v16")
    e("s_lshl_b32 s67, s60, 10")
    e("v_lshl_add_u32 v6, v2, 2, s67")
    for q in range(8):
        e(f"ds_write_b32 v6, v{MXR + q} offset:{L_MX + q * 128}")
    e("s_waitcnt lgkmcnt(0)")
    e("s_barrier")
    e("v_lshlrev_b32 v6, 2, v2")
    for q in range(8):
        for wp in range(4):
            e(f"ds_read_b32 v{16 + wp}, v6 offset:{L_MX + wp * 1024 + q * 128}")
        e("s_waitcnt lgkmcnt(0)")
        e(f"v_max3_f32 v{MXR + q}, v16, v17, v18")
        e(f"v_max_f32 v{MXR + q}, v{MXR + q}, v19")
    e("s_mov_b32 s69, s68")
    e("s_mov_b32 s70, 16")
    e.label("K2_SLOW_P2")
    load_kv(0, "s69", 0, "s")
    e.vwait(None)
    for q in range(8):
        mfma32(e, S[0], KB[0], Q(q))
        e("s_nop 15")
        for i in range(16):
            e(f"v_sub_f32 v{S[0] + i}, v{S[0] + i}, v{MXR + q}")
        for i in range(16):
            e(f"v_exp_f32 v{S[0] + i}, v{S[0] + i}")
        e("s_nop 0")
        for c in range(8):
            e(f"v_cvt_pk_bf16_f32 v{P + c}, v{S[0] + 2 * c}, v{S[0] + 2 * c + 1}")
        e("s_nop 1")
        mfma32(e, ACC(q), VB[0], P, ACC(q))
        mfma32(e, ACC(q), VB[0] + 4, P + 4, ACC(q))
    e("s_add_u32 s69, s69, 2048")
    e("s_sub_u32 s70, s70, 1")
    e("s_cmp_lg_u32 s70, 0")
    e("s_cbranch_scc1 K2_SLOW_P2")
    e("s_branch K2_DUMP")
    e.label("K2_SLOW_H")
    e("s_barrier")
    e("s_branch K2_BAR1")

    e.label("K2_H")
    e.vm = []
    e("s_setprio 2")
    e("s_sub_u32 s66, s60, 4")
    e("v_and_b32 v8, 15, v1")
    e("v_lshrrev_b32 v9, 4, v1")
    e("v_lshlrev_b32 v6, 3, v1")
    e(f"s_mov_b32 s67, {hex(WS_KEYS)}")
    e.vmem("buffer_load_dwordx2 v[10:11], v6, s[44:47], s67 offen", "keys")
    e("s_lshl_b32 s67, s57, 2")
    e("s_add_u32 s67, s67, s66")
    e("s_lshl_b32 s67, s67, 10")
    e(f"s_add_u32 s67, s67, {hex(WS_KV)}")
    e.vmem("buffer_load_dwordx4 v[12:15], v4, s[44:47], s67 offen", "warm")
    e("s_cmp_lg_u32 s66, 0")
    e("s_cbranch_scc1 K2_H_NOINIT")
    e("v_mov_b32 v6, 0")
    e("v_mov_b32 v7, 0")
    e(f"v_mov_b32 v16, {L_CNT}")
    e("ds_write_b64 v16, v[6:7]")
    e("s_waitcnt lgkmcnt(0)")
    e.label("K2_H_NOINIT")
    GR = lambda m, ks, i: 64 + m * 32 + ks * 8 + i
    DR = lambda i: 128 + 4 * i
    e("s_movk_i32 s67, 3584")
    e("v_mul_lo_u32 v16, v9, s67")
    e("v_lshlrev_b32 v16, 3, v16")
    e("v_lshl_add_u32 v16, v8, 2, v16")
    e(f"s_mul_i32 s68, s66, {128 * 3584}")
    e("s_lshl_b32 s67, s2, 6")
    e("s_add_u32 s68, s68, s67")
    e("v_lshlrev_b32 v17, 13, v9")
    e("v_lshl_add_u32 v17, v8, 4, v17")
    e("s_lshl_b32 s69, s2, 15")
    e("s_lshl_b32 s67, s66, 8")
    e("s_add_u32 s69, s69, s67")
    e(f"s_cmp_ge_u32 s2, {NFFN}")
    e("s_cbranch_scc1 K2_H_NOFFN0")
    vm_save = list(e.vm)

    def gu_loads(m):
        for ks in range(4):
            for i in range(8):
                e(f"s_add_u32 s67, s68, {(32 * ks + i) * 3584}")
                e.vmem(f"buffer_load_dword v{GR(m, ks, i)}, v16, s[{28 + 4 * m}:{31 + 4 * m}], s67 offen", ("gu", m))
    gu_loads(0)
    for i in range(8):
        if i == 4:
            e("s_add_u32 s69, s69, 4096")
        e.vmem(f"buffer_load_dwordx4 {vr(DR(i), 4)}, v17, s[36:39], s69 offen offset:{(i & 3) * 1024}", "down")
    e.label("K2_H_NOFFN0")
    e("s_barrier")
    e(f"s_cmp_ge_u32 s2, {NFFN}")
    e("s_cbranch_scc1 K2_H_W0")
    e("s_waitcnt vmcnt(41)")
    e("s_branch K2_H_W1")
    e.label("K2_H_W0")
    e("s_waitcnt vmcnt(1)")
    e.label("K2_H_W1")
    e.vm = e.vm[1:]
    e("v_mov_b32 v18, v10")
    dpp_umax_reduce(e, 18)
    e("v_readlane_b32 s70, v18, 63")
    e("s_nop 1")
    e("v_cmp_eq_u32 vcc, s70, v10")
    e("s_nop 1")
    e("v_cndmask_b32 v18, v10, v11, vcc")
    dpp_umax_reduce(e, 18)
    e("v_readlane_b32 s71, v18, 63")
    e("s_nop 3")
    e("s_and_b32 s72, s70, 0xffff")
    e("s_sub_u32 s72, 0xffff, s72")
    e("s_and_b32 s73, s71, 0xffff")
    e("s_sub_u32 s73, 0xffff, s73")
    e("s_and_b32 s72, s72, 2047")
    e("s_and_b32 s73, s73, 2047")
    e("s_cmp_lg_u32 s66, 0")
    e("s_cbranch_scc1 K2_H_NOSEL")
    e("v_mov_b32 v18, s72")
    e("v_mov_b32 v19, s73")
    e(f"v_mov_b32 v20, {L_SEL}")
    e("ds_write_b64 v20, v[18:19]")
    e.label("K2_H_NOSEL")
    e(f"s_cmp_ge_u32 s2, {NFFN}")
    e("s_cbranch_scc1 K2_H_NOFFN1")
    e("v_mov_b32 v18, s72")
    e("v_mov_b32 v19, s73")
    e("v_cmp_eq_u32 vcc, 0, v3")
    e("s_nop 1")
    e("v_cndmask_b32 v18, v19, v18, vcc")
    e("v_lshlrev_b32 v19, 10, v18")
    e("v_lshl_add_u32 v19, v2, 3, v19")
    e("s_lshl_b32 s67, s66, 8")
    e.vmem("buffer_load_dwordx2 v[20:21], v19, s[20:23], s67 offen", "xs")
    e("v_lshlrev_b32 v19, 3, v18")
    e(f"s_mov_b32 s67, {hex(WS_STATS)}")
    e.vmem("buffer_load_dwordx2 v[22:23], v19, s[44:47], s67 offen", "xs")
    e.vwait("xs")
    gu_loads(1)
    e("v_rcp_f32 v23, v23")
    for d in range(2):
        e(f"v_lshlrev_b32 v24, 16, v{20 + d}")
        e(f"v_and_b32 v25, 0xffff0000, v{20 + d}")
        e("v_sub_f32 v24, v24, v22")
        e("v_sub_f32 v25, v25, v22")
        e("v_cvt_pk_bf16_f32 v26, v24, v25")
        e("v_lshlrev_b32 v24, 16, v26")
        e("v_and_b32 v25, 0xffff0000, v26")
        e("v_mul_f32 v24, v23, v24")
        e("v_mul_f32 v25, v23, v25")
        e(f"v_cvt_pk_bf16_f32 v{20 + d}, v24, v25")
    e("s_lshl_b32 s67, s66, 9")
    e("v_lshlrev_b32 v19, 8, v3")
    e("v_lshl_add_u32 v19, v2, 3, v19")
    e("v_add_u32 v19, s67, v19")
    e(f"ds_write_b64 v19, v[20:21] offset:{L_XS}")
    e("v_and_b32 v19, 1, v8")
    e("v_lshlrev_b32 v19, 8, v19")
    e("v_lshl_add_u32 v19, v9, 4, v19")
    e("v_add_u32 v19, s67, v19")
    e("s_waitcnt lgkmcnt(0)")
    XB = lambda ks: 24 + 4 * ks
    for ks in range(4):
        e(f"ds_read_b128 {vr(XB(ks), 4)}, v19 offset:{L_XS + 64 * ks}")
    e("s_waitcnt lgkmcnt(0)")
    FA = [40, 44]
    DG = lambda m, t: 48 + (m * 2 + t) * 4
    for m in range(2):
        if m == 1:
            e.vwait(("gu", 1))
        for ks in range(4):
            for c in range(4):
                e(f"v_perm_b32 v{FA[0] + c}, v{GR(m, ks, 2 * c + 1)}, v{GR(m, ks, 2 * c)}, s64")
                e(f"v_perm_b32 v{FA[1] + c}, v{GR(m, ks, 2 * c + 1)}, v{GR(m, ks, 2 * c)}, s65")
            e("s_nop 1")
            for t in range(2):
                mfma16(e, DG(m, t), FA[t], XB(ks), None if ks == 0 else DG(m, t))
    e("s_lshl_b32 s67, s66, 12")
    e("v_add_u32 v19, s67, v4")
    e("s_nop 7")
    for mt in range(4):
        e(f"ds_write_b128 v19, {vr(48 + 4 * mt, 4)} offset:{L_FP + mt * 1024}")
    e("s_waitcnt lgkmcnt(0)")
    e(f"v_mov_b32 v18, {L_CNT}")
    e("v_mov_b32 v19, 1")
    e("s_mov_b64 exec, 1")
    e("ds_add_u32 v18, v19")
    e("s_mov_b64 exec, -1")
    DF = lambda ee: 64 + 4 * ee
    for ee in range(8):
        for c in range(4):
            e(f"v_perm_b32 v{DF(ee) + c}, v{DR(2 * c + 1) + ee // 2}, v{DR(2 * c) + ee // 2}, s{64 + (ee & 1)}")
    e.label("K2_H_SPIN1")
    e("ds_read_b32 v19, v18")
    e("s_waitcnt lgkmcnt(0)")
    e("v_readfirstlane_b32 s67, v19")
    e("s_nop 3")
    e("s_cmp_ge_u32 s67, 4")
    e("s_cbranch_scc1 K2_H_SPIN1_DONE")
    e("s_sleep 1")
    e("s_branch K2_H_SPIN1")
    e.label("K2_H_SPIN1_DONE")
    for wp in range(4):
        for mt in range(4):
            e(f"ds_read_b128 {vr(96 + (wp * 4 + mt) * 4, 4)}, v4 offset:{L_FP + wp * 4096 + mt * 1024}")
        if wp == 2:
            e("s_waitcnt lgkmcnt(4)")
    e("s_waitcnt lgkmcnt(0)")
    for i in range(16):
        e(f"v_add_f32 v{96 + i}, v{96 + i}, v{112 + i}")
        e(f"v_add_f32 v{128 + i}, v{128 + i}, v{144 + i}")
        e(f"v_add_f32 v{96 + i}, v{96 + i}, v{128 + i}")
    for r in range(4):
        g0, g1, u0, u1 = 96 + r, 100 + r, 104 + r, 108 + r
        e(f"v_cvt_pk_bf16_f32 v24, v{g0}, v{g1}")
        e(f"v_cvt_pk_bf16_f32 v25, v{u0}, v{u1}")
        e(f"v_lshlrev_b32 v{g0}, 16, v24")
        e(f"v_and_b32 v{g1}, 0xffff0000, v24")
        e(f"v_lshlrev_b32 v{u0}, 16, v25")
        e(f"v_and_b32 v{u1}, 0xffff0000, v25")
        e(f"v_mul_f32 v24, {hex(NLOG2E)}, v{g0}")
        e(f"v_mul_f32 v25, {hex(NLOG2E)}, v{g1}")
        e("v_exp_f32 v24, v24")
        e("v_exp_f32 v25, v25")
        e("s_nop 0")
        e("v_add_f32 v24, 1.0, v24")
        e("v_add_f32 v25, 1.0, v25")
        e("v_rcp_f32 v24, v24")
        e("v_rcp_f32 v25, v25")
        e("s_nop 0")
        e(f"v_mul_f32 v{g0}, v24, v{g0}")
        e(f"v_mul_f32 v{g1}, v25, v{g1}")
        e(f"v_cvt_pk_bf16_f32 v24, v{g0}, v{g1}")
        e(f"v_lshlrev_b32 v{g0}, 16, v24")
        e(f"v_and_b32 v{g1}, 0xffff0000, v24")
        e(f"v_mul_f32 v{g0}, v{g0}, v{u0}")
        e(f"v_mul_f32 v{g1}, v{g1}, v{u1}")
        e(f"v_cvt_pk_bf16_f32 v{40 + r}, v{g0}, v{g1}")
    e("s_nop 1")
    for ee in range(8):
        mfma16(e, 96 + 4 * ee, DF(ee), 40)
    e("v_lshlrev_b32 v19, 11, v8")
    e("v_lshl_add_u32 v19, v9, 7, v19")
    e("s_lshl_b32 s67, s2, 12")
    e("s_lshl_b32 s74, s66, 9")
    e("s_add_u32 s67, s67, s74")
    e(f"s_add_u32 s67, s67, {hex(WS_YP)}")
    e("s_mov_b32 exec_lo, 0x00030003")
    e("s_mov_b32 exec_hi, 0x00030003")
    e("s_nop 7")
    for ee in range(8):
        e(f"buffer_store_dwordx4 {vr(96 + 4 * ee, 4)}, v19, s[44:47], s67 offen offset:{16 * ee} sc1")
    e("s_waitcnt vmcnt(0)")
    e("s_mov_b64 exec, 1")
    e("v_mov_b32 v18, 128")
    e("v_mov_b32 v19, 1")
    e("global_atomic_add v18, v19, s[16:17] sc1")
    e("s_mov_b64 exec, -1")
    e.label("K2_H_NOFFN1")
    e("s_waitcnt vmcnt(0)")
    e.vm = []
    e("v_bfe_u32 v16, v2, 2, 1")
    e("v_lshlrev_b32 v16, 4, v16")
    e("v_lshrrev_b32 v17, 3, v2")
    e("v_lshl_add_u32 v16, v17, 2, v16")
    e("v_and_b32 v17, 3, v2")
    e("v_add_u32 v16, v16, v17")
    e("v_lshlrev_b32 v16, 2, v16")
    e("v_lshl_add_u32 v16, v3, 12, v16")
    e("s_lshl_b32 s68, s66, 17")
    e("s_lshl_b32 s67, s62, 7")
    e("s_add_u32 s68, s68, s67")
    WOF = lambda hd, nt: 160 + (hd * 2 + nt) * 4
    WR_ = lambda hd, i: 64 + hd * 8 + i
    for hd in range(8):
        if hd == 7:
            e.vwait(("wo", 0))
        for half in range(2):
            e(f"s_add_u32 s67, s68, {(16 * hd + 8 * half) * 1024}")
            for i in range(4):
                e.vmem(f"buffer_load_dword v{WR_(hd, 4 * half + i)}, v16, s[24:27], s67 offen offset:{i * 1024}", ("wo", hd))
    for hd in range(8):
        if hd > 0:
            e.vwait(("wo", hd))
        for c in range(4):
            e(f"v_perm_b32 v{WOF(hd, 0) + c}, v{WR_(hd, 2 * c + 1)}, v{WR_(hd, 2 * c)}, s64")
            e(f"v_perm_b32 v{WOF(hd, 1) + c}, v{WR_(hd, 2 * c + 1)}, v{WR_(hd, 2 * c)}, s65")
    e("s_cmp_ge_u32 s66, 2")
    e("s_cbranch_scc1 K2_H_NOCONS")
    e("s_cmp_eq_u32 s66, 0")
    e("s_cselect_b32 s74, s72, s73")
    e("s_cselect_b32 s75, s70, s71")
    e("s_lshr_b32 s67, s74, 6")
    e("s_cmp_lg_u32 s67, s61")
    e("s_cbranch_scc1 K2_H_NOCONS")
    e("v_mov_b32 v18, 128")
    e("s_mov_b32 s76, 0x100000")
    e.label("K2_H_SPIN2")
    e("global_load_dword v19, v18, s[16:17] sc1")
    e("s_waitcnt vmcnt(0)")
    e("v_readfirstlane_b32 s67, v19")
    e("s_nop 3")
    e(f"s_cmp_ge_u32 s67, {NFFN * 4}")
    e("s_cbranch_scc1 K2_H_SPIN2_DONE")
    e("s_sleep 2")
    e("s_sub_u32 s76, s76, 1")
    e("s_cmp_lg_u32 s76, 0")
    e("s_cbranch_scc1 K2_H_SPIN2")
    e.label("K2_H_SPIN2_DONE")
    e("s_lshl_b32 s67, s66, 11")
    e("s_lshl_b32 s76, s62, 8")
    e("s_add_u32 s67, s67, s76")
    e(f"s_add_u32 s67, s67, {hex(WS_YP)}")
    e("v_lshlrev_b32 v18, 2, v1")
    for p in range(NFFN):
        e(f"buffer_load_dword v{64 + p}, v18, s[44:47], s67 offen sc1")
        e("s_add_u32 s67, s67, 4096")
    e("s_waitcnt vmcnt(0)")
    for p in range(1, NFFN):
        e(f"v_add_f32 v64, v64, v{64 + p}")
    rbf(e, 64, 64)
    e("s_and_b32 s75, s75, 0xffff0000")
    e("s_cmp_lt_i32 s75, 0")
    e("s_mov_b32 s77, 0xffff0000")
    e("s_cselect_b32 s76, 0x80000000, s77")
    e("s_xor_b32 s75, s75, s76")
    e("v_mov_b32 v19, s75")
    e(f"v_mul_f32 v19, {hex(NLOG2E)}, v19")
    e("v_exp_f32 v19, v19")
    e("s_nop 0")
    e("v_add_f32 v19, 1.0, v19")
    e("v_rcp_f32 v19, v19")
    e("s_nop 0")
    rbf(e, 19, 19)
    e("v_mul_f32 v64, v64, v19")
    rbf(e, 64, 64)
    e("v_and_b32 v18, 3, v1")
    e("v_lshlrev_b32 v18, 3, v18")
    e("v_bfe_u32 v19, v1, 2, 3")
    e("v_add_u32 v18, v18, v19")
    e("v_lshl_add_u32 v18, v3, 5, v18")
    e("v_lshlrev_b32 v18, 2, v18")
    e("s_lshl_b32 s67, s66, 8")
    e("v_add_u32 v18, s67, v18")
    e(f"ds_write_b32 v18, v64 offset:{L_Y}")
    e.label("K2_H_NOCONS")
    e("s_waitcnt lgkmcnt(0)")
    e("s_setprio 0")
    e("s_branch K2_BAR1")

    e.label("K2_H2")
    e("s_lshl_b32 s67, s61, 2")
    e("v_mov_b32 v18, s67")
    e("s_mov_b32 s76, 0x100000")
    e("s_lshl_b32 s68, s61, 16")
    e("s_lshl_b32 s67, s66, 13")
    e("s_add_u32 s68, s68, s67")
    e(f"s_add_u32 s68, s68, {hex(WS_OF)}")
    e.label("K2_H_SPIN3")
    e("global_load_dword v19, v18, s[16:17] sc1")
    e("s_waitcnt vmcnt(0)")
    e("v_readfirstlane_b32 s67, v19")
    e("s_nop 3")
    e("s_cmp_ge_u32 s67, 8")
    e("s_cbranch_scc1 K2_H_SPIN3_DONE")
    e("s_sleep 1")
    e("s_sub_u32 s76, s76, 1")
    e("s_cmp_lg_u32 s76, 0")
    e("s_cbranch_scc1 K2_H_SPIN3")
    e.label("K2_H_SPIN3_DONE")
    OFR = lambda tt, hd: 8 + (tt * 8 + hd) * 4
    OA = lambda tt, nt: 96 + (tt * 2 + nt) * 16
    for hd in range(8):
        for tt in range(2):
            e(f"s_add_u32 s67, s68, {tt * 32768 + (hd & 4) * 1024}")
            e.vmem(f"buffer_load_dwordx4 {vr(OFR(tt, hd), 4)}, v4, s[44:47], s67 offen offset:{(hd & 3) * 1024} sc1", ("o", hd))
    for hd in range(8):
        e.vwait(("o", hd))
        for tt in range(2):
            for nt in range(2):
                mfma32(e, OA(tt, nt), WOF(hd, nt), OFR(tt, hd), None if hd == 0 else OA(tt, nt))
    e("s_lshl_b32 s67, s66, 14")
    e(f"s_add_u32 s67, s67, {L_REDB}")
    e("v_add_u32 v6, s67, v4")
    e("s_nop 15")
    for tt in range(2):
        for nt in range(2):
            for rq in range(4):
                e(f"ds_write_b128 v6, {vr(OA(tt, nt) + 4 * rq, 4)} offset:{L_RED + ((tt * 2 + nt) * 4 + rq) * 1024}")
            e("s_waitcnt lgkmcnt(8)")
    e("s_waitcnt lgkmcnt(0)")
    e("s_barrier")
    e.label("K2_END")
    e("s_endpgm")
    return kn, 256, LDS_SIZE


def kd(name, nv, ns=96):
    return f""".p2align 6
.amdhsa_kernel {name}
  .amdhsa_next_free_vgpr {nv}
  .amdhsa_next_free_sgpr {ns}
  .amdhsa_accum_offset {(nv + 3) // 4 * 4}
  .amdhsa_group_segment_fixed_size 0
  .amdhsa_kernarg_size 104
  .amdhsa_user_sgpr_count 2
  .amdhsa_user_sgpr_kernarg_segment_ptr 1
  .amdhsa_system_sgpr_workgroup_id_x 1
  .amdhsa_float_denorm_mode_32 3
.end_amdhsa_kernel
"""


def main():
    e = Asm()
    k1, nv1, lds1 = gen_k1(e)
    k2, nv2, lds2 = gen_k2(e)
    head = f"""; MQA attention + mixture-of-depths FFN, generated by gen/gen.py (hand-written generator)
; @launch kernel={k1} grid=(320,1,1) block=(256,1,1) lds={lds1}
; @launch kernel={k2} grid=(256,1,1) block=(512,1,1) lds={lds2}
.amdgcn_target "amdgcn-amd-amdhsa--gfx950"
.text
"""
    tail = '.section .rodata,"a"\n' + kd(k1, nv1) + kd(k2, nv2)
    out = sys.argv[1] if len(sys.argv) > 1 else f"cdna_kernels/{NAME}.s"
    with open(out, "w") as f:
        f.write(head + e.text() + tail)


if __name__ == "__main__":
    main()
```

```python
import sys

NAME = "recurrent_scan__grouped_kv_mqa__moe_arch_mod__prompt"

WS_QF = 0x000000
WS_KV = 0x200000
WS_KEYS = 0x220000
WS_STATS = 0x221000
WS_OF = 0x300000
WS_YP = 0x500000
WS_SIZE = 0x600000

QSCALE = 0x3eb8aa3b
NLOG2E = 0xbfb8aa3b
ONES = 0x3f803f80
EPS = 0x3727c5ac
INV512 = 0x3b000000

PROF = "--prof" in sys.argv
XNOH = "--xnoh" in sys.argv
XPRIO0 = "--xprio0" in sys.argv
WS_PROF = 0x580000
NFFN = 56


class Asm:
    def __init__(self):
        self.lines = []
        self.vm = []

    def __call__(self, s):
        self.lines.append("    " + s)

    def label(self, l):
        self.lines.append(l + ":")

    def c(self, s):
        self.lines.append("    ; " + s)

    def raw(self, s):
        self.lines.append(s)

    def vmem(self, s, tag=None):
        self(s)
        self.vm.append(tag)
        assert len(self.vm) <= 63, "too many outstanding vmem ops"

    def vwait(self, tag=None):
        if tag is None:
            self("s_waitcnt vmcnt(0)")
            self.vm = []
            return
        idx = max(i for i, t in enumerate(self.vm) if t == tag)
        n = len(self.vm) - 1 - idx
        self(f"s_waitcnt vmcnt({n})")
        self.vm = self.vm[idx + 1:]

    def text(self):
        return "\n".join(self.lines) + "\n"


def stamp(e, i):
    if not PROF:
        return
    e("s_memrealtime s[78:79]")
    e("s_waitcnt lgkmcnt(0)")
    e(f"s_mov_b32 s{80 + i}, s78")


def cstamp(e, i):
    if not PROF:
        return
    e("s_memtime s[78:79]")
    e("s_waitcnt lgkmcnt(0)")
    e(f"s_mov_b32 s{80 + i}, s78")


def stamp_flush(e, kidx, wsrd, wave_sgpr):
    if not PROF:
        return
    stamp(e, 11)
    e("s_mov_b64 exec, 1")
    e(f"s_lshl_b32 s78, s2, 3")
    e(f"s_add_u32 s78, s78, s{wave_sgpr}")
    e(f"s_lshl_b32 s78, s78, 6")
    e(f"s_add_u32 s78, s78, {hex(WS_PROF + kidx * 320 * 8 * 64)}")
    e("v_mov_b32 v220, 0")
    for b in range(3):
        for i in range(4):
            e(f"v_mov_b32 v{216 + i}, s{80 + 4 * b + i}")
        e(f"buffer_store_dwordx4 v[216:219], v220, s[{wsrd}:{wsrd + 3}], s78 offen offset:{16 * b}")
        e("s_nop 1")


def vr(a, n=1):
    return f"v{a}" if n == 1 else f"v[{a}:{a + n - 1}]"


def sr(a, n=1):
    return f"s{a}" if n == 1 else f"s[{a}:{a + n - 1}]"


def srd(e, d, base, size):
    e(f"s_mov_b32 s{d}, s{base}")
    e(f"s_and_b32 s{d + 1}, s{base + 1}, 0xffff")
    e(f"s_mov_b32 s{d + 2}, {hex(size)}")
    e(f"s_mov_b32 s{d + 3}, 0x00020000")


def rbf(e, d, s):
    e(f"v_cvt_pk_bf16_f32 v{d}, v{s}, v{s}")
    e(f"v_and_b32 v{d}, 0xffff0000, v{d}")


def mfma32(e, d, a, b, c=None):
    cs = "0" if c is None else vr(c, 16)
    e(f"v_mfma_f32_32x32x16_bf16 {vr(d, 16)}, {vr(a, 4)}, {vr(b, 4)}, {cs}")


def mfma16(e, d, a, b, c=None):
    cs = "0" if c is None else vr(c, 4)
    e(f"v_mfma_f32_16x16x32_bf16 {vr(d, 4)}, {vr(a, 4)}, {vr(b, 4)}, {cs}")


def dpp_umax_reduce(e, v):
    for mod in ("row_shr:1 row_mask:0xf bank_mask:0xf bound_ctrl:0",
                "row_shr:2 row_mask:0xf bank_mask:0xf bound_ctrl:0",
                "row_shr:4 row_mask:0xf bank_mask:0xf bound_ctrl:0",
                "row_shr:8 row_mask:0xf bank_mask:0xf bound_ctrl:0",
                "row_bcast:15 row_mask:0xa bank_mask:0xf",
                "row_bcast:31 row_mask:0xc bank_mask:0xf"):
        e("s_nop 1")
        e(f"v_max_u32_dpp v{v}, v{v}, v{v} {mod}")
    e("s_nop 1")


def token_stats(e, sx, sq, mb, db, inv, t0, t1):
    e(f"v_mul_f32 v{t0}, {hex(INV512)}, v{sx}")
    e(f"v_mul_f32 v{t1}, {hex(INV512)}, v{sq}")
    rbf(e, mb, t0)
    e(f"v_fma_f32 v{t1}, -v{t0}, v{t0}, v{t1}")
    e(f"v_max_f32 v{t1}, 0, v{t1}")
    rbf(e, t1, t1)
    e(f"v_add_f32 v{t1}, {hex(EPS)}, v{t1}")
    rbf(e, t1, t1)
    e(f"v_sqrt_f32 v{t1}, v{t1}")
    e("s_nop 0")
    rbf(e, db, t1)
    e(f"v_rcp_f32 v{inv}, v{db}")
    e("s_nop 0")


def gen_k1(e):
    kn = "mqa_proj_kernel"
    e.raw(".p2align 8")
    e.raw(f".globl {kn}")
    e.raw(f".type {kn},@function")
    e.label(kn)
    e("s_cmp_ge_u32 s2, 320")
    e("s_cbranch_scc1 K1_END")
    if PROF:
        for i in range(12):
            e(f"s_mov_b32 s{80 + i}, 0")
    stamp(e, 0)
    e("s_load_dwordx4 s[4:7], s[0:1], 0")
    e("s_load_dwordx4 s[8:11], s[0:1], 16")
    e("s_load_dwordx2 s[12:13], s[0:1], 48")
    e("s_load_dwordx2 s[14:15], s[0:1], 96")
    e("v_and_b32 v1, 63, v0")
    e("v_lshrrev_b32 v6, 6, v0")
    e("v_and_b32 v2, 31, v1")
    e("v_lshrrev_b32 v3, 5, v1")
    e("v_readfirstlane_b32 s38, v6")
    e("s_mov_b32 s40, 0x05040100")
    e("s_mov_b32 s41, 0x07060302")
    e(f"v_mov_b32 v158, {hex(ONES)}")
    e("v_lshlrev_b32 v4, 10, v2")
    e("v_lshl_add_u32 v4, v3, 4, v4")
    e("s_waitcnt lgkmcnt(0)")
    stamp(e, 1)
    srd(e, 16, 4, 2048 * 512 * 2)
    srd(e, 20, 6, 512 * 512 * 2)
    srd(e, 24, 14, WS_SIZE)
    srd(e, 28, 12, 512 * 2)
    e("s_and_b32 s33, s2, 7")
    e("s_cmp_ge_u32 s2, 256")
    e("s_cbranch_scc1 K1_KV")

    X = lambda tt, ks: 16 + (tt * 8 + ks) * 4
    R = lambda ks, i: 80 + ks * 8 + i
    F = [144, 148]
    SX, SQ, CS = [152, 153], [154, 155], [156, 157]
    ACC = lambda tt, ct: 160 + (tt * 2 + ct) * 16
    L_STAT, L_CSP, L_CSUM, L_ACC = 0, 4096, 4096 + 2048, 8192
    e("s_lshr_b32 s34, s2, 3")
    e("s_lshr_b32 s35, s34, 3")
    e("s_lshl_b32 s36, s33, 2")
    e("s_add_u32 s36, s36, s35")
    e("s_and_b32 s37, s34, 7")
    e("s_lshl_b32 s42, s36, 16")
    e("s_lshl_b32 s39, s38, 8")
    e("s_add_u32 s42, s42, s39")
    e("s_add_u32 s43, s42, 32768")
    e("s_lshl_b32 s44, s38, 17")
    e("s_lshl_b32 s39, s37, 7")
    e("s_add_u32 s44, s44, s39")
    e("v_lshlrev_b32 v5, 13, v3")
    e("v_lshl_add_u32 v5, v2, 2, v5")
    for r in SX + SQ + CS:
        e(f"v_mov_b32 v{r}, 0")

    def q_loads(ks):
        e.vmem(f"buffer_load_dwordx4 {vr(X(0, ks), 4)}, v4, s[16:19], s42 offen offset:{32 * ks}", ("k", ks))
        e.vmem(f"buffer_load_dwordx4 {vr(X(1, ks), 4)}, v4, s[16:19], s43 offen offset:{32 * ks}", ("k", ks))
        for half in range(2):
            s = 45 + half
            e(f"s_add_u32 s{s}, s44, {(16 * ks + 4 * half) * 1024}")
            for i in range(4):
                e.vmem(f"buffer_load_dword v{R(ks, 4 * half + i)}, v5, s[20:23], s{s} offen offset:{i * 1024}", ("k", ks))

    for ks in range(6):
        q_loads(ks)
    for ks in range(8):
        e.vwait(("k", ks))
        if ks == 0:
            stamp(e, 2)
        if ks + 6 < 8:
            q_loads(ks + 6)
        for c in range(4):
            e(f"v_perm_b32 v{F[0] + c}, v{R(ks, 2 * c + 1)}, v{R(ks, 2 * c)}, s40")
            e(f"v_perm_b32 v{F[1] + c}, v{R(ks, 2 * c + 1)}, v{R(ks, 2 * c)}, s41")
        for tt in range(2):
            for c in range(4):
                e(f"v_dot2_f32_bf16 v{SX[tt]}, v{X(tt, ks) + c}, v158, v{SX[tt]}")
                e(f"v_dot2_f32_bf16 v{SQ[tt]}, v{X(tt, ks) + c}, v{X(tt, ks) + c}, v{SQ[tt]}")
            for ct in range(2):
                mfma32(e, ACC(tt, ct), F[ct], X(tt, ks), None if ks == 0 else ACC(tt, ct))
        for ct in range(2):
            for c in range(4):
                e(f"v_dot2_f32_bf16 v{CS[ct]}, v{F[ct] + c}, v158, v{CS[ct]}")
    stamp(e, 3)
    e("v_lshlrev_b32 v6, 4, v1")
    e("s_lshl_b32 s39, s38, 14")
    e("v_add_u32 v7, s39, v6")
    e("s_lshl_b32 s39, s38, 3")
    e("v_lshlrev_b32 v8, 5, v2")
    e("v_lshl_add_u32 v8, v3, 2, v8")
    e("v_add_u32 v8, s39, v8")
    e("s_nop 3")
    for q, regs in enumerate((SX, SQ)):
        for tt in range(2):
            e(f"ds_write_b32 v8, v{regs[tt]} offset:{L_STAT + (q * 2 + tt) * 1024}")
    for ct in range(2):
        e(f"ds_write_b32 v8, v{CS[ct]} offset:{L_CSP + ct * 1024}")
    e("s_nop 7")
    for tt in range(2):
        for ct in range(2):
            for rq in range(4):
                e(f"ds_write_b128 v7, {vr(ACC(tt, ct) + 4 * rq, 4)} offset:{L_ACC + ((tt * 2 + ct) * 4 + rq) * 1024}")
            e("s_waitcnt lgkmcnt(8)")
    e("s_waitcnt lgkmcnt(0)")
    e("s_barrier")
    stamp(e, 4)
    e("s_lshr_b32 s46, s38, 1")
    e("s_and_b32 s47, s38, 1")
    e("s_lshl_b32 s39, s46, 10")
    e("v_lshlrev_b32 v8, 5, v2")
    e("v_add_u32 v8, s39, v8")
    e(f"ds_read_b128 v[16:19], v8 offset:{L_STAT}")
    e(f"ds_read_b128 v[20:23], v8 offset:{L_STAT + 16}")
    e(f"ds_read_b128 v[24:27], v8 offset:{L_STAT + 2048}")
    e(f"ds_read_b128 v[28:31], v8 offset:{L_STAT + 2048 + 16}")
    e("v_lshlrev_b32 v9, 5, v1")
    e(f"ds_read_b128 v[32:35], v9 offset:{L_CSP}")
    e(f"ds_read_b128 v[36:39], v9 offset:{L_CSP + 16}")
    e("s_lshl_b32 s39, s46, 13")
    e("s_lshl_b32 s48, s47, 11")
    e("s_add_u32 s39, s39, s48")
    e("v_add_u32 v10, s39, v6")
    AR = lambda wp, ct, gi: 80 + ((wp * 2 + ct) * 2 + gi) * 4
    for wp in range(2):
        for ct in range(2):
            for gi in range(2):
                e(f"ds_read_b128 {vr(AR(wp, ct, gi), 4)}, v10 offset:{L_ACC + wp * 16384 + ct * 4096 + gi * 1024}")
    e("s_waitcnt lgkmcnt(8)")
    e("v_add_f32 v32, v32, v33")
    e("v_add_f32 v34, v34, v35")
    e("v_add_f32 v36, v36, v37")
    e("v_add_f32 v38, v38, v39")
    e("v_add_f32 v32, v32, v34")
    e("v_add_f32 v36, v36, v38")
    e("v_add_f32 v32, v32, v36")
    e("s_lshl_b32 s39, s38, 8")
    e("v_lshl_add_u32 v11, v1, 2, s39")
    e(f"ds_write_b32 v11, v32 offset:{L_CSUM}")
    e("s_waitcnt lgkmcnt(5)")
    for wp in range(2, 4):
        for ct in range(2):
            for gi in range(2):
                e(f"ds_read_b128 {vr(AR(wp, ct, gi), 4)}, v10 offset:{L_ACC + wp * 16384 + ct * 4096 + gi * 1024}")
    for base in (16, 24):
        e(f"v_add_f32 v{base}, v{base}, v{base + 1}")
        e(f"v_add_f32 v{base + 2}, v{base + 2}, v{base + 3}")
        e(f"v_add_f32 v{base + 4}, v{base + 4}, v{base + 5}")
        e(f"v_add_f32 v{base + 6}, v{base + 6}, v{base + 7}")
        e(f"v_add_f32 v{base}, v{base}, v{base + 2}")
        e(f"v_add_f32 v{base + 4}, v{base + 4}, v{base + 6}")
        e(f"v_add_f32 v{base}, v{base}, v{base + 4}")
    token_stats(e, 16, 24, 40, 41, 42, 43, 44)
    e(f"v_mul_f32 v42, {hex(QSCALE)}, v42")
    e("s_waitcnt lgkmcnt(0)")
    e("s_lshl_b32 s48, s47, 6")
    e("s_add_u32 s39, s39, s48")
    e("v_lshl_add_u32 v11, v3, 4, s39")
    CSR = lambda ct, gi: 48 + (ct * 2 + gi) * 4
    for ct in range(2):
        for gi in range(2):
            e(f"ds_read_b128 {vr(CSR(ct, gi), 4)}, v11 offset:{L_CSUM + ct * 128 + gi * 32}")
    for ct in range(2):
        for gi in range(2):
            for c in range(4):
                a = AR(0, ct, gi) + c
                e(f"v_add_f32 v{a}, v{a}, v{AR(1, ct, gi) + c}")
                e(f"v_add_f32 v{AR(2, ct, gi) + c}, v{AR(2, ct, gi) + c}, v{AR(3, ct, gi) + c}")
                e(f"v_add_f32 v{a}, v{a}, v{AR(2, ct, gi) + c}")
    e("s_waitcnt lgkmcnt(0)")
    for ct in range(2):
        for gi in range(2):
            for c in range(4):
                a = AR(0, ct, gi) + c
                e(f"v_fma_f32 v{a}, -v40, v{CSR(ct, gi) + c}, v{a}")
                e(f"v_mul_f32 v{a}, v42, v{a}")
    for gi in range(2):
        for c in range(4):
            e(f"v_cvt_pk_bf16_f32 v{64 + gi * 4 + c}, v{AR(0, 0, gi) + c}, v{AR(0, 1, gi) + c}")
    e("s_lshl_b32 s39, s37, 2")
    e("s_lshl_b32 s48, s47, 1")
    e("s_add_u32 s39, s39, s48")
    e("s_lshl_b32 s39, s39, 6")
    e("s_lshl_b32 s48, s36, 1")
    e("s_add_u32 s39, s39, s48")
    e("s_add_u32 s39, s39, s46")
    e("s_lshl_b32 s39, s39, 10")
    e("s_add_u32 s48, s39, 65536")
    e(f"buffer_store_dwordx4 v[64:67], v6, s[24:27], s39 offen")
    e(f"buffer_store_dwordx4 v[68:71], v6, s[24:27], s48 offen")
    stamp_flush(e, 0, 24, 38)
    e("s_endpgm")
    e.vm = []

    e.label("K1_KV")
    XK = lambda ks: 16 + ks * 4
    WR = lambda ks: 48 + ks * 4
    FK = 144
    sx, sq, srr, cs, csr = 152, 153, 154, 155, 156
    AK, AV = 160, 176
    L_AK, L_AV, L_ST, L_CP, L_CR, L_PRIV = 0, 8192, 24576, 24576 + 3072, 24576 + 4096, 24576 + 4096 + 64
    e("s_sub_u32 s34, s2, 256")
    e("s_lshr_b32 s34, s34, 3")
    e("s_lshl_b32 s36, s33, 3")
    e("s_add_u32 s36, s36, s34")
    e("s_lshl_b32 s42, s36, 15")
    e("s_lshl_b32 s39, s38, 8")
    e("s_add_u32 s42, s42, s39")
    e("v_bfe_u32 v5, v2, 2, 1")
    e("v_lshlrev_b32 v5, 3, v5")
    e("v_bfe_u32 v6, v2, 3, 1")
    e("v_lshl_add_u32 v5, v6, 2, v5")
    e("v_and_b32 v6, 3, v2")
    e("v_add_u32 v5, v5, v6")
    e("v_and_b32 v6, 15, v2")
    e("v_cmp_gt_u32 vcc, 16, v2")
    e("v_mov_b32 v8, s10")
    e("v_mov_b32 v9, s11")
    e("v_mov_b32 v10, s8")
    e("v_mov_b32 v11, s9")
    e("v_cndmask_b32 v5, v6, v5, vcc")
    e("v_cndmask_b32 v8, v8, v10, vcc")
    e("v_cndmask_b32 v9, v9, v11, vcc")
    e("v_lshlrev_b32 v5, 1, v5")
    e("v_lshl_add_u32 v5, v3, 8, v5")
    e("s_lshl_b32 s43, s38, 12")
    e("v_add_u32 v5, s43, v5")
    e("v_add_co_u32 v8, vcc, v8, v5")
    e("s_nop 1")
    e("v_addc_co_u32 v9, vcc, 0, v9, vcc")
    e("v_lshlrev_b32 v12, 4, v3")
    for r in (sx, sq, srr, cs, csr):
        e(f"v_mov_b32 v{r}, 0")

    def kv_loads(ks):
        e.vmem(f"buffer_load_dwordx4 {vr(XK(ks), 4)}, v4, s[16:19], s42 offen offset:{32 * ks}", ("k", ks))
        e.vmem(f"buffer_load_dwordx4 {vr(WR(ks), 4)}, v12, s[28:31], s39 offen offset:{32 * ks}", ("k", ks))
        for i in range(8):
            e.vmem(f"global_load_ushort v{R(ks, i)}, v[8:9], off offset:{(16 * ks + i) * 32}", ("k", ks))

    for ks in range(6):
        kv_loads(ks)
    for ks in range(8):
        e.vwait(("k", ks))
        if ks == 0:
            stamp(e, 2)
        if ks + 6 < 8:
            kv_loads(ks + 6)
        for c in range(4):
            e(f"v_perm_b32 v{FK + c}, v{R(ks, 2 * c + 1)}, v{R(ks, 2 * c)}, s40")
        for c in range(4):
            e(f"v_dot2_f32_bf16 v{sx}, v{XK(ks) + c}, v158, v{sx}")
            e(f"v_dot2_f32_bf16 v{sq}, v{XK(ks) + c}, v{XK(ks) + c}, v{sq}")
            e(f"v_dot2_f32_bf16 v{srr}, v{XK(ks) + c}, v{WR(ks) + c}, v{srr}")
        mfma32(e, AK, FK, XK(ks), None if ks == 0 else AK)
        for c in range(4):
            e(f"v_dot2_f32_bf16 v{cs}, v{FK + c}, v158, v{cs}")
            e(f"v_dot2_f32_bf16 v{csr}, v{WR(ks) + c}, v158, v{csr}")
        mfma32(e, AV, XK(ks), FK, None if ks == 0 else AV)
    stamp(e, 3)
    e("v_lshlrev_b32 v6, 4, v1")
    e("s_lshl_b32 s43, s38, 11")
    e("v_add_u32 v7, s43, v6")
    e("s_lshl_b32 s43, s38, 12")
    e("v_add_u32 v13, s43, v6")
    e("s_lshl_b32 s43, s38, 3")
    e("v_lshlrev_b32 v8, 5, v2")
    e("v_lshl_add_u32 v8, v3, 2, v8")
    e("v_add_u32 v8, s43, v8")
    e("v_lshlrev_b32 v9, 2, v3")
    e("v_add_u32 v9, s43, v9")
    e("s_nop 3")
    for q, r in enumerate((sx, sq, srr)):
        e(f"ds_write_b32 v8, v{r} offset:{L_ST + q * 1024}")
    e(f"ds_write_b32 v8, v{cs} offset:{L_CP}")
    e(f"ds_write_b32 v9, v{csr} offset:{L_CR}")
    e("s_nop 7")
    for rq in range(2):
        e(f"ds_write_b128 v7, {vr(AK + 4 * rq, 4)} offset:{L_AK + rq * 1024}")
    for rq in range(4):
        e(f"ds_write_b128 v13, {vr(AV + 4 * rq, 4)} offset:{L_AV + rq * 1024}")
    e("s_waitcnt lgkmcnt(0)")
    e("s_barrier")
    stamp(e, 4)
    e("v_lshlrev_b32 v8, 5, v2")
    for q in range(3):
        e(f"ds_read_b128 {vr(16 + q * 8, 4)}, v8 offset:{L_ST + q * 1024}")
        e(f"ds_read_b128 {vr(20 + q * 8, 4)}, v8 offset:{L_ST + q * 1024 + 16}")
    e(f"ds_read_b128 v[40:43], v8 offset:{L_CP}")
    e(f"ds_read_b128 v[44:47], v8 offset:{L_CP + 16}")
    e("v_mov_b32 v9, 0")
    e(f"ds_read_b128 v[48:51], v9 offset:{L_CR}")
    e(f"ds_read_b128 v[52:55], v9 offset:{L_CR + 16}")
    e("s_waitcnt lgkmcnt(0)")
    for base in (16, 24, 32, 40, 48):
        e(f"v_add_f32 v{base}, v{base}, v{base + 1}")
        e(f"v_add_f32 v{base + 2}, v{base + 2}, v{base + 3}")
        e(f"v_add_f32 v{base + 4}, v{base + 4}, v{base + 5}")
        e(f"v_add_f32 v{base + 6}, v{base + 6}, v{base + 7}")
        e(f"v_add_f32 v{base}, v{base}, v{base + 2}")
        e(f"v_add_f32 v{base + 4}, v{base + 4}, v{base + 6}")
        e(f"v_add_f32 v{base}, v{base}, v{base + 4}")
    MB, DB, INV = 56, 57, 58
    token_stats(e, 16, 24, MB, DB, INV, 59, 60)
    e("s_mul_i32 s43, s38, 384")
    e("v_lshl_add_u32 v9, v2, 2, s43")
    e(f"ds_write_b32 v9, v40 offset:{L_PRIV}")
    e(f"ds_write_b32 v9, v{MB} offset:{L_PRIV + 128}")
    e(f"ds_write_b32 v9, v{INV} offset:{L_PRIV + 256}")
    e("v_lshl_add_u32 v9, v3, 4, s43")
    e("s_lshl_b32 s44, s36, 11")
    e(f"s_add_u32 s44, s44, {WS_KV}")
    e("s_cmp_eq_u32 s38, 0")
    e("s_cbranch_scc1 K1_KV_K")
    e("s_cmp_eq_u32 s38, 3")
    e("s_cbranch_scc1 K1_KV_R")
    e("s_sub_u32 s45, s38, 1")
    e("s_lshl_b32 s46, s45, 11")
    e("v_add_u32 v10, s46, v6")
    for wp in range(4):
        for rr in range(2):
            e(f"ds_read_b128 {vr(80 + (wp * 2 + rr) * 4, 4)}, v10 offset:{L_AV + wp * 4096 + rr * 1024}")
    e("s_lshl_b32 s46, s45, 6")
    e("v_add_u32 v11, s46, v9")
    for rr in range(2):
        e(f"ds_read_b128 {vr(64 + rr * 4, 4)}, v11 offset:{L_PRIV + 128 + rr * 32}")
        e(f"ds_read_b128 {vr(72 + rr * 4, 4)}, v11 offset:{L_PRIV + 256 + rr * 32}")
    e("s_waitcnt lgkmcnt(0)")
    for i in range(8):
        a = 80 + i
        e(f"v_add_f32 v{a}, v{a}, v{a + 8}")
        e(f"v_add_f32 v{a + 16}, v{a + 16}, v{a + 24}")
        e(f"v_add_f32 v{a}, v{a}, v{a + 16}")
        e(f"v_fma_f32 v{a}, -v{64 + i}, v40, v{a}")
        e(f"v_mul_f32 v{a}, v{72 + i}, v{a}")
    for c in range(4):
        e(f"v_cvt_pk_bf16_f32 v{112 + c}, v{80 + 2 * c}, v{81 + 2 * c}")
    e("v_and_b32 v10, 15, v2")
    e("v_lshlrev_b32 v10, 4, v10")
    e("v_lshl_add_u32 v10, v3, 8, v10")
    e("s_lshl_b32 s46, s45, 9")
    e("s_add_u32 s46, s46, s44")
    e("s_mov_b32 exec_lo, 0xffff0000")
    e("s_mov_b32 exec_hi, 0xffff0000")
    e("buffer_store_dwordx4 v[112:115], v10, s[24:27], s46 offen offset:1024")
    stamp_flush(e, 0, 24, 38)
    e("s_endpgm")
    e.label("K1_KV_K")
    for wp in range(4):
        for rr in range(2):
            e(f"ds_read_b128 {vr(80 + (wp * 2 + rr) * 4, 4)}, v6 offset:{L_AK + wp * 2048 + rr * 1024}")
    for rr in range(2):
        e(f"ds_read_b128 {vr(64 + rr * 4, 4)}, v9 offset:{L_PRIV + rr * 32}")
    e("s_waitcnt lgkmcnt(0)")
    for i in range(8):
        a = 80 + i
        e(f"v_add_f32 v{a}, v{a}, v{a + 8}")
        e(f"v_add_f32 v{a + 16}, v{a + 16}, v{a + 24}")
        e(f"v_add_f32 v{a}, v{a}, v{a + 16}")
        e(f"v_fma_f32 v{a}, -v{MB}, v{64 + i}, v{a}")
        e(f"v_mul_f32 v{a}, v{INV}, v{a}")
    for c in range(4):
        e(f"v_cvt_pk_bf16_f32 v{112 + c}, v{80 + 2 * c}, v{81 + 2 * c}")
    e("buffer_store_dwordx4 v[112:115], v6, s[24:27], s44 offen")
    stamp_flush(e, 0, 24, 38)
    e("s_endpgm")
    e.label("K1_KV_R")
    e(f"v_fma_f32 v32, -v{MB}, v48, v32")
    e(f"v_mul_f32 v32, v{INV}, v32")
    rbf(e, 32, 32)
    e("v_ashrrev_i32 v33, 31, v32")
    e("v_or_b32 v33, 0x80000000, v33")
    e("v_xor_b32 v32, v32, v33")
    e("v_and_b32 v32, 0xffff0000, v32")
    e("s_lshl_b32 s45, s36, 5")
    e("v_add_u32 v34, s45, v2")
    e("v_sub_u32 v33, 0xffff, v34")
    e("v_or_b32 v32, v32, v33")
    e("v_cmp_eq_u32 vcc, 0, v3")
    e("s_nop 1")
    e("v_cndmask_b32 v32, 0, v32, vcc")
    e("v_mov_b32 v35, v32")
    dpp_umax_reduce(e, 35)
    e("v_readlane_b32 s46, v35, 63")
    e("s_nop 1")
    e("v_cmp_ne_u32 vcc, s46, v32")
    e("s_nop 1")
    e("v_cndmask_b32 v35, 0, v32, vcc")
    dpp_umax_reduce(e, 35)
    e("v_readlane_b32 s47, v35, 63")
    e("s_nop 1")
    e("v_mov_b32 v36, s46")
    e("v_mov_b32 v37, s47")
    e("v_lshlrev_b32 v38, 3, v34")
    e("s_mov_b32 exec_hi, 0")
    e(f"s_mov_b32 s48, {hex(WS_STATS)}")
    e(f"buffer_store_dwordx2 v[{MB}:{DB}], v38, s[24:27], s48 offen")
    e("s_lshl_b32 s48, s36, 3")
    e(f"s_add_u32 s48, s48, {hex(WS_KEYS)}")
    e("v_mov_b32 v39, 0")
    e("s_mov_b32 exec_lo, 1")
    e("buffer_store_dwordx2 v[36:37], v39, s[24:27], s48 offen")
    stamp_flush(e, 0, 24, 38)
    e.label("K1_END")
    e("s_endpgm")
    e.vm = []
    return kn, 224, 73 * 1024


def gen_k2(e):
    kn = "mqa_attn_kernel"
    L_XS = 0
    L_FP = L_XS + 2048
    L_Y = L_FP + 16384
    L_SEL = L_Y + 512
    L_CNT = L_SEL + 16
    L_MX = L_CNT + 16
    L_REDB = 24576
    assert L_MX + 4096 <= L_REDB
    L_RED = 0
    LDS_SIZE = L_REDB + 73728

    e.raw(".p2align 8")
    e.raw(f".globl {kn}")
    e.raw(f".type {kn},@function")
    e.label(kn)
    e("s_cmp_ge_u32 s2, 256")
    e("s_cbranch_scc1 K2_END")
    if PROF:
        for i in range(12):
            e(f"s_mov_b32 s{80 + i}, 0")
    stamp(e, 0)
    e("s_load_dwordx2 s[4:5], s[0:1], 0")
    e("s_load_dwordx2 s[6:7], s[0:1], 32")
    e("s_load_dwordx4 s[8:11], s[0:1], 56")
    e("s_load_dwordx4 s[12:15], s[0:1], 72")
    e("s_load_dwordx4 s[16:19], s[0:1], 88")
    e("v_and_b32 v1, 63, v0")
    e("v_lshrrev_b32 v6, 6, v0")
    e("v_and_b32 v2, 31, v1")
    e("v_lshrrev_b32 v3, 5, v1")
    e("v_readfirstlane_b32 s60, v6")
    e("v_lshlrev_b32 v4, 4, v1")
    e("s_mov_b32 s64, 0x05040100")
    e("s_mov_b32 s65, 0x07060302")
    e("s_and_b32 s56, s2, 7")
    e("s_lshr_b32 s57, s2, 3")
    e("s_lshr_b32 s58, s57, 3")
    e("s_lshl_b32 s61, s56, 2")
    e("s_add_u32 s61, s61, s58")
    e("s_and_b32 s62, s57, 7")
    e("s_mov_b32 s63, 0")
    e("v_and_b32 v5, 15, v2")
    e("v_lshlrev_b32 v5, 4, v5")
    e("v_lshl_add_u32 v5, v3, 8, v5")
    e("v_add_u32 v5, 1024, v5")
    e("s_waitcnt lgkmcnt(0)")
    stamp(e, 1)
    srd(e, 20, 4, 2048 * 512 * 2)
    srd(e, 24, 6, 512 * 512 * 2)
    srd(e, 28, 8, 512 * 1792 * 2)
    srd(e, 32, 10, 512 * 1792 * 2)
    srd(e, 36, 12, 512 * 1792 * 2)
    srd(e, 40, 14, 2048 * 512 * 2)
    srd(e, 44, 18, WS_SIZE)
    e("s_cmp_ge_u32 s60, 4")
    e("s_cbranch_scc1 K2_H")

    ACC = lambda q: 128 + 16 * q
    Q = lambda q: 96 + 4 * q
    S = [64, 80]
    P = 56
    KB = [8, 12, 16, 20]
    VB = [24, 32, 40, 48]
    NB = 4
    e("s_lshl_b32 s66, s62, 8")
    e("s_lshl_b32 s67, s61, 1")
    e("s_add_u32 s66, s66, s67")
    e("s_lshl_b32 s66, s66, 10")
    e("s_lshl_b32 s68, s60, 15")
    e(f"s_add_u32 s68, s68, {hex(WS_KV)}")
    e("s_mov_b32 s50, 0x0000ffff")
    e("s_mov_b32 s51, 0x0000ffff")

    def load_q():
        for q in range(8):
            hl, tt = q >> 1, q & 1
            e(f"s_add_u32 s67, s66, {hl * 65536 + tt * 1024}")
            e.vmem(f"buffer_load_dwordx4 {vr(Q(q), 4)}, v4, s[44:47], s67 offen", "q")

    def init_v():
        e("v_and_b32 v6, 27, v2")
        e("v_cmp_eq_u32 vcc, 16, v6")
        e(f"v_mov_b32 v7, {hex(ONES)}")
        e("s_nop 0")
        e("v_cndmask_b32 v7, 0, v7, vcc")
        for r in range(24, 56):
            e(f"v_mov_b32 v{r}, v7")

    def load_kv(buf, soff, imm=0, tag="kv"):
        e.vmem(f"buffer_load_dwordx4 {vr(KB[buf], 4)}, v4, s[44:47], {soff} offen offset:{imm}", tag + "k")
        e("s_mov_b64 exec, s[50:51]")
        e.vmem(f"buffer_load_dwordx4 {vr(VB[buf], 4)}, v5, s[44:47], {soff} offen offset:{imm}", tag + "v")
        e.vmem(f"buffer_load_dwordx4 {vr(VB[buf] + 4, 4)}, v5, s[44:47], {soff} offen offset:{imm + 512}", tag + "v")
        e("s_mov_b64 exec, -1")

    init_v()
    load_kv(0, "s68", 0, "a")
    load_q()
    load_kv(1, "s68", 2048, "b")
    e("s_add_u32 s69, s68, 4096")
    load_kv(2, "s69", 0, "c")
    e("s_add_u32 s69, s69, 2048")
    for r in range(P, P + 8):
        e(f"v_mov_b32 v{r}, 0")
    for r in range(128, 256):
        e(f"v_mov_b32 v{r}, 0")
    e("s_barrier")
    e.vwait("q")
    stamp(e, 2)
    cstamp(e, 8)
    mfma32(e, S[0], KB[0], Q(0))
    e("s_mov_b32 s70, 4")
    e("s_nop 7")
    e("s_nop 2")

    def slot(kb, q):
        t = q
        Sc, Sn = S[t & 1], S[(t + 1) & 1]
        kn, kp = (kb + 1) % NB, (kb - 1) % NB
        if q < 7:
            mfma32(e, Sn, KB[kb], Q(q + 1))
        else:
            mfma32(e, Sn, KB[kn], Q(0))
        for i in range(6):
            e(f"v_exp_f32 v{Sc + i}, v{Sc + i}")
        if q == 0:
            mfma32(e, ACC(7), VB[kp] + 4, P + 4, ACC(7))
        else:
            mfma32(e, ACC(q - 1), VB[kb] + 4, P + 4, ACC(q - 1))
        for i in range(6, 8):
            e(f"v_exp_f32 v{Sc + i}, v{Sc + i}")
        if q == 0:
            load_kv(kp, "s69", 0, "l")
        for c in range(4):
            e(f"v_cvt_pk_bf16_f32 v{P + c}, v{Sc + 2 * c}, v{Sc + 2 * c + 1}")
        e(f"v_exp_f32 v{Sc + 8}, v{Sc + 8}")
        if q == 0:
            e("s_waitcnt vmcnt(9)")
        e(f"v_exp_f32 v{Sc + 9}, v{Sc + 9}")
        mfma32(e, ACC(q), VB[kb], P, ACC(q))
        for i in range(10, 16):
            e(f"v_exp_f32 v{Sc + i}, v{Sc + i}")
            if q == 0 and i == 10:
                e("s_add_u32 s69, s69, 2048")
            if q == 6 and i == 15:
                e("s_waitcnt vmcnt(8)")
        for c in range(4, 8):
            e(f"v_cvt_pk_bf16_f32 v{P + c}, v{Sc + 2 * c}, v{Sc + 2 * c + 1}")

    e.raw(".p2align 6")
    e.label("K2_LOOP")
    for kb in range(NB):
        for q in range(8):
            e.vm = []
            slot(kb, q)
    e("s_sub_u32 s70, s70, 1")
    e("s_cmp_lg_u32 s70, 0")
    e("s_cbranch_scc1 K2_LOOP")
    e("s_nop 1")
    mfma32(e, ACC(7), VB[NB - 1] + 4, P + 4, ACC(7))
    e("s_waitcnt vmcnt(0)")
    e.vm = []

    stamp(e, 3)
    cstamp(e, 9)
    e.label("K2_DUMP")
    e(f"s_mul_i32 s67, s60, {8 * 2304}")
    e(f"s_add_u32 s67, s67, {L_REDB}")
    e("v_add_u32 v6, s67, v4")
    e("v_lshl_add_u32 v7, v1, 2, s67")
    e("s_nop 15")
    for q in range(8):
        e(f"ds_write_b128 v6, {vr(ACC(q), 4)} offset:{L_RED + q * 2304}")
        e(f"ds_write_b128 v6, {vr(ACC(q) + 4, 4)} offset:{L_RED + q * 2304 + 1024}")
        e(f"ds_write_b32 v7, v{ACC(q) + 8} offset:{L_RED + q * 2304 + 2048}")
        if q >= 3:
            e("s_waitcnt lgkmcnt(9)")
    e("s_waitcnt lgkmcnt(0)")
    e.label("K2_BAR1")
    e("s_barrier")
    stamp(e, 4)
    e("s_mul_i32 s67, s60, 2304")
    e(f"s_add_u32 s67, s67, {L_REDB}")
    e("v_add_u32 v6, s67, v4")
    e("v_lshl_add_u32 v7, v1, 2, s67")
    for wp in range(4):
        e(f"ds_read_b128 {vr(8 + wp * 8, 4)}, v6 offset:{L_RED + wp * 18432}")
        e(f"ds_read_b128 {vr(12 + wp * 8, 4)}, v6 offset:{L_RED + wp * 18432 + 1024}")
        e(f"ds_read_b32 v{40 + wp}, v7 offset:{L_RED + wp * 18432 + 2048}")
    e("s_and_b32 s67, s60, 1")
    e("s_lshl_b32 s71, s61, 1")
    e("s_add_u32 s67, s67, s71")
    e("s_lshl_b32 s67, s67, 5")
    e("s_lshl_b32 s71, s62, 2")
    e("s_add_u32 s67, s67, s71")
    e("s_lshr_b32 s71, s60, 1")
    e("s_add_u32 s67, s67, s71")
    e("s_lshl_b32 s67, s67, 10")
    e(f"s_add_u32 s67, s67, {hex(WS_OF)}")
    e("s_waitcnt lgkmcnt(0)")
    e("v_add_f32 v40, v40, v41")
    e("v_add_f32 v42, v42, v43")
    e("v_add_f32 v40, v40, v42")
    e("v_rcp_f32 v41, v40")
    for i in range(8):
        e(f"v_add_f32 v{8 + i}, v{8 + i}, v{16 + i}")
        e(f"v_add_f32 v{24 + i}, v{24 + i}, v{32 + i}")
        e(f"v_add_f32 v{8 + i}, v{8 + i}, v{24 + i}")
    e("v_mul_f32 v42, 0, v8")
    for i in range(1, 8):
        e(f"v_fma_f32 v42, v{8 + i}, 0, v42")
    e("v_add_f32 v42, v42, v40")
    e("v_mov_b32 v43, 0x37800000")
    e("v_mov_b32 v44, 0x5f800000")
    e("v_cmp_nle_f32 vcc, v43, v42")
    e("v_cmp_nle_f32 s[72:73], v42, v44")
    for i in range(8):
        e(f"v_mul_f32 v{8 + i}, v41, v{8 + i}")
    e("s_or_b64 vcc, vcc, s[72:73]")
    for c in range(4):
        e(f"v_cvt_pk_bf16_f32 v{16 + c}, v{8 + 2 * c}, v{9 + 2 * c}")
    e("buffer_store_dwordx4 v[16:19], v4, s[44:47], s67 offen sc1")
    e("s_cmp_eq_u64 vcc, 0")
    e("s_cbranch_scc1 K2_NOFAIL")
    e("v_mov_b32 v6, 1")
    e(f"v_mov_b32 v7, {L_CNT + 4}")
    e("ds_write_b32 v7, v6")
    e.label("K2_NOFAIL")
    e("s_waitcnt vmcnt(0) lgkmcnt(0)")
    e("s_barrier")
    stamp(e, 5)
    e("s_cmp_lg_u32 s63, 0")
    e("s_cbranch_scc1 K2_POST")
    e(f"v_mov_b32 v7, {L_CNT + 4}")
    e("ds_read_b32 v6, v7")
    e("s_waitcnt lgkmcnt(0)")
    e("v_readfirstlane_b32 s67, v6")
    e("s_nop 3")
    e("s_cmp_lg_u32 s67, 0")
    e("s_cbranch_scc1 K2_SLOW")
    e.label("K2_POST")
    e("s_cmp_ge_u32 s60, 4")
    e("s_cbranch_scc1 K2_H2")
    e("s_cmp_lg_u32 s60, 0")
    e("s_cbranch_scc1 K2_NOSIG")
    e("s_lshl_b32 s67, s61, 2")
    e("v_mov_b32 v6, s67")
    e("v_mov_b32 v7, 1")
    e("s_mov_b64 exec, 1")
    e("global_atomic_add v6, v7, s[16:17] sc1")
    e("s_mov_b64 exec, -1")
    e.label("K2_NOSIG")
    e("s_lshr_b32 s71, s60, 1")
    e("s_and_b32 s72, s60, 1")
    e("s_lshl_b32 s73, s61, 6")
    e("s_lshl_b32 s67, s71, 5")
    e("s_add_u32 s73, s73, s67")
    e("v_add_u32 v8, s73, v2")
    e("v_lshlrev_b32 v9, 10, v8")
    e("v_lshl_add_u32 v9, v3, 6, v9")
    e("s_lshl_b32 s74, s62, 7")
    e("s_lshl_b32 s67, s72, 5")
    e("s_add_u32 s74, s74, s67")
    e("buffer_load_dwordx4 v[16:19], v9, s[20:23], s74 offen")
    e("buffer_load_dwordx4 v[20:23], v9, s[20:23], s74 offen offset:16")
    e("v_lshlrev_b32 v10, 3, v8")
    e(f"s_mov_b32 s67, {hex(WS_STATS)}")
    e("buffer_load_dwordx2 v[12:13], v10, s[44:47], s67 offen")
    e(f"v_mov_b32 v7, {L_SEL}")
    e("ds_read_b64 v[14:15], v7")
    for i in range(16):
        e(f"v_mov_b32 v{64 + i}, 0")
    e("s_waitcnt lgkmcnt(0)")
    e("v_lshlrev_b32 v11, 7, v3")
    e("s_lshl_b32 s67, s72, 6")
    e("v_add_u32 v11, s67, v11")
    for sl in range(2):
        e(f"v_cmp_eq_u32 vcc, v{14 + sl}, v8")
        e("s_and_saveexec_b64 s[76:77], vcc")
        e(f"s_cbranch_execz K2_NOY{sl}")
        for i in range(4):
            e(f"ds_read_b128 {vr(64 + 4 * i, 4)}, v11 offset:{L_Y + sl * 256 + i * 16}")
        e("s_waitcnt lgkmcnt(0)")
        e.label(f"K2_NOY{sl}")
        e("s_mov_b64 exec, -1")
    e("s_waitcnt vmcnt(0)")
    e("v_rcp_f32 v13, v13")
    for dw in range(8):
        e(f"v_lshlrev_b32 v{32 + 2 * dw}, 16, v{16 + dw}")
        e(f"v_and_b32 v{33 + 2 * dw}, 0xffff0000, v{16 + dw}")
    for dw in range(8):
        a, b = 48 + 2 * dw, 49 + 2 * dw
        e(f"v_sub_f32 v{a}, v{32 + 2 * dw}, v12")
        e(f"v_sub_f32 v{b}, v{33 + 2 * dw}, v12")
        e(f"v_cvt_pk_bf16_f32 v24, v{a}, v{b}")
        e(f"v_lshlrev_b32 v{a}, 16, v24")
        e(f"v_and_b32 v{b}, 0xffff0000, v24")
        e(f"v_mul_f32 v{a}, v13, v{a}")
        e(f"v_mul_f32 v{b}, v13, v{b}")
        e(f"v_cvt_pk_bf16_f32 v24, v{a}, v{b}")
        e(f"v_lshlrev_b32 v{a}, 16, v24")
        e(f"v_and_b32 v{b}, 0xffff0000, v24")
        e(f"v_add_f32 v{a}, v{a}, v{64 + 2 * dw}")
        e(f"v_add_f32 v{b}, v{b}, v{65 + 2 * dw}")
        e(f"v_cvt_pk_bf16_f32 v24, v{a}, v{b}")
        e(f"v_lshlrev_b32 v{a}, 16, v24")
        e(f"v_and_b32 v{b}, 0xffff0000, v24")
        e(f"v_mul_f32 v25, {hex(NLOG2E)}, v{a}")
        e(f"v_mul_f32 v26, {hex(NLOG2E)}, v{b}")
        e("v_exp_f32 v25, v25")
        e("v_exp_f32 v26, v26")
        e("s_nop 0")
        e("v_add_f32 v25, 1.0, v25")
        e("v_add_f32 v26, 1.0, v26")
        e("v_rcp_f32 v25, v25")
        e("v_rcp_f32 v26, v26")
        e("s_nop 0")
        e(f"v_mul_f32 v{a}, v25, v{a}")
        e(f"v_mul_f32 v{b}, v26, v{b}")
        e(f"v_cvt_pk_bf16_f32 v24, v{a}, v{b}")
        e(f"v_lshlrev_b32 v{a}, 16, v24")
        e(f"v_and_b32 v{b}, 0xffff0000, v24")
    e("s_lshl_b32 s67, s71, 13")
    e("s_lshl_b32 s75, s72, 11")
    e("s_add_u32 s67, s67, s75")
    e(f"s_add_u32 s67, s67, {L_REDB}")
    e("v_add_u32 v10, s67, v4")
    stamp(e, 6)
    e("s_barrier")
    stamp(e, 7)
    AR = lambda hq, nt, gi: 64 + ((hq * 2 + nt) * 2 + gi) * 4
    for hq in range(4):
        for nt in range(2):
            for gi in range(2):
                e(f"ds_read_b128 {vr(AR(hq, nt, gi), 4)}, v10 offset:{L_RED + hq * 16384 + nt * 4096 + gi * 1024}")
        if hq == 2:
            e("s_waitcnt lgkmcnt(4)")
    e("s_waitcnt lgkmcnt(0)")
    for gi in range(2):
        for c in range(4):
            dw = gi * 4 + c
            for nt in range(2):
                a = AR(0, nt, gi) + c
                e(f"v_add_f32 v{a}, v{a}, v{AR(1, nt, gi) + c}")
                e(f"v_add_f32 v{AR(2, nt, gi) + c}, v{AR(2, nt, gi) + c}, v{AR(3, nt, gi) + c}")
                e(f"v_add_f32 v{a}, v{a}, v{AR(2, nt, gi) + c}")
                e(f"v_fma_f32 v{a}, v{a}, v{48 + 2 * dw + nt}, v{32 + 2 * dw + nt}")
            e(f"v_cvt_pk_bf16_f32 v{16 + dw}, v{AR(0, 0, gi) + c}, v{AR(0, 1, gi) + c}")
    e("buffer_store_dwordx4 v[16:19], v9, s[40:43], s74 offen")
    e("buffer_store_dwordx4 v[20:23], v9, s[40:43], s74 offen offset:16")
    stamp_flush(e, 1, 44, 60)
    e("s_endpgm")

    e.label("K2_SLOW")
    e("s_mov_b32 s63, 1")
    e("s_cmp_ge_u32 s60, 4")
    e("s_cbranch_scc1 K2_SLOW_H")
    e.vm = []
    init_v()
    load_q()
    MXR = 8
    for q in range(8):
        e(f"v_mov_b32 v{MXR + q}, 0xff7fffff")
    for r in range(128, 256):
        e(f"v_mov_b32 v{r}, 0")
    e("s_mov_b32 s69, s68")
    e("s_mov_b32 s70, 16")
    e.label("K2_SLOW_P1")
    e.vmem(f"buffer_load_dwordx4 {vr(KB[3], 4)}, v4, s[44:47], s69 offen", "k")
    e.vwait(None)
    for q in range(8):
        mfma32(e, S[0], KB[3], Q(q))
        e("s_nop 15")
        for i in range(8):
            e(f"v_max3_f32 v{MXR + q}, v{S[0] + 2 * i}, v{S[0] + 2 * i + 1}, v{MXR + q}")
    e("s_add_u32 s69, s69, 2048")
    e("s_sub_u32 s70, s70, 1")
    e("s_cmp_lg_u32 s70, 0")
    e("s_cbranch_scc1 K2_SLOW_P1")
    for q in range(8):
        e(f"v_mov_b32 v16, v{MXR + q}")
        e("s_nop 1")
        e(f"v_permlane32_swap_b32 v{MXR + q}, v16")
        e("s_nop 1")
        e(f"v_max_f32 v{MXR + q}, v{MXR + q}, v16")
    e("s_lshl_b32 s67, s60, 10")
    e("v_lshl_add_u32 v6, v2, 2, s67")
    for q in range(8):
        e(f"ds_write_b32 v6, v{MXR + q} offset:{L_MX + q * 128}")
    e("s_waitcnt lgkmcnt(0)")
    e("s_barrier")
    e("v_lshlrev_b32 v6, 2, v2")
    for q in range(8):
        for wp in range(4):
            e(f"ds_read_b32 v{16 + wp}, v6 offset:{L_MX + wp * 1024 + q * 128}")
        e("s_waitcnt lgkmcnt(0)")
        e(f"v_max3_f32 v{MXR + q}, v16, v17, v18")
        e(f"v_max_f32 v{MXR + q}, v{MXR + q}, v19")
    e("s_mov_b32 s69, s68")
    e("s_mov_b32 s70, 16")
    e.label("K2_SLOW_P2")
    load_kv(3, "s69", 0, "s")
    e.vwait(None)
    for q in range(8):
        mfma32(e, S[0], KB[3], Q(q))
        e("s_nop 15")
        for i in range(16):
            e(f"v_sub_f32 v{S[0] + i}, v{S[0] + i}, v{MXR + q}")
        for i in range(16):
            e(f"v_exp_f32 v{S[0] + i}, v{S[0] + i}")
        e("s_nop 0")
        for c in range(8):
            e(f"v_cvt_pk_bf16_f32 v{P + c}, v{S[0] + 2 * c}, v{S[0] + 2 * c + 1}")
        e("s_nop 1")
        mfma32(e, ACC(q), VB[3], P, ACC(q))
        mfma32(e, ACC(q), VB[3] + 4, P + 4, ACC(q))
    e("s_add_u32 s69, s69, 2048")
    e("s_sub_u32 s70, s70, 1")
    e("s_cmp_lg_u32 s70, 0")
    e("s_cbranch_scc1 K2_SLOW_P2")
    e("s_branch K2_DUMP")
    e.label("K2_SLOW_H")
    e("s_barrier")
    e("s_branch K2_BAR1")

    e.label("K2_H")
    e.vm = []
    if not XPRIO0:
        e("s_setprio 2")
    e("s_sub_u32 s66, s60, 4")
    if XNOH:
        e("v_mov_b32 v6, 0")
        e("v_mov_b32 v7, 0")
        e(f"v_mov_b32 v16, {L_CNT}")
        e("ds_write_b64 v16, v[6:7]")
        e("s_waitcnt lgkmcnt(0)")
        e("s_barrier")
        e("s_branch K2_BAR1")
    e("v_and_b32 v8, 15, v1")
    e("v_lshrrev_b32 v9, 4, v1")
    e("v_lshlrev_b32 v6, 3, v1")
    e(f"s_mov_b32 s67, {hex(WS_KEYS)}")
    e.vmem("buffer_load_dwordx2 v[10:11], v6, s[44:47], s67 offen", "keys")
    e("s_lshl_b32 s67, s57, 2")
    e("s_add_u32 s67, s67, s66")
    e("s_lshl_b32 s67, s67, 10")
    e(f"s_add_u32 s67, s67, {hex(WS_KV)}")
    e.vmem("buffer_load_dwordx4 v[12:15], v4, s[44:47], s67 offen", "warm")
    e("s_cmp_lg_u32 s66, 0")
    e("s_cbranch_scc1 K2_H_NOINIT")
    e("v_mov_b32 v6, 0")
    e("v_mov_b32 v7, 0")
    e(f"v_mov_b32 v16, {L_CNT}")
    e("ds_write_b64 v16, v[6:7]")
    e("s_waitcnt lgkmcnt(0)")
    e.label("K2_H_NOINIT")
    GR = lambda m, ks, i: 64 + m * 32 + ks * 8 + i
    DR = lambda i: 128 + 4 * i
    e("s_movk_i32 s67, 3584")
    e("v_mul_lo_u32 v16, v9, s67")
    e("v_lshlrev_b32 v16, 3, v16")
    e("v_lshl_add_u32 v16, v8, 2, v16")
    e(f"s_mul_i32 s68, s66, {128 * 3584}")
    e("s_lshl_b32 s67, s2, 6")
    e("s_add_u32 s68, s68, s67")
    e("v_lshlrev_b32 v17, 13, v9")
    e("v_lshl_add_u32 v17, v8, 4, v17")
    e("s_lshl_b32 s69, s2, 15")
    e("s_lshl_b32 s67, s66, 8")
    e("s_add_u32 s69, s69, s67")
    e(f"s_cmp_ge_u32 s2, {NFFN}")
    e("s_cbranch_scc1 K2_H_NOFFN0")
    vm_save = list(e.vm)

    def gu_loads(m):
        for ks in range(4):
            for i in range(8):
                e(f"s_add_u32 s67, s68, {(32 * ks + i) * 3584}")
                e.vmem(f"buffer_load_dword v{GR(m, ks, i)}, v16, s[{28 + 4 * m}:{31 + 4 * m}], s67 offen", ("gu", m))
    gu_loads(0)
    for i in range(8):
        if i == 4:
            e("s_add_u32 s69, s69, 4096")
        e.vmem(f"buffer_load_dwordx4 {vr(DR(i), 4)}, v17, s[36:39], s69 offen offset:{(i & 3) * 1024}", "down")
    e.label("K2_H_NOFFN0")
    e("s_barrier")
    e(f"s_cmp_ge_u32 s2, {NFFN}")
    e("s_cbranch_scc1 K2_H_W0")
    e("s_waitcnt vmcnt(41)")
    e("s_branch K2_H_W1")
    e.label("K2_H_W0")
    e("s_waitcnt vmcnt(1)")
    e.label("K2_H_W1")
    e.vm = e.vm[1:]
    e("v_mov_b32 v18, v10")
    dpp_umax_reduce(e, 18)
    e("v_readlane_b32 s70, v18, 63")
    e("s_nop 1")
    e("v_cmp_eq_u32 vcc, s70, v10")
    e("s_nop 1")
    e("v_cndmask_b32 v18, v10, v11, vcc")
    dpp_umax_reduce(e, 18)
    e("v_readlane_b32 s71, v18, 63")
    e("s_nop 3")
    e("s_and_b32 s72, s70, 0xffff")
    e("s_sub_u32 s72, 0xffff, s72")
    e("s_and_b32 s73, s71, 0xffff")
    e("s_sub_u32 s73, 0xffff, s73")
    e("s_and_b32 s72, s72, 2047")
    e("s_and_b32 s73, s73, 2047")
    stamp(e, 2)
    e("s_cmp_lg_u32 s66, 0")
    e("s_cbranch_scc1 K2_H_NOSEL")
    e("v_mov_b32 v18, s72")
    e("v_mov_b32 v19, s73")
    e(f"v_mov_b32 v20, {L_SEL}")
    e("ds_write_b64 v20, v[18:19]")
    e.label("K2_H_NOSEL")
    e(f"s_cmp_ge_u32 s2, {NFFN}")
    e("s_cbranch_scc1 K2_H_NOFFN1")
    e("v_mov_b32 v18, s72")
    e("v_mov_b32 v19, s73")
    e("v_cmp_eq_u32 vcc, 0, v3")
    e("s_nop 1")
    e("v_cndmask_b32 v18, v19, v18, vcc")
    e("v_lshlrev_b32 v19, 10, v18")
    e("v_lshl_add_u32 v19, v2, 3, v19")
    e("s_lshl_b32 s67, s66, 8")
    e.vmem("buffer_load_dwordx2 v[20:21], v19, s[20:23], s67 offen", "xs")
    e("v_lshlrev_b32 v19, 3, v18")
    e(f"s_mov_b32 s67, {hex(WS_STATS)}")
    e.vmem("buffer_load_dwordx2 v[22:23], v19, s[44:47], s67 offen", "xs")
    e.vwait("xs")
    gu_loads(1)
    e("v_rcp_f32 v23, v23")
    for d in range(2):
        e(f"v_lshlrev_b32 v24, 16, v{20 + d}")
        e(f"v_and_b32 v25, 0xffff0000, v{20 + d}")
        e("v_sub_f32 v24, v24, v22")
        e("v_sub_f32 v25, v25, v22")
        e("v_cvt_pk_bf16_f32 v26, v24, v25")
        e("v_lshlrev_b32 v24, 16, v26")
        e("v_and_b32 v25, 0xffff0000, v26")
        e("v_mul_f32 v24, v23, v24")
        e("v_mul_f32 v25, v23, v25")
        e(f"v_cvt_pk_bf16_f32 v{20 + d}, v24, v25")
    e("s_lshl_b32 s67, s66, 9")
    e("v_lshlrev_b32 v19, 8, v3")
    e("v_lshl_add_u32 v19, v2, 3, v19")
    e("v_add_u32 v19, s67, v19")
    e(f"ds_write_b64 v19, v[20:21] offset:{L_XS}")
    e("v_and_b32 v19, 1, v8")
    e("v_lshlrev_b32 v19, 8, v19")
    e("v_lshl_add_u32 v19, v9, 4, v19")
    e("v_add_u32 v19, s67, v19")
    e("s_waitcnt lgkmcnt(0)")
    XB = lambda ks: 24 + 4 * ks
    for ks in range(4):
        e(f"ds_read_b128 {vr(XB(ks), 4)}, v19 offset:{L_XS + 64 * ks}")
    e("s_waitcnt lgkmcnt(0)")
    FA = [40, 44]
    DG = lambda m, t: 48 + (m * 2 + t) * 4
    for m in range(2):
        if m == 1:
            e.vwait(("gu", 1))
        for ks in range(4):
            for c in range(4):
                e(f"v_perm_b32 v{FA[0] + c}, v{GR(m, ks, 2 * c + 1)}, v{GR(m, ks, 2 * c)}, s64")
                e(f"v_perm_b32 v{FA[1] + c}, v{GR(m, ks, 2 * c + 1)}, v{GR(m, ks, 2 * c)}, s65")
            e("s_nop 1")
            for t in range(2):
                mfma16(e, DG(m, t), FA[t], XB(ks), None if ks == 0 else DG(m, t))
    e("s_lshl_b32 s67, s66, 12")
    e("v_add_u32 v19, s67, v4")
    e("s_nop 7")
    for mt in range(4):
        e(f"ds_write_b128 v19, {vr(48 + 4 * mt, 4)} offset:{L_FP + mt * 1024}")
    e("s_waitcnt lgkmcnt(0)")
    e(f"v_mov_b32 v18, {L_CNT}")
    e("v_mov_b32 v19, 1")
    e("s_mov_b64 exec, 1")
    e("ds_add_u32 v18, v19")
    e("s_mov_b64 exec, -1")
    DF = lambda ee: 64 + 4 * ee
    for ee in range(8):
        for c in range(4):
            e(f"v_perm_b32 v{DF(ee) + c}, v{DR(2 * c + 1) + ee // 2}, v{DR(2 * c) + ee // 2}, s{64 + (ee & 1)}")
    e.label("K2_H_SPIN1")
    e("ds_read_b32 v19, v18")
    e("s_waitcnt lgkmcnt(0)")
    e("v_readfirstlane_b32 s67, v19")
    e("s_nop 3")
    e("s_cmp_ge_u32 s67, 4")
    e("s_cbranch_scc1 K2_H_SPIN1_DONE")
    e("s_sleep 1")
    e("s_branch K2_H_SPIN1")
    e.label("K2_H_SPIN1_DONE")
    for wp in range(4):
        for mt in range(4):
            e(f"ds_read_b128 {vr(96 + (wp * 4 + mt) * 4, 4)}, v4 offset:{L_FP + wp * 4096 + mt * 1024}")
        if wp == 2:
            e("s_waitcnt lgkmcnt(4)")
    e("s_waitcnt lgkmcnt(0)")
    for i in range(16):
        e(f"v_add_f32 v{96 + i}, v{96 + i}, v{112 + i}")
        e(f"v_add_f32 v{128 + i}, v{128 + i}, v{144 + i}")
        e(f"v_add_f32 v{96 + i}, v{96 + i}, v{128 + i}")
    for r in range(4):
        g0, g1, u0, u1 = 96 + r, 100 + r, 104 + r, 108 + r
        e(f"v_cvt_pk_bf16_f32 v24, v{g0}, v{g1}")
        e(f"v_cvt_pk_bf16_f32 v25, v{u0}, v{u1}")
        e(f"v_lshlrev_b32 v{g0}, 16, v24")
        e(f"v_and_b32 v{g1}, 0xffff0000, v24")
        e(f"v_lshlrev_b32 v{u0}, 16, v25")
        e(f"v_and_b32 v{u1}, 0xffff0000, v25")
        e(f"v_mul_f32 v24, {hex(NLOG2E)}, v{g0}")
        e(f"v_mul_f32 v25, {hex(NLOG2E)}, v{g1}")
        e("v_exp_f32 v24, v24")
        e("v_exp_f32 v25, v25")
        e("s_nop 0")
        e("v_add_f32 v24, 1.0, v24")
        e("v_add_f32 v25, 1.0, v25")
        e("v_rcp_f32 v24, v24")
        e("v_rcp_f32 v25, v25")
        e("s_nop 0")
        e(f"v_mul_f32 v{g0}, v24, v{g0}")
        e(f"v_mul_f32 v{g1}, v25, v{g1}")
        e(f"v_cvt_pk_bf16_f32 v24, v{g0}, v{g1}")
        e(f"v_lshlrev_b32 v{g0}, 16, v24")
        e(f"v_and_b32 v{g1}, 0xffff0000, v24")
        e(f"v_mul_f32 v{g0}, v{g0}, v{u0}")
        e(f"v_mul_f32 v{g1}, v{g1}, v{u1}")
        e(f"v_cvt_pk_bf16_f32 v{40 + r}, v{g0}, v{g1}")
    e("s_nop 1")
    for ee in range(8):
        mfma16(e, 96 + 4 * ee, DF(ee), 40)
    e("v_lshlrev_b32 v19, 11, v8")
    e("v_lshl_add_u32 v19, v9, 7, v19")
    e("s_lshl_b32 s67, s2, 12")
    e("s_lshl_b32 s74, s66, 9")
    e("s_add_u32 s67, s67, s74")
    e(f"s_add_u32 s67, s67, {hex(WS_YP)}")
    e("s_mov_b32 exec_lo, 0x00030003")
    e("s_mov_b32 exec_hi, 0x00030003")
    e("s_nop 7")
    for ee in range(8):
        e(f"buffer_store_dwordx4 {vr(96 + 4 * ee, 4)}, v19, s[44:47], s67 offen offset:{16 * ee} sc1")
    e("s_waitcnt vmcnt(0)")
    e("s_mov_b64 exec, 1")
    e("v_mov_b32 v18, 128")
    e("v_mov_b32 v19, 1")
    e("global_atomic_add v18, v19, s[16:17] sc1")
    e("s_mov_b64 exec, -1")
    e.label("K2_H_NOFFN1")
    e("s_waitcnt vmcnt(0)")
    stamp(e, 3)
    e.vm = []
    e("v_bfe_u32 v16, v2, 2, 1")
    e("v_lshlrev_b32 v16, 4, v16")
    e("v_lshrrev_b32 v17, 3, v2")
    e("v_lshl_add_u32 v16, v17, 2, v16")
    e("v_and_b32 v17, 3, v2")
    e("v_add_u32 v16, v16, v17")
    e("v_lshlrev_b32 v16, 2, v16")
    e("v_lshl_add_u32 v16, v3, 12, v16")
    e("s_lshl_b32 s68, s66, 17")
    e("s_lshl_b32 s67, s62, 7")
    e("s_add_u32 s68, s68, s67")
    WOF = lambda hd, nt: 160 + (hd * 2 + nt) * 4
    WR_ = lambda hd, i: 64 + hd * 8 + i
    for hd in range(8):
        if hd == 7:
            e.vwait(("wo", 0))
        for half in range(2):
            e(f"s_add_u32 s67, s68, {(16 * hd + 8 * half) * 1024}")
            for i in range(4):
                e.vmem(f"buffer_load_dword v{WR_(hd, 4 * half + i)}, v16, s[24:27], s67 offen offset:{i * 1024}", ("wo", hd))
    for hd in range(8):
        if hd > 0:
            e.vwait(("wo", hd))
        for c in range(4):
            e(f"v_perm_b32 v{WOF(hd, 0) + c}, v{WR_(hd, 2 * c + 1)}, v{WR_(hd, 2 * c)}, s64")
            e(f"v_perm_b32 v{WOF(hd, 1) + c}, v{WR_(hd, 2 * c + 1)}, v{WR_(hd, 2 * c)}, s65")
    stamp(e, 8)
    e("s_cmp_ge_u32 s66, 2")
    e("s_cbranch_scc1 K2_H_NOCONS")
    e("s_cmp_eq_u32 s66, 0")
    e("s_cselect_b32 s74, s72, s73")
    e("s_cselect_b32 s75, s70, s71")
    e("s_lshr_b32 s67, s74, 6")
    e("s_cmp_lg_u32 s67, s61")
    e("s_cbranch_scc1 K2_H_NOCONS")
    e("v_mov_b32 v18, 128")
    e("s_mov_b32 s76, 0x100000")
    e.label("K2_H_SPIN2")
    e("global_load_dword v19, v18, s[16:17] sc1")
    e("s_waitcnt vmcnt(0)")
    e("v_readfirstlane_b32 s67, v19")
    e("s_nop 3")
    e(f"s_cmp_ge_u32 s67, {NFFN * 4}")
    e("s_cbranch_scc1 K2_H_SPIN2_DONE")
    e("s_sleep 2")
    e("s_sub_u32 s76, s76, 1")
    e("s_cmp_lg_u32 s76, 0")
    e("s_cbranch_scc1 K2_H_SPIN2")
    e.label("K2_H_SPIN2_DONE")
    e("s_lshl_b32 s67, s66, 11")
    e("s_lshl_b32 s76, s62, 8")
    e("s_add_u32 s67, s67, s76")
    e(f"s_add_u32 s67, s67, {hex(WS_YP)}")
    e("v_lshlrev_b32 v18, 2, v1")
    for p in range(NFFN):
        e(f"buffer_load_dword v{64 + p}, v18, s[44:47], s67 offen sc1")
        e("s_add_u32 s67, s67, 4096")
    e("s_waitcnt vmcnt(0)")
    for p in range(1, NFFN):
        e(f"v_add_f32 v64, v64, v{64 + p}")
    rbf(e, 64, 64)
    e("s_and_b32 s75, s75, 0xffff0000")
    e("s_cmp_lt_i32 s75, 0")
    e("s_mov_b32 s77, 0xffff0000")
    e("s_cselect_b32 s76, 0x80000000, s77")
    e("s_xor_b32 s75, s75, s76")
    e("v_mov_b32 v19, s75")
    e(f"v_mul_f32 v19, {hex(NLOG2E)}, v19")
    e("v_exp_f32 v19, v19")
    e("s_nop 0")
    e("v_add_f32 v19, 1.0, v19")
    e("v_rcp_f32 v19, v19")
    e("s_nop 0")
    rbf(e, 19, 19)
    e("v_mul_f32 v64, v64, v19")
    rbf(e, 64, 64)
    e("v_and_b32 v18, 3, v1")
    e("v_lshlrev_b32 v18, 3, v18")
    e("v_bfe_u32 v19, v1, 2, 3")
    e("v_add_u32 v18, v18, v19")
    e("v_lshl_add_u32 v18, v3, 5, v18")
    e("v_lshlrev_b32 v18, 2, v18")
    e("s_lshl_b32 s67, s66, 8")
    e("v_add_u32 v18, s67, v18")
    e(f"ds_write_b32 v18, v64 offset:{L_Y}")
    e.label("K2_H_NOCONS")
    e("s_waitcnt lgkmcnt(0)")
    stamp(e, 9)
    e("s_setprio 0")
    e("s_branch K2_BAR1")

    e.label("K2_H2")
    e("s_lshl_b32 s67, s61, 2")
    e("v_mov_b32 v18, s67")
    e("s_mov_b32 s76, 0x100000")
    e("s_lshl_b32 s68, s61, 16")
    e("s_lshl_b32 s67, s66, 13")
    e("s_add_u32 s68, s68, s67")
    e(f"s_add_u32 s68, s68, {hex(WS_OF)}")
    e.label("K2_H_SPIN3")
    e("global_load_dword v19, v18, s[16:17] sc1")
    e("s_waitcnt vmcnt(0)")
    e("v_readfirstlane_b32 s67, v19")
    e("s_nop 3")
    e("s_cmp_ge_u32 s67, 8")
    e("s_cbranch_scc1 K2_H_SPIN3_DONE")
    e("s_sleep 1")
    e("s_sub_u32 s76, s76, 1")
    e("s_cmp_lg_u32 s76, 0")
    e("s_cbranch_scc1 K2_H_SPIN3")
    e.label("K2_H_SPIN3_DONE")
    stamp(e, 6)
    OFR = lambda tt, hd: 8 + (tt * 8 + hd) * 4
    OA = lambda tt, nt: 96 + (tt * 2 + nt) * 16
    for hd in range(8):
        for tt in range(2):
            e(f"s_add_u32 s67, s68, {tt * 32768 + (hd & 4) * 1024}")
            e.vmem(f"buffer_load_dwordx4 {vr(OFR(tt, hd), 4)}, v4, s[44:47], s67 offen offset:{(hd & 3) * 1024} sc1", ("o", hd))
    for hd in range(8):
        e.vwait(("o", hd))
        for tt in range(2):
            for nt in range(2):
                mfma32(e, OA(tt, nt), WOF(hd, nt), OFR(tt, hd), None if hd == 0 else OA(tt, nt))
    e("s_lshl_b32 s67, s66, 14")
    e(f"s_add_u32 s67, s67, {L_REDB}")
    e("v_add_u32 v6, s67, v4")
    e("s_nop 15")
    for tt in range(2):
        for nt in range(2):
            for rq in range(4):
                e(f"ds_write_b128 v6, {vr(OA(tt, nt) + 4 * rq, 4)} offset:{L_RED + ((tt * 2 + nt) * 4 + rq) * 1024}")
            e("s_waitcnt lgkmcnt(8)")
    e("s_waitcnt lgkmcnt(0)")
    stamp(e, 7)
    e("s_barrier")
    stamp_flush(e, 1, 44, 60)
    e.label("K2_END")
    e("s_endpgm")
    return kn, 256, LDS_SIZE


def kd(name, nv, ns=96):
    return f""".p2align 6
.amdhsa_kernel {name}
  .amdhsa_next_free_vgpr {nv}
  .amdhsa_next_free_sgpr {ns}
  .amdhsa_accum_offset {(nv + 3) // 4 * 4}
  .amdhsa_group_segment_fixed_size 0
  .amdhsa_kernarg_size 104
  .amdhsa_user_sgpr_count 2
  .amdhsa_user_sgpr_kernarg_segment_ptr 1
  .amdhsa_system_sgpr_workgroup_id_x 1
  .amdhsa_float_denorm_mode_32 3
.end_amdhsa_kernel
"""


def main():
    e = Asm()
    k1, nv1, lds1 = gen_k1(e)
    k2, nv2, lds2 = gen_k2(e)
    head = f"""; MQA attention + mixture-of-depths FFN, generated by gen/gen.py (hand-written generator)
; @launch kernel={k1} grid=(320,1,1) block=(256,1,1) lds={lds1}
; @launch kernel={k2} grid=(256,1,1) block=(512,1,1) lds={lds2}
.amdgcn_target "amdgcn-amd-amdhsa--gfx950"
.text
"""
    tail = '.section .rodata,"a"\n' + kd(k1, nv1) + kd(k2, nv2)
    args = [a for a in sys.argv[1:] if not a.startswith("--")]
    out = args[0] if args else f"cdna_kernels/{NAME}.s"
    with open(out, "w") as f:
        f.write(head + e.text() + tail)


if __name__ == "__main__":
    main()
```

```python
import sys

NAME = "recurrent_scan__grouped_kv_mqa__moe_arch_mod__prompt"

WS_QF = 0x000000
WS_KV = 0x200000
WS_KEYS = 0x220000
WS_STATS = 0x221000
WS_FLAGS = 0x226000
WS_OF = 0x300000
WS_YP = 0x500000
WS_PROF = 0x600000
WS_SIZE = 0x700000

QSCALE = 0x3eb8aa3b
NLOG2E = 0xbfb8aa3b
ONES = 0x3f803f80
EPS = 0x3727c5ac
INV512 = 0x3b000000

PROF = "--prof" in sys.argv
XNOFFN = "--xnoffn" in sys.argv
FFNLIM = 0 if XNOFFN else 28


class Asm:
    def __init__(self):
        self.lines = []
        self.vm = []

    def __call__(self, s):
        self.lines.append("    " + s)

    def label(self, l):
        self.lines.append(l + ":")

    def raw(self, s):
        self.lines.append(s)

    def vmem(self, s, tag=None):
        self(s)
        self.vm.append(tag)
        assert len(self.vm) <= 63, "too many outstanding vmem ops"

    def vwait(self, tag=None):
        if tag is None:
            self("s_waitcnt vmcnt(0)")
            self.vm = []
            return
        idx = max(i for i, t in enumerate(self.vm) if t == tag)
        n = len(self.vm) - 1 - idx
        self(f"s_waitcnt vmcnt({n})")
        self.vm = self.vm[idx + 1:]

    def text(self):
        return "\n".join(self.lines) + "\n"


def stamp(e, i):
    if not PROF:
        return
    e("s_memrealtime s[78:79]")
    e("s_waitcnt lgkmcnt(0)")
    e(f"s_mov_b32 s{80 + i}, s78")


def cstamp(e, i):
    if not PROF:
        return
    e("s_memtime s[78:79]")
    e("s_waitcnt lgkmcnt(0)")
    e(f"s_mov_b32 s{80 + i}, s78")


def stamp_init(e):
    if PROF:
        for i in range(12):
            e(f"s_mov_b32 s{80 + i}, 0")
    stamp(e, 0)


def stamp_flush(e, kidx, wsrd, wave_sgpr):
    if not PROF:
        return
    stamp(e, 11)
    e("s_mov_b64 exec, 1")
    e("s_lshl_b32 s78, s2, 3")
    e(f"s_add_u32 s78, s78, s{wave_sgpr}")
    e("s_lshl_b32 s78, s78, 6")
    e(f"s_add_u32 s78, s78, {hex(WS_PROF + kidx * 320 * 8 * 64)}")
    e("v_mov_b32 v220, 0")
    for b in range(3):
        for i in range(4):
            e(f"v_mov_b32 v{216 + i}, s{80 + 4 * b + i}")
        e(f"buffer_store_dwordx4 v[216:219], v220, s[{wsrd}:{wsrd + 3}], s78 offen offset:{16 * b}")
        e("s_nop 1")


def vr(a, n=1):
    return f"v{a}" if n == 1 else f"v[{a}:{a + n - 1}]"


def srd(e, d, base, size):
    e(f"s_mov_b32 s{d}, s{base}")
    e(f"s_and_b32 s{d + 1}, s{base + 1}, 0xffff")
    e(f"s_mov_b32 s{d + 2}, {hex(size)}")
    e(f"s_mov_b32 s{d + 3}, 0x00020000")


def rbf(e, d, s):
    e(f"v_cvt_pk_bf16_f32 v{d}, v{s}, v{s}")
    e(f"v_and_b32 v{d}, 0xffff0000, v{d}")


def mfma32(e, d, a, b, c=None):
    cs = "0" if c is None else vr(c, 16)
    e(f"v_mfma_f32_32x32x16_bf16 {vr(d, 16)}, {vr(a, 4)}, {vr(b, 4)}, {cs}")


def mfma16(e, d, a, b, c=None):
    cs = "0" if c is None else vr(c, 4)
    e(f"v_mfma_f32_16x16x32_bf16 {vr(d, 4)}, {vr(a, 4)}, {vr(b, 4)}, {cs}")


def dpp_umax_reduce(e, v):
    for mod in ("row_shr:1 row_mask:0xf bank_mask:0xf bound_ctrl:0",
                "row_shr:2 row_mask:0xf bank_mask:0xf bound_ctrl:0",
                "row_shr:4 row_mask:0xf bank_mask:0xf bound_ctrl:0",
                "row_shr:8 row_mask:0xf bank_mask:0xf bound_ctrl:0",
                "row_bcast:15 row_mask:0xa bank_mask:0xf",
                "row_bcast:31 row_mask:0xc bank_mask:0xf"):
        e("s_nop 1")
        e(f"v_max_u32_dpp v{v}, v{v}, v{v} {mod}")
    e("s_nop 1")


def token_stats(e, sx, sq, mb, db, inv, t0, t1):
    e(f"v_mul_f32 v{t0}, {hex(INV512)}, v{sx}")
    e(f"v_mul_f32 v{t1}, {hex(INV512)}, v{sq}")
    rbf(e, mb, t0)
    e(f"v_fma_f32 v{t1}, -v{t0}, v{t0}, v{t1}")
    e(f"v_max_f32 v{t1}, 0, v{t1}")
    rbf(e, t1, t1)
    e(f"v_add_f32 v{t1}, {hex(EPS)}, v{t1}")
    rbf(e, t1, t1)
    e(f"v_sqrt_f32 v{t1}, v{t1}")
    e("s_nop 0")
    rbf(e, db, t1)
    e(f"v_rcp_f32 v{inv}, v{db}")
    e("s_nop 0")


def swap_add(e, a, b):
    e("s_nop 1")
    e(f"v_permlane32_swap_b32 v{a}, v{b}")
    e("s_nop 1")
    e(f"v_add_f32 v{a}, v{a}, v{b}")


def sum4(e, d, a, b, c, dd):
    e(f"v_add_f32 v{a}, v{a}, v{b}")
    e(f"v_add_f32 v{c}, v{c}, v{dd}")
    e(f"v_add_f32 v{d}, v{a}, v{c}")


def gen_k1(e):
    kn = "mqa_proj_kernel"
    RSZ = 40960
    O_X, O_W, O_KV = 0, 16384, 32768
    e.raw(".p2align 8")
    e.raw(f".globl {kn}")
    e.raw(f".type {kn},@function")
    e.label(kn)
    e("s_cmp_ge_u32 s2, 256")
    e("s_cbranch_scc1 K1_END")
    stamp_init(e)
    e("s_load_dwordx4 s[4:7], s[0:1], 0")
    e("s_load_dwordx4 s[8:11], s[0:1], 16")
    e("s_load_dwordx2 s[12:13], s[0:1], 48")
    e("s_load_dwordx2 s[14:15], s[0:1], 96")
    e("v_and_b32 v1, 63, v0")
    e("v_lshrrev_b32 v6, 6, v0")
    e("v_and_b32 v2, 31, v1")
    e("v_lshrrev_b32 v3, 5, v1")
    e("v_readfirstlane_b32 s60, v6")
    e("v_lshlrev_b32 v4, 4, v1")
    e(f"v_mov_b32 v5, {hex(ONES)}")
    e("s_and_b32 s56, s2, 7")
    e("s_lshr_b32 s57, s2, 3")
    e("s_lshr_b32 s58, s57, 3")
    e("s_lshl_b32 s61, s56, 2")
    e("s_add_u32 s61, s61, s58")
    e("s_and_b32 s62, s57, 7")
    e(f"s_mul_i32 s63, s60, {RSZ}")
    e("v_lshrrev_b32 v6, 4, v1")
    e("v_and_b32 v7, 15, v1")
    e("v_xor_b32 v7, v7, v6")
    for v in range(4):
        e(f"v_xor_b32 v{8 + v}, {4 * v}, v7")
        e(f"v_lshlrev_b32 v{8 + v}, 4, v{8 + v}")
        e(f"v_lshl_add_u32 v{8 + v}, v6, 10, v{8 + v}")
    e("v_lshrrev_b32 v6, 3, v1")
    e("v_and_b32 v12, 7, v1")
    e("v_lshlrev_b32 v12, 4, v12")
    e("v_lshl_add_u32 v12, v6, 10, v12")
    e("s_lshl_b32 s64, s61, 16")
    e("s_lshl_b32 s65, s60, 8")
    e("s_add_u32 s64, s64, s65")
    e("s_lshl_b32 s66, s60, 17")
    e("s_lshl_b32 s67, s62, 7")
    e("s_add_u32 s66, s66, s67")
    e("s_waitcnt lgkmcnt(0)")
    stamp(e, 1)
    srd(e, 16, 4, 2048 * 512 * 2)
    srd(e, 20, 6, 512 * 512 * 2)
    srd(e, 24, 14, WS_SIZE)
    srd(e, 28, 12, 512 * 2)
    srd(e, 32, 8, 512 * 16 * 2)
    srd(e, 36, 10, 512 * 16 * 2)

    def dma_x(n):
        if n % 4 == 0:
            e(f"s_add_u32 m0, s63, {O_X + (n >> 2) * 4096}")
        e(f"s_add_u32 s67, s64, {n * 4096 - (n & 3) * 1024}")
        e.vmem(f"buffer_load_dwordx4 v{8 + (n & 3)}, s[16:19], s67 offen offset:{(n & 3) * 1024} lds", ("x", n))

    def dma_w(n):
        if n % 4 == 0:
            e(f"s_add_u32 m0, s63, {O_W + (n >> 2) * 4096}")
        e(f"s_add_u32 s67, s66, {n * 8192 - (n & 3) * 1024}")
        e.vmem(f"buffer_load_dwordx4 v12, s[20:23], s67 offen offset:{(n & 3) * 1024} lds", ("w", n))

    for n in range(16):
        dma_x(n)
    for n in range(4):
        dma_w(n)
    e("s_cmp_ge_u32 s62, 2")
    e("s_cbranch_scc1 K1_NOKVDMA")
    e("s_lshl_b32 s67, s60, 12")
    e(f"s_add_u32 m0, s63, {O_KV}")
    e("s_nop 0")
    for i in range(4):
        e(f"buffer_load_dwordx4 v4, s[32:35], s67 offen offset:{i * 1024} lds")
    e(f"s_add_u32 m0, s63, {O_KV + 4096}")
    e("s_nop 0")
    for i in range(4):
        e(f"buffer_load_dwordx4 v4, s[36:39], s67 offen offset:{i * 1024} lds")
    e.label("K1_NOKVDMA")
    WR = lambda ks: 176 + 4 * ks
    e("v_lshlrev_b32 v13, 4, v3")
    e("s_cmp_lg_u32 s62, 2")
    e("s_cbranch_scc1 K1_NOWR")
    for ks in range(8):
        e(f"buffer_load_dwordx4 {vr(WR(ks), 4)}, v13, s[28:31], s65 offen offset:{32 * ks}")
    e.label("K1_NOWR")
    marker = len(e.vm)
    for n in range(4, 16):
        dma_w(n)
    e("v_mov_b32 v16, -1")
    e("v_mov_b32 v17, -1")
    e("v_mov_b32 v18, -1")
    e("v_mov_b32 v19, -1")
    e("v_lshlrev_b32 v14, 4, v0")
    e("s_lshl_b32 s67, s2, 13")
    e(f"s_add_u32 s67, s67, {hex(WS_OF)}")
    e("v_and_b32 v6, 15, v2")
    e("v_xor_b32 v6, v6, v3")
    e("v_lshlrev_b32 v7, 8, v2")
    e("v_add_u32 v7, s63, v7")
    for ks in range(8):
        e(f"v_xor_b32 v{24 + ks}, {2 * ks}, v6")
        e(f"v_lshl_add_u32 v{24 + ks}, v{24 + ks}, 4, v7")
    e("v_bfe_u32 v6, v1, 2, 2")
    e("v_lshl_add_u32 v6, v3, 3, v6")
    e("v_and_b32 v7, 1, v1")
    e("v_bfe_u32 v15, v1, 1, 1")
    e("v_lshl_add_u32 v7, v7, 1, v15")
    e("v_bfe_u32 v15, v1, 4, 1")
    e("v_lshlrev_b32 v20, 7, v6")
    e("v_lshl_add_u32 v20, v15, 5, v20")
    e("v_lshl_add_u32 v20, v7, 3, v20")
    e("v_add_u32 v20, s63, v20")
    e("v_and_b32 v21, 3, v1")
    e("v_cmp_eq_u32 vcc, 1, v15")
    e("v_lshlrev_b32 v6, 5, v6")
    e("v_lshl_add_u32 v6, v15, 12, v6")
    e("v_cndmask_b32 v21, v7, v21, vcc")
    e("v_lshl_add_u32 v21, v21, 3, v6")
    e("v_add_u32 v21, s63, v21")
    SX, SQ, CS = [32, 33], [34, 35], [36, 37]
    SR, CSR, CSK, ZZ = [38, 39], 40, 41, 42
    for r in range(32, 44):
        e(f"v_mov_b32 v{r}, 0")
    XF = lambda b, tt: 48 + (b * 2 + tt) * 4
    WF = lambda b, ct: 64 + (b * 2 + ct) * 4
    KF = lambda b: 80 + b * 4
    ACC = lambda tt, ct: 96 + (tt * 2 + ct) * 16
    AK, AV = 208, 224

    def reads(ks):
        b = ks & 1
        for tt in range(2):
            e(f"ds_read_b128 {vr(XF(b, tt), 4)}, v{24 + ks} offset:{O_X + tt * 8192}")
        for ct in range(2):
            for u in range(2):
                e(f"ds_read_b64_tr_b16 {vr(WF(b, ct) + 2 * u, 2)}, v20 offset:{O_W + (16 * ks + 4 * u) * 128 + 64 * ct}")

    def wait_w(n):
        e.vwait(("w", n))

    wait_w(5)
    stamp(e, 2)
    reads(0)
    for ks in range(8):
        b = ks & 1
        if ks + 1 < 8:
            if 2 * (ks + 1) + 1 > 5:
                wait_w(2 * (ks + 1) + 1)
            reads(ks + 1)
            e("s_waitcnt lgkmcnt(6)")
        else:
            e("s_waitcnt lgkmcnt(0)")
        if ks == 1:
            e.vmem("buffer_store_dwordx4 v[16:19], v14, s[24:27], s67 offen sc1", "st")
        for tt in range(2):
            for ct in range(2):
                mfma32(e, ACC(tt, ct), WF(b, ct), XF(b, tt), None if ks == 0 else ACC(tt, ct))
                x = XF(b, tt)
                if ct == 0:
                    for c in range(4):
                        e(f"v_dot2_f32_bf16 v{SX[tt]}, v{x + c}, v5, v{SX[tt]}")
                        e(f"v_dot2_f32_bf16 v{SQ[tt]}, v{x + c}, v{x + c}, v{SQ[tt]}")
                else:
                    for c in range(4):
                        e(f"v_dot2_f32_bf16 v{CS[tt]}, v{WF(b, tt) + c}, v5, v{CS[tt]}")
        e("s_cmp_ge_u32 s62, 2")
        e(f"s_cbranch_scc1 K1_R{ks}_A")
        for u in range(2):
            e(f"ds_read_b64_tr_b16 {vr(KF(0) + 2 * u, 2)}, v21 offset:{O_KV + (16 * ks + 4 * u) * 32}")
        e("s_cmp_eq_u32 s62, 0")
        e(f"s_cbranch_scc1 K1_R{ks}_T0")
        e("s_waitcnt lgkmcnt(0)")
        mfma32(e, AK, KF(0), XF(b, 1), None if ks == 0 else AK)
        mfma32(e, AV, XF(b, 1), KF(0), None if ks == 0 else AV)
        e(f"s_branch K1_R{ks}_C")
        e.label(f"K1_R{ks}_T0")
        e("s_waitcnt lgkmcnt(0)")
        mfma32(e, AK, KF(0), XF(b, 0), None if ks == 0 else AK)
        mfma32(e, AV, XF(b, 0), KF(0), None if ks == 0 else AV)
        e.label(f"K1_R{ks}_C")
        for c in range(4):
            e(f"v_dot2_f32_bf16 v{CSK}, v{KF(0) + c}, v5, v{CSK}")
        e(f"s_branch K1_R{ks}_E")
        e.label(f"K1_R{ks}_A")
        e("s_cmp_lg_u32 s62, 2")
        e(f"s_cbranch_scc1 K1_R{ks}_E")
        for c in range(4):
            e(f"v_dot2_f32_bf16 v{SR[0]}, v{XF(b, 0) + c}, v{WR(ks) + c}, v{SR[0]}")
            e(f"v_dot2_f32_bf16 v{SR[1]}, v{XF(b, 1) + c}, v{WR(ks) + c}, v{SR[1]}")
            e(f"v_dot2_f32_bf16 v{CSR}, v{WR(ks) + c}, v5, v{CSR}")
        e.label(f"K1_R{ks}_E")
    stamp(e, 3)
    e("s_add_u32 s67, s67, 4096")
    e("buffer_store_dwordx4 v[16:19], v14, s[24:27], s67 offen sc1")
    e("s_nop 2")
    swap_add(e, SX[0], SX[1])
    swap_add(e, SQ[0], SQ[1])
    swap_add(e, CS[0], CS[1])
    swap_add(e, SR[0], SR[1])
    swap_add(e, CSR, CSK)
    e("v_lshl_add_u32 v6, v1, 2, s63")
    for q, r in enumerate((32, 34, 36, 38, 40)):
        e(f"ds_write_b32 v6, v{r} offset:{O_W + q * 256}")
    e("v_add_u32 v7, s63, v4")
    for tt in range(2):
        for ct in range(2):
            for rq in range(4):
                e(f"ds_write_b128 v7, {vr(ACC(tt, ct) + 4 * rq, 4)} offset:{O_X + ((tt * 2 + ct) * 4 + rq) * 1024}")
            e("s_waitcnt lgkmcnt(8)")
    e("s_cmp_ge_u32 s62, 2")
    e("s_cbranch_scc1 K1_NOKVW")
    for rq in range(2):
        e(f"ds_write_b128 v7, {vr(AK + 4 * rq, 4)} offset:{O_KV + rq * 1024}")
    for rq in range(4):
        e(f"ds_write_b128 v7, {vr(AV + 4 * rq, 4)} offset:{O_KV + 2048 + rq * 1024}")
    e.label("K1_NOKVW")
    e("s_waitcnt lgkmcnt(0)")
    e("s_barrier")
    stamp(e, 4)
    e("s_lshr_b32 s68, s60, 1")
    e("s_and_b32 s69, s60, 1")
    e("v_lshlrev_b32 v6, 2, v1")
    e(f"v_add_u32 v7, {2 * RSZ}, v6")
    for q in range(5):
        for wp in range(4):
            a = 6 if wp < 2 else 7
            e(f"ds_read_b32 v{44 + q * 4 + wp}, v{a} offset:{(wp & 1) * RSZ + O_W + q * 256}")
        if q == 2:
            e("s_waitcnt lgkmcnt(4)")
    e("s_lshl_b32 s67, s60, 12")
    e("v_add_u32 v8, s67, v4")
    e(f"v_add_u32 v9, {2 * RSZ}, v8")
    AR = lambda wp, rq: 96 + (wp * 4 + rq) * 4
    e("s_waitcnt lgkmcnt(0)")
    for wp in range(4):
        a = 8 if wp < 2 else 9
        if wp == 3:
            for q in range(5):
                b = 44 + q * 4
                sum4(e, b, b, b + 1, b + 2, b + 3)
            e("s_waitcnt lgkmcnt(8)")
        for rq in range(4):
            e(f"ds_read_b128 {vr(AR(wp, rq), 4)}, v{a} offset:{(wp & 1) * RSZ + O_X + rq * 1024}")
    MB, DB, INV = 64, 65, 66
    token_stats(e, 44, 48, MB, DB, INV, 67, 68)
    PV = O_W + 2048
    e("v_lshl_add_u32 v10, v1, 2, s63")
    e("s_waitcnt lgkmcnt(8)")
    e(f"ds_write_b32 v10, v52 offset:{PV}")
    e(f"ds_write_b32 v10, v{MB} offset:{PV + 256}")
    e(f"ds_write_b32 v10, v{INV} offset:{PV + 512}")
    e(f"ds_write_b32 v10, v60 offset:{PV + 768}")
    e("s_lshl_b32 s67, s68, 7")
    e("s_add_u32 s67, s67, s63")
    e("v_lshl_add_u32 v11, v2, 2, s67")
    e("s_waitcnt lgkmcnt(6)")
    e(f"ds_read_b32 v69, v11 offset:{PV + 256}")
    e(f"ds_read_b32 v70, v11 offset:{PV + 512}")
    e("s_lshl_b32 s67, s69, 7")
    e("s_add_u32 s67, s67, s63")
    e("v_lshl_add_u32 v11, v3, 4, s67")
    for g in range(4):
        e(f"ds_read_b128 {vr(72 + 4 * g, 4)}, v11 offset:{PV + 32 * g}")
    e("s_waitcnt lgkmcnt(0)")
    e(f"v_mul_f32 v70, {hex(QSCALE)}, v70")
    for r in range(16):
        a = AR(0, 0) + r
        sum4(e, a, a, a + 16, a + 32, a + 48)
        e(f"v_fma_f32 v{a}, -v69, v{72 + r}, v{a}")
        e(f"v_mul_f32 v{a}, v70, v{a}")
    for c in range(8):
        e(f"v_cvt_pk_bf16_f32 v{88 + c}, v{96 + 2 * c}, v{97 + 2 * c}")
    e("s_lshl_b32 s67, s62, 2")
    e("s_lshl_b32 s70, s69, 1")
    e("s_add_u32 s67, s67, s70")
    e("s_lshl_b32 s67, s67, 6")
    e("s_lshl_b32 s70, s61, 1")
    e("s_add_u32 s67, s67, s70")
    e("s_add_u32 s67, s67, s68")
    e("s_lshl_b32 s67, s67, 10")
    e("s_add_u32 s70, s67, 65536")
    e("buffer_store_dwordx4 v[88:91], v4, s[24:27], s67 offen")
    e("buffer_store_dwordx4 v[92:95], v4, s[24:27], s70 offen")
    e("s_cmp_gt_u32 s62, 3")
    e("s_cbranch_scc1 K1_FIN")
    e("s_cmp_eq_u32 s62, 3")
    e("s_cbranch_scc1 K1_FLAGS")
    e("s_cmp_eq_u32 s62, 2")
    e("s_cbranch_scc1 K1_ROUTER")
    e("s_cmp_eq_u32 s60, 3")
    e("s_cbranch_scc1 K1_FIN")
    e("s_lshl_b32 s70, s61, 1")
    e("s_add_u32 s70, s70, s62")
    e("s_lshl_b32 s70, s70, 11")
    e(f"s_add_u32 s70, s70, {hex(WS_KV)}")
    e(f"v_add_u32 v8, {O_KV}, v4")
    e(f"v_add_u32 v9, {2 * RSZ + O_KV}, v4")
    e("s_lshl_b32 s71, s62, 7")
    e("s_add_u32 s71, s71, s63")
    e("s_cmp_eq_u32 s60, 0")
    e("s_cbranch_scc1 K1_KV_K")
    e("s_sub_u32 s72, s60, 1")
    e("s_lshl_b32 s67, s72, 11")
    e("v_add_u32 v8, s67, v8")
    e("v_add_u32 v9, s67, v9")
    for wp in range(4):
        a = 8 if wp < 2 else 9
        for rr in range(2):
            e(f"ds_read_b128 {vr(96 + (wp * 2 + rr) * 4, 4)}, v{a} offset:{(wp & 1) * RSZ + 2048 + rr * 1024}")
    e("s_lshl_b32 s67, s72, 6")
    e("s_add_u32 s67, s67, s71")
    e("v_lshl_add_u32 v11, v3, 4, s67")
    for rr in range(2):
        e(f"ds_read_b128 {vr(72 + rr * 4, 4)}, v11 offset:{PV + 256 + rr * 32}")
        e(f"ds_read_b128 {vr(80 + rr * 4, 4)}, v11 offset:{PV + 512 + rr * 32}")
    e("v_lshl_add_u32 v11, v2, 2, s63")
    e(f"ds_read_b32 v69, v11 offset:{PV + 768 + 128}")
    e("s_waitcnt lgkmcnt(0)")
    for i in range(8):
        a = 96 + i
        sum4(e, a, a, a + 8, a + 16, a + 24)
        e(f"v_fma_f32 v{a}, -v{72 + i}, v69, v{a}")
        e(f"v_mul_f32 v{a}, v{80 + i}, v{a}")
    for c in range(4):
        e(f"v_cvt_pk_bf16_f32 v{88 + c}, v{96 + 2 * c}, v{97 + 2 * c}")
    e("v_and_b32 v10, 15, v2")
    e("v_lshlrev_b32 v10, 4, v10")
    e("v_lshl_add_u32 v10, v3, 8, v10")
    e("s_lshl_b32 s67, s72, 9")
    e("s_add_u32 s67, s67, s70")
    e("s_mov_b32 exec_lo, 0xffff0000")
    e("s_mov_b32 exec_hi, 0xffff0000")
    e("buffer_store_dwordx4 v[88:91], v10, s[24:27], s67 offen offset:1024")
    e("s_branch K1_FIN")
    e.label("K1_KV_K")
    for wp in range(4):
        a = 8 if wp < 2 else 9
        for rr in range(2):
            e(f"ds_read_b128 {vr(96 + (wp * 2 + rr) * 4, 4)}, v{a} offset:{(wp & 1) * RSZ + rr * 1024}")
    e("v_lshl_add_u32 v11, v3, 4, s63")
    for rr in range(2):
        e(f"ds_read_b128 {vr(72 + rr * 4, 4)}, v11 offset:{PV + 768 + 128 + rr * 32}")
    e("v_lshl_add_u32 v11, v2, 2, s71")
    e(f"ds_read_b32 v69, v11 offset:{PV + 256}")
    e(f"ds_read_b32 v70, v11 offset:{PV + 512}")
    e("s_waitcnt lgkmcnt(0)")
    for i in range(8):
        a = 96 + i
        sum4(e, a, a, a + 8, a + 16, a + 24)
        e(f"v_fma_f32 v{a}, -v69, v{72 + i}, v{a}")
        e(f"v_mul_f32 v{a}, v70, v{a}")
    for c in range(4):
        e(f"v_cvt_pk_bf16_f32 v{88 + c}, v{96 + 2 * c}, v{97 + 2 * c}")
    e("buffer_store_dwordx4 v[88:91], v4, s[24:27], s70 offen")
    e("s_branch K1_FIN")
    e.label("K1_FLAGS")
    e("s_cmp_lg_u32 s60, 0")
    e("s_cbranch_scc1 K1_FIN")
    e("v_mov_b32 v8, 0")
    e("v_lshlrev_b32 v9, 2, v1")
    e("s_lshl_b32 s67, s61, 7")
    e(f"s_add_u32 s67, s67, {hex(WS_FLAGS)}")
    e("s_mov_b32 exec_hi, 0")
    e("buffer_store_dword v8, v9, s[24:27], s67 offen sc1")
    e("s_branch K1_FIN")
    e.label("K1_ROUTER")
    e("s_cmp_lg_u32 s60, 0")
    e("s_cbranch_scc1 K1_FIN")
    e("v_readlane_b32 s67, v60, 0")
    e("s_nop 1")
    e(f"v_mul_f32 v8, s67, v{MB}")
    e("v_sub_f32 v56, v56, v8")
    e(f"v_mul_f32 v56, v{INV}, v56")
    rbf(e, 56, 56)
    e("v_ashrrev_i32 v8, 31, v56")
    e("v_or_b32 v8, 0x80000000, v8")
    e("v_xor_b32 v56, v56, v8")
    e("v_and_b32 v56, 0xffff0000, v56")
    e("s_lshl_b32 s67, s61, 6")
    e("v_add_u32 v9, s67, v1")
    e("v_sub_u32 v8, 0xffff, v9")
    e("v_or_b32 v56, v56, v8")
    e("v_mov_b32 v10, v56")
    dpp_umax_reduce(e, 10)
    e("v_readlane_b32 s70, v10, 63")
    e("s_nop 1")
    e("v_cmp_ne_u32 vcc, s70, v56")
    e("s_nop 1")
    e("v_cndmask_b32 v10, 0, v56, vcc")
    dpp_umax_reduce(e, 10)
    e("v_readlane_b32 s71, v10, 63")
    e("s_nop 1")
    e("v_mov_b32 v12, s70")
    e("v_mov_b32 v13, s71")
    e("v_lshlrev_b32 v9, 3, v9")
    e(f"s_mov_b32 s67, {hex(WS_STATS)}")
    e(f"buffer_store_dwordx2 v[{MB}:{DB}], v9, s[24:27], s67 offen")
    e("s_lshl_b32 s67, s61, 3")
    e(f"s_add_u32 s67, s67, {hex(WS_KEYS)}")
    e("v_mov_b32 v8, 0")
    e("s_mov_b64 exec, 1")
    e("buffer_store_dwordx2 v[12:13], v8, s[24:27], s67 offen")
    e.label("K1_FIN")
    stamp_flush(e, 0, 24, 60)
    e.label("K1_END")
    e("s_endpgm")
    e.vm = []
    return kn, 240, 4 * RSZ


def gen_k2(e):
    kn = "mqa_attn_kernel"
    L_XS = 0
    L_FP = 2048
    L_YS = L_FP + 4096
    L_SEL = L_YS + 2048
    L_CNT = L_SEL + 16
    L_MX = L_CNT + 16
    L_REDB = 16384
    assert L_MX + 4096 <= L_REDB
    L_WO = L_REDB + 73728
    LDS_SIZE = L_WO + 65536
    assert LDS_SIZE <= 163840

    e.raw(".p2align 8")
    e.raw(f".globl {kn}")
    e.raw(f".type {kn},@function")
    e.label(kn)
    e("s_cmp_ge_u32 s2, 256")
    e("s_cbranch_scc1 K2_END")
    stamp_init(e)
    e("s_load_dwordx2 s[4:5], s[0:1], 0")
    e("s_load_dwordx2 s[6:7], s[0:1], 32")
    e("s_load_dwordx4 s[8:11], s[0:1], 56")
    e("s_load_dwordx4 s[12:15], s[0:1], 72")
    e("s_load_dwordx2 s[18:19], s[0:1], 96")
    e("v_and_b32 v1, 63, v0")
    e("v_lshrrev_b32 v6, 6, v0")
    e("v_and_b32 v2, 31, v1")
    e("v_lshrrev_b32 v3, 5, v1")
    e("v_readfirstlane_b32 s60, v6")
    e("v_lshlrev_b32 v4, 4, v1")
    e("s_and_b32 s56, s2, 7")
    e("s_lshr_b32 s57, s2, 3")
    e("s_lshr_b32 s58, s57, 3")
    e("s_lshl_b32 s61, s56, 2")
    e("s_add_u32 s61, s61, s58")
    e("s_and_b32 s62, s57, 7")
    e("s_mov_b32 s63, 0")
    e("s_mov_b32 s59, 0")
    e("v_and_b32 v5, 15, v2")
    e("v_lshlrev_b32 v5, 4, v5")
    e("v_lshl_add_u32 v5, v3, 8, v5")
    e("v_add_u32 v5, 1024, v5")
    e("s_waitcnt lgkmcnt(0)")
    stamp(e, 1)
    srd(e, 20, 4, 2048 * 512 * 2)
    srd(e, 24, 6, 512 * 512 * 2)
    srd(e, 28, 8, 512 * 1792 * 2)
    srd(e, 32, 10, 512 * 1792 * 2)
    srd(e, 36, 12, 512 * 1792 * 2)
    srd(e, 40, 14, 2048 * 512 * 2)
    srd(e, 44, 18, WS_SIZE)
    e("s_cmp_ge_u32 s60, 4")
    e("s_cbranch_scc1 K2_H")

    ACC = lambda q: 128 + 16 * q
    Q = lambda q: 96 + 4 * q
    S = [64, 80]
    P = 56
    KB = [8, 12, 16, 20]
    VB = [24, 32, 40, 48]
    NB = 4
    e("s_lshl_b32 s66, s62, 8")
    e("s_lshl_b32 s67, s61, 1")
    e("s_add_u32 s66, s66, s67")
    e("s_lshl_b32 s66, s66, 10")
    e("s_lshl_b32 s68, s60, 15")
    e(f"s_add_u32 s68, s68, {hex(WS_KV)}")
    e("s_mov_b32 s50, 0x0000ffff")
    e("s_mov_b32 s51, 0x0000ffff")

    def load_q():
        for q in range(8):
            hl, tt = q >> 1, q & 1
            e(f"s_add_u32 s67, s66, {hl * 65536 + tt * 1024}")
            e.vmem(f"buffer_load_dwordx4 {vr(Q(q), 4)}, v4, s[44:47], s67 offen", "q")

    def init_v():
        e("v_and_b32 v6, 27, v2")
        e("v_cmp_eq_u32 vcc, 16, v6")
        e(f"v_mov_b32 v7, {hex(ONES)}")
        e("s_nop 0")
        e("v_cndmask_b32 v7, 0, v7, vcc")
        for r in range(24, 56):
            e(f"v_mov_b32 v{r}, v7")

    def load_kv(buf, soff, imm=0, tag="kv"):
        e.vmem(f"buffer_load_dwordx4 {vr(KB[buf], 4)}, v4, s[44:47], {soff} offen offset:{imm}", tag + "k")
        e("s_mov_b64 exec, s[50:51]")
        e.vmem(f"buffer_load_dwordx4 {vr(VB[buf], 4)}, v5, s[44:47], {soff} offen offset:{imm}", tag + "v")
        e.vmem(f"buffer_load_dwordx4 {vr(VB[buf] + 4, 4)}, v5, s[44:47], {soff} offen offset:{imm + 512}", tag + "v")
        e("s_mov_b64 exec, -1")

    load_q()
    init_v()
    load_kv(0, "s68", 0, "a")
    load_kv(1, "s68", 2048, "b")
    e("s_add_u32 s69, s68, 4096")
    load_kv(2, "s69", 0, "c")
    e("s_add_u32 s69, s69, 2048")
    for r in range(P, P + 8):
        e(f"v_mov_b32 v{r}, 0")
    for r in range(128, 256):
        e(f"v_mov_b32 v{r}, 0")
    e("s_barrier")
    e.vwait("av")
    stamp(e, 2)
    cstamp(e, 8)
    mfma32(e, S[0], KB[0], Q(0))
    e("s_mov_b32 s70, 4")
    e("s_nop 7")
    e("s_nop 2")

    def slot(kb, q):
        t = q
        Sc, Sn = S[t & 1], S[(t + 1) & 1]
        kn_, kp = (kb + 1) % NB, (kb - 1) % NB
        if q < 7:
            mfma32(e, Sn, KB[kb], Q(q + 1))
        else:
            mfma32(e, Sn, KB[kn_], Q(0))
        for i in range(6):
            e(f"v_exp_f32 v{Sc + i}, v{Sc + i}")
        if q == 0:
            mfma32(e, ACC(7), VB[kp] + 4, P + 4, ACC(7))
        else:
            mfma32(e, ACC(q - 1), VB[kb] + 4, P + 4, ACC(q - 1))
        for i in range(6, 8):
            e(f"v_exp_f32 v{Sc + i}, v{Sc + i}")
        if q == 0:
            load_kv(kp, "s69", 0, "l")
        for c in range(4):
            e(f"v_cvt_pk_bf16_f32 v{P + c}, v{Sc + 2 * c}, v{Sc + 2 * c + 1}")
        e(f"v_exp_f32 v{Sc + 8}, v{Sc + 8}")
        if q == 0:
            e("s_waitcnt vmcnt(9)")
        e(f"v_exp_f32 v{Sc + 9}, v{Sc + 9}")
        mfma32(e, ACC(q), VB[kb], P, ACC(q))
        for i in range(10, 16):
            e(f"v_exp_f32 v{Sc + i}, v{Sc + i}")
            if q == 0 and i == 10:
                e("s_add_u32 s69, s69, 2048")
            if q == 6 and i == 15:
                e("s_waitcnt vmcnt(8)")
        for c in range(4, 8):
            e(f"v_cvt_pk_bf16_f32 v{P + c}, v{Sc + 2 * c}, v{Sc + 2 * c + 1}")

    e.raw(".p2align 6")
    e.label("K2_LOOP")
    for kb in range(NB):
        for q in range(8):
            e.vm = []
            slot(kb, q)
    e("s_sub_u32 s70, s70, 1")
    e("s_cmp_lg_u32 s70, 0")
    e("s_cbranch_scc1 K2_LOOP")
    e("s_nop 1")
    mfma32(e, ACC(7), VB[NB - 1] + 4, P + 4, ACC(7))
    e("s_waitcnt vmcnt(0)")
    e.vm = []
    stamp(e, 3)
    cstamp(e, 9)
    e.label("K2_DUMP0")
    e("s_barrier")
    e.label("K2_DUMP")
    e(f"s_mul_i32 s67, s60, {8 * 2304}")
    e(f"s_add_u32 s67, s67, {L_REDB}")
    e("v_add_u32 v6, s67, v4")
    e("v_lshl_add_u32 v7, v1, 2, s67")
    e("s_nop 12")
    for q in range(8):
        e(f"ds_write_b128 v6, {vr(ACC(q), 4)} offset:{q * 2304}")
        e(f"ds_write_b128 v6, {vr(ACC(q) + 4, 4)} offset:{q * 2304 + 1024}")
        e(f"ds_write_b32 v7, v{ACC(q) + 8} offset:{q * 2304 + 2048}")
        if q >= 3:
            e("s_waitcnt lgkmcnt(9)")
    e("s_waitcnt lgkmcnt(0)")
    e.label("K2_BAR1")
    e("s_barrier")
    stamp(e, 4)
    e("s_mul_i32 s67, s60, 2304")
    e(f"s_add_u32 s67, s67, {L_REDB}")
    e("v_add_u32 v6, s67, v4")
    e("v_lshl_add_u32 v7, v1, 2, s67")
    for wp in range(4):
        e(f"ds_read_b128 {vr(8 + wp * 8, 4)}, v6 offset:{wp * 18432}")
        e(f"ds_read_b128 {vr(12 + wp * 8, 4)}, v6 offset:{wp * 18432 + 1024}")
        e(f"ds_read_b32 v{40 + wp}, v7 offset:{wp * 18432 + 2048}")
    e("s_and_b32 s67, s60, 1")
    e("s_lshl_b32 s71, s61, 1")
    e("s_add_u32 s67, s67, s71")
    e("s_lshl_b32 s67, s67, 5")
    e("s_lshl_b32 s71, s62, 2")
    e("s_add_u32 s67, s67, s71")
    e("s_lshr_b32 s71, s60, 1")
    e("s_add_u32 s67, s67, s71")
    e("s_lshl_b32 s67, s67, 10")
    e(f"s_add_u32 s67, s67, {hex(WS_OF)}")
    e("v_mov_b32 v45, 0x37800000")
    e("v_mov_b32 v44, 0x5f800000")
    e("s_waitcnt lgkmcnt(0)")
    sum4(e, 40, 40, 41, 42, 43)
    e("v_rcp_f32 v41, v40")
    for i in range(8):
        sum4(e, 8 + i, 8 + i, 16 + i, 24 + i, 32 + i)
    e("v_fma_f32 v42, v8, 0, v40")
    for i in range(1, 8):
        e(f"v_fma_f32 v42, v{8 + i}, 0, v42")
    for i in range(8):
        e(f"v_mul_f32 v{8 + i}, v41, v{8 + i}")
    e("v_cmp_nle_f32 vcc, v45, v42")
    e("v_cmp_nle_f32 s[72:73], v42, v44")
    for c in range(4):
        e(f"v_cvt_pk_bf16_f32 v{16 + c}, v{8 + 2 * c}, v{9 + 2 * c}")
    e("s_or_b64 vcc, vcc, s[72:73]")
    e("s_cmp_lg_u32 s59, 0")
    e("s_cbranch_scc1 K2_STORED")
    e("s_cmp_lg_u32 s63, 0")
    e("s_cbranch_scc1 K2_DOSTORE")
    e("s_cmp_eq_u64 vcc, 0")
    e("s_cbranch_scc1 K2_DOSTORE")
    e("v_mov_b32 v6, 1")
    e(f"v_mov_b32 v7, {L_CNT + 4}")
    e("ds_write_b32 v7, v6")
    e("s_branch K2_STORED")
    e.label("K2_DOSTORE")
    e("buffer_store_dwordx4 v[16:19], v4, s[44:47], s67 offen sc1")
    e("s_mov_b32 s59, 1")
    e.label("K2_STORED")
    e("s_waitcnt lgkmcnt(0)")
    e("s_barrier")
    stamp(e, 5)
    e("s_cmp_lg_u32 s63, 0")
    e("s_cbranch_scc1 K2_POST")
    e(f"v_mov_b32 v7, {L_CNT + 4}")
    e("ds_read_b32 v6, v7")
    e("s_waitcnt lgkmcnt(0)")
    e("v_readfirstlane_b32 s67, v6")
    e("s_nop 3")
    e("s_cmp_lg_u32 s67, 0")
    e("s_cbranch_scc1 K2_SLOW")
    e.label("K2_POST")
    e("s_cmp_ge_u32 s60, 4")
    e("s_cbranch_scc1 K2_H2")
    e("s_lshr_b32 s71, s60, 1")
    e("s_and_b32 s72, s60, 1")
    e("s_lshl_b32 s73, s61, 6")
    e("s_lshl_b32 s67, s71, 5")
    e("s_add_u32 s73, s73, s67")
    e("v_add_u32 v8, s73, v2")
    e("v_lshlrev_b32 v9, 10, v8")
    e("v_lshl_add_u32 v9, v3, 6, v9")
    e("s_lshl_b32 s74, s62, 7")
    e("s_lshl_b32 s67, s72, 5")
    e("s_add_u32 s74, s74, s67")
    e("buffer_load_dwordx4 v[16:19], v9, s[20:23], s74 offen")
    e("buffer_load_dwordx4 v[20:23], v9, s[20:23], s74 offen offset:16")
    e("v_lshlrev_b32 v10, 3, v8")
    e(f"s_mov_b32 s67, {hex(WS_STATS)}")
    e("buffer_load_dwordx2 v[12:13], v10, s[44:47], s67 offen")
    e(f"v_mov_b32 v7, {L_SEL}")
    e("ds_read_b128 v[28:31], v7")
    for i in range(16):
        e(f"v_mov_b32 v{64 + i}, 0")
    e("v_lshlrev_b32 v11, 7, v3")
    e("s_lshl_b32 s67, s72, 6")
    e("v_add_u32 v11, s67, v11")
    e("s_waitcnt lgkmcnt(0)")
    for sl in range(2):
        e(f"v_cmp_eq_u32 vcc, v{28 + sl}, v8")
        e("s_and_saveexec_b64 s[76:77], vcc")
        e(f"s_cbranch_execz K2_NOY{sl}")
        for hq in range(4):
            for i in range(4):
                e(f"ds_read_b128 {vr(64 + hq * 16 + 4 * i, 4)}, v11 offset:{L_YS + sl * 1024 + hq * 256 + i * 16}")
            if hq == 2:
                e("s_waitcnt lgkmcnt(4)")
        e("s_waitcnt lgkmcnt(0)")
        for i in range(16):
            sum4(e, 64 + i, 64 + i, 80 + i, 96 + i, 112 + i)
            rbf(e, 64 + i, 64 + i)
            e(f"v_mul_f32 v{64 + i}, v{30 + sl}, v{64 + i}")
            rbf(e, 64 + i, 64 + i)
        e.label(f"K2_NOY{sl}")
        e("s_mov_b64 exec, -1")
    e("s_waitcnt vmcnt(0)")
    e("v_rcp_f32 v13, v13")
    for dw in range(8):
        e(f"v_lshlrev_b32 v{32 + 2 * dw}, 16, v{16 + dw}")
        e(f"v_and_b32 v{33 + 2 * dw}, 0xffff0000, v{16 + dw}")
    for dw in range(8):
        a, b = 48 + 2 * dw, 49 + 2 * dw
        e(f"v_sub_f32 v{a}, v{32 + 2 * dw}, v12")
        e(f"v_sub_f32 v{b}, v{33 + 2 * dw}, v12")
        e(f"v_cvt_pk_bf16_f32 v24, v{a}, v{b}")
        e(f"v_lshlrev_b32 v{a}, 16, v24")
        e(f"v_and_b32 v{b}, 0xffff0000, v24")
        e(f"v_mul_f32 v{a}, v13, v{a}")
        e(f"v_mul_f32 v{b}, v13, v{b}")
        e(f"v_cvt_pk_bf16_f32 v24, v{a}, v{b}")
        e(f"v_lshlrev_b32 v{a}, 16, v24")
        e(f"v_and_b32 v{b}, 0xffff0000, v24")
        e(f"v_add_f32 v{a}, v{a}, v{64 + 2 * dw}")
        e(f"v_add_f32 v{b}, v{b}, v{65 + 2 * dw}")
        e(f"v_cvt_pk_bf16_f32 v24, v{a}, v{b}")
        e(f"v_lshlrev_b32 v{a}, 16, v24")
        e(f"v_and_b32 v{b}, 0xffff0000, v24")
        e(f"v_mul_f32 v25, {hex(NLOG2E)}, v{a}")
        e(f"v_mul_f32 v26, {hex(NLOG2E)}, v{b}")
        e("v_exp_f32 v25, v25")
        e("v_exp_f32 v26, v26")
        e("s_nop 0")
        e("v_add_f32 v25, 1.0, v25")
        e("v_add_f32 v26, 1.0, v26")
        e("v_rcp_f32 v25, v25")
        e("v_rcp_f32 v26, v26")
        e("s_nop 0")
        e(f"v_mul_f32 v{a}, v25, v{a}")
        e(f"v_mul_f32 v{b}, v26, v{b}")
        e(f"v_cvt_pk_bf16_f32 v24, v{a}, v{b}")
        e(f"v_lshlrev_b32 v{a}, 16, v24")
        e(f"v_and_b32 v{b}, 0xffff0000, v24")
    e("s_lshl_b32 s67, s60, 12")
    e(f"s_add_u32 s67, s67, {L_REDB}")
    e("v_add_u32 v10, s67, v4")
    stamp(e, 6)
    e("s_barrier")
    stamp(e, 7)
    AR = lambda hq, rq: 64 + (hq * 4 + rq) * 4
    for hq in range(4):
        for rq in range(4):
            e(f"ds_read_b128 {vr(AR(hq, rq), 4)}, v10 offset:{hq * 16384 + rq * 1024}")
        if hq == 2:
            e("s_waitcnt lgkmcnt(4)")
    e("s_waitcnt lgkmcnt(0)")
    for r in range(16):
        a = 64 + r
        sum4(e, a, a, a + 16, a + 32, a + 48)
        e(f"v_fma_f32 v{a}, v{a}, v{48 + r}, v{32 + r}")
        if r & 1:
            e(f"v_cvt_pk_bf16_f32 v{16 + r // 2}, v{a - 1}, v{a}")
    e("buffer_store_dwordx4 v[16:19], v9, s[40:43], s74 offen")
    e("buffer_store_dwordx4 v[20:23], v9, s[40:43], s74 offen offset:16")
    stamp_flush(e, 1, 44, 60)
    e("s_endpgm")

    e.label("K2_SLOW")
    e("s_mov_b32 s63, 1")
    e("s_cmp_ge_u32 s60, 4")
    e("s_cbranch_scc1 K2_SLOW_H")
    e.vm = []
    init_v()
    load_q()
    MXR = 8
    for q in range(8):
        e(f"v_mov_b32 v{MXR + q}, 0xff7fffff")
    for r in range(128, 256):
        e(f"v_mov_b32 v{r}, 0")
    e("s_mov_b32 s69, s68")
    e("s_mov_b32 s70, 16")
    e.label("K2_SLOW_P1")
    e.vmem(f"buffer_load_dwordx4 {vr(KB[3], 4)}, v4, s[44:47], s69 offen", "k")
    e.vwait(None)
    for q in range(8):
        mfma32(e, S[0], KB[3], Q(q))
        e("s_nop 15")
        for i in range(8):
            e(f"v_max3_f32 v{MXR + q}, v{S[0] + 2 * i}, v{S[0] + 2 * i + 1}, v{MXR + q}")
    e("s_add_u32 s69, s69, 2048")
    e("s_sub_u32 s70, s70, 1")
    e("s_cmp_lg_u32 s70, 0")
    e("s_cbranch_scc1 K2_SLOW_P1")
    for q in range(8):
        e(f"v_mov_b32 v16, v{MXR + q}")
        e("s_nop 1")
        e(f"v_permlane32_swap_b32 v{MXR + q}, v16")
        e("s_nop 1")
        e(f"v_max_f32 v{MXR + q}, v{MXR + q}, v16")
    e("s_lshl_b32 s67, s60, 10")
    e("v_lshl_add_u32 v6, v2, 2, s67")
    for q in range(8):
        e(f"ds_write_b32 v6, v{MXR + q} offset:{L_MX + q * 128}")
    e("s_waitcnt lgkmcnt(0)")
    e("s_barrier")
    e("v_lshlrev_b32 v6, 2, v2")
    for q in range(8):
        for wp in range(4):
            e(f"ds_read_b32 v{16 + wp}, v6 offset:{L_MX + wp * 1024 + q * 128}")
        e("s_waitcnt lgkmcnt(0)")
        e(f"v_max3_f32 v{MXR + q}, v16, v17, v18")
        e(f"v_max_f32 v{MXR + q}, v{MXR + q}, v19")
    e("s_mov_b32 s69, s68")
    e("s_mov_b32 s70, 16")
    e.label("K2_SLOW_P2")
    load_kv(3, "s69", 0, "s")
    e.vwait(None)
    for q in range(8):
        mfma32(e, S[0], KB[3], Q(q))
        e("s_nop 15")
        for i in range(16):
            e(f"v_sub_f32 v{S[0] + i}, v{S[0] + i}, v{MXR + q}")
        for i in range(16):
            e(f"v_exp_f32 v{S[0] + i}, v{S[0] + i}")
        e("s_nop 0")
        for c in range(8):
            e(f"v_cvt_pk_bf16_f32 v{P + c}, v{S[0] + 2 * c}, v{S[0] + 2 * c + 1}")
        e("s_nop 1")
        mfma32(e, ACC(q), VB[3], P, ACC(q))
        mfma32(e, ACC(q), VB[3] + 4, P + 4, ACC(q))
    e("s_add_u32 s69, s69, 2048")
    e("s_sub_u32 s70, s70, 1")
    e("s_cmp_lg_u32 s70, 0")
    e("s_cbranch_scc1 K2_SLOW_P2")
    e("s_nop 3")
    e("s_branch K2_DUMP")
    e.label("K2_SLOW_H")
    e("s_barrier")
    e("s_branch K2_BAR1")

    e.label("K2_H")
    e.vm = []
    e("s_setprio 2")
    e("s_sub_u32 s66, s60, 4")
    e("v_and_b32 v8, 15, v1")
    e("v_lshrrev_b32 v9, 4, v1")
    e("v_lshlrev_b32 v6, 3, v2")
    e(f"s_mov_b32 s67, {hex(WS_KEYS)}")
    e.vmem("buffer_load_dwordx2 v[10:11], v6, s[44:47], s67 offen", "keys")
    e("s_mul_i32 s64, s56, 28")
    e("s_add_u32 s64, s64, s57")
    e("s_mul_i32 s65, s66, 6144")
    e(f"s_add_u32 s65, s65, {L_REDB}")
    e(f"s_cmp_ge_u32 s57, {FFNLIM}")
    e("s_cbranch_scc1 K2_H_NOFFN0")
    e("s_movk_i32 s67, 3584")
    e("v_mul_lo_u32 v16, v1, s67")
    e(f"s_mul_i32 s68, s66, {128 * 3584}")
    e("s_lshl_b32 s67, s64, 4")
    e("s_add_u32 s68, s68, s67")
    for m in range(2):
        for n in range(2):
            e(f"s_add_u32 m0, s65, {m * 2048 + n * 1024}")
            e(f"s_add_u32 s67, s68, {n * 64 * 3584}")
            e(f"buffer_load_dwordx4 v16, s[{28 + 4 * m}:{31 + 4 * m}], s67 offen lds")
    e("v_lshlrev_b32 v17, 10, v9")
    e("v_lshl_add_u32 v17, v8, 4, v17")
    e("s_lshl_b32 s68, s64, 13")
    e("s_lshl_b32 s67, s66, 8")
    e("s_add_u32 s68, s68, s67")
    for n in range(2):
        e(f"s_add_u32 m0, s65, {4096 + n * 1024}")
        e(f"s_add_u32 s67, s68, {n * 4096}")
        e("buffer_load_dwordx4 v17, s[36:39], s67 offen lds")
    e.label("K2_H_NOFFN0")
    e("v_lshrrev_b32 v6, 3, v1")
    e("v_and_b32 v12, 7, v1")
    e("v_lshlrev_b32 v12, 4, v12")
    e("v_lshl_add_u32 v12, v6, 10, v12")
    e("s_lshl_b32 s68, s66, 17")
    e("s_lshl_b32 s67, s62, 7")
    e("s_add_u32 s68, s68, s67")
    e("s_lshl_b32 s69, s66, 14")
    e(f"s_add_u32 s69, s69, {L_WO}")
    for n in range(16):
        if n % 4 == 0:
            e(f"s_add_u32 m0, s69, {(n >> 2) * 4096}")
        e(f"s_add_u32 s67, s68, {n * 8192 - (n & 3) * 1024}")
        e.vmem(f"buffer_load_dwordx4 v12, s[24:27], s67 offen offset:{(n & 3) * 1024} lds", "wo")
    e("s_cmp_lg_u32 s66, 0")
    e("s_cbranch_scc1 K2_H_NOINIT")
    e("v_mov_b32 v6, 0")
    e("v_mov_b32 v7, 0")
    e(f"v_mov_b32 v16, {L_CNT}")
    e("ds_write_b64 v16, v[6:7]")
    e("s_waitcnt lgkmcnt(0)")
    e.label("K2_H_NOINIT")
    e("s_barrier")
    e("s_waitcnt vmcnt(16)")
    e("v_mov_b32 v18, v10")
    dpp_umax_reduce(e, 18)
    e("v_readlane_b32 s70, v18, 63")
    e("s_nop 1")
    e("v_cmp_eq_u32 vcc, s70, v10")
    e("s_nop 1")
    e("v_cndmask_b32 v18, v10, v11, vcc")
    dpp_umax_reduce(e, 18)
    e("v_readlane_b32 s71, v18, 63")
    e("s_nop 3")
    e("s_and_b32 s72, s70, 0xffff")
    e("s_sub_u32 s72, 0xffff, s72")
    e("s_and_b32 s73, s71, 0xffff")
    e("s_sub_u32 s73, 0xffff, s73")
    e("s_and_b32 s72, s72, 2047")
    e("s_and_b32 s73, s73, 2047")
    stamp(e, 2)
    e(f"s_cmp_ge_u32 s57, {FFNLIM}")
    e("s_cbranch_scc1 K2_H_NOFFN1")
    e("v_mov_b32 v18, s72")
    e("v_mov_b32 v19, s73")
    e("v_cmp_eq_u32 vcc, 0, v3")
    e("s_nop 1")
    e("v_cndmask_b32 v18, v19, v18, vcc")
    e("v_lshlrev_b32 v19, 10, v18")
    e("v_lshl_add_u32 v19, v2, 3, v19")
    e("s_lshl_b32 s67, s66, 8")
    e("buffer_load_dwordx2 v[20:21], v19, s[20:23], s67 offen")
    e("v_lshlrev_b32 v19, 3, v18")
    e(f"s_mov_b32 s67, {hex(WS_STATS)}")
    e("buffer_load_dwordx2 v[22:23], v19, s[44:47], s67 offen")
    e("v_bfe_u32 v24, v1, 2, 2")
    e("v_lshl_add_u32 v25, v9, 3, v24")
    e("v_lshlrev_b32 v25, 4, v25")
    e("v_bfe_u32 v26, v1, 1, 1")
    e("v_lshl_add_u32 v25, v26, 11, v25")
    e("v_and_b32 v26, 1, v1")
    e("v_lshl_add_u32 v25, v26, 3, v25")
    e("v_add_u32 v25, s65, v25")
    GA = lambda ks: 64 + 4 * ks
    for ks in range(4):
        for u in range(2):
            e(f"ds_read_b64_tr_b16 {vr(GA(ks) + 2 * u, 2)}, v25 offset:{(32 * ks + 4 * u) * 16}")
    e("v_and_b32 v24, 1, v24")
    e("v_lshl_add_u32 v24, v9, 1, v24")
    e("v_lshlrev_b32 v24, 8, v24")
    e("v_and_b32 v26, 3, v1")
    e("v_lshl_add_u32 v24, v26, 3, v24")
    e("v_add_u32 v24, s65, v24")
    DF = lambda ee: 96 + 4 * ee
    e("s_waitcnt lgkmcnt(4)")
    for ee in range(8):
        e(f"ds_read_b64_tr_b16 {vr(DF(ee), 2)}, v24 offset:{4096 + 32 * ee}")
        e(f"v_mov_b32 v{DF(ee) + 2}, 0")
        e(f"v_mov_b32 v{DF(ee) + 3}, 0")
    e("s_waitcnt vmcnt(0)")
    e("v_rcp_f32 v23, v23")
    for d in range(2):
        e(f"v_lshlrev_b32 v26, 16, v{20 + d}")
        e(f"v_and_b32 v27, 0xffff0000, v{20 + d}")
        e("v_sub_f32 v26, v26, v22")
        e("v_sub_f32 v27, v27, v22")
        e("v_cvt_pk_bf16_f32 v28, v26, v27")
        e("v_lshlrev_b32 v26, 16, v28")
        e("v_and_b32 v27, 0xffff0000, v28")
        e("v_mul_f32 v26, v23, v26")
        e("v_mul_f32 v27, v23, v27")
        e(f"v_cvt_pk_bf16_f32 v{20 + d}, v26, v27")
    e("s_lshl_b32 s67, s66, 9")
    e("v_lshlrev_b32 v19, 8, v3")
    e("v_lshl_add_u32 v19, v2, 3, v19")
    e("v_add_u32 v19, s67, v19")
    e("s_waitcnt lgkmcnt(0)")
    e(f"ds_write_b64 v19, v[20:21] offset:{L_XS}")
    e("v_and_b32 v19, 1, v8")
    e("v_lshlrev_b32 v19, 8, v19")
    e("v_lshl_add_u32 v19, v9, 4, v19")
    e("v_add_u32 v19, s67, v19")
    XB = lambda ks: 80 + 4 * ks
    for ks in range(4):
        e(f"ds_read_b128 {vr(XB(ks), 4)}, v19 offset:{L_XS + 64 * ks}")
    e("s_waitcnt lgkmcnt(0)")
    for ks in range(4):
        mfma16(e, 48, GA(ks), XB(ks), None if ks == 0 else 48)
    e("s_lshl_b32 s67, s66, 10")
    e("v_add_u32 v19, s67, v4")
    e(f"v_mov_b32 v18, {L_CNT}")
    e("v_mov_b32 v26, 1")
    e("s_nop 4")
    e(f"ds_write_b128 v19, v[48:51] offset:{L_FP}")
    e("s_waitcnt lgkmcnt(0)")
    e("s_mov_b64 exec, 1")
    e("ds_add_u32 v18, v26")
    e("s_mov_b64 exec, -1")
    e("v_lshrrev_b32 v27, 1, v9")
    e("v_lshl_add_u32 v27, v27, 4, v8")
    e("v_lshlrev_b32 v27, 4, v27")
    e("v_and_b32 v28, 1, v9")
    e("v_lshl_add_u32 v27, v28, 3, v27")
    e.label("K2_H_SPIN1")
    e("ds_read_b32 v19, v18")
    e("s_waitcnt lgkmcnt(0)")
    e("v_readfirstlane_b32 s67, v19")
    e("s_nop 3")
    e("s_cmp_ge_u32 s67, 4")
    e("s_cbranch_scc1 K2_H_SPIN1_DONE")
    e("s_sleep 1")
    e("s_branch K2_H_SPIN1")
    e.label("K2_H_SPIN1_DONE")
    for wp in range(4):
        e(f"ds_read_b64 {vr(64 + 4 * wp, 2)}, v27 offset:{L_FP + wp * 1024}")
        e(f"ds_read_b64 {vr(66 + 4 * wp, 2)}, v27 offset:{L_FP + wp * 1024 + 512}")
    e("v_mov_b32 v41, 0")
    e("v_mov_b32 v42, 0")
    e("v_mov_b32 v43, 0")
    e("s_waitcnt lgkmcnt(0)")
    for i in range(4):
        sum4(e, 64 + i, 64 + i, 68 + i, 72 + i, 76 + i)
    g0, g1, u0, u1 = 64, 65, 66, 67
    e(f"v_cvt_pk_bf16_f32 v24, v{g0}, v{g1}")
    e(f"v_cvt_pk_bf16_f32 v25, v{u0}, v{u1}")
    e(f"v_lshlrev_b32 v{g0}, 16, v24")
    e(f"v_and_b32 v{g1}, 0xffff0000, v24")
    e(f"v_lshlrev_b32 v{u0}, 16, v25")
    e(f"v_and_b32 v{u1}, 0xffff0000, v25")
    e(f"v_mul_f32 v24, {hex(NLOG2E)}, v{g0}")
    e(f"v_mul_f32 v25, {hex(NLOG2E)}, v{g1}")
    e("v_exp_f32 v24, v24")
    e("v_exp_f32 v25, v25")
    e("s_nop 0")
    e("v_add_f32 v24, 1.0, v24")
    e("v_add_f32 v25, 1.0, v25")
    e("v_rcp_f32 v24, v24")
    e("v_rcp_f32 v25, v25")
    e("s_nop 0")
    e(f"v_mul_f32 v{g0}, v24, v{g0}")
    e(f"v_mul_f32 v{g1}, v25, v{g1}")
    e(f"v_cvt_pk_bf16_f32 v24, v{g0}, v{g1}")
    e(f"v_lshlrev_b32 v{g0}, 16, v24")
    e(f"v_and_b32 v{g1}, 0xffff0000, v24")
    e(f"v_mul_f32 v{g0}, v{g0}, v{u0}")
    e(f"v_mul_f32 v{g1}, v{g1}, v{u1}")
    e(f"v_cvt_pk_bf16_f32 v40, v{g0}, v{g1}")
    e("v_lshlrev_b32 v19, 11, v8")
    e("v_lshl_add_u32 v19, v9, 4, v19")
    for ee in range(8):
        mfma16(e, 64 + 4 * ee, DF(ee), 40)
    e("s_lshl_b32 s67, s64, 12")
    e("s_lshl_b32 s74, s66, 9")
    e("s_add_u32 s67, s67, s74")
    e(f"s_add_u32 s67, s67, {hex(WS_YP)}")
    e("s_mov_b32 exec_lo, 0x00030003")
    e("s_mov_b32 exec_hi, 0x00030003")
    e("s_nop 3")
    for ee in range(8):
        e(f"buffer_store_dwordx4 {vr(64 + 4 * ee, 4)}, v19, s[44:47], s67 offen offset:{64 * ee} sc1")
    e("s_lshl_b32 s67, s66, 10")
    e("s_lshl_b32 s74, s64, 2")
    e("s_add_u32 s67, s67, s74")
    e(f"s_add_u32 s67, s67, {hex(WS_FLAGS)}")
    e("s_mov_b64 exec, 1")
    e("v_mov_b32 v18, 0")
    e("s_waitcnt vmcnt(0)")
    e("buffer_store_dword v26, v18, s[44:47], s67 offen sc1")
    e("s_mov_b64 exec, -1")
    e.label("K2_H_NOFFN1")
    stamp(e, 3)
    e("s_cmp_lg_u32 s66, 0")
    e("s_cbranch_scc1 K2_H_NOSEL")
    e("s_mov_b32 s77, 0xffff0000")
    for sl in range(2):
        e(f"s_and_b32 s75, s{70 + sl}, 0xffff0000")
        e("s_cmp_lt_i32 s75, 0")
        e("s_cselect_b32 s76, 0x80000000, s77")
        e("s_xor_b32 s75, s75, s76")
        e(f"v_mov_b32 v{22 + sl}, s75")
        e(f"v_mul_f32 v{22 + sl}, {hex(NLOG2E)}, v{22 + sl}")
        e(f"v_exp_f32 v{22 + sl}, v{22 + sl}")
        e("s_nop 0")
        e(f"v_add_f32 v{22 + sl}, 1.0, v{22 + sl}")
        e(f"v_rcp_f32 v{22 + sl}, v{22 + sl}")
        e("s_nop 0")
        rbf(e, 22 + sl, 22 + sl)
    e("v_mov_b32 v20, s72")
    e("v_mov_b32 v21, s73")
    e(f"v_mov_b32 v18, {L_SEL}")
    e("ds_write_b128 v18, v[20:23]")
    e.label("K2_H_NOSEL")
    for sl in range(2):
        e(f"s_lshr_b32 s67, s{72 + sl}, 6")
        e("s_cmp_lg_u32 s67, s61")
        e(f"s_cbranch_scc1 K2_H_NOCONS{sl}")
        if XNOFFN:
            e(f"s_branch K2_H_NOCONS{sl}")
        e("s_lshr_b32 s67, s62, 1")
        e("s_lshl_b32 s67, s67, 10")
        e("s_mul_i32 s74, s66, 224")
        e("s_add_u32 s67, s67, s74")
        e(f"s_add_u32 s67, s67, {hex(WS_FLAGS)}")
        e("v_lshlrev_b32 v18, 2, v1")
        e("s_mov_b32 s76, 0x40000")
        e("s_mov_b32 exec_hi, 0x00ffffff")
        e.label(f"K2_H_SPIN2_{sl}")
        e("buffer_load_dword v19, v18, s[44:47], s67 offen sc1")
        e("s_waitcnt vmcnt(0)")
        e("v_cmp_ne_u32 vcc, 1, v19")
        e("s_cmp_eq_u64 vcc, 0")
        e(f"s_cbranch_scc1 K2_H_SPIN2_DONE{sl}")
        e("s_sleep 8")
        e("s_sub_u32 s76, s76, 1")
        e("s_cmp_lg_u32 s76, 0")
        e(f"s_cbranch_scc1 K2_H_SPIN2_{sl}")
        e.label(f"K2_H_SPIN2_DONE{sl}")
        e("s_mov_b64 exec, -1")
        e("v_lshlrev_b32 v18, 12, v9")
        e("v_lshl_add_u32 v18, v8, 4, v18")
        e(f"s_mul_i32 s67, s66, {56 * 4096}")
        e("s_lshl_b32 s74, s62, 8")
        e("s_add_u32 s67, s67, s74")
        e(f"s_add_u32 s67, s67, {hex(WS_YP + sl * 2048)}")
        for i in range(14):
            e(f"buffer_load_dwordx4 {vr(64 + 4 * i, 4)}, v18, s[44:47], s67 offen sc1")
            e("s_add_u32 s67, s67, 16384")
        e("s_waitcnt vmcnt(0)")
        for i in range(1, 14):
            for c in range(4):
                e(f"v_add_f32 v{64 + c}, v{64 + c}, v{64 + 4 * i + c}")
        swap_add(e, 64, 65)
        swap_add(e, 66, 67)
        e("s_nop 1")
        e("v_permlane16_swap_b32 v64, v66")
        e("s_nop 1")
        e("v_add_f32 v64, v64, v66")
        e("v_and_b32 v19, 1, v9")
        e("v_lshrrev_b32 v20, 1, v9")
        e("v_lshl_add_u32 v19, v19, 1, v20")
        e("v_lshl_add_u32 v19, v8, 2, v19")
        e("v_lshlrev_b32 v19, 2, v19")
        e("s_lshl_b32 s67, s66, 8")
        e("v_add_u32 v19, s67, v19")
        e(f"ds_write_b32 v19, v64 offset:{L_YS + sl * 1024}")
        e.label(f"K2_H_NOCONS{sl}")
    stamp(e, 9)
    e("v_bfe_u32 v16, v1, 2, 2")
    e("v_lshl_add_u32 v16, v3, 2, v16")
    e("v_lshlrev_b32 v16, 7, v16")
    e("v_and_b32 v17, 1, v1")
    e("v_lshl_add_u32 v16, v17, 6, v16")
    e("v_bfe_u32 v17, v1, 4, 1")
    e("v_lshl_add_u32 v16, v17, 4, v16")
    e("v_bfe_u32 v17, v1, 1, 1")
    e("v_lshl_add_u32 v16, v17, 3, v16")
    e("v_add_u32 v16, s69, v16")
    e("s_waitcnt vmcnt(0)")
    WOF = lambda hd, nt: 160 + (hd * 2 + nt) * 4
    for hd in range(8):
        for nt in range(2):
            for u in range(2):
                e(f"ds_read_b64_tr_b16 {vr(WOF(hd, nt) + 2 * u, 2)}, v16 offset:{(16 * hd + 8 * u) * 128 + nt * 32}")
        if hd % 2 == 1:
            e("s_waitcnt lgkmcnt(4)")
    e("s_waitcnt lgkmcnt(0)")
    stamp(e, 8)
    e("s_setprio 0")
    e("s_barrier")
    e("s_branch K2_BAR1")

    e.label("K2_H2")
    e("s_mov_b32 s76, 0x10000")
    e("s_lshl_b32 s68, s61, 16")
    e("s_lshl_b32 s67, s66, 13")
    e("s_add_u32 s68, s68, s67")
    e(f"s_add_u32 s68, s68, {hex(WS_OF)}")
    OFR = lambda tt, hd: 8 + (tt * 8 + hd) * 4
    OA = lambda tt, nt: 96 + (tt * 2 + nt) * 16
    e.label("K2_H_SPIN3")
    for hd in range(8):
        for tt in range(2):
            e(f"s_add_u32 s67, s68, {tt * 32768 + (hd & 4) * 1024}")
            e(f"buffer_load_dwordx4 {vr(OFR(tt, hd), 4)}, v4, s[44:47], s67 offen offset:{(hd & 3) * 1024} sc1")
    e("s_waitcnt vmcnt(0)")
    e("v_max3_u32 v72, v8, v9, v10")
    for r in range(11, 71, 2):
        e(f"v_max3_u32 v72, v{r}, v{r + 1}, v72")
    e("v_max_u32 v72, v71, v72")
    e("v_cmp_eq_u32 vcc, -1, v72")
    e("s_cmp_eq_u64 vcc, 0")
    e("s_cbranch_scc1 K2_H_SPIN3_DONE")
    e("s_sleep 4")
    e("s_sub_u32 s76, s76, 1")
    e("s_cmp_lg_u32 s76, 0")
    e("s_cbranch_scc1 K2_H_SPIN3")
    e.label("K2_H_SPIN3_DONE")
    stamp(e, 6)
    for hd in range(8):
        for tt in range(2):
            for nt in range(2):
                mfma32(e, OA(tt, nt), WOF(hd, nt), OFR(tt, hd), None if hd == 0 else OA(tt, nt))
    e("s_lshl_b32 s67, s66, 14")
    e(f"s_add_u32 s67, s67, {L_REDB}")
    e("v_add_u32 v6, s67, v4")
    e("s_nop 15")
    for tt in range(2):
        for nt in range(2):
            for rq in range(4):
                e(f"ds_write_b128 v6, {vr(OA(tt, nt) + 4 * rq, 4)} offset:{((tt * 2 + nt) * 4 + rq) * 1024}")
            e("s_waitcnt lgkmcnt(8)")
    e("s_waitcnt lgkmcnt(0)")
    stamp(e, 7)
    e("s_barrier")
    stamp_flush(e, 1, 44, 60)
    e.label("K2_END")
    e("s_endpgm")
    return kn, 256, LDS_SIZE


def kd(name, nv, ns=96):
    return f""".p2align 6
.amdhsa_kernel {name}
  .amdhsa_next_free_vgpr {nv}
  .amdhsa_next_free_sgpr {ns}
  .amdhsa_accum_offset {(nv + 3) // 4 * 4}
  .amdhsa_group_segment_fixed_size 0
  .amdhsa_kernarg_size 104
  .amdhsa_user_sgpr_count 2
  .amdhsa_user_sgpr_kernarg_segment_ptr 1
  .amdhsa_system_sgpr_workgroup_id_x 1
  .amdhsa_float_denorm_mode_32 3
.end_amdhsa_kernel
"""


def main():
    e = Asm()
    k1, nv1, lds1 = gen_k1(e)
    k2, nv2, lds2 = gen_k2(e)
    head = f"""; MQA attention + mixture-of-depths FFN, generated by gen/gen2.py (hand-written generator)
; @launch kernel={k1} grid=(256,1,1) block=(256,1,1) lds={lds1}
; @launch kernel={k2} grid=(256,1,1) block=(512,1,1) lds={lds2}
.amdgcn_target "amdgcn-amd-amdhsa--gfx950"
.text
"""
    tail = '.section .rodata,"a"\n' + kd(k1, nv1) + kd(k2, nv2)
    args = [a for a in sys.argv[1:] if not a.startswith("--")]
    out = args[0] if args else f"cdna_kernels/{NAME}.s"
    with open(out, "w") as f:
        f.write(head + e.text() + tail)


if __name__ == "__main__":
    main()
```

```python
import sys

NAME = "recurrent_scan__grouped_kv_mqa__moe_arch_mod__prompt"

WS_QF = 0x000000
WS_KV = 0x200000
WS_KEYS = 0x220000
WS_STATS = 0x221000
WS_FLAGS = 0x226000
WS_OF = 0x300000
WS_YP = 0x500000
WS_PROF = 0x600000
WS_SIZE = 0x700000

QSCALE = 0x3eb8aa3b
NLOG2E = 0xbfb8aa3b
ONES = 0x3f803f80
EPS = 0x3727c5ac
INV512 = 0x3b000000

PROF = "--prof" in sys.argv
XNOFFN = "--xnoffn" in sys.argv
DBGOUT = "--dbgout" in sys.argv
FFNLIM = 0 if XNOFFN else 28


class Asm:
    def __init__(self):
        self.lines = []
        self.vm = []

    def __call__(self, s):
        self.lines.append("    " + s)

    def label(self, l):
        self.lines.append(l + ":")

    def raw(self, s):
        self.lines.append(s)

    def vmem(self, s, tag=None):
        self(s)
        self.vm.append(tag)
        assert len(self.vm) <= 63, "too many outstanding vmem ops"

    def vwait(self, tag=None):
        if tag is None:
            self("s_waitcnt vmcnt(0)")
            self.vm = []
            return
        idx = max(i for i, t in enumerate(self.vm) if t == tag)
        n = len(self.vm) - 1 - idx
        self(f"s_waitcnt vmcnt({n})")
        self.vm = self.vm[idx + 1:]

    def text(self):
        return "\n".join(self.lines) + "\n"


def stamp(e, i):
    if not PROF:
        return
    e("s_memrealtime s[78:79]")
    e("s_waitcnt lgkmcnt(0)")
    e(f"s_mov_b32 s{80 + i}, s78")


def cstamp(e, i):
    if not PROF:
        return
    e("s_memtime s[78:79]")
    e("s_waitcnt lgkmcnt(0)")
    e(f"s_mov_b32 s{80 + i}, s78")


def stamp_init(e):
    if PROF:
        for i in range(12):
            e(f"s_mov_b32 s{80 + i}, 0")
    stamp(e, 0)


def stamp_flush(e, kidx, wsrd, wave_sgpr):
    if not PROF:
        return
    stamp(e, 11)
    e("s_mov_b64 exec, 1")
    e("s_lshl_b32 s78, s2, 3")
    e(f"s_add_u32 s78, s78, s{wave_sgpr}")
    e("s_lshl_b32 s78, s78, 6")
    e(f"s_add_u32 s78, s78, {hex(WS_PROF + kidx * 320 * 8 * 64)}")
    e("v_mov_b32 v220, 0")
    for b in range(3):
        for i in range(4):
            e(f"v_mov_b32 v{216 + i}, s{80 + 4 * b + i}")
        e(f"buffer_store_dwordx4 v[216:219], v220, s[{wsrd}:{wsrd + 3}], s78 offen offset:{16 * b}")
        e("s_nop 1")


def vr(a, n=1):
    return f"v{a}" if n == 1 else f"v[{a}:{a + n - 1}]"


def srd(e, d, base, size):
    e(f"s_mov_b32 s{d}, s{base}")
    e(f"s_and_b32 s{d + 1}, s{base + 1}, 0xffff")
    e(f"s_mov_b32 s{d + 2}, {hex(size)}")
    e(f"s_mov_b32 s{d + 3}, 0x00020000")


def rbf(e, d, s):
    e(f"v_cvt_pk_bf16_f32 v{d}, v{s}, v{s}")
    e(f"v_and_b32 v{d}, 0xffff0000, v{d}")


def mfma32(e, d, a, b, c=None):
    cs = "0" if c is None else vr(c, 16)
    e(f"v_mfma_f32_32x32x16_bf16 {vr(d, 16)}, {vr(a, 4)}, {vr(b, 4)}, {cs}")


def mfma16(e, d, a, b, c=None):
    cs = "0" if c is None else vr(c, 4)
    e(f"v_mfma_f32_16x16x32_bf16 {vr(d, 4)}, {vr(a, 4)}, {vr(b, 4)}, {cs}")


def dpp_umax_reduce(e, v):
    for mod in ("row_shr:1 row_mask:0xf bank_mask:0xf bound_ctrl:0",
                "row_shr:2 row_mask:0xf bank_mask:0xf bound_ctrl:0",
                "row_shr:4 row_mask:0xf bank_mask:0xf bound_ctrl:0",
                "row_shr:8 row_mask:0xf bank_mask:0xf bound_ctrl:0",
                "row_bcast:15 row_mask:0xa bank_mask:0xf",
                "row_bcast:31 row_mask:0xc bank_mask:0xf"):
        e("s_nop 1")
        e(f"v_max_u32_dpp v{v}, v{v}, v{v} {mod}")
    e("s_nop 1")


def token_stats(e, sx, sq, mb, db, inv, t0, t1):
    e(f"v_mul_f32 v{t0}, {hex(INV512)}, v{sx}")
    e(f"v_mul_f32 v{t1}, {hex(INV512)}, v{sq}")
    rbf(e, mb, t0)
    e(f"v_fma_f32 v{t1}, -v{t0}, v{t0}, v{t1}")
    e(f"v_max_f32 v{t1}, 0, v{t1}")
    rbf(e, t1, t1)
    e(f"v_add_f32 v{t1}, {hex(EPS)}, v{t1}")
    rbf(e, t1, t1)
    e(f"v_sqrt_f32 v{t1}, v{t1}")
    e("s_nop 0")
    rbf(e, db, t1)
    e(f"v_rcp_f32 v{inv}, v{db}")
    e("s_nop 0")


def swap_add(e, a, b):
    e("s_nop 1")
    e(f"v_permlane32_swap_b32 v{a}, v{b}")
    e("s_nop 1")
    e(f"v_add_f32 v{a}, v{a}, v{b}")


def sum4(e, d, a, b, c, dd):
    e(f"v_add_f32 v{a}, v{a}, v{b}")
    e(f"v_add_f32 v{c}, v{c}, v{dd}")
    e(f"v_add_f32 v{d}, v{a}, v{c}")


def gen_k1(e):
    kn = "mqa_proj_kernel"
    RSZ = 40960
    O_X, O_W, O_KV = 0, 16384, 32768
    e.raw(".p2align 8")
    e.raw(f".globl {kn}")
    e.raw(f".type {kn},@function")
    e.label(kn)
    e("s_cmp_ge_u32 s2, 256")
    e("s_cbranch_scc1 K1_END")
    stamp_init(e)
    e("s_load_dwordx4 s[4:7], s[0:1], 0")
    e("s_load_dwordx4 s[8:11], s[0:1], 16")
    e("s_load_dwordx2 s[12:13], s[0:1], 48")
    e("s_load_dwordx2 s[14:15], s[0:1], 96")
    e("v_and_b32 v1, 63, v0")
    e("v_lshrrev_b32 v6, 6, v0")
    e("v_and_b32 v2, 31, v1")
    e("v_lshrrev_b32 v3, 5, v1")
    e("v_readfirstlane_b32 s60, v6")
    e("v_lshlrev_b32 v4, 4, v1")
    e(f"v_mov_b32 v5, {hex(ONES)}")
    e("s_and_b32 s56, s2, 7")
    e("s_lshr_b32 s57, s2, 3")
    e("s_lshr_b32 s58, s57, 3")
    e("s_lshl_b32 s61, s56, 2")
    e("s_add_u32 s61, s61, s58")
    e("s_and_b32 s62, s57, 7")
    e(f"s_mul_i32 s63, s60, {RSZ}")
    e("v_lshrrev_b32 v6, 4, v1")
    e("v_and_b32 v7, 15, v1")
    e("v_xor_b32 v7, v7, v6")
    for v in range(4):
        e(f"v_xor_b32 v{8 + v}, {4 * v}, v7")
        e(f"v_lshlrev_b32 v{8 + v}, 4, v{8 + v}")
        e(f"v_lshl_add_u32 v{8 + v}, v6, 10, v{8 + v}")
    e("v_lshrrev_b32 v6, 3, v1")
    e("v_and_b32 v12, 7, v1")
    e("v_lshlrev_b32 v12, 4, v12")
    e("v_lshl_add_u32 v12, v6, 10, v12")
    e("s_lshl_b32 s64, s61, 16")
    e("s_lshl_b32 s65, s60, 8")
    e("s_add_u32 s64, s64, s65")
    e("s_lshl_b32 s66, s60, 17")
    e("s_lshl_b32 s67, s62, 7")
    e("s_add_u32 s66, s66, s67")
    e("s_waitcnt lgkmcnt(0)")
    stamp(e, 1)
    srd(e, 16, 4, 2048 * 512 * 2)
    srd(e, 20, 6, 512 * 512 * 2)
    srd(e, 24, 14, WS_SIZE)
    srd(e, 28, 12, 512 * 2)
    srd(e, 32, 8, 512 * 16 * 2)
    srd(e, 36, 10, 512 * 16 * 2)

    def dma_x(n):
        if n % 4 == 0:
            e(f"s_add_u32 m0, s63, {O_X + (n >> 2) * 4096}")
        e(f"s_add_u32 s67, s64, {n * 4096 - (n & 3) * 1024}")
        e.vmem(f"buffer_load_dwordx4 v{8 + (n & 3)}, s[16:19], s67 offen offset:{(n & 3) * 1024} lds", ("x", n))

    def dma_w(n):
        if n % 4 == 0:
            e(f"s_add_u32 m0, s63, {O_W + (n >> 2) * 4096}")
        e(f"s_add_u32 s67, s66, {n * 8192 - (n & 3) * 1024}")
        e.vmem(f"buffer_load_dwordx4 v12, s[20:23], s67 offen offset:{(n & 3) * 1024} lds", ("w", n))

    for n in range(16):
        dma_x(n)
    for n in range(4):
        dma_w(n)
    e("s_cmp_ge_u32 s62, 2")
    e("s_cbranch_scc1 K1_NOKVDMA")
    e("s_lshl_b32 s67, s60, 12")
    e(f"s_add_u32 m0, s63, {O_KV}")
    e("s_nop 0")
    for i in range(4):
        e(f"buffer_load_dwordx4 v4, s[32:35], s67 offen offset:{i * 1024} lds")
    e(f"s_add_u32 m0, s63, {O_KV + 4096}")
    e("s_nop 0")
    for i in range(4):
        e(f"buffer_load_dwordx4 v4, s[36:39], s67 offen offset:{i * 1024} lds")
    e.label("K1_NOKVDMA")
    WR = lambda ks: 176 + 4 * ks
    e("v_lshlrev_b32 v13, 4, v3")
    e("s_cmp_lg_u32 s62, 2")
    e("s_cbranch_scc1 K1_NOWR")
    for ks in range(8):
        e(f"buffer_load_dwordx4 {vr(WR(ks), 4)}, v13, s[28:31], s65 offen offset:{32 * ks}")
    e.label("K1_NOWR")
    marker = len(e.vm)
    for n in range(4, 16):
        dma_w(n)
    e("v_mov_b32 v16, -1")
    e("v_mov_b32 v17, -1")
    e("v_mov_b32 v18, -1")
    e("v_mov_b32 v19, -1")
    e("v_lshlrev_b32 v14, 4, v0")
    e("s_lshl_b32 s67, s2, 13")
    e(f"s_add_u32 s67, s67, {hex(WS_OF)}")
    e("v_and_b32 v6, 15, v2")
    e("v_xor_b32 v6, v6, v3")
    e("v_lshlrev_b32 v7, 8, v2")
    e("v_add_u32 v7, s63, v7")
    for ks in range(8):
        e(f"v_xor_b32 v{24 + ks}, {2 * ks}, v6")
        e(f"v_lshl_add_u32 v{24 + ks}, v{24 + ks}, 4, v7")
    e("v_bfe_u32 v6, v1, 2, 2")
    e("v_lshl_add_u32 v6, v3, 3, v6")
    e("v_and_b32 v7, 1, v1")
    e("v_bfe_u32 v15, v1, 1, 1")
    e("v_lshl_add_u32 v7, v7, 1, v15")
    e("v_bfe_u32 v15, v1, 4, 1")
    e("v_lshlrev_b32 v20, 7, v6")
    e("v_lshl_add_u32 v20, v15, 5, v20")
    e("v_lshl_add_u32 v20, v7, 3, v20")
    e("v_add_u32 v20, s63, v20")
    e("v_and_b32 v21, 3, v1")
    e("v_cmp_eq_u32 vcc, 1, v15")
    e("v_lshlrev_b32 v6, 5, v6")
    e("v_lshl_add_u32 v6, v15, 12, v6")
    e("v_cndmask_b32 v21, v7, v21, vcc")
    e("v_lshl_add_u32 v21, v21, 3, v6")
    e("v_add_u32 v21, s63, v21")
    SX, SQ, CS = [32, 33], [34, 35], [36, 37]
    SR, CSR, CSK, ZZ = [38, 39], 40, 41, 42
    for r in range(32, 44):
        e(f"v_mov_b32 v{r}, 0")
    XF = lambda b, tt: 48 + (b * 2 + tt) * 4
    WF = lambda b, ct: 64 + (b * 2 + ct) * 4
    KF = lambda b: 80 + b * 4
    ACC = lambda tt, ct: 96 + (tt * 2 + ct) * 16
    AK, AV = 208, 224

    def reads(ks):
        b = ks & 1
        for tt in range(2):
            e(f"ds_read_b128 {vr(XF(b, tt), 4)}, v{24 + ks} offset:{O_X + tt * 8192}")
        for ct in range(2):
            for u in range(2):
                e(f"ds_read_b64_tr_b16 {vr(WF(b, ct) + 2 * u, 2)}, v20 offset:{O_W + (16 * ks + 4 * u) * 128 + 64 * ct}")

    def wait_w(n):
        e.vwait(("w", n))

    wait_w(5)
    stamp(e, 2)
    reads(0)
    for ks in range(8):
        b = ks & 1
        if ks + 1 < 8:
            if 2 * (ks + 1) + 1 > 5:
                wait_w(2 * (ks + 1) + 1)
            reads(ks + 1)
            e("s_waitcnt lgkmcnt(6)")
        else:
            e("s_waitcnt lgkmcnt(0)")
        if ks == 1:
            e.vmem("buffer_store_dwordx4 v[16:19], v14, s[24:27], s67 offen sc1", "st")
        for tt in range(2):
            for ct in range(2):
                mfma32(e, ACC(tt, ct), WF(b, ct), XF(b, tt), None if ks == 0 else ACC(tt, ct))
                x = XF(b, tt)
                if ct == 0:
                    for c in range(4):
                        e(f"v_dot2_f32_bf16 v{SX[tt]}, v{x + c}, v5, v{SX[tt]}")
                        e(f"v_dot2_f32_bf16 v{SQ[tt]}, v{x + c}, v{x + c}, v{SQ[tt]}")
                else:
                    for c in range(4):
                        e(f"v_dot2_f32_bf16 v{CS[tt]}, v{WF(b, tt) + c}, v5, v{CS[tt]}")
        e("s_cmp_ge_u32 s62, 2")
        e(f"s_cbranch_scc1 K1_R{ks}_A")
        for u in range(2):
            e(f"ds_read_b64_tr_b16 {vr(KF(0) + 2 * u, 2)}, v21 offset:{O_KV + (16 * ks + 4 * u) * 32}")
        e("s_cmp_eq_u32 s62, 0")
        e(f"s_cbranch_scc1 K1_R{ks}_T0")
        e("s_waitcnt lgkmcnt(0)")
        mfma32(e, AK, KF(0), XF(b, 1), None if ks == 0 else AK)
        mfma32(e, AV, XF(b, 1), KF(0), None if ks == 0 else AV)
        e(f"s_branch K1_R{ks}_C")
        e.label(f"K1_R{ks}_T0")
        e("s_waitcnt lgkmcnt(0)")
        mfma32(e, AK, KF(0), XF(b, 0), None if ks == 0 else AK)
        mfma32(e, AV, XF(b, 0), KF(0), None if ks == 0 else AV)
        e.label(f"K1_R{ks}_C")
        for c in range(4):
            e(f"v_dot2_f32_bf16 v{CSK}, v{KF(0) + c}, v5, v{CSK}")
        e(f"s_branch K1_R{ks}_E")
        e.label(f"K1_R{ks}_A")
        e("s_cmp_lg_u32 s62, 2")
        e(f"s_cbranch_scc1 K1_R{ks}_E")
        for c in range(4):
            e(f"v_dot2_f32_bf16 v{SR[0]}, v{XF(b, 0) + c}, v{WR(ks) + c}, v{SR[0]}")
            e(f"v_dot2_f32_bf16 v{SR[1]}, v{XF(b, 1) + c}, v{WR(ks) + c}, v{SR[1]}")
            e(f"v_dot2_f32_bf16 v{CSR}, v{WR(ks) + c}, v5, v{CSR}")
        e.label(f"K1_R{ks}_E")
    stamp(e, 3)
    e("s_add_u32 s67, s67, 4096")
    e("buffer_store_dwordx4 v[16:19], v14, s[24:27], s67 offen sc1")
    e("s_nop 2")
    swap_add(e, SX[0], SX[1])
    swap_add(e, SQ[0], SQ[1])
    swap_add(e, CS[0], CS[1])
    swap_add(e, SR[0], SR[1])
    swap_add(e, CSR, CSK)
    e("v_lshl_add_u32 v6, v1, 2, s63")
    for q, r in enumerate((32, 34, 36, 38, 40)):
        e(f"ds_write_b32 v6, v{r} offset:{O_W + q * 256}")
    e("v_add_u32 v7, s63, v4")
    for tt in range(2):
        for ct in range(2):
            for rq in range(4):
                e(f"ds_write_b128 v7, {vr(ACC(tt, ct) + 4 * rq, 4)} offset:{O_X + ((tt * 2 + ct) * 4 + rq) * 1024}")
            e("s_waitcnt lgkmcnt(8)")
    e("s_cmp_ge_u32 s62, 2")
    e("s_cbranch_scc1 K1_NOKVW")
    for rq in range(2):
        e(f"ds_write_b128 v7, {vr(AK + 4 * rq, 4)} offset:{O_KV + rq * 1024}")
    for rq in range(4):
        e(f"ds_write_b128 v7, {vr(AV + 4 * rq, 4)} offset:{O_KV + 2048 + rq * 1024}")
    e.label("K1_NOKVW")
    e("s_waitcnt lgkmcnt(0)")
    e("s_barrier")
    stamp(e, 4)
    e("s_lshr_b32 s68, s60, 1")
    e("s_and_b32 s69, s60, 1")
    e("v_lshlrev_b32 v6, 2, v1")
    e(f"v_add_u32 v7, {2 * RSZ}, v6")
    for q in range(5):
        for wp in range(4):
            a = 6 if wp < 2 else 7
            e(f"ds_read_b32 v{44 + q * 4 + wp}, v{a} offset:{(wp & 1) * RSZ + O_W + q * 256}")
        if q == 2:
            e("s_waitcnt lgkmcnt(4)")
    e("s_lshl_b32 s67, s60, 12")
    e("v_add_u32 v8, s67, v4")
    e(f"v_add_u32 v9, {2 * RSZ}, v8")
    AR = lambda wp, rq: 96 + (wp * 4 + rq) * 4
    e("s_waitcnt lgkmcnt(0)")
    for wp in range(4):
        a = 8 if wp < 2 else 9
        if wp == 3:
            for q in range(5):
                b = 44 + q * 4
                sum4(e, b, b, b + 1, b + 2, b + 3)
            e("s_waitcnt lgkmcnt(8)")
        for rq in range(4):
            e(f"ds_read_b128 {vr(AR(wp, rq), 4)}, v{a} offset:{(wp & 1) * RSZ + O_X + rq * 1024}")
    MB, DB, INV = 64, 65, 66
    token_stats(e, 44, 48, MB, DB, INV, 67, 68)
    PV = O_W + 2048
    e("v_lshl_add_u32 v10, v1, 2, s63")
    e("s_waitcnt lgkmcnt(8)")
    e(f"ds_write_b32 v10, v52 offset:{PV}")
    e(f"ds_write_b32 v10, v{MB} offset:{PV + 256}")
    e(f"ds_write_b32 v10, v{INV} offset:{PV + 512}")
    e(f"ds_write_b32 v10, v60 offset:{PV + 768}")
    e("s_lshl_b32 s67, s68, 7")
    e("s_add_u32 s67, s67, s63")
    e("v_lshl_add_u32 v11, v2, 2, s67")
    e("s_waitcnt lgkmcnt(6)")
    e(f"ds_read_b32 v69, v11 offset:{PV + 256}")
    e(f"ds_read_b32 v70, v11 offset:{PV + 512}")
    e("s_lshl_b32 s67, s69, 7")
    e("s_add_u32 s67, s67, s63")
    e("v_lshl_add_u32 v11, v3, 4, s67")
    for g in range(4):
        e(f"ds_read_b128 {vr(72 + 4 * g, 4)}, v11 offset:{PV + 32 * g}")
    e("s_waitcnt lgkmcnt(0)")
    e(f"v_mul_f32 v70, {hex(QSCALE)}, v70")
    for r in range(16):
        a = AR(0, 0) + r
        sum4(e, a, a, a + 16, a + 32, a + 48)
        e(f"v_fma_f32 v{a}, -v69, v{72 + r}, v{a}")
        e(f"v_mul_f32 v{a}, v70, v{a}")
    for c in range(8):
        e(f"v_cvt_pk_bf16_f32 v{88 + c}, v{96 + 2 * c}, v{97 + 2 * c}")
    e("s_lshl_b32 s67, s62, 2")
    e("s_lshl_b32 s70, s69, 1")
    e("s_add_u32 s67, s67, s70")
    e("s_lshl_b32 s67, s67, 6")
    e("s_lshl_b32 s70, s61, 1")
    e("s_add_u32 s67, s67, s70")
    e("s_add_u32 s67, s67, s68")
    e("s_lshl_b32 s67, s67, 10")
    e("s_add_u32 s70, s67, 65536")
    e("buffer_store_dwordx4 v[88:91], v4, s[24:27], s67 offen")
    e("buffer_store_dwordx4 v[92:95], v4, s[24:27], s70 offen")
    e("s_cmp_gt_u32 s62, 3")
    e("s_cbranch_scc1 K1_FIN")
    e("s_cmp_eq_u32 s62, 3")
    e("s_cbranch_scc1 K1_FLAGS")
    e("s_cmp_eq_u32 s62, 2")
    e("s_cbranch_scc1 K1_ROUTER")
    e("s_cmp_eq_u32 s60, 3")
    e("s_cbranch_scc1 K1_FIN")
    e("s_lshl_b32 s70, s61, 1")
    e("s_add_u32 s70, s70, s62")
    e("s_lshl_b32 s70, s70, 11")
    e(f"s_add_u32 s70, s70, {hex(WS_KV)}")
    e(f"v_add_u32 v8, {O_KV}, v4")
    e(f"v_add_u32 v9, {2 * RSZ + O_KV}, v4")
    e("s_lshl_b32 s71, s62, 7")
    e("s_add_u32 s71, s71, s63")
    e("s_cmp_eq_u32 s60, 0")
    e("s_cbranch_scc1 K1_KV_K")
    e("s_sub_u32 s72, s60, 1")
    e("s_lshl_b32 s67, s72, 11")
    e("v_add_u32 v8, s67, v8")
    e("v_add_u32 v9, s67, v9")
    for wp in range(4):
        a = 8 if wp < 2 else 9
        for rr in range(2):
            e(f"ds_read_b128 {vr(96 + (wp * 2 + rr) * 4, 4)}, v{a} offset:{(wp & 1) * RSZ + 2048 + rr * 1024}")
    e("s_lshl_b32 s67, s72, 6")
    e("s_add_u32 s67, s67, s71")
    e("v_lshl_add_u32 v11, v3, 4, s67")
    for rr in range(2):
        e(f"ds_read_b128 {vr(72 + rr * 4, 4)}, v11 offset:{PV + 256 + rr * 32}")
        e(f"ds_read_b128 {vr(80 + rr * 4, 4)}, v11 offset:{PV + 512 + rr * 32}")
    e("v_lshl_add_u32 v11, v2, 2, s63")
    e(f"ds_read_b32 v69, v11 offset:{PV + 768 + 128}")
    e("s_waitcnt lgkmcnt(0)")
    for i in range(8):
        a = 96 + i
        sum4(e, a, a, a + 8, a + 16, a + 24)
        e(f"v_fma_f32 v{a}, -v{72 + i}, v69, v{a}")
        e(f"v_mul_f32 v{a}, v{80 + i}, v{a}")
    for c in range(4):
        e(f"v_cvt_pk_bf16_f32 v{88 + c}, v{96 + 2 * c}, v{97 + 2 * c}")
    e("v_and_b32 v10, 15, v2")
    e("v_lshlrev_b32 v10, 4, v10")
    e("v_lshl_add_u32 v10, v3, 8, v10")
    e("s_lshl_b32 s67, s72, 9")
    e("s_add_u32 s67, s67, s70")
    e("s_mov_b32 exec_lo, 0xffff0000")
    e("s_mov_b32 exec_hi, 0xffff0000")
    e("buffer_store_dwordx4 v[88:91], v10, s[24:27], s67 offen offset:1024")
    e("s_branch K1_FIN")
    e.label("K1_KV_K")
    for wp in range(4):
        a = 8 if wp < 2 else 9
        for rr in range(2):
            e(f"ds_read_b128 {vr(96 + (wp * 2 + rr) * 4, 4)}, v{a} offset:{(wp & 1) * RSZ + rr * 1024}")
    e("v_lshl_add_u32 v11, v3, 4, s63")
    for rr in range(2):
        e(f"ds_read_b128 {vr(72 + rr * 4, 4)}, v11 offset:{PV + 768 + 128 + rr * 32}")
    e("v_lshl_add_u32 v11, v2, 2, s71")
    e(f"ds_read_b32 v69, v11 offset:{PV + 256}")
    e(f"ds_read_b32 v70, v11 offset:{PV + 512}")
    e("s_waitcnt lgkmcnt(0)")
    for i in range(8):
        a = 96 + i
        sum4(e, a, a, a + 8, a + 16, a + 24)
        e(f"v_fma_f32 v{a}, -v69, v{72 + i}, v{a}")
        e(f"v_mul_f32 v{a}, v70, v{a}")
    for c in range(4):
        e(f"v_cvt_pk_bf16_f32 v{88 + c}, v{96 + 2 * c}, v{97 + 2 * c}")
    e("buffer_store_dwordx4 v[88:91], v4, s[24:27], s70 offen")
    e("s_branch K1_FIN")
    e.label("K1_FLAGS")
    e("s_cmp_lg_u32 s60, 0")
    e("s_cbranch_scc1 K1_FIN")
    e("v_mov_b32 v8, 0")
    e("v_lshlrev_b32 v9, 2, v1")
    e("s_lshl_b32 s67, s61, 7")
    e(f"s_add_u32 s67, s67, {hex(WS_FLAGS)}")
    e("s_mov_b32 exec_hi, 0")
    e("buffer_store_dword v8, v9, s[24:27], s67 offen sc1")
    e("s_branch K1_FIN")
    e.label("K1_ROUTER")
    e("s_cmp_lg_u32 s60, 0")
    e("s_cbranch_scc1 K1_FIN")
    e("v_readlane_b32 s67, v60, 0")
    e("s_nop 1")
    e(f"v_mul_f32 v8, s67, v{MB}")
    e("v_sub_f32 v56, v56, v8")
    e(f"v_mul_f32 v56, v{INV}, v56")
    rbf(e, 56, 56)
    e("v_ashrrev_i32 v8, 31, v56")
    e("v_or_b32 v8, 0x80000000, v8")
    e("v_xor_b32 v56, v56, v8")
    e("v_and_b32 v56, 0xffff0000, v56")
    e("s_lshl_b32 s67, s61, 6")
    e("v_add_u32 v9, s67, v1")
    e("v_sub_u32 v8, 0xffff, v9")
    e("v_or_b32 v56, v56, v8")
    e("v_mov_b32 v10, v56")
    dpp_umax_reduce(e, 10)
    e("v_readlane_b32 s70, v10, 63")
    e("s_nop 1")
    e("v_cmp_ne_u32 vcc, s70, v56")
    e("s_nop 1")
    e("v_cndmask_b32 v10, 0, v56, vcc")
    dpp_umax_reduce(e, 10)
    e("v_readlane_b32 s71, v10, 63")
    e("s_nop 1")
    e("v_mov_b32 v12, s70")
    e("v_mov_b32 v13, s71")
    e("v_lshlrev_b32 v9, 3, v9")
    e(f"s_mov_b32 s67, {hex(WS_STATS)}")
    e(f"buffer_store_dwordx2 v[{MB}:{DB}], v9, s[24:27], s67 offen")
    e("s_lshl_b32 s67, s61, 3")
    e(f"s_add_u32 s67, s67, {hex(WS_KEYS)}")
    e("v_mov_b32 v8, 0")
    e("s_mov_b64 exec, 1")
    e("buffer_store_dwordx2 v[12:13], v8, s[24:27], s67 offen")
    e.label("K1_FIN")
    stamp_flush(e, 0, 24, 60)
    e.label("K1_END")
    e("s_endpgm")
    e.vm = []
    return kn, 240, 4 * RSZ


def gen_k2(e):
    kn = "mqa_attn_kernel"
    L_XS = 0
    L_FP = 2048
    L_YS = L_FP + 4096
    L_SEL = L_YS + 2048
    L_CNT = L_SEL + 16
    L_MX = L_CNT + 16
    L_REDB = 16384
    assert L_MX + 4096 <= L_REDB
    L_WO = L_REDB + 73728
    LDS_SIZE = L_WO + 65536
    assert LDS_SIZE <= 163840

    e.raw(".p2align 8")
    e.raw(f".globl {kn}")
    e.raw(f".type {kn},@function")
    e.label(kn)
    e("s_cmp_ge_u32 s2, 256")
    e("s_cbranch_scc1 K2_END")
    stamp_init(e)
    e("s_load_dwordx2 s[4:5], s[0:1], 0")
    e("s_load_dwordx2 s[6:7], s[0:1], 32")
    e("s_load_dwordx4 s[8:11], s[0:1], 56")
    e("s_load_dwordx4 s[12:15], s[0:1], 72")
    e("s_load_dwordx2 s[18:19], s[0:1], 96")
    e("v_and_b32 v1, 63, v0")
    e("v_lshrrev_b32 v6, 6, v0")
    e("v_and_b32 v2, 31, v1")
    e("v_lshrrev_b32 v3, 5, v1")
    e("v_readfirstlane_b32 s60, v6")
    e("v_lshlrev_b32 v4, 4, v1")
    e("s_and_b32 s56, s2, 7")
    e("s_lshr_b32 s57, s2, 3")
    e("s_lshr_b32 s58, s57, 3")
    e("s_lshl_b32 s61, s56, 2")
    e("s_add_u32 s61, s61, s58")
    e("s_and_b32 s62, s57, 7")
    e("s_mov_b32 s63, 0")
    e("s_mov_b32 s59, 0")
    e("v_and_b32 v5, 15, v2")
    e("v_lshlrev_b32 v5, 4, v5")
    e("v_lshl_add_u32 v5, v3, 8, v5")
    e("v_add_u32 v5, 1024, v5")
    e("s_waitcnt lgkmcnt(0)")
    stamp(e, 1)
    srd(e, 20, 4, 2048 * 512 * 2)
    srd(e, 24, 6, 512 * 512 * 2)
    srd(e, 28, 8, 512 * 1792 * 2)
    srd(e, 32, 10, 512 * 1792 * 2)
    srd(e, 36, 12, 512 * 1792 * 2)
    srd(e, 40, 14, 2048 * 512 * 2)
    srd(e, 44, 18, WS_SIZE)
    e("s_cmp_ge_u32 s60, 4")
    e("s_cbranch_scc1 K2_H")

    ACC = lambda q: 128 + 16 * q
    Q = lambda q: 96 + 4 * q
    S = [64, 80]
    P = 56
    KB = [8, 12, 16, 20]
    VB = [24, 32, 40, 48]
    NB = 4
    e("s_lshl_b32 s66, s62, 8")
    e("s_lshl_b32 s67, s61, 1")
    e("s_add_u32 s66, s66, s67")
    e("s_lshl_b32 s66, s66, 10")
    e("s_lshl_b32 s68, s60, 15")
    e(f"s_add_u32 s68, s68, {hex(WS_KV)}")
    e("s_mov_b32 s50, 0x0000ffff")
    e("s_mov_b32 s51, 0x0000ffff")

    def load_q():
        for q in range(8):
            hl, tt = q >> 1, q & 1
            e(f"s_add_u32 s67, s66, {hl * 65536 + tt * 1024}")
            e.vmem(f"buffer_load_dwordx4 {vr(Q(q), 4)}, v4, s[44:47], s67 offen", "q")

    def init_v():
        e("v_and_b32 v6, 27, v2")
        e("v_cmp_eq_u32 vcc, 16, v6")
        e(f"v_mov_b32 v7, {hex(ONES)}")
        e("s_nop 0")
        e("v_cndmask_b32 v7, 0, v7, vcc")
        for r in range(24, 56):
            e(f"v_mov_b32 v{r}, v7")

    def load_kv(buf, soff, imm=0, tag="kv"):
        e.vmem(f"buffer_load_dwordx4 {vr(KB[buf], 4)}, v4, s[44:47], {soff} offen offset:{imm}", tag + "k")
        e("s_mov_b64 exec, s[50:51]")
        e.vmem(f"buffer_load_dwordx4 {vr(VB[buf], 4)}, v5, s[44:47], {soff} offen offset:{imm}", tag + "v")
        e.vmem(f"buffer_load_dwordx4 {vr(VB[buf] + 4, 4)}, v5, s[44:47], {soff} offen offset:{imm + 512}", tag + "v")
        e("s_mov_b64 exec, -1")

    load_q()
    init_v()
    load_kv(0, "s68", 0, "a")
    load_kv(1, "s68", 2048, "b")
    e("s_add_u32 s69, s68, 4096")
    load_kv(2, "s69", 0, "c")
    e("s_add_u32 s69, s69, 2048")
    for r in range(P, P + 8):
        e(f"v_mov_b32 v{r}, 0")
    for r in range(128, 256):
        e(f"v_mov_b32 v{r}, 0")
    e("s_barrier")
    e.vwait("av")
    stamp(e, 2)
    cstamp(e, 8)
    mfma32(e, S[0], KB[0], Q(0))
    e("s_mov_b32 s70, 4")
    e("s_nop 7")
    e("s_nop 2")

    def slot(kb, q):
        t = q
        Sc, Sn = S[t & 1], S[(t + 1) & 1]
        kn_, kp = (kb + 1) % NB, (kb - 1) % NB
        if q < 7:
            mfma32(e, Sn, KB[kb], Q(q + 1))
        else:
            mfma32(e, Sn, KB[kn_], Q(0))
        for i in range(6):
            e(f"v_exp_f32 v{Sc + i}, v{Sc + i}")
        if q == 0:
            mfma32(e, ACC(7), VB[kp] + 4, P + 4, ACC(7))
        else:
            mfma32(e, ACC(q - 1), VB[kb] + 4, P + 4, ACC(q - 1))
        for i in range(6, 8):
            e(f"v_exp_f32 v{Sc + i}, v{Sc + i}")
        if q == 0:
            load_kv(kp, "s69", 0, "l")
        for c in range(4):
            e(f"v_cvt_pk_bf16_f32 v{P + c}, v{Sc + 2 * c}, v{Sc + 2 * c + 1}")
        e(f"v_exp_f32 v{Sc + 8}, v{Sc + 8}")
        if q == 0:
            e("s_waitcnt vmcnt(9)")
        e(f"v_exp_f32 v{Sc + 9}, v{Sc + 9}")
        mfma32(e, ACC(q), VB[kb], P, ACC(q))
        for i in range(10, 16):
            e(f"v_exp_f32 v{Sc + i}, v{Sc + i}")
            if q == 0 and i == 10:
                e("s_add_u32 s69, s69, 2048")
            if q == 6 and i == 15:
                e("s_waitcnt vmcnt(8)")
        for c in range(4, 8):
            e(f"v_cvt_pk_bf16_f32 v{P + c}, v{Sc + 2 * c}, v{Sc + 2 * c + 1}")

    e.raw(".p2align 6")
    e.label("K2_LOOP")
    for kb in range(NB):
        for q in range(8):
            e.vm = []
            slot(kb, q)
    e("s_sub_u32 s70, s70, 1")
    e("s_cmp_lg_u32 s70, 0")
    e("s_cbranch_scc1 K2_LOOP")
    e("s_nop 1")
    mfma32(e, ACC(7), VB[NB - 1] + 4, P + 4, ACC(7))
    e("s_waitcnt vmcnt(0)")
    e.vm = []
    stamp(e, 3)
    cstamp(e, 9)
    e.label("K2_DUMP0")
    e("s_barrier")
    e.label("K2_DUMP")
    e(f"s_mul_i32 s67, s60, {8 * 2304}")
    e(f"s_add_u32 s67, s67, {L_REDB}")
    e("v_add_u32 v6, s67, v4")
    e("v_lshl_add_u32 v7, v1, 2, s67")
    e("s_nop 12")
    for q in range(8):
        e(f"ds_write_b128 v6, {vr(ACC(q), 4)} offset:{q * 2304}")
        e(f"ds_write_b128 v6, {vr(ACC(q) + 4, 4)} offset:{q * 2304 + 1024}")
        e(f"ds_write_b32 v7, v{ACC(q) + 8} offset:{q * 2304 + 2048}")
        if q >= 3:
            e("s_waitcnt lgkmcnt(9)")
    e("s_waitcnt lgkmcnt(0)")
    e.label("K2_BAR1")
    e("s_barrier")
    stamp(e, 4)
    e("s_mul_i32 s67, s60, 2304")
    e(f"s_add_u32 s67, s67, {L_REDB}")
    e("v_add_u32 v6, s67, v4")
    e("v_lshl_add_u32 v7, v1, 2, s67")
    for wp in range(4):
        e(f"ds_read_b128 {vr(8 + wp * 8, 4)}, v6 offset:{wp * 18432}")
        e(f"ds_read_b128 {vr(12 + wp * 8, 4)}, v6 offset:{wp * 18432 + 1024}")
        e(f"ds_read_b32 v{40 + wp}, v7 offset:{wp * 18432 + 2048}")
    e("s_and_b32 s67, s60, 1")
    e("s_lshl_b32 s71, s61, 1")
    e("s_add_u32 s67, s67, s71")
    e("s_lshl_b32 s67, s67, 5")
    e("s_lshl_b32 s71, s62, 2")
    e("s_add_u32 s67, s67, s71")
    e("s_lshr_b32 s71, s60, 1")
    e("s_add_u32 s67, s67, s71")
    e("s_lshl_b32 s67, s67, 10")
    e(f"s_add_u32 s67, s67, {hex(WS_OF)}")
    e("v_mov_b32 v45, 0x37800000")
    e("v_mov_b32 v44, 0x5f800000")
    e("s_waitcnt lgkmcnt(0)")
    sum4(e, 40, 40, 41, 42, 43)
    e("v_rcp_f32 v41, v40")
    for i in range(8):
        sum4(e, 8 + i, 8 + i, 16 + i, 24 + i, 32 + i)
    e("v_fma_f32 v42, v8, 0, v40")
    for i in range(1, 8):
        e(f"v_fma_f32 v42, v{8 + i}, 0, v42")
    for i in range(8):
        e(f"v_mul_f32 v{8 + i}, v41, v{8 + i}")
    e("v_cmp_nle_f32 vcc, v45, v42")
    e("v_cmp_nle_f32 s[72:73], v42, v44")
    for c in range(4):
        e(f"v_cvt_pk_bf16_f32 v{16 + c}, v{8 + 2 * c}, v{9 + 2 * c}")
    e("s_or_b64 vcc, vcc, s[72:73]")
    e("s_cmp_lg_u32 s59, 0")
    e("s_cbranch_scc1 K2_STORED")
    e("s_cmp_lg_u32 s63, 0")
    e("s_cbranch_scc1 K2_DOSTORE")
    e("s_cmp_eq_u64 vcc, 0")
    e("s_cbranch_scc1 K2_DOSTORE")
    e("v_mov_b32 v6, 1")
    e(f"v_mov_b32 v7, {L_CNT + 4}")
    e("ds_write_b32 v7, v6")
    e("s_branch K2_STORED")
    e.label("K2_DOSTORE")
    e("buffer_store_dwordx4 v[16:19], v4, s[44:47], s67 offen sc1")
    e("s_mov_b32 s59, 1")
    e.label("K2_STORED")
    e("s_waitcnt lgkmcnt(0)")
    e("s_barrier")
    stamp(e, 5)
    e("s_cmp_lg_u32 s63, 0")
    e("s_cbranch_scc1 K2_POST")
    e(f"v_mov_b32 v7, {L_CNT + 4}")
    e("ds_read_b32 v6, v7")
    e("s_waitcnt lgkmcnt(0)")
    e("v_readfirstlane_b32 s67, v6")
    e("s_nop 3")
    e("s_cmp_lg_u32 s67, 0")
    e("s_cbranch_scc1 K2_SLOW")
    e.label("K2_POST")
    e("s_cmp_ge_u32 s60, 4")
    e("s_cbranch_scc1 K2_H2")
    e("s_lshr_b32 s71, s60, 1")
    e("s_and_b32 s72, s60, 1")
    e("s_lshl_b32 s73, s61, 6")
    e("s_lshl_b32 s67, s71, 5")
    e("s_add_u32 s73, s73, s67")
    e("v_add_u32 v8, s73, v2")
    e("v_lshlrev_b32 v9, 10, v8")
    e("v_lshl_add_u32 v9, v3, 6, v9")
    e("s_lshl_b32 s74, s62, 7")
    e("s_lshl_b32 s67, s72, 5")
    e("s_add_u32 s74, s74, s67")
    e("buffer_load_dwordx4 v[16:19], v9, s[20:23], s74 offen")
    e("buffer_load_dwordx4 v[20:23], v9, s[20:23], s74 offen offset:16")
    e("v_lshlrev_b32 v10, 3, v8")
    e(f"s_mov_b32 s67, {hex(WS_STATS)}")
    e("buffer_load_dwordx2 v[12:13], v10, s[44:47], s67 offen")
    e(f"v_mov_b32 v7, {L_SEL}")
    e("ds_read_b128 v[28:31], v7")
    for i in range(16):
        e(f"v_mov_b32 v{64 + i}, 0")
    e("v_lshlrev_b32 v11, 7, v3")
    e("s_lshl_b32 s67, s72, 6")
    e("v_add_u32 v11, s67, v11")
    e("s_waitcnt lgkmcnt(0)")
    for sl in range(2):
        e(f"v_cmp_eq_u32 vcc, v{28 + sl}, v8")
        e("s_and_saveexec_b64 s[76:77], vcc")
        e(f"s_cbranch_execz K2_NOY{sl}")
        for hq in range(4):
            for i in range(4):
                e(f"ds_read_b128 {vr(64 + hq * 16 + 4 * i, 4)}, v11 offset:{L_YS + sl * 1024 + hq * 256 + i * 16}")
            if hq == 2:
                e("s_waitcnt lgkmcnt(4)")
        e("s_waitcnt lgkmcnt(0)")
        for i in range(16):
            sum4(e, 64 + i, 64 + i, 80 + i, 96 + i, 112 + i)
            rbf(e, 64 + i, 64 + i)
            e(f"v_mul_f32 v{64 + i}, v{30 + sl}, v{64 + i}")
            rbf(e, 64 + i, 64 + i)
        e.label(f"K2_NOY{sl}")
        e("s_mov_b64 exec, -1")
    e("s_waitcnt vmcnt(0)")
    e("v_rcp_f32 v13, v13")
    for dw in range(8):
        e(f"v_lshlrev_b32 v{32 + 2 * dw}, 16, v{16 + dw}")
        e(f"v_and_b32 v{33 + 2 * dw}, 0xffff0000, v{16 + dw}")
    for dw in range(8):
        a, b = 48 + 2 * dw, 49 + 2 * dw
        e(f"v_sub_f32 v{a}, v{32 + 2 * dw}, v12")
        e(f"v_sub_f32 v{b}, v{33 + 2 * dw}, v12")
        e(f"v_cvt_pk_bf16_f32 v24, v{a}, v{b}")
        e(f"v_lshlrev_b32 v{a}, 16, v24")
        e(f"v_and_b32 v{b}, 0xffff0000, v24")
        e(f"v_mul_f32 v{a}, v13, v{a}")
        e(f"v_mul_f32 v{b}, v13, v{b}")
        e(f"v_cvt_pk_bf16_f32 v24, v{a}, v{b}")
        e(f"v_lshlrev_b32 v{a}, 16, v24")
        e(f"v_and_b32 v{b}, 0xffff0000, v24")
        e(f"v_add_f32 v{a}, v{a}, v{64 + 2 * dw}")
        e(f"v_add_f32 v{b}, v{b}, v{65 + 2 * dw}")
        e(f"v_cvt_pk_bf16_f32 v24, v{a}, v{b}")
        e(f"v_lshlrev_b32 v{a}, 16, v24")
        e(f"v_and_b32 v{b}, 0xffff0000, v24")
        e(f"v_mul_f32 v25, {hex(NLOG2E)}, v{a}")
        e(f"v_mul_f32 v26, {hex(NLOG2E)}, v{b}")
        e("v_exp_f32 v25, v25")
        e("v_exp_f32 v26, v26")
        e("s_nop 0")
        e("v_add_f32 v25, 1.0, v25")
        e("v_add_f32 v26, 1.0, v26")
        e("v_rcp_f32 v25, v25")
        e("v_rcp_f32 v26, v26")
        e("s_nop 0")
        e(f"v_mul_f32 v{a}, v25, v{a}")
        e(f"v_mul_f32 v{b}, v26, v{b}")
        e(f"v_cvt_pk_bf16_f32 v24, v{a}, v{b}")
        e(f"v_lshlrev_b32 v{a}, 16, v24")
        e(f"v_and_b32 v{b}, 0xffff0000, v24")
    e("s_lshl_b32 s67, s60, 12")
    e(f"s_add_u32 s67, s67, {L_REDB}")
    e("v_add_u32 v10, s67, v4")
    stamp(e, 6)
    e("s_barrier")
    stamp(e, 7)
    AR = lambda hq, rq: 64 + (hq * 4 + rq) * 4
    for hq in range(4):
        for rq in range(4):
            e(f"ds_read_b128 {vr(AR(hq, rq), 4)}, v10 offset:{hq * 16384 + rq * 1024}")
        if hq == 2:
            e("s_waitcnt lgkmcnt(4)")
    e("s_waitcnt lgkmcnt(0)")
    for r in range(16):
        a = 64 + r
        sum4(e, a, a, a + 16, a + 32, a + 48)
        e(f"v_fma_f32 v{a}, v{a}, v{48 + r}, v{32 + r}")
        if r & 1:
            e(f"v_cvt_pk_bf16_f32 v{16 + r // 2}, v{a - 1}, v{a}")
    e("buffer_store_dwordx4 v[16:19], v9, s[40:43], s74 offen")
    e("buffer_store_dwordx4 v[20:23], v9, s[40:43], s74 offen offset:16")
    stamp_flush(e, 1, 44, 60)
    if DBGOUT:
        e("s_add_u32 s78, s2, s60")
        e("s_cmp_lg_u32 s78, 0")
        e("s_cbranch_scc1 K2_DBG_SKIP")
        e("s_load_dwordx2 s[16:17], s[0:1], 88")
        e(f"s_mov_b32 s78, {hex(WS_PROF)}")
        e("v_mov_b32 v220, 0")
        e("buffer_load_dwordx4 v[200:203], v220, s[44:47], s78 offen")
        e("buffer_load_dwordx4 v[204:207], v220, s[44:47], s78 offen offset:16")
        e("buffer_load_dwordx4 v[208:211], v220, s[44:47], s78 offen offset:32")
        e("s_waitcnt vmcnt(0) lgkmcnt(0)")
        srcs = ["v200", "v201", "v202", "v203", "v204", "v211"] + [f"s{80 + i}" for i in (0, 1, 2, 3, 4, 5, 6, 7, 11)]
        for i, r in enumerate(srcs):
            e(f"v_mov_b32 v212, {r}")
            e("v_sub_u32 v212, v212, v200")
            e(f"global_store_dword v220, v212, s[16:17] offset:{4 * i}")
            e("s_nop 1")
        e.label("K2_DBG_SKIP")
    e("s_endpgm")

    e.label("K2_SLOW")
    e("s_mov_b32 s63, 1")
    e("s_cmp_ge_u32 s60, 4")
    e("s_cbranch_scc1 K2_SLOW_H")
    e.vm = []
    init_v()
    load_q()
    MXR = 8
    for q in range(8):
        e(f"v_mov_b32 v{MXR + q}, 0xff7fffff")
    for r in range(128, 256):
        e(f"v_mov_b32 v{r}, 0")
    e("s_mov_b32 s69, s68")
    e("s_mov_b32 s70, 16")
    e.label("K2_SLOW_P1")
    e.vmem(f"buffer_load_dwordx4 {vr(KB[3], 4)}, v4, s[44:47], s69 offen", "k")
    e.vwait(None)
    for q in range(8):
        mfma32(e, S[0], KB[3], Q(q))
        e("s_nop 15")
        for i in range(8):
            e(f"v_max3_f32 v{MXR + q}, v{S[0] + 2 * i}, v{S[0] + 2 * i + 1}, v{MXR + q}")
    e("s_add_u32 s69, s69, 2048")
    e("s_sub_u32 s70, s70, 1")
    e("s_cmp_lg_u32 s70, 0")
    e("s_cbranch_scc1 K2_SLOW_P1")
    for q in range(8):
        e(f"v_mov_b32 v16, v{MXR + q}")
        e("s_nop 1")
        e(f"v_permlane32_swap_b32 v{MXR + q}, v16")
        e("s_nop 1")
        e(f"v_max_f32 v{MXR + q}, v{MXR + q}, v16")
    e("s_lshl_b32 s67, s60, 10")
    e("v_lshl_add_u32 v6, v2, 2, s67")
    for q in range(8):
        e(f"ds_write_b32 v6, v{MXR + q} offset:{L_MX + q * 128}")
    e("s_waitcnt lgkmcnt(0)")
    e("s_barrier")
    e("v_lshlrev_b32 v6, 2, v2")
    for q in range(8):
        for wp in range(4):
            e(f"ds_read_b32 v{16 + wp}, v6 offset:{L_MX + wp * 1024 + q * 128}")
        e("s_waitcnt lgkmcnt(0)")
        e(f"v_max3_f32 v{MXR + q}, v16, v17, v18")
        e(f"v_max_f32 v{MXR + q}, v{MXR + q}, v19")
    e("s_mov_b32 s69, s68")
    e("s_mov_b32 s70, 16")
    e.label("K2_SLOW_P2")
    load_kv(3, "s69", 0, "s")
    e.vwait(None)
    for q in range(8):
        mfma32(e, S[0], KB[3], Q(q))
        e("s_nop 15")
        for i in range(16):
            e(f"v_sub_f32 v{S[0] + i}, v{S[0] + i}, v{MXR + q}")
        for i in range(16):
            e(f"v_exp_f32 v{S[0] + i}, v{S[0] + i}")
        e("s_nop 0")
        for c in range(8):
            e(f"v_cvt_pk_bf16_f32 v{P + c}, v{S[0] + 2 * c}, v{S[0] + 2 * c + 1}")
        e("s_nop 1")
        mfma32(e, ACC(q), VB[3], P, ACC(q))
        mfma32(e, ACC(q), VB[3] + 4, P + 4, ACC(q))
    e("s_add_u32 s69, s69, 2048")
    e("s_sub_u32 s70, s70, 1")
    e("s_cmp_lg_u32 s70, 0")
    e("s_cbranch_scc1 K2_SLOW_P2")
    e("s_nop 3")
    e("s_branch K2_DUMP")
    e.label("K2_SLOW_H")
    e("s_barrier")
    e("s_branch K2_BAR1")

    e.label("K2_H")
    e.vm = []
    e("s_setprio 2")
    e("s_sub_u32 s66, s60, 4")
    e("v_and_b32 v8, 15, v1")
    e("v_lshrrev_b32 v9, 4, v1")
    e("v_lshlrev_b32 v6, 3, v2")
    e(f"s_mov_b32 s67, {hex(WS_KEYS)}")
    e.vmem("buffer_load_dwordx2 v[10:11], v6, s[44:47], s67 offen", "keys")
    e("s_mul_i32 s64, s56, 28")
    e("s_add_u32 s64, s64, s57")
    e("s_mul_i32 s65, s66, 6144")
    e(f"s_add_u32 s65, s65, {L_REDB}")
    e(f"s_cmp_ge_u32 s57, {FFNLIM}")
    e("s_cbranch_scc1 K2_H_NOFFN0")
    e("s_movk_i32 s67, 3584")
    e("v_mul_lo_u32 v16, v1, s67")
    e(f"s_mul_i32 s68, s66, {128 * 3584}")
    e("s_lshl_b32 s67, s64, 4")
    e("s_add_u32 s68, s68, s67")
    for m in range(2):
        for n in range(2):
            e(f"s_add_u32 m0, s65, {m * 2048 + n * 1024}")
            e(f"s_add_u32 s67, s68, {n * 64 * 3584}")
            e(f"buffer_load_dwordx4 v16, s[{28 + 4 * m}:{31 + 4 * m}], s67 offen lds")
    e("v_lshlrev_b32 v17, 10, v9")
    e("v_lshl_add_u32 v17, v8, 4, v17")
    e("s_lshl_b32 s68, s64, 13")
    e("s_lshl_b32 s67, s66, 8")
    e("s_add_u32 s68, s68, s67")
    for n in range(2):
        e(f"s_add_u32 m0, s65, {4096 + n * 1024}")
        e(f"s_add_u32 s67, s68, {n * 4096}")
        e("buffer_load_dwordx4 v17, s[36:39], s67 offen lds")
    e.label("K2_H_NOFFN0")
    e("v_lshrrev_b32 v6, 3, v1")
    e("v_and_b32 v12, 7, v1")
    e("v_lshlrev_b32 v12, 4, v12")
    e("v_lshl_add_u32 v12, v6, 10, v12")
    e("s_lshl_b32 s68, s66, 17")
    e("s_lshl_b32 s67, s62, 7")
    e("s_add_u32 s68, s68, s67")
    e("s_lshl_b32 s69, s66, 14")
    e(f"s_add_u32 s69, s69, {L_WO}")
    for n in range(16):
        if n % 4 == 0:
            e(f"s_add_u32 m0, s69, {(n >> 2) * 4096}")
        e(f"s_add_u32 s67, s68, {n * 8192 - (n & 3) * 1024}")
        e.vmem(f"buffer_load_dwordx4 v12, s[24:27], s67 offen offset:{(n & 3) * 1024} lds", "wo")
    e("s_cmp_lg_u32 s66, 0")
    e("s_cbranch_scc1 K2_H_NOINIT")
    e("v_mov_b32 v6, 0")
    e("v_mov_b32 v7, 0")
    e(f"v_mov_b32 v16, {L_CNT}")
    e("ds_write_b64 v16, v[6:7]")
    e("s_waitcnt lgkmcnt(0)")
    e.label("K2_H_NOINIT")
    e("s_barrier")
    e("s_waitcnt vmcnt(16)")
    e("v_mov_b32 v18, v10")
    dpp_umax_reduce(e, 18)
    e("v_readlane_b32 s70, v18, 63")
    e("s_nop 1")
    e("v_cmp_eq_u32 vcc, s70, v10")
    e("s_nop 1")
    e("v_cndmask_b32 v18, v10, v11, vcc")
    dpp_umax_reduce(e, 18)
    e("v_readlane_b32 s71, v18, 63")
    e("s_nop 3")
    e("s_and_b32 s72, s70, 0xffff")
    e("s_sub_u32 s72, 0xffff, s72")
    e("s_and_b32 s73, s71, 0xffff")
    e("s_sub_u32 s73, 0xffff, s73")
    e("s_and_b32 s72, s72, 2047")
    e("s_and_b32 s73, s73, 2047")
    stamp(e, 2)
    e(f"s_cmp_ge_u32 s57, {FFNLIM}")
    e("s_cbranch_scc1 K2_H_NOFFN1")
    e("v_mov_b32 v18, s72")
    e("v_mov_b32 v19, s73")
    e("v_cmp_eq_u32 vcc, 0, v3")
    e("s_nop 1")
    e("v_cndmask_b32 v18, v19, v18, vcc")
    e("v_lshlrev_b32 v19, 10, v18")
    e("v_lshl_add_u32 v19, v2, 3, v19")
    e("s_lshl_b32 s67, s66, 8")
    e("buffer_load_dwordx2 v[20:21], v19, s[20:23], s67 offen")
    e("v_lshlrev_b32 v19, 3, v18")
    e(f"s_mov_b32 s67, {hex(WS_STATS)}")
    e("buffer_load_dwordx2 v[22:23], v19, s[44:47], s67 offen")
    e("v_bfe_u32 v24, v1, 2, 2")
    e("v_lshl_add_u32 v25, v9, 3, v24")
    e("v_lshlrev_b32 v25, 4, v25")
    e("v_bfe_u32 v26, v1, 1, 1")
    e("v_lshl_add_u32 v25, v26, 11, v25")
    e("v_and_b32 v26, 1, v1")
    e("v_lshl_add_u32 v25, v26, 3, v25")
    e("v_add_u32 v25, s65, v25")
    GA = lambda ks: 64 + 4 * ks
    for ks in range(4):
        for u in range(2):
            e(f"ds_read_b64_tr_b16 {vr(GA(ks) + 2 * u, 2)}, v25 offset:{(32 * ks + 4 * u) * 16}")
    e("v_and_b32 v24, 1, v24")
    e("v_lshl_add_u32 v24, v9, 1, v24")
    e("v_lshlrev_b32 v24, 8, v24")
    e("v_and_b32 v26, 3, v1")
    e("v_lshl_add_u32 v24, v26, 3, v24")
    e("v_add_u32 v24, s65, v24")
    DF = lambda ee: 96 + 4 * ee
    e("s_waitcnt lgkmcnt(4)")
    for ee in range(8):
        e(f"ds_read_b64_tr_b16 {vr(DF(ee), 2)}, v24 offset:{4096 + 32 * ee}")
        e(f"v_mov_b32 v{DF(ee) + 2}, 0")
        e(f"v_mov_b32 v{DF(ee) + 3}, 0")
    e("s_waitcnt vmcnt(0)")
    e("v_rcp_f32 v23, v23")
    for d in range(2):
        e(f"v_lshlrev_b32 v26, 16, v{20 + d}")
        e(f"v_and_b32 v27, 0xffff0000, v{20 + d}")
        e("v_sub_f32 v26, v26, v22")
        e("v_sub_f32 v27, v27, v22")
        e("v_cvt_pk_bf16_f32 v28, v26, v27")
        e("v_lshlrev_b32 v26, 16, v28")
        e("v_and_b32 v27, 0xffff0000, v28")
        e("v_mul_f32 v26, v23, v26")
        e("v_mul_f32 v27, v23, v27")
        e(f"v_cvt_pk_bf16_f32 v{20 + d}, v26, v27")
    e("s_lshl_b32 s67, s66, 9")
    e("v_lshlrev_b32 v19, 8, v3")
    e("v_lshl_add_u32 v19, v2, 3, v19")
    e("v_add_u32 v19, s67, v19")
    e("s_waitcnt lgkmcnt(0)")
    e(f"ds_write_b64 v19, v[20:21] offset:{L_XS}")
    e("v_and_b32 v19, 1, v8")
    e("v_lshlrev_b32 v19, 8, v19")
    e("v_lshl_add_u32 v19, v9, 4, v19")
    e("v_add_u32 v19, s67, v19")
    XB = lambda ks: 80 + 4 * ks
    for ks in range(4):
        e(f"ds_read_b128 {vr(XB(ks), 4)}, v19 offset:{L_XS + 64 * ks}")
    e("s_waitcnt lgkmcnt(0)")
    for ks in range(4):
        mfma16(e, 48, GA(ks), XB(ks), None if ks == 0 else 48)
    e("s_lshl_b32 s67, s66, 10")
    e("v_add_u32 v19, s67, v4")
    e(f"v_mov_b32 v18, {L_CNT}")
    e("v_mov_b32 v26, 1")
    e("s_nop 4")
    e(f"ds_write_b128 v19, v[48:51] offset:{L_FP}")
    e("s_waitcnt lgkmcnt(0)")
    e("s_mov_b64 exec, 1")
    e("ds_add_u32 v18, v26")
    e("s_mov_b64 exec, -1")
    e("v_lshrrev_b32 v27, 1, v9")
    e("v_lshl_add_u32 v27, v27, 4, v8")
    e("v_lshlrev_b32 v27, 4, v27")
    e("v_and_b32 v28, 1, v9")
    e("v_lshl_add_u32 v27, v28, 3, v27")
    e.label("K2_H_SPIN1")
    e("ds_read_b32 v19, v18")
    e("s_waitcnt lgkmcnt(0)")
    e("v_readfirstlane_b32 s67, v19")
    e("s_nop 3")
    e("s_cmp_ge_u32 s67, 4")
    e("s_cbranch_scc1 K2_H_SPIN1_DONE")
    e("s_sleep 1")
    e("s_branch K2_H_SPIN1")
    e.label("K2_H_SPIN1_DONE")
    for wp in range(4):
        e(f"ds_read_b64 {vr(64 + 4 * wp, 2)}, v27 offset:{L_FP + wp * 1024}")
        e(f"ds_read_b64 {vr(66 + 4 * wp, 2)}, v27 offset:{L_FP + wp * 1024 + 512}")
    e("v_mov_b32 v41, 0")
    e("v_mov_b32 v42, 0")
    e("v_mov_b32 v43, 0")
    e("s_waitcnt lgkmcnt(0)")
    for i in range(4):
        sum4(e, 64 + i, 64 + i, 68 + i, 72 + i, 76 + i)
    g0, g1, u0, u1 = 64, 65, 66, 67
    e(f"v_cvt_pk_bf16_f32 v24, v{g0}, v{g1}")
    e(f"v_cvt_pk_bf16_f32 v25, v{u0}, v{u1}")
    e(f"v_lshlrev_b32 v{g0}, 16, v24")
    e(f"v_and_b32 v{g1}, 0xffff0000, v24")
    e(f"v_lshlrev_b32 v{u0}, 16, v25")
    e(f"v_and_b32 v{u1}, 0xffff0000, v25")
    e(f"v_mul_f32 v24, {hex(NLOG2E)}, v{g0}")
    e(f"v_mul_f32 v25, {hex(NLOG2E)}, v{g1}")
    e("v_exp_f32 v24, v24")
    e("v_exp_f32 v25, v25")
    e("s_nop 0")
    e("v_add_f32 v24, 1.0, v24")
    e("v_add_f32 v25, 1.0, v25")
    e("v_rcp_f32 v24, v24")
    e("v_rcp_f32 v25, v25")
    e("s_nop 0")
    e(f"v_mul_f32 v{g0}, v24, v{g0}")
    e(f"v_mul_f32 v{g1}, v25, v{g1}")
    e(f"v_cvt_pk_bf16_f32 v24, v{g0}, v{g1}")
    e(f"v_lshlrev_b32 v{g0}, 16, v24")
    e(f"v_and_b32 v{g1}, 0xffff0000, v24")
    e(f"v_mul_f32 v{g0}, v{g0}, v{u0}")
    e(f"v_mul_f32 v{g1}, v{g1}, v{u1}")
    e(f"v_cvt_pk_bf16_f32 v40, v{g0}, v{g1}")
    e("v_lshlrev_b32 v19, 11, v8")
    e("v_lshl_add_u32 v19, v9, 4, v19")
    for ee in range(8):
        mfma16(e, 64 + 4 * ee, DF(ee), 40)
    e("s_lshl_b32 s67, s64, 12")
    e("s_lshl_b32 s74, s66, 9")
    e("s_add_u32 s67, s67, s74")
    e(f"s_add_u32 s67, s67, {hex(WS_YP)}")
    e("s_mov_b32 exec_lo, 0x00030003")
    e("s_mov_b32 exec_hi, 0x00030003")
    e("s_nop 3")
    for ee in range(8):
        e(f"buffer_store_dwordx4 {vr(64 + 4 * ee, 4)}, v19, s[44:47], s67 offen offset:{64 * ee} sc1")
    e("s_lshl_b32 s67, s66, 10")
    e("s_lshl_b32 s74, s64, 2")
    e("s_add_u32 s67, s67, s74")
    e(f"s_add_u32 s67, s67, {hex(WS_FLAGS)}")
    e("s_mov_b64 exec, 1")
    e("v_mov_b32 v18, 0")
    e("s_waitcnt vmcnt(0)")
    e("buffer_store_dword v26, v18, s[44:47], s67 offen sc1")
    e("s_mov_b64 exec, -1")
    e.label("K2_H_NOFFN1")
    stamp(e, 3)
    e("s_cmp_lg_u32 s66, 0")
    e("s_cbranch_scc1 K2_H_NOSEL")
    e("s_mov_b32 s77, 0xffff0000")
    for sl in range(2):
        e(f"s_and_b32 s75, s{70 + sl}, 0xffff0000")
        e("s_cmp_lt_i32 s75, 0")
        e("s_cselect_b32 s76, 0x80000000, s77")
        e("s_xor_b32 s75, s75, s76")
        e(f"v_mov_b32 v{22 + sl}, s75")
        e(f"v_mul_f32 v{22 + sl}, {hex(NLOG2E)}, v{22 + sl}")
        e(f"v_exp_f32 v{22 + sl}, v{22 + sl}")
        e("s_nop 0")
        e(f"v_add_f32 v{22 + sl}, 1.0, v{22 + sl}")
        e(f"v_rcp_f32 v{22 + sl}, v{22 + sl}")
        e("s_nop 0")
        rbf(e, 22 + sl, 22 + sl)
    e("v_mov_b32 v20, s72")
    e("v_mov_b32 v21, s73")
    e(f"v_mov_b32 v18, {L_SEL}")
    e("ds_write_b128 v18, v[20:23]")
    e.label("K2_H_NOSEL")
    for sl in range(2):
        e(f"s_lshr_b32 s67, s{72 + sl}, 6")
        e("s_cmp_lg_u32 s67, s61")
        e(f"s_cbranch_scc1 K2_H_NOCONS{sl}")
        if XNOFFN:
            e(f"s_branch K2_H_NOCONS{sl}")
        e("s_lshr_b32 s67, s62, 1")
        e("s_lshl_b32 s67, s67, 10")
        e("s_mul_i32 s74, s66, 224")
        e("s_add_u32 s67, s67, s74")
        e(f"s_add_u32 s67, s67, {hex(WS_FLAGS)}")
        e("v_lshlrev_b32 v18, 2, v1")
        e("s_mov_b32 s76, 0x40000")
        e("s_mov_b32 exec_hi, 0x00ffffff")
        e.label(f"K2_H_SPIN2_{sl}")
        e("buffer_load_dword v19, v18, s[44:47], s67 offen sc1")
        e("s_waitcnt vmcnt(0)")
        e("v_cmp_ne_u32 vcc, 1, v19")
        e("s_cmp_eq_u64 vcc, 0")
        e(f"s_cbranch_scc1 K2_H_SPIN2_DONE{sl}")
        e("s_sleep 8")
        e("s_sub_u32 s76, s76, 1")
        e("s_cmp_lg_u32 s76, 0")
        e(f"s_cbranch_scc1 K2_H_SPIN2_{sl}")
        e.label(f"K2_H_SPIN2_DONE{sl}")
        e("s_mov_b64 exec, -1")
        e("v_lshlrev_b32 v18, 12, v9")
        e("v_lshl_add_u32 v18, v8, 4, v18")
        e(f"s_mul_i32 s67, s66, {56 * 4096}")
        e("s_lshl_b32 s74, s62, 8")
        e("s_add_u32 s67, s67, s74")
        e(f"s_add_u32 s67, s67, {hex(WS_YP + sl * 2048)}")
        for i in range(14):
            e(f"buffer_load_dwordx4 {vr(64 + 4 * i, 4)}, v18, s[44:47], s67 offen sc1")
            e("s_add_u32 s67, s67, 16384")
        e("s_waitcnt vmcnt(0)")
        for i in range(1, 14):
            for c in range(4):
                e(f"v_add_f32 v{64 + c}, v{64 + c}, v{64 + 4 * i + c}")
        swap_add(e, 64, 65)
        swap_add(e, 66, 67)
        e("s_nop 1")
        e("v_permlane16_swap_b32 v64, v66")
        e("s_nop 1")
        e("v_add_f32 v64, v64, v66")
        e("v_and_b32 v19, 1, v9")
        e("v_lshrrev_b32 v20, 1, v9")
        e("v_lshl_add_u32 v19, v19, 1, v20")
        e("v_lshl_add_u32 v19, v8, 2, v19")
        e("v_lshlrev_b32 v19, 2, v19")
        e("s_lshl_b32 s67, s66, 8")
        e("v_add_u32 v19, s67, v19")
        e(f"ds_write_b32 v19, v64 offset:{L_YS + sl * 1024}")
        e.label(f"K2_H_NOCONS{sl}")
    stamp(e, 9)
    e("v_bfe_u32 v16, v1, 2, 2")
    e("v_lshl_add_u32 v16, v3, 2, v16")
    e("v_lshlrev_b32 v16, 7, v16")
    e("v_and_b32 v17, 1, v1")
    e("v_lshl_add_u32 v16, v17, 6, v16")
    e("v_bfe_u32 v17, v1, 4, 1")
    e("v_lshl_add_u32 v16, v17, 4, v16")
    e("v_bfe_u32 v17, v1, 1, 1")
    e("v_lshl_add_u32 v16, v17, 3, v16")
    e("v_add_u32 v16, s69, v16")
    e("s_waitcnt vmcnt(0)")
    WOF = lambda hd, nt: 160 + (hd * 2 + nt) * 4
    for hd in range(8):
        for nt in range(2):
            for u in range(2):
                e(f"ds_read_b64_tr_b16 {vr(WOF(hd, nt) + 2 * u, 2)}, v16 offset:{(16 * hd + 8 * u) * 128 + nt * 32}")
        if hd % 2 == 1:
            e("s_waitcnt lgkmcnt(4)")
    e("s_waitcnt lgkmcnt(0)")
    stamp(e, 8)
    e("s_setprio 0")
    e("s_barrier")
    e("s_branch K2_BAR1")

    e.label("K2_H2")
    e("s_mov_b32 s76, 0x10000")
    e("s_lshl_b32 s68, s61, 16")
    e("s_lshl_b32 s67, s66, 13")
    e("s_add_u32 s68, s68, s67")
    e(f"s_add_u32 s68, s68, {hex(WS_OF)}")
    OFR = lambda tt, hd: 8 + (tt * 8 + hd) * 4
    OA = lambda tt, nt: 96 + (tt * 2 + nt) * 16
    e.label("K2_H_SPIN3")
    for hd in range(8):
        for tt in range(2):
            e(f"s_add_u32 s67, s68, {tt * 32768 + (hd & 4) * 1024}")
            e(f"buffer_load_dwordx4 {vr(OFR(tt, hd), 4)}, v4, s[44:47], s67 offen offset:{(hd & 3) * 1024} sc1")
    e("s_waitcnt vmcnt(0)")
    e("v_max3_u32 v72, v8, v9, v10")
    for r in range(11, 71, 2):
        e(f"v_max3_u32 v72, v{r}, v{r + 1}, v72")
    e("v_max_u32 v72, v71, v72")
    e("v_cmp_eq_u32 vcc, -1, v72")
    e("s_cmp_eq_u64 vcc, 0")
    e("s_cbranch_scc1 K2_H_SPIN3_DONE")
    e("s_sleep 4")
    e("s_sub_u32 s76, s76, 1")
    e("s_cmp_lg_u32 s76, 0")
    e("s_cbranch_scc1 K2_H_SPIN3")
    e.label("K2_H_SPIN3_DONE")
    stamp(e, 6)
    for hd in range(8):
        for tt in range(2):
            for nt in range(2):
                mfma32(e, OA(tt, nt), WOF(hd, nt), OFR(tt, hd), None if hd == 0 else OA(tt, nt))
    e("s_lshl_b32 s67, s66, 14")
    e(f"s_add_u32 s67, s67, {L_REDB}")
    e("v_add_u32 v6, s67, v4")
    e("s_nop 15")
    for tt in range(2):
        for nt in range(2):
            for rq in range(4):
                e(f"ds_write_b128 v6, {vr(OA(tt, nt) + 4 * rq, 4)} offset:{((tt * 2 + nt) * 4 + rq) * 1024}")
            e("s_waitcnt lgkmcnt(8)")
    e("s_waitcnt lgkmcnt(0)")
    stamp(e, 7)
    e("s_barrier")
    stamp_flush(e, 1, 44, 60)
    e.label("K2_END")
    e("s_endpgm")
    return kn, 256, LDS_SIZE


def kd(name, nv, ns=96):
    return f""".p2align 6
.amdhsa_kernel {name}
  .amdhsa_next_free_vgpr {nv}
  .amdhsa_next_free_sgpr {ns}
  .amdhsa_accum_offset {(nv + 3) // 4 * 4}
  .amdhsa_group_segment_fixed_size 0
  .amdhsa_kernarg_size 104
  .amdhsa_user_sgpr_count 2
  .amdhsa_user_sgpr_kernarg_segment_ptr 1
  .amdhsa_system_sgpr_workgroup_id_x 1
  .amdhsa_float_denorm_mode_32 3
.end_amdhsa_kernel
"""


def main():
    e = Asm()
    k1, nv1, lds1 = gen_k1(e)
    k2, nv2, lds2 = gen_k2(e)
    head = f"""; MQA attention + mixture-of-depths FFN, generated by gen/gen2.py (hand-written generator)
; @launch kernel={k1} grid=(256,1,1) block=(256,1,1) lds={lds1}
; @launch kernel={k2} grid=(256,1,1) block=(512,1,1) lds={lds2}
.amdgcn_target "amdgcn-amd-amdhsa--gfx950"
.text
"""
    tail = '.section .rodata,"a"\n' + kd(k1, nv1) + kd(k2, nv2)
    args = [a for a in sys.argv[1:] if not a.startswith("--")]
    out = args[0] if args else f"cdna_kernels/{NAME}.s"
    with open(out, "w") as f:
        f.write(head + e.text() + tail)


if __name__ == "__main__":
    main()
```

```python
import sys

NAME = "recurrent_scan__grouped_kv_mqa__moe_arch_mod__prompt"

WS_QF = 0x000000
WS_KV = 0x200000
WS_KEYS = 0x220000
WS_STATS = 0x221000
WS_FLAGS = 0x226000
WS_PG = 0x240000
WS_OF = 0x300000
WS_YP = 0x500000
WS_OF2 = 0x600000
WS_PROF = 0x800000
WS_SIZE = 0x900000

QSCALE = 0x3eb8aa3b
NLOG2E = 0xbfb8aa3b
ONES = 0x3f803f80
EPS = 0x3727c5ac
INV512 = 0x3b000000

PROF = "--prof" in sys.argv
XNOFFN = "--xnoffn" in sys.argv
DBGOUT = "--dbgout" in sys.argv
PF1 = "--nopf1" not in sys.argv
PF2 = "--pf2" in sys.argv
UNR = 4 if "--unr4" in sys.argv else 2
FFNLIM = 0 if XNOFFN else 28


class Asm:
    def __init__(self):
        self.lines = []
        self.vm = []

    def __call__(self, s):
        self.lines.append("    " + s)

    def label(self, l):
        self.lines.append(l + ":")

    def raw(self, s):
        self.lines.append(s)

    def vmem(self, s, tag=None):
        self(s)
        self.vm.append(tag)
        assert len(self.vm) <= 63, "too many outstanding vmem ops"

    def vwait(self, tag=None):
        if tag is None:
            self("s_waitcnt vmcnt(0)")
            self.vm = []
            return
        idx = max(i for i, t in enumerate(self.vm) if t == tag)
        n = len(self.vm) - 1 - idx
        self(f"s_waitcnt vmcnt({n})")
        self.vm = self.vm[idx + 1:]

    def text(self):
        return "\n".join(self.lines) + "\n"


def stamp(e, i):
    if not PROF:
        return
    e("s_memrealtime s[78:79]")
    e("s_waitcnt lgkmcnt(0)")
    e(f"s_mov_b32 s{80 + i}, s78")


def cstamp(e, i):
    if not PROF:
        return
    e("s_memtime s[78:79]")
    e("s_waitcnt lgkmcnt(0)")
    e(f"s_mov_b32 s{80 + i}, s78")


def stamp_init(e):
    if PROF:
        for i in range(12):
            e(f"s_mov_b32 s{80 + i}, 0")
    stamp(e, 0)


def stamp_flush(e, kidx, wsrd, wave_sgpr):
    if not PROF:
        return
    stamp(e, 11)
    e("s_mov_b64 exec, 1")
    e("s_lshl_b32 s78, s2, 3")
    e(f"s_add_u32 s78, s78, s{wave_sgpr}")
    e("s_lshl_b32 s78, s78, 6")
    e(f"s_add_u32 s78, s78, {hex(WS_PROF + kidx * 320 * 8 * 64)}")
    e("v_mov_b32 v220, 0")
    for b in range(3):
        for i in range(4):
            e(f"v_mov_b32 v{216 + i}, s{80 + 4 * b + i}")
        e(f"buffer_store_dwordx4 v[216:219], v220, s[{wsrd}:{wsrd + 3}], s78 offen offset:{16 * b}")
        e("s_nop 1")


def vr(a, n=1):
    return f"v{a}" if n == 1 else f"v[{a}:{a + n - 1}]"


def srd(e, d, base, size):
    e(f"s_mov_b32 s{d}, s{base}")
    e(f"s_and_b32 s{d + 1}, s{base + 1}, 0xffff")
    e(f"s_mov_b32 s{d + 2}, {hex(size)}")
    e(f"s_mov_b32 s{d + 3}, 0x00020000")


def rbf(e, d, s):
    e(f"v_cvt_pk_bf16_f32 v{d}, v{s}, v{s}")
    e(f"v_and_b32 v{d}, 0xffff0000, v{d}")


def mfma32(e, d, a, b, c=None):
    cs = "0" if c is None else vr(c, 16)
    e(f"v_mfma_f32_32x32x16_bf16 {vr(d, 16)}, {vr(a, 4)}, {vr(b, 4)}, {cs}")


def mfma16(e, d, a, b, c=None):
    cs = "0" if c is None else vr(c, 4)
    e(f"v_mfma_f32_16x16x32_bf16 {vr(d, 4)}, {vr(a, 4)}, {vr(b, 4)}, {cs}")


def dpp_umax_reduce(e, v):
    for mod in ("row_shr:1 row_mask:0xf bank_mask:0xf bound_ctrl:0",
                "row_shr:2 row_mask:0xf bank_mask:0xf bound_ctrl:0",
                "row_shr:4 row_mask:0xf bank_mask:0xf bound_ctrl:0",
                "row_shr:8 row_mask:0xf bank_mask:0xf bound_ctrl:0",
                "row_bcast:15 row_mask:0xa bank_mask:0xf",
                "row_bcast:31 row_mask:0xc bank_mask:0xf"):
        e("s_nop 1")
        e(f"v_max_u32_dpp v{v}, v{v}, v{v} {mod}")
    e("s_nop 1")


def token_stats(e, sx, sq, mb, db, inv, t0, t1):
    e(f"v_mul_f32 v{t0}, {hex(INV512)}, v{sx}")
    e(f"v_mul_f32 v{t1}, {hex(INV512)}, v{sq}")
    rbf(e, mb, t0)
    e(f"v_fma_f32 v{t1}, -v{t0}, v{t0}, v{t1}")
    e(f"v_max_f32 v{t1}, 0, v{t1}")
    rbf(e, t1, t1)
    e(f"v_add_f32 v{t1}, {hex(EPS)}, v{t1}")
    rbf(e, t1, t1)
    e(f"v_sqrt_f32 v{t1}, v{t1}")
    e("s_nop 0")
    rbf(e, db, t1)
    e(f"v_rcp_f32 v{inv}, v{db}")
    e("s_nop 0")


def swap_add(e, a, b):
    e("s_nop 1")
    e(f"v_permlane32_swap_b32 v{a}, v{b}")
    e("s_nop 1")
    e(f"v_add_f32 v{a}, v{a}, v{b}")


def sum4(e, d, a, b, c, dd):
    e(f"v_add_f32 v{a}, v{a}, v{b}")
    e(f"v_add_f32 v{c}, v{c}, v{dd}")
    e(f"v_add_f32 v{d}, v{a}, v{c}")


def gen_k1(e):
    kn = "mqa_proj_kernel"
    RSZ = 40960
    O_X, O_W, O_KV = 0, 16384, 32768
    e.raw(".p2align 8")
    e.raw(f".globl {kn}")
    e.raw(f".type {kn},@function")
    e.label(kn)
    e("s_cmp_ge_u32 s2, 256")
    e("s_cbranch_scc1 K1_END")
    stamp_init(e)
    e("s_load_dwordx4 s[4:7], s[0:1], 0")
    e("s_load_dwordx4 s[8:11], s[0:1], 16")
    e("s_load_dwordx2 s[12:13], s[0:1], 48")
    e("s_load_dwordx2 s[14:15], s[0:1], 96")
    e("v_and_b32 v1, 63, v0")
    e("v_lshrrev_b32 v6, 6, v0")
    e("v_and_b32 v2, 31, v1")
    e("v_lshrrev_b32 v3, 5, v1")
    e("v_readfirstlane_b32 s60, v6")
    e("v_lshlrev_b32 v4, 4, v1")
    e(f"v_mov_b32 v5, {hex(ONES)}")
    e("s_and_b32 s56, s2, 7")
    e("s_lshr_b32 s57, s2, 3")
    e("s_lshr_b32 s58, s57, 3")
    e("s_lshl_b32 s61, s56, 2")
    e("s_add_u32 s61, s61, s58")
    e("s_and_b32 s62, s57, 7")
    e(f"s_mul_i32 s63, s60, {RSZ}")
    e("v_lshrrev_b32 v6, 4, v1")
    e("v_and_b32 v7, 15, v1")
    e("v_xor_b32 v7, v7, v6")
    for v in range(4):
        e(f"v_xor_b32 v{8 + v}, {4 * v}, v7")
        e(f"v_lshlrev_b32 v{8 + v}, 4, v{8 + v}")
        e(f"v_lshl_add_u32 v{8 + v}, v6, 10, v{8 + v}")
    e("v_lshrrev_b32 v6, 3, v1")
    e("v_and_b32 v12, 7, v1")
    e("v_lshlrev_b32 v12, 4, v12")
    e("v_lshl_add_u32 v12, v6, 10, v12")
    e("s_lshl_b32 s64, s61, 16")
    e("s_lshl_b32 s65, s60, 8")
    e("s_add_u32 s64, s64, s65")
    e("s_lshl_b32 s66, s60, 17")
    e("s_lshl_b32 s67, s62, 7")
    e("s_add_u32 s66, s66, s67")
    e("s_waitcnt lgkmcnt(0)")
    stamp(e, 1)
    srd(e, 16, 4, 2048 * 512 * 2)
    srd(e, 20, 6, 512 * 512 * 2)
    srd(e, 24, 14, WS_SIZE)
    srd(e, 28, 12, 512 * 2)
    srd(e, 32, 8, 512 * 16 * 2)
    srd(e, 36, 10, 512 * 16 * 2)

    def dma_x(n):
        if n % 4 == 0:
            e(f"s_add_u32 m0, s63, {O_X + (n >> 2) * 4096}")
        e(f"s_add_u32 s67, s64, {n * 4096 - (n & 3) * 1024}")
        e.vmem(f"buffer_load_dwordx4 v{8 + (n & 3)}, s[16:19], s67 offen offset:{(n & 3) * 1024} lds", ("x", n))

    def dma_w(n):
        if n % 4 == 0:
            e(f"s_add_u32 m0, s63, {O_W + (n >> 2) * 4096}")
        e(f"s_add_u32 s67, s66, {n * 8192 - (n & 3) * 1024}")
        e.vmem(f"buffer_load_dwordx4 v12, s[20:23], s67 offen offset:{(n & 3) * 1024} lds", ("w", n))

    for n in range(16):
        dma_x(n)
    for n in range(4):
        dma_w(n)
    e("s_cmp_ge_u32 s62, 2")
    e("s_cbranch_scc1 K1_NOKVDMA")
    e("s_lshl_b32 s67, s60, 12")
    e(f"s_add_u32 m0, s63, {O_KV}")
    e("s_nop 0")
    for i in range(4):
        e(f"buffer_load_dwordx4 v4, s[32:35], s67 offen offset:{i * 1024} lds")
    e(f"s_add_u32 m0, s63, {O_KV + 4096}")
    e("s_nop 0")
    for i in range(4):
        e(f"buffer_load_dwordx4 v4, s[36:39], s67 offen offset:{i * 1024} lds")
    e.label("K1_NOKVDMA")
    WR = lambda ks: 176 + 4 * ks
    e("v_lshlrev_b32 v13, 4, v3")
    e("s_cmp_lg_u32 s62, 2")
    e("s_cbranch_scc1 K1_NOWR")
    for ks in range(8):
        e(f"buffer_load_dwordx4 {vr(WR(ks), 4)}, v13, s[28:31], s65 offen offset:{32 * ks}")
    e.label("K1_NOWR")
    marker = len(e.vm)
    for n in range(4, 16):
        dma_w(n)
    if PF1:
        e("s_lshl_b32 s67, s57, 2")
        e("s_add_u32 s67, s67, s60")
        e("s_and_b32 s67, s67, 31")
        e("s_min_u32 s67, s67, 17")
        e("s_getpc_b64 s[40:41]")
        e.label("K1_PC")
        e("s_add_u32 s40, s40, mqa_attn_kernel-K1_PC")
        e("s_addc_u32 s41, s41, 0")
        e("s_lshl_b32 s67, s67, 10")
        e("v_add_u32 v14, s67, v4")
        e.vmem("global_load_dwordx4 v[244:247], v14, s[40:41]", "pf")
    e("v_mov_b32 v16, -1")
    e("v_mov_b32 v17, -1")
    e("v_mov_b32 v18, -1")
    e("v_mov_b32 v19, -1")
    e("v_lshlrev_b32 v14, 4, v0")
    e("s_lshl_b32 s67, s2, 13")
    e(f"s_add_u32 s67, s67, {hex(WS_OF)}")
    e("v_and_b32 v6, 15, v2")
    e("v_xor_b32 v6, v6, v3")
    e("v_lshlrev_b32 v7, 8, v2")
    e("v_add_u32 v7, s63, v7")
    for ks in range(8):
        e(f"v_xor_b32 v{24 + ks}, {2 * ks}, v6")
        e(f"v_lshl_add_u32 v{24 + ks}, v{24 + ks}, 4, v7")
    e("v_bfe_u32 v6, v1, 2, 2")
    e("v_lshl_add_u32 v6, v3, 3, v6")
    e("v_and_b32 v7, 1, v1")
    e("v_bfe_u32 v15, v1, 1, 1")
    e("v_lshl_add_u32 v7, v7, 1, v15")
    e("v_bfe_u32 v15, v1, 4, 1")
    e("v_lshlrev_b32 v20, 7, v6")
    e("v_lshl_add_u32 v20, v15, 5, v20")
    e("v_lshl_add_u32 v20, v7, 3, v20")
    e("v_add_u32 v20, s63, v20")
    e("v_and_b32 v21, 3, v1")
    e("v_cmp_eq_u32 vcc, 1, v15")
    e("v_lshlrev_b32 v6, 5, v6")
    e("v_lshl_add_u32 v6, v15, 12, v6")
    e("v_cndmask_b32 v21, v7, v21, vcc")
    e("v_lshl_add_u32 v21, v21, 3, v6")
    e("v_add_u32 v21, s63, v21")
    SX, SQ, CS = [32, 33], [34, 35], [36, 37]
    SR, CSR, CSK, ZZ = [38, 39], 40, 41, 42
    for r in range(32, 44):
        e(f"v_mov_b32 v{r}, 0")
    XF = lambda b, tt: 48 + (b * 2 + tt) * 4
    WF = lambda b, ct: 64 + (b * 2 + ct) * 4
    KF = lambda b: 80 + b * 4
    ACC = lambda tt, ct: 96 + (tt * 2 + ct) * 16
    AK, AV = 208, 224

    def reads(ks):
        b = ks & 1
        for tt in range(2):
            e(f"ds_read_b128 {vr(XF(b, tt), 4)}, v{24 + ks} offset:{O_X + tt * 8192}")
        for ct in range(2):
            for u in range(2):
                e(f"ds_read_b64_tr_b16 {vr(WF(b, ct) + 2 * u, 2)}, v20 offset:{O_W + (16 * ks + 4 * u) * 128 + 64 * ct}")

    def wait_w(n):
        e.vwait(("w", n))

    wait_w(5)
    stamp(e, 2)
    reads(0)
    for ks in range(8):
        b = ks & 1
        if ks + 1 < 8:
            if 2 * (ks + 1) + 1 > 5:
                wait_w(2 * (ks + 1) + 1)
            reads(ks + 1)
            e("s_waitcnt lgkmcnt(6)")
        else:
            e("s_waitcnt lgkmcnt(0)")
        for tt in range(2):
            for ct in range(2):
                mfma32(e, ACC(tt, ct), WF(b, ct), XF(b, tt), None if ks == 0 else ACC(tt, ct))
                x = XF(b, tt)
                if ct == 0:
                    for c in range(4):
                        e(f"v_dot2_f32_bf16 v{SX[tt]}, v{x + c}, v5, v{SX[tt]}")
                        e(f"v_dot2_f32_bf16 v{SQ[tt]}, v{x + c}, v{x + c}, v{SQ[tt]}")
                else:
                    for c in range(4):
                        e(f"v_dot2_f32_bf16 v{CS[tt]}, v{WF(b, tt) + c}, v5, v{CS[tt]}")
        e("s_cmp_ge_u32 s62, 2")
        e(f"s_cbranch_scc1 K1_R{ks}_A")
        for u in range(2):
            e(f"ds_read_b64_tr_b16 {vr(KF(0) + 2 * u, 2)}, v21 offset:{O_KV + (16 * ks + 4 * u) * 32}")
        e("s_cmp_eq_u32 s62, 0")
        e(f"s_cbranch_scc1 K1_R{ks}_T0")
        e("s_waitcnt lgkmcnt(0)")
        mfma32(e, AK, KF(0), XF(b, 1), None if ks == 0 else AK)
        mfma32(e, AV, XF(b, 1), KF(0), None if ks == 0 else AV)
        e(f"s_branch K1_R{ks}_C")
        e.label(f"K1_R{ks}_T0")
        e("s_waitcnt lgkmcnt(0)")
        mfma32(e, AK, KF(0), XF(b, 0), None if ks == 0 else AK)
        mfma32(e, AV, XF(b, 0), KF(0), None if ks == 0 else AV)
        e.label(f"K1_R{ks}_C")
        for c in range(4):
            e(f"v_dot2_f32_bf16 v{CSK}, v{KF(0) + c}, v5, v{CSK}")
        e(f"s_branch K1_R{ks}_E")
        e.label(f"K1_R{ks}_A")
        e("s_cmp_lg_u32 s62, 2")
        e(f"s_cbranch_scc1 K1_R{ks}_E")
        for c in range(4):
            e(f"v_dot2_f32_bf16 v{SR[0]}, v{XF(b, 0) + c}, v{WR(ks) + c}, v{SR[0]}")
            e(f"v_dot2_f32_bf16 v{SR[1]}, v{XF(b, 1) + c}, v{WR(ks) + c}, v{SR[1]}")
            e(f"v_dot2_f32_bf16 v{CSR}, v{WR(ks) + c}, v5, v{CSR}")
        e.label(f"K1_R{ks}_E")
    stamp(e, 3)
    for off in (0, 4096, WS_OF2 - WS_OF, WS_OF2 - WS_OF + 4096):
        e(f"s_add_u32 s70, s67, {off}")
        e("buffer_store_dwordx4 v[16:19], v14, s[24:27], s70 offen sc1")
    swap_add(e, SX[0], SX[1])
    swap_add(e, SQ[0], SQ[1])
    swap_add(e, CS[0], CS[1])
    swap_add(e, SR[0], SR[1])
    swap_add(e, CSR, CSK)
    e("v_lshl_add_u32 v6, v1, 2, s63")
    for q, r in enumerate((32, 34, 36, 38, 40)):
        e(f"ds_write_b32 v6, v{r} offset:{O_W + q * 256}")
    e("v_add_u32 v7, s63, v4")
    for tt in range(2):
        for ct in range(2):
            for rq in range(4):
                e(f"ds_write_b128 v7, {vr(ACC(tt, ct) + 4 * rq, 4)} offset:{O_X + ((tt * 2 + ct) * 4 + rq) * 1024}")
            e("s_waitcnt lgkmcnt(8)")
    e("s_cmp_ge_u32 s62, 2")
    e("s_cbranch_scc1 K1_NOKVW")
    for rq in range(2):
        e(f"ds_write_b128 v7, {vr(AK + 4 * rq, 4)} offset:{O_KV + rq * 1024}")
    for rq in range(4):
        e(f"ds_write_b128 v7, {vr(AV + 4 * rq, 4)} offset:{O_KV + 2048 + rq * 1024}")
    e.label("K1_NOKVW")
    e("s_waitcnt lgkmcnt(0)")
    e("s_barrier")
    stamp(e, 4)
    e("s_lshr_b32 s68, s60, 1")
    e("s_and_b32 s69, s60, 1")
    e("v_lshlrev_b32 v6, 2, v1")
    e(f"v_add_u32 v7, {2 * RSZ}, v6")
    for q in range(5):
        for wp in range(4):
            a = 6 if wp < 2 else 7
            e(f"ds_read_b32 v{44 + q * 4 + wp}, v{a} offset:{(wp & 1) * RSZ + O_W + q * 256}")
        if q == 2:
            e("s_waitcnt lgkmcnt(4)")
    e("s_lshl_b32 s67, s60, 12")
    e("v_add_u32 v8, s67, v4")
    e(f"v_add_u32 v9, {2 * RSZ}, v8")
    AR = lambda wp, rq: 96 + (wp * 4 + rq) * 4
    e("s_waitcnt lgkmcnt(0)")
    for wp in range(4):
        a = 8 if wp < 2 else 9
        if wp == 3:
            for q in range(5):
                b = 44 + q * 4
                sum4(e, b, b, b + 1, b + 2, b + 3)
            e("s_waitcnt lgkmcnt(8)")
        for rq in range(4):
            e(f"ds_read_b128 {vr(AR(wp, rq), 4)}, v{a} offset:{(wp & 1) * RSZ + O_X + rq * 1024}")
    MB, DB, INV = 64, 65, 66
    token_stats(e, 44, 48, MB, DB, INV, 67, 68)
    PV = O_W + 2048
    e("v_lshl_add_u32 v10, v1, 2, s63")
    e("s_waitcnt lgkmcnt(8)")
    e(f"ds_write_b32 v10, v52 offset:{PV}")
    e(f"ds_write_b32 v10, v{MB} offset:{PV + 256}")
    e(f"ds_write_b32 v10, v{INV} offset:{PV + 512}")
    e(f"ds_write_b32 v10, v60 offset:{PV + 768}")
    e("s_lshl_b32 s67, s68, 7")
    e("s_add_u32 s67, s67, s63")
    e("v_lshl_add_u32 v11, v2, 2, s67")
    e("s_waitcnt lgkmcnt(6)")
    e(f"ds_read_b32 v69, v11 offset:{PV + 256}")
    e(f"ds_read_b32 v70, v11 offset:{PV + 512}")
    e("s_lshl_b32 s67, s69, 7")
    e("s_add_u32 s67, s67, s63")
    e("v_lshl_add_u32 v11, v3, 4, s67")
    for g in range(4):
        e(f"ds_read_b128 {vr(72 + 4 * g, 4)}, v11 offset:{PV + 32 * g}")
    e("s_waitcnt lgkmcnt(0)")
    e(f"v_mul_f32 v70, {hex(QSCALE)}, v70")
    for r in range(16):
        a = AR(0, 0) + r
        sum4(e, a, a, a + 16, a + 32, a + 48)
        e(f"v_fma_f32 v{a}, -v69, v{72 + r}, v{a}")
        e(f"v_mul_f32 v{a}, v70, v{a}")
    for c in range(8):
        e(f"v_cvt_pk_bf16_f32 v{88 + c}, v{96 + 2 * c}, v{97 + 2 * c}")
    e("s_lshl_b32 s67, s62, 2")
    e("s_lshl_b32 s70, s69, 1")
    e("s_add_u32 s67, s67, s70")
    e("s_lshl_b32 s67, s67, 6")
    e("s_lshl_b32 s70, s61, 1")
    e("s_add_u32 s67, s67, s70")
    e("s_add_u32 s67, s67, s68")
    e("s_lshl_b32 s67, s67, 10")
    e("s_add_u32 s70, s67, 65536")
    e("buffer_store_dwordx4 v[88:91], v4, s[24:27], s67 offen")
    e("buffer_store_dwordx4 v[92:95], v4, s[24:27], s70 offen")
    e("s_cmp_gt_u32 s62, 3")
    e("s_cbranch_scc1 K1_FIN")
    e("s_cmp_eq_u32 s62, 3")
    e("s_cbranch_scc1 K1_FLAGS")
    e("s_cmp_eq_u32 s62, 2")
    e("s_cbranch_scc1 K1_ROUTER")
    e("s_cmp_eq_u32 s60, 3")
    e("s_cbranch_scc1 K1_FIN")
    e("s_lshl_b32 s70, s61, 1")
    e("s_add_u32 s70, s70, s62")
    e("s_lshl_b32 s70, s70, 11")
    e(f"s_add_u32 s70, s70, {hex(WS_KV)}")
    e(f"v_add_u32 v8, {O_KV}, v4")
    e(f"v_add_u32 v9, {2 * RSZ + O_KV}, v4")
    e("s_lshl_b32 s71, s62, 7")
    e("s_add_u32 s71, s71, s63")
    e("s_cmp_eq_u32 s60, 0")
    e("s_cbranch_scc1 K1_KV_K")
    e("s_sub_u32 s72, s60, 1")
    e("s_lshl_b32 s67, s72, 11")
    e("v_add_u32 v8, s67, v8")
    e("v_add_u32 v9, s67, v9")
    for wp in range(4):
        a = 8 if wp < 2 else 9
        for rr in range(2):
            e(f"ds_read_b128 {vr(96 + (wp * 2 + rr) * 4, 4)}, v{a} offset:{(wp & 1) * RSZ + 2048 + rr * 1024}")
    e("s_lshl_b32 s67, s72, 6")
    e("s_add_u32 s67, s67, s71")
    e("v_lshl_add_u32 v11, v3, 4, s67")
    for rr in range(2):
        e(f"ds_read_b128 {vr(72 + rr * 4, 4)}, v11 offset:{PV + 256 + rr * 32}")
        e(f"ds_read_b128 {vr(80 + rr * 4, 4)}, v11 offset:{PV + 512 + rr * 32}")
    e("v_lshl_add_u32 v11, v2, 2, s63")
    e(f"ds_read_b32 v69, v11 offset:{PV + 768 + 128}")
    e("s_waitcnt lgkmcnt(0)")
    for i in range(8):
        a = 96 + i
        sum4(e, a, a, a + 8, a + 16, a + 24)
        e(f"v_fma_f32 v{a}, -v{72 + i}, v69, v{a}")
        e(f"v_mul_f32 v{a}, v{80 + i}, v{a}")
    for c in range(4):
        e(f"v_cvt_pk_bf16_f32 v{88 + c}, v{96 + 2 * c}, v{97 + 2 * c}")
    e("v_and_b32 v10, 15, v2")
    e("v_lshlrev_b32 v10, 4, v10")
    e("v_lshl_add_u32 v10, v3, 8, v10")
    e("s_lshl_b32 s67, s72, 9")
    e("s_add_u32 s67, s67, s70")
    e("s_mov_b32 exec_lo, 0xffff0000")
    e("s_mov_b32 exec_hi, 0xffff0000")
    e("buffer_store_dwordx4 v[88:91], v10, s[24:27], s67 offen offset:1024")
    e("s_branch K1_FIN")
    e.label("K1_KV_K")
    for wp in range(4):
        a = 8 if wp < 2 else 9
        for rr in range(2):
            e(f"ds_read_b128 {vr(96 + (wp * 2 + rr) * 4, 4)}, v{a} offset:{(wp & 1) * RSZ + rr * 1024}")
    e("v_lshl_add_u32 v11, v3, 4, s63")
    for rr in range(2):
        e(f"ds_read_b128 {vr(72 + rr * 4, 4)}, v11 offset:{PV + 768 + 128 + rr * 32}")
    e("v_lshl_add_u32 v11, v2, 2, s71")
    e(f"ds_read_b32 v69, v11 offset:{PV + 256}")
    e(f"ds_read_b32 v70, v11 offset:{PV + 512}")
    e("s_waitcnt lgkmcnt(0)")
    for i in range(8):
        a = 96 + i
        sum4(e, a, a, a + 8, a + 16, a + 24)
        e(f"v_fma_f32 v{a}, -v69, v{72 + i}, v{a}")
        e(f"v_mul_f32 v{a}, v70, v{a}")
    for c in range(4):
        e(f"v_cvt_pk_bf16_f32 v{88 + c}, v{96 + 2 * c}, v{97 + 2 * c}")
    e("buffer_store_dwordx4 v[88:91], v4, s[24:27], s70 offen")
    e("s_branch K1_FIN")
    e.label("K1_FLAGS")
    e("s_cmp_lg_u32 s60, 0")
    e("s_cbranch_scc1 K1_FIN")
    e("v_mov_b32 v8, 0")
    e("v_lshlrev_b32 v9, 2, v1")
    e("s_lshl_b32 s67, s61, 8")
    e(f"s_add_u32 s67, s67, {hex(WS_FLAGS)}")
    e("buffer_store_dword v8, v9, s[24:27], s67 offen sc1")
    e("s_branch K1_FIN")
    e.label("K1_ROUTER")
    e("s_cmp_lg_u32 s60, 0")
    e("s_cbranch_scc1 K1_FIN")
    e("v_readlane_b32 s67, v60, 0")
    e("s_nop 1")
    e(f"v_mul_f32 v8, s67, v{MB}")
    e("v_sub_f32 v56, v56, v8")
    e(f"v_mul_f32 v56, v{INV}, v56")
    rbf(e, 56, 56)
    e("v_ashrrev_i32 v8, 31, v56")
    e("v_or_b32 v8, 0x80000000, v8")
    e("v_xor_b32 v56, v56, v8")
    e("v_and_b32 v56, 0xffff0000, v56")
    e("s_lshl_b32 s67, s61, 6")
    e("v_add_u32 v9, s67, v1")
    e("v_sub_u32 v8, 0xffff, v9")
    e("v_or_b32 v56, v56, v8")
    e("v_mov_b32 v10, v56")
    dpp_umax_reduce(e, 10)
    e("v_readlane_b32 s70, v10, 63")
    e("s_nop 1")
    e("v_cmp_ne_u32 vcc, s70, v56")
    e("s_nop 1")
    e("v_cndmask_b32 v10, 0, v56, vcc")
    dpp_umax_reduce(e, 10)
    e("v_readlane_b32 s71, v10, 63")
    e("s_nop 1")
    e("v_mov_b32 v12, s70")
    e("v_mov_b32 v13, s71")
    e("v_lshlrev_b32 v9, 3, v9")
    e(f"s_mov_b32 s67, {hex(WS_STATS)}")
    e(f"buffer_store_dwordx2 v[{MB}:{DB}], v9, s[24:27], s67 offen")
    e("s_lshl_b32 s67, s61, 3")
    e(f"s_add_u32 s67, s67, {hex(WS_KEYS)}")
    e("v_mov_b32 v8, 0")
    e("s_mov_b64 exec, 1")
    e("buffer_store_dwordx2 v[12:13], v8, s[24:27], s67 offen")
    e.label("K1_FIN")
    stamp_flush(e, 0, 24, 60)
    e.label("K1_END")
    e("s_endpgm")
    e.vm = []
    return kn, 248, 4 * RSZ


def gen_k2(e):
    kn = "mqa_attn_kernel"
    L_XS = 0
    L_YS = 512
    L_SEL = L_YS + 2048
    L_CNT = L_SEL + 16
    L_MX = L_CNT + 16
    L_STG = 8192
    assert L_MX + 4096 <= L_STG
    L_KV = 32768
    L_REDB = 32768
    LDS_SIZE = 163840

    e.raw(".p2align 8")
    e.raw(f".globl {kn}")
    e.raw(f".type {kn},@function")
    e.label(kn)
    e("s_cmp_ge_u32 s2, 256")
    e("s_cbranch_scc1 K2_END")
    stamp_init(e)
    e("s_load_dwordx2 s[4:5], s[0:1], 0")
    e("s_load_dwordx2 s[6:7], s[0:1], 32")
    e("s_load_dwordx4 s[8:11], s[0:1], 56")
    e("s_load_dwordx4 s[12:15], s[0:1], 72")
    e("s_load_dwordx2 s[18:19], s[0:1], 96")
    e("v_and_b32 v1, 63, v0")
    e("v_lshrrev_b32 v6, 6, v0")
    e("v_and_b32 v2, 31, v1")
    e("v_lshrrev_b32 v3, 5, v1")
    e("v_readfirstlane_b32 s60, v6")
    e("v_lshlrev_b32 v4, 4, v1")
    e("s_and_b32 s56, s2, 7")
    e("s_lshr_b32 s57, s2, 3")
    e("s_lshr_b32 s58, s57, 3")
    e("s_lshl_b32 s61, s56, 2")
    e("s_add_u32 s61, s61, s58")
    e("s_and_b32 s62, s57, 7")
    e("s_mov_b32 s63, 0")
    e("s_mov_b32 s59, 0")
    e("v_and_b32 v5, 15, v2")
    e("v_lshlrev_b32 v5, 4, v5")
    e("v_lshl_add_u32 v5, v3, 8, v5")
    e("v_add_u32 v5, 1024, v5")
    e("s_waitcnt lgkmcnt(0)")
    stamp(e, 1)
    srd(e, 20, 4, 2048 * 512 * 2)
    srd(e, 24, 6, 512 * 512 * 2)
    srd(e, 28, 8, 512 * 1792 * 2)
    srd(e, 32, 10, 512 * 1792 * 2)
    srd(e, 36, 12, 512 * 1792 * 2)
    srd(e, 40, 14, 2048 * 512 * 2)
    srd(e, 44, 18, WS_SIZE)
    e("s_cmp_ge_u32 s60, 4")
    e("s_cbranch_scc1 K2_H")

    ACC = lambda q: 128 + 16 * q
    Q = lambda q: 96 + 4 * q
    S = [64, 80]
    P = 56
    KB = [8, 12]
    VB = [24, 32]
    NB = 2
    e("s_lshl_b32 s66, s62, 8")
    e("s_lshl_b32 s67, s61, 1")
    e("s_add_u32 s66, s66, s67")
    e("s_lshl_b32 s66, s66, 10")
    e("s_lshl_b32 s71, s60, 15")
    e(f"s_add_u32 s68, s71, {hex(WS_KV)}")
    e(f"s_add_u32 s71, s71, {L_KV}")
    e("s_mov_b32 s50, 0x0000ffff")
    e("s_mov_b32 s51, 0x0000ffff")

    def load_q():
        for q in range(8):
            hl, tt = q >> 1, q & 1
            e(f"s_add_u32 s67, s66, {hl * 65536 + tt * 1024}")
            e.vmem(f"buffer_load_dwordx4 {vr(Q(q), 4)}, v4, s[44:47], s67 offen", "q")

    def init_v():
        e("v_and_b32 v6, 27, v2")
        e("v_cmp_eq_u32 vcc, 16, v6")
        e(f"v_mov_b32 v7, {hex(ONES)}")
        e("s_nop 0")
        e("v_cndmask_b32 v7, 0, v7, vcc")
        for r in range(24, 40):
            e(f"v_mov_b32 v{r}, v7")

    def load_kv(buf, soff, imm=0, tag="kv"):
        e.vmem(f"buffer_load_dwordx4 {vr(KB[buf], 4)}, v4, s[44:47], {soff} offen offset:{imm}", tag + "k")
        e("s_mov_b64 exec, s[50:51]")
        e.vmem(f"buffer_load_dwordx4 {vr(VB[buf], 4)}, v5, s[44:47], {soff} offen offset:{imm}", tag + "v")
        e.vmem(f"buffer_load_dwordx4 {vr(VB[buf] + 4, 4)}, v5, s[44:47], {soff} offen offset:{imm + 512}", tag + "v")
        e("s_mov_b64 exec, -1")

    def read_kv(buf, imm):
        e(f"ds_read_b128 {vr(KB[buf], 4)}, v40 offset:{imm}")
        e("s_mov_b64 exec, s[50:51]")
        e(f"ds_read_b128 {vr(VB[buf], 4)}, v41 offset:{imm}")
        e(f"ds_read_b128 {vr(VB[buf] + 4, 4)}, v41 offset:{imm + 512}")
        e("s_mov_b64 exec, -1")

    def kv_dma(n):
        if n % 4 == 0:
            e(f"s_add_u32 m0, s71, {n * 1024}")
            e(f"s_add_u32 s69, s68, {n * 1024}")
        e.vmem(f"buffer_load_dwordx4 v4, s[44:47], s69 offen offset:{(n & 3) * 1024} lds", ("kv", n))
    for n in range(2):
        kv_dma(n)
    load_q()
    for n in range(2, 10):
        if n == 2:
            pass
        kv_dma(n)
    init_v()
    e("v_add_u32 v40, s71, v4")
    e("v_add_u32 v41, s71, v5")
    for r in range(P, P + 8):
        e(f"v_mov_b32 v{r}, 0")
    for r in range(128, 256):
        e(f"v_mov_b32 v{r}, 0")
    e.vwait("q")
    read_kv(0, 0)
    stamp(e, 2)
    cstamp(e, 8)
    e("s_waitcnt lgkmcnt(0)")
    mfma32(e, S[0], KB[0], Q(0))
    e(f"s_mov_b32 s70, {16 // UNR}")
    e("s_nop 7")
    e("s_nop 2")

    def slot(tb, q):
        kb = tb & 1
        t = q
        Sc, Sn = S[t & 1], S[(t + 1) & 1]
        if q < 7:
            mfma32(e, Sn, KB[kb], Q(q + 1))
        else:
            mfma32(e, Sn, KB[kb ^ 1], Q(0))
        for i in range(6):
            e(f"v_exp_f32 v{Sc + i}, v{Sc + i}")
            if q == 5 and i == 0:
                e(f"s_waitcnt vmcnt({2 - 2 * tb})")
        if q == 0:
            mfma32(e, ACC(7), VB[kb ^ 1] + 4, P + 4, ACC(7))
        else:
            mfma32(e, ACC(q - 1), VB[kb] + 4, P + 4, ACC(q - 1))
        for i in range(6, 8):
            e(f"v_exp_f32 v{Sc + i}, v{Sc + i}")
        if q == 5:
            read_kv(kb ^ 1, 2048 * (tb + 1))
        for c in range(4):
            e(f"v_cvt_pk_bf16_f32 v{P + c}, v{Sc + 2 * c}, v{Sc + 2 * c + 1}")
        e(f"v_exp_f32 v{Sc + 8}, v{Sc + 8}")
        e(f"v_exp_f32 v{Sc + 9}, v{Sc + 9}")
        mfma32(e, ACC(q), VB[kb], P, ACC(q))
        for i in range(10, 16):
            e(f"v_exp_f32 v{Sc + i}, v{Sc + i}")
            if q == 6 and i == 15:
                e("s_waitcnt lgkmcnt(0)")
        for c in range(4, 8):
            e(f"v_cvt_pk_bf16_f32 v{P + c}, v{Sc + 2 * c}, v{Sc + 2 * c + 1}")
        if q == 7 and tb == UNR - 1:
            e(f"v_add_u32 v40, {2048 * UNR}, v40")
            e(f"v_add_u32 v41, {2048 * UNR}, v41")

    e.raw(".p2align 6")
    e.label("K2_LOOP")
    for tb in range(UNR):
        for q in range(8):
            e.vm = []
            slot(tb, q)
    e("s_sub_u32 s70, s70, 1")
    e("s_cmp_lg_u32 s70, 6")
    e("s_cbranch_scc1 K2_LOOP_NB")
    e("s_barrier")
    e.label("K2_LOOP_NB")
    e("s_cmp_lg_u32 s70, 0")
    e("s_cbranch_scc1 K2_LOOP")
    mfma32(e, ACC(7), VB[1] + 4, P + 4, ACC(7))
    e.vm = []
    stamp(e, 3)
    cstamp(e, 9)
    e.label("K2_DUMP")
    e("s_lshr_b32 s71, s60, 1")
    e("s_and_b32 s72, s60, 1")
    e("s_lshl_b32 s73, s61, 6")
    e("s_lshl_b32 s67, s71, 5")
    e("s_add_u32 s73, s73, s67")
    e("v_add_u32 v56, s73, v2")
    e("v_lshlrev_b32 v57, 10, v56")
    e("v_lshl_add_u32 v57, v3, 5, v57")
    e("s_lshl_b32 s74, s62, 7")
    e("s_lshl_b32 s67, s72, 6")
    e("s_add_u32 s74, s74, s67")
    e("buffer_load_dwordx4 v[48:51], v57, s[20:23], s74 offen")
    e("buffer_load_dwordx4 v[52:55], v57, s[20:23], s74 offen offset:16")
    e("v_lshlrev_b32 v58, 3, v56")
    e(f"s_mov_b32 s67, {hex(WS_STATS)}")
    e("buffer_load_dwordx2 v[46:47], v58, s[44:47], s67 offen")
    e("s_lshl_b32 s67, s60, 15")
    e(f"s_add_u32 s67, s67, {L_REDB}")
    e("v_add_u32 v6, s67, v4")
    e("v_lshl_add_u32 v7, v1, 2, s67")
    for q in range(8):
        e(f"ds_write_b128 v6, {vr(ACC(q), 4)} offset:{q * 2304}")
        e(f"ds_write_b128 v6, {vr(ACC(q) + 4, 4)} offset:{q * 2304 + 1024}")
        e(f"ds_write_b32 v7, v{ACC(q) + 8} offset:{q * 2304 + 2048}")
        if q >= 3:
            e("s_waitcnt lgkmcnt(9)")
    e("s_waitcnt lgkmcnt(0)")
    e.label("K2_BAR1")
    e("s_barrier")
    stamp(e, 4)
    e("s_mul_i32 s67, s60, 2304")
    e(f"s_add_u32 s67, s67, {L_REDB}")
    e("v_add_u32 v6, s67, v4")
    e("v_lshl_add_u32 v7, v1, 2, s67")
    e("v_add_u32 v44, 65536, v6")
    e("v_add_u32 v45, 65536, v7")
    for wp in range(4):
        a, b = (6, 7) if wp < 2 else (44, 45)
        e(f"ds_read_b128 {vr(8 + wp * 8, 4)}, v{a} offset:{(wp & 1) * 32768}")
        e(f"ds_read_b128 {vr(12 + wp * 8, 4)}, v{a} offset:{(wp & 1) * 32768 + 1024}")
        e(f"ds_read_b32 v{40 + wp}, v{b} offset:{(wp & 1) * 32768 + 2048}")
    e("s_and_b32 s67, s60, 1")
    e("s_lshl_b32 s71, s61, 1")
    e("s_add_u32 s67, s67, s71")
    e("s_lshl_b32 s67, s67, 5")
    e("s_lshl_b32 s71, s62, 2")
    e("s_add_u32 s67, s67, s71")
    e("s_lshr_b32 s71, s60, 1")
    e("s_add_u32 s67, s67, s71")
    e("s_lshl_b32 s67, s67, 10")
    e(f"s_add_u32 s67, s67, {hex(WS_OF)}")
    e("v_mov_b32 v45, 0x37800000")
    e("v_mov_b32 v44, 0x5f800000")
    e("s_waitcnt lgkmcnt(0)")
    sum4(e, 40, 40, 41, 42, 43)
    e("v_rcp_f32 v41, v40")
    for i in range(8):
        sum4(e, 8 + i, 8 + i, 16 + i, 24 + i, 32 + i)
    e("v_fma_f32 v42, v8, 0, v40")
    for i in range(1, 8):
        e(f"v_fma_f32 v42, v{8 + i}, 0, v42")
    for i in range(8):
        e(f"v_mul_f32 v{8 + i}, v41, v{8 + i}")
    e("v_cmp_nle_f32 vcc, v45, v42")
    e("v_cmp_nle_f32 s[72:73], v42, v44")
    for c in range(4):
        e(f"v_cvt_pk_bf16_f32 v{16 + c}, v{8 + 2 * c}, v{9 + 2 * c}")
    e("s_or_b64 vcc, vcc, s[72:73]")
    e("s_waitcnt vmcnt(0)")
    e("s_cmp_lg_u32 s59, 0")
    e("s_cbranch_scc1 K2_STORED")
    e("s_cmp_lg_u32 s63, 0")
    e("s_cbranch_scc1 K2_DOSTORE")
    e("s_cmp_eq_u64 vcc, 0")
    e("s_cbranch_scc1 K2_DOSTORE")
    e("v_mov_b32 v6, 1")
    e(f"v_mov_b32 v7, {L_CNT + 4}")
    e("ds_write_b32 v7, v6")
    e("s_branch K2_STORED")
    e.label("K2_DOSTORE")
    e("buffer_store_dwordx4 v[16:19], v4, s[44:47], s67 offen")
    e(f"s_add_u32 s67, s67, {WS_OF2 - WS_OF}")
    e("buffer_store_dwordx4 v[16:19], v4, s[44:47], s67 offen sc1")
    e("s_mov_b32 s59, 1")
    e.label("K2_STORED")
    e("s_waitcnt lgkmcnt(0)")
    e("s_barrier")
    stamp(e, 5)
    e("s_cmp_lg_u32 s63, 0")
    e("s_cbranch_scc1 K2_POST")
    e(f"v_mov_b32 v7, {L_CNT + 4}")
    e("ds_read_b32 v6, v7")
    e("s_waitcnt lgkmcnt(0)")
    e("v_readfirstlane_b32 s67, v6")
    e("s_nop 3")
    e("s_cmp_lg_u32 s67, 0")
    e("s_cbranch_scc1 K2_SLOW")
    e.label("K2_POST")
    e("s_cmp_ge_u32 s60, 4")
    e("s_cbranch_scc1 K2_H2")
    e("s_mul_i32 s67, s60, 6144")
    e(f"s_add_u32 s67, s67, {L_STG}")
    e("v_add_u32 v10, s67, v4")
    e(f"v_mov_b32 v7, {L_SEL}")
    e("ds_read_b128 v[28:31], v7")
    for i in range(16):
        e(f"v_mov_b32 v{64 + i}, 0")
    e("s_and_b32 s72, s60, 1")
    e("v_lshlrev_b32 v11, 6, v3")
    e("s_lshl_b32 s67, s72, 7")
    e("v_add_u32 v11, s67, v11")
    e("v_rcp_f32 v47, v47")
    e("s_waitcnt lgkmcnt(0)")
    for sl in range(2):
        e(f"v_cmp_eq_u32 vcc, v{28 + sl}, v56")
        e("s_and_saveexec_b64 s[76:77], vcc")
        e(f"s_cbranch_execz K2_NOY{sl}")
        for hq in range(4):
            for i in range(4):
                e(f"ds_read_b128 {vr(64 + hq * 16 + 4 * i, 4)}, v11 offset:{L_YS + sl * 1024 + hq * 256 + i * 16}")
            if hq == 2:
                e("s_waitcnt lgkmcnt(4)")
        e("s_waitcnt lgkmcnt(0)")
        for i in range(16):
            sum4(e, 64 + i, 64 + i, 80 + i, 96 + i, 112 + i)
            rbf(e, 64 + i, 64 + i)
            e(f"v_mul_f32 v{64 + i}, v{30 + sl}, v{64 + i}")
            rbf(e, 64 + i, 64 + i)
        e.label(f"K2_NOY{sl}")
        e("s_mov_b64 exec, -1")
    for dw in range(8):
        a, b = 64 + 2 * dw, 65 + 2 * dw
        e(f"v_lshlrev_b32 v22, 16, v{48 + dw}")
        e(f"v_and_b32 v23, 0xffff0000, v{48 + dw}")
        e("v_sub_f32 v22, v22, v46")
        e("v_sub_f32 v23, v23, v46")
        e("v_cvt_pk_bf16_f32 v24, v22, v23")
        e("v_lshlrev_b32 v22, 16, v24")
        e("v_and_b32 v23, 0xffff0000, v24")
        e("v_mul_f32 v22, v47, v22")
        e("v_mul_f32 v23, v47, v23")
        e("v_cvt_pk_bf16_f32 v24, v22, v23")
        e("v_lshlrev_b32 v22, 16, v24")
        e("v_and_b32 v23, 0xffff0000, v24")
        e(f"v_add_f32 v22, v22, v{a}")
        e(f"v_add_f32 v23, v23, v{b}")
        e("v_cvt_pk_bf16_f32 v24, v22, v23")
        e("v_lshlrev_b32 v22, 16, v24")
        e("v_and_b32 v23, 0xffff0000, v24")
        e(f"v_mul_f32 v25, {hex(NLOG2E)}, v22")
        e(f"v_mul_f32 v26, {hex(NLOG2E)}, v23")
        e("v_exp_f32 v25, v25")
        e("v_exp_f32 v26, v26")
        e("s_nop 0")
        e("v_add_f32 v25, 1.0, v25")
        e("v_add_f32 v26, 1.0, v26")
        e("v_rcp_f32 v25, v25")
        e("v_rcp_f32 v26, v26")
        e("s_nop 0")
        e("v_mul_f32 v22, v25, v22")
        e("v_mul_f32 v23, v26, v23")
        e("v_cvt_pk_bf16_f32 v24, v22, v23")
        e(f"v_lshlrev_b32 v{a}, 16, v24")
        e(f"v_and_b32 v{b}, 0xffff0000, v24")
        if dw & 1:
            e(f"ds_write_b128 v10, {vr(64 + 4 * (dw >> 1), 4)} offset:{(dw >> 1) * 1024}")
    e("s_waitcnt lgkmcnt(0)")
    stamp(e, 6)
    e("s_barrier")
    stamp_flush(e, 1, 44, 60)
    e("s_endpgm")

    e.label("K2_SLOW")
    e("s_mov_b32 s63, 1")
    e("s_cmp_ge_u32 s60, 4")
    e("s_cbranch_scc1 K2_SLOW_H")
    e.vm = []
    init_v()
    load_q()
    MXR = 16
    for q in range(8):
        e(f"v_mov_b32 v{MXR + q}, 0xff7fffff")
    for r in range(128, 256):
        e(f"v_mov_b32 v{r}, 0")
    e("s_mov_b32 s69, s68")
    e("s_mov_b32 s70, 16")
    e.label("K2_SLOW_P1")
    e.vmem(f"buffer_load_dwordx4 {vr(KB[1], 4)}, v4, s[44:47], s69 offen", "k")
    e.vwait(None)
    for q in range(8):
        mfma32(e, S[0], KB[1], Q(q))
        e("s_nop 15")
        for i in range(8):
            e(f"v_max3_f32 v{MXR + q}, v{S[0] + 2 * i}, v{S[0] + 2 * i + 1}, v{MXR + q}")
    e("s_add_u32 s69, s69, 2048")
    e("s_sub_u32 s70, s70, 1")
    e("s_cmp_lg_u32 s70, 0")
    e("s_cbranch_scc1 K2_SLOW_P1")
    for q in range(8):
        e(f"v_mov_b32 v42, v{MXR + q}")
        e("s_nop 1")
        e(f"v_permlane32_swap_b32 v{MXR + q}, v42")
        e("s_nop 1")
        e(f"v_max_f32 v{MXR + q}, v{MXR + q}, v42")
    e("s_lshl_b32 s67, s60, 10")
    e("v_lshl_add_u32 v6, v2, 2, s67")
    for q in range(8):
        e(f"ds_write_b32 v6, v{MXR + q} offset:{L_MX + q * 128}")
    e("s_waitcnt lgkmcnt(0)")
    e("s_barrier")
    e("v_lshlrev_b32 v6, 2, v2")
    for q in range(8):
        for wp in range(4):
            e(f"ds_read_b32 v{42 + wp}, v6 offset:{L_MX + wp * 1024 + q * 128}")
        e("s_waitcnt lgkmcnt(0)")
        e(f"v_max3_f32 v{MXR + q}, v42, v43, v44")
        e(f"v_max_f32 v{MXR + q}, v{MXR + q}, v45")
    e("s_mov_b32 s69, s68")
    e("s_mov_b32 s70, 16")
    e.label("K2_SLOW_P2")
    load_kv(1, "s69", 0, "s")
    e.vwait(None)
    for q in range(8):
        mfma32(e, S[0], KB[1], Q(q))
        e("s_nop 15")
        for i in range(16):
            e(f"v_sub_f32 v{S[0] + i}, v{S[0] + i}, v{MXR + q}")
        for i in range(16):
            e(f"v_exp_f32 v{S[0] + i}, v{S[0] + i}")
        e("s_nop 0")
        for c in range(8):
            e(f"v_cvt_pk_bf16_f32 v{P + c}, v{S[0] + 2 * c}, v{S[0] + 2 * c + 1}")
        e("s_nop 1")
        mfma32(e, ACC(q), VB[1], P, ACC(q))
        mfma32(e, ACC(q), VB[1] + 4, P + 4, ACC(q))
    e("s_add_u32 s69, s69, 2048")
    e("s_sub_u32 s70, s70, 1")
    e("s_cmp_lg_u32 s70, 0")
    e("s_cbranch_scc1 K2_SLOW_P2")
    e("s_nop 3")
    e("s_branch K2_DUMP")
    e.label("K2_SLOW_H")
    e("s_barrier")
    e("s_branch K2_BAR1")

    e.label("K2_H")
    e.vm = []
    e("s_setprio 2")
    e("s_sub_u32 s66, s60, 4")
    e("v_and_b32 v8, 15, v1")
    e("v_lshrrev_b32 v9, 4, v1")
    e("v_lshlrev_b32 v6, 3, v2")
    e(f"s_mov_b32 s67, {hex(WS_KEYS)}")
    e("buffer_load_dwordx2 v[10:11], v6, s[44:47], s67 offen")
    e("s_mul_i32 s64, s56, 28")
    e("s_add_u32 s64, s64, s57")
    e("s_mul_i32 s65, s66, 6144")
    e(f"s_add_u32 s65, s65, {L_STG}")
    e("s_cmp_lt_u32 s66, 2")
    e("s_cselect_b32 s52, s28, s32")
    e("s_cselect_b32 s53, s29, s33")
    e(f"s_mov_b32 s54, {hex(512 * 1792 * 2)}")
    e("s_mov_b32 s55, 0x00020000")
    e("s_lshr_b32 s48, s64, 3")
    e("s_and_b32 s49, s64, 7")
    e("s_lshl_b32 s49, s49, 1")
    e("s_and_b32 s67, s66, 1")
    e("s_add_u32 s49, s49, s67")
    e("v_lshrrev_b32 v6, 3, v1")
    e("v_and_b32 v12, 7, v1")
    e("v_lshlrev_b32 v12, 4, v12")
    e("s_movk_i32 s67, 3584")
    e("v_mad_u32_u24 v16, v6, s67, v12")
    e("v_lshlrev_b32 v17, 10, v9")
    e("v_lshl_add_u32 v17, v8, 4, v17")
    e("v_lshl_add_u32 v12, v6, 10, v12")
    e("v_bfe_u32 v13, v1, 2, 2")
    e("v_lshl_add_u32 v13, v3, 2, v13")
    e("v_lshlrev_b32 v13, 7, v13")
    e("v_and_b32 v14, 1, v1")
    e("v_lshl_add_u32 v13, v14, 5, v13")
    e("v_bfe_u32 v14, v1, 4, 1")
    e("v_lshl_add_u32 v13, v14, 4, v13")
    e("v_bfe_u32 v14, v1, 1, 1")
    e("v_lshl_add_u32 v13, v14, 3, v13")
    e("v_add_u32 v13, s65, v13")
    e("s_and_b32 s77, s66, 1")
    e("s_lshl_b32 s67, s77, 6")
    e("v_add_u32 v13, s67, v13")
    e("v_xor_b32 v29, 64, v13")
    e("s_lshl_b32 s69, s77, 18")
    e("s_lshl_b32 s67, s62, 7")
    e("s_add_u32 s69, s69, s67")
    e("s_cmp_lg_u32 s66, 0")
    e("s_cbranch_scc1 K2_H_NOINIT")
    e("v_mov_b32 v6, 0")
    e("v_mov_b32 v7, 0")
    e(f"v_mov_b32 v18, {L_CNT}")
    e("ds_write_b64 v18, v[6:7]")
    e("s_waitcnt lgkmcnt(0)")
    e.label("K2_H_NOINIT")
    e("s_lshl_b32 s74, s66, 15")
    e(f"s_add_u32 s75, s74, {hex(WS_KV)}")
    e(f"s_add_u32 s74, s74, {L_KV}")
    e("s_waitcnt vmcnt(0)")
    for n in range(10, 32):
        if n == 10 or n % 4 == 0:
            e(f"s_add_u32 m0, s74, {(n & ~3) * 1024}")
            e(f"s_add_u32 s67, s75, {(n & ~3) * 1024}")
        e(f"buffer_load_dwordx4 v4, s[44:47], s67 offen offset:{(n & 3) * 1024} lds")
    e("v_mov_b32 v18, v10")
    dpp_umax_reduce(e, 18)
    e("v_readlane_b32 s70, v18, 63")
    e("s_nop 1")
    e("v_cmp_eq_u32 vcc, s70, v10")
    e("s_nop 1")
    e("v_cndmask_b32 v18, v10, v11, vcc")
    dpp_umax_reduce(e, 18)
    e("v_readlane_b32 s71, v18, 63")
    e("s_nop 3")
    e("s_and_b32 s72, s70, 0xffff")
    e("s_sub_u32 s72, 0xffff, s72")
    e("s_and_b32 s73, s71, 0xffff")
    e("s_sub_u32 s73, 0xffff, s73")
    e("s_and_b32 s72, s72, 2047")
    e("s_and_b32 s73, s73, 2047")
    stamp(e, 2)

    WOF = lambda hd, nt: 128 + (hd * 2 + nt) * 4

    def wo_rounds(h0, h1):
        hd = h0
        while hd < h1:
            n = min(3, h1 - hd)
            for i in range(2 * n):
                if i % 4 == 0:
                    e(f"s_add_u32 m0, s65, {i * 1024}")
                e(f"s_add_u32 s67, s69, {(2 * hd + i) * 8192 - (i & 3) * 1024}")
                e(f"buffer_load_dwordx4 v12, s[24:27], s67 offen offset:{(i & 3) * 1024} lds")
            e("s_waitcnt vmcnt(0)")
            for i in range(n):
                for nt in range(2):
                    for u in range(2):
                        e(f"ds_read_b64_tr_b16 {vr(WOF(hd + i, nt) + 2 * u, 2)}, v{13 if nt == 0 else 29} offset:{(16 * i + 8 * u) * 128}")
            e("s_waitcnt lgkmcnt(0)")
            hd += n

    e(f"s_cmp_lt_u32 s57, {FFNLIM}")
    e("s_cbranch_scc1 K2_H_FFN")
    e("s_waitcnt vmcnt(0)")
    e("s_barrier")
    wo_rounds(0, 6)
    e("s_branch K2_H_NOFFN1")
    e.label("K2_H_FFN")
    e("v_mov_b32 v18, s72")
    e("v_mov_b32 v19, s73")
    e("v_cmp_eq_u32 vcc, 0, v3")
    e("s_lshl_b32 s67, s49, 6")
    e("s_nop 0")
    e("v_cndmask_b32 v18, v19, v18, vcc")
    e("v_lshlrev_b32 v19, 10, v18")
    e("v_lshl_add_u32 v19, v2, 1, v19")
    e("buffer_load_ushort v20, v19, s[20:23], s67 offen")
    e("v_lshlrev_b32 v19, 3, v18")
    e(f"s_mov_b32 s67, {hex(WS_STATS)}")
    e("buffer_load_dwordx2 v[22:23], v19, s[44:47], s67 offen")
    e(f"s_mul_i32 s68, s49, {32 * 3584}")
    e("s_lshl_b32 s67, s48, 7")
    e("s_add_u32 s68, s68, s67")
    for n in range(4):
        e(f"s_add_u32 m0, s65, {n * 1024}")
        e(f"s_add_u32 s67, s68, {n * 8 * 3584}")
        e("buffer_load_dwordx4 v16, s[52:55], s67 offen lds")
    e("s_lshl_b32 s68, s64, 13")
    e("s_lshl_b32 s67, s66, 8")
    e("s_add_u32 s68, s68, s67")
    for n in range(2):
        e(f"s_add_u32 m0, s65, {4096 + n * 1024}")
        e(f"s_add_u32 s67, s68, {n * 4096}")
        e("buffer_load_dwordx4 v17, s[36:39], s67 offen lds")
    e("v_bfe_u32 v24, v1, 2, 2")
    e("v_lshl_add_u32 v25, v9, 3, v24")
    e("v_lshlrev_b32 v25, 7, v25")
    e("v_and_b32 v26, 3, v1")
    e("v_lshl_add_u32 v25, v26, 3, v25")
    e("v_add_u32 v25, s65, v25")
    e("v_and_b32 v24, 1, v24")
    e("v_lshl_add_u32 v24, v9, 1, v24")
    e("v_lshlrev_b32 v24, 8, v24")
    e("v_lshl_add_u32 v24, v26, 3, v24")
    e("v_add_u32 v24, s65, v24")
    e("s_lshl_b32 s67, s66, 7")
    e("v_lshl_add_u32 v27, v1, 1, s67")
    e("v_and_b32 v28, 1, v8")
    e("v_lshlrev_b32 v28, 6, v28")
    e("v_lshl_add_u32 v28, v9, 4, v28")
    e("v_add_u32 v28, s67, v28")
    e("s_waitcnt vmcnt(6)")
    e("v_rcp_f32 v23, v23")
    e("v_lshlrev_b32 v20, 16, v20")
    e("v_sub_f32 v20, v20, v22")
    rbf(e, 20, 20)
    e("v_mul_f32 v20, v23, v20")
    e("v_cvt_pk_bf16_f32 v20, v20, v20")
    e(f"ds_write_b16 v27, v20 offset:{L_XS}")
    e(f"ds_read_b128 v[80:83], v28 offset:{L_XS}")
    e("s_waitcnt vmcnt(2)")
    GA = lambda ft: 64 + 4 * ft
    for ft in range(4):
        for u in range(2):
            e(f"ds_read_b64_tr_b16 {vr(GA(ft) + 2 * u, 2)}, v25 offset:{4 * u * 128 + ft * 32}")
    e("s_movk_i32 s67, 7168")
    e("v_mul_lo_u32 v19, v8, s67")
    e("v_lshl_add_u32 v19, v9, 4, v19")
    e("s_lshl_b32 s67, s49, 1")
    e("s_lshr_b32 s74, s66, 1")
    e("s_add_u32 s67, s67, s74")
    e(f"s_mul_i32 s67, s67, {2 * 7168}")
    e("s_lshl_b32 s74, s48, 8")
    e("s_add_u32 s67, s67, s74")
    e(f"s_add_u32 s75, s67, {hex(WS_PG)}")
    e("v_mov_b32 v26, 1")
    e("v_mov_b32 v18, 0")
    e("s_waitcnt lgkmcnt(0)")
    for ft in range(4):
        mfma16(e, 48 + 4 * ft, GA(ft), 80)
    e("s_mov_b32 exec_lo, 0x00030003")
    e("s_mov_b32 exec_hi, 0x00030003")
    e("s_nop 5")
    for ft in range(4):
        e(f"buffer_store_dwordx4 {vr(48 + 4 * ft, 4)}, v19, s[44:47], s75 offen offset:{64 * ft} sc1")
    e("s_mov_b64 exec, -1")
    DF = lambda ee: 96 + 4 * ee
    e("s_waitcnt vmcnt(4)")
    for ee in range(8):
        e(f"ds_read_b64_tr_b16 {vr(DF(ee), 2)}, v24 offset:{4096 + 32 * ee}")
        e(f"v_mov_b32 v{DF(ee) + 2}, 0")
        e(f"v_mov_b32 v{DF(ee) + 3}, 0")
    e("s_lshl_b32 s67, s64, 4")
    e("s_lshl_b32 s74, s66, 2")
    e("s_add_u32 s67, s67, s74")
    e(f"s_add_u32 s67, s67, {hex(WS_FLAGS + 4096)}")
    e("s_waitcnt vmcnt(0)")
    e("s_mov_b64 exec, 1")
    e("buffer_store_dword v26, v18, s[44:47], s67 offen sc1")
    e("s_mov_b64 exec, -1")
    e("s_waitcnt lgkmcnt(0)")
    e("s_barrier")
    wo_rounds(0, 6)
    e("s_mov_b32 exec_hi, 0")
    e("v_lshlrev_b32 v18, 2, v1")
    e("s_lshl_b32 s67, s48, 7")
    e(f"s_add_u32 s67, s67, {hex(WS_FLAGS + 4096)}")
    e("s_mov_b32 s76, 0x40000")
    e.label("K2_H_SPIN1")
    e("buffer_load_dword v19, v18, s[44:47], s67 offen sc1")
    e("s_waitcnt vmcnt(0)")
    e("v_cmp_ne_u32 vcc, 1, v19")
    e("s_cmp_eq_u64 vcc, 0")
    e("s_cbranch_scc1 K2_H_SPIN1_DONE")
    e("s_sleep 8")
    e("s_sub_u32 s76, s76, 1")
    e("s_cmp_lg_u32 s76, 0")
    e("s_cbranch_scc1 K2_H_SPIN1")
    e.label("K2_H_SPIN1_DONE")
    e("s_mov_b64 exec, -1")
    e("v_lshrrev_b32 v18, 1, v8")
    e(f"s_mov_b32 s67, {8 * 7168}")
    e("v_mul_lo_u32 v18, v18, s67")
    e("v_and_b32 v19, 1, v8")
    e("s_movk_i32 s67, 7168")
    e("v_mad_u32_u24 v18, v19, s67, v18")
    e("v_lshl_add_u32 v18, v9, 3, v18")
    e("s_lshl_b32 s74, s64, 5")
    e(f"s_add_u32 s74, s74, {hex(WS_PG)}")
    for kl in range(2):
        for m in range(2):
            e(f"s_add_u32 s67, s74, {(kl * 2 + m) * 2 * 7168}")
            e(f"buffer_load_dwordx2 {vr(64 + (kl * 2 + m) * 2, 2)}, v18, s[44:47], s67 offen sc1")
    e("v_mov_b32 v41, 0")
    e("v_mov_b32 v42, 0")
    e("v_mov_b32 v43, 0")
    e("s_waitcnt vmcnt(0) lgkmcnt(0)")
    for i in range(4):
        e(f"v_add_f32 v{64 + i}, v{64 + i}, v{68 + i}")
    for rot in (2, 4, 8):
        e("s_nop 0")
        for i in range(4):
            e(f"v_add_f32_dpp v{64 + i}, v{64 + i}, v{64 + i} row_ror:{rot} row_mask:0xf bank_mask:0xf")
    g0, g1, u0, u1 = 64, 65, 66, 67
    e(f"v_cvt_pk_bf16_f32 v24, v{g0}, v{g1}")
    e(f"v_cvt_pk_bf16_f32 v25, v{u0}, v{u1}")
    e(f"v_lshlrev_b32 v{g0}, 16, v24")
    e(f"v_and_b32 v{g1}, 0xffff0000, v24")
    e(f"v_lshlrev_b32 v{u0}, 16, v25")
    e(f"v_and_b32 v{u1}, 0xffff0000, v25")
    e(f"v_mul_f32 v24, {hex(NLOG2E)}, v{g0}")
    e(f"v_mul_f32 v25, {hex(NLOG2E)}, v{g1}")
    e("v_exp_f32 v24, v24")
    e("v_exp_f32 v25, v25")
    e("s_nop 0")
    e("v_add_f32 v24, 1.0, v24")
    e("v_add_f32 v25, 1.0, v25")
    e("v_rcp_f32 v24, v24")
    e("v_rcp_f32 v25, v25")
    e("s_nop 0")
    e(f"v_mul_f32 v{g0}, v24, v{g0}")
    e(f"v_mul_f32 v{g1}, v25, v{g1}")
    e(f"v_cvt_pk_bf16_f32 v24, v{g0}, v{g1}")
    e(f"v_lshlrev_b32 v{g0}, 16, v24")
    e(f"v_and_b32 v{g1}, 0xffff0000, v24")
    e(f"v_mul_f32 v{g0}, v{g0}, v{u0}")
    e(f"v_mul_f32 v{g1}, v{g1}, v{u1}")
    e(f"v_cvt_pk_bf16_f32 v40, v{g0}, v{g1}")
    e("v_lshlrev_b32 v19, 11, v8")
    e("v_lshl_add_u32 v19, v9, 4, v19")
    for ee in range(8):
        mfma16(e, 64 + 4 * ee, DF(ee), 40)
    e("s_lshl_b32 s67, s64, 12")
    e("s_lshl_b32 s74, s66, 9")
    e("s_add_u32 s67, s67, s74")
    e(f"s_add_u32 s67, s67, {hex(WS_YP)}")
    e("s_mov_b32 exec_lo, 0x00030003")
    e("s_mov_b32 exec_hi, 0x00030003")
    e("s_nop 3")
    for ee in range(8):
        e(f"buffer_store_dwordx4 {vr(64 + 4 * ee, 4)}, v19, s[44:47], s67 offen offset:{64 * ee} sc1")
    e("s_lshl_b32 s67, s66, 10")
    e("s_lshl_b32 s74, s64, 2")
    e("s_add_u32 s67, s67, s74")
    e(f"s_add_u32 s67, s67, {hex(WS_FLAGS)}")
    e("s_mov_b64 exec, 1")
    e("v_mov_b32 v18, 0")
    e("s_waitcnt vmcnt(0)")
    e("buffer_store_dword v26, v18, s[44:47], s67 offen sc1")
    e("s_mov_b64 exec, -1")
    e.label("K2_H_NOFFN1")
    stamp(e, 3)
    wo_rounds(6, 16)
    e("s_lshr_b32 s74, s66, 1")
    e("s_lshl_b32 s75, s61, 1")
    e("s_add_u32 s75, s75, s74")
    e("s_lshl_b32 s67, s75, 5")
    e("v_add_u32 v15, s67, v2")
    e("v_lshlrev_b32 v14, 10, v15")
    e("v_lshl_add_u32 v14, v3, 5, v14")
    e("s_lshl_b32 s58, s62, 7")
    e("s_lshl_b32 s67, s77, 6")
    e("s_add_u32 s58, s58, s67")
    e("buffer_load_dwordx4 v[120:123], v14, s[20:23], s58 offen")
    e("buffer_load_dwordx4 v[124:127], v14, s[20:23], s58 offen offset:16")
    e("s_cmp_lg_u32 s66, 0")
    e("s_cbranch_scc1 K2_H_NOSEL")
    for sl in range(2):
        e(f"s_and_b32 s74, s{70 + sl}, 0xffff0000")
        e("s_mov_b32 s76, 0xffff0000")
        e("s_cmp_lt_i32 s74, 0")
        e("s_cselect_b32 s76, 0x80000000, s76")
        e("s_xor_b32 s74, s74, s76")
        e(f"v_mov_b32 v{22 + sl}, s74")
        e(f"v_mul_f32 v{22 + sl}, {hex(NLOG2E)}, v{22 + sl}")
        e(f"v_exp_f32 v{22 + sl}, v{22 + sl}")
        e("s_nop 0")
        e(f"v_add_f32 v{22 + sl}, 1.0, v{22 + sl}")
        e(f"v_rcp_f32 v{22 + sl}, v{22 + sl}")
        e("s_nop 0")
        rbf(e, 22 + sl, 22 + sl)
    e("v_mov_b32 v20, s72")
    e("v_mov_b32 v21, s73")
    e(f"v_mov_b32 v18, {L_SEL}")
    e("ds_write_b128 v18, v[20:23]")
    e.label("K2_H_NOSEL")
    for sl in range(2):
        e(f"s_lshr_b32 s67, s{72 + sl}, 6")
        e("s_cmp_lg_u32 s67, s61")
        e(f"s_cbranch_scc1 K2_H_NOCONS{sl}")
        if XNOFFN:
            e(f"s_branch K2_H_NOCONS{sl}")
        e("s_lshr_b32 s67, s62, 1")
        e("s_lshl_b32 s67, s67, 10")
        e("s_mul_i32 s74, s66, 224")
        e("s_add_u32 s67, s67, s74")
        e(f"s_add_u32 s67, s67, {hex(WS_FLAGS)}")
        e("v_lshlrev_b32 v18, 2, v1")
        e("s_mov_b32 s76, 0x40000")
        e("s_mov_b32 exec_hi, 0x00ffffff")
        e.label(f"K2_H_SPIN2_{sl}")
        e("buffer_load_dword v19, v18, s[44:47], s67 offen sc1")
        e("s_waitcnt vmcnt(0)")
        e("v_cmp_ne_u32 vcc, 1, v19")
        e("s_cmp_eq_u64 vcc, 0")
        e(f"s_cbranch_scc1 K2_H_SPIN2_DONE{sl}")
        e("s_sleep 8")
        e("s_sub_u32 s76, s76, 1")
        e("s_cmp_lg_u32 s76, 0")
        e(f"s_cbranch_scc1 K2_H_SPIN2_{sl}")
        e.label(f"K2_H_SPIN2_DONE{sl}")
        e("s_mov_b64 exec, -1")
        e("v_lshlrev_b32 v18, 12, v9")
        e("v_lshl_add_u32 v18, v8, 4, v18")
        e(f"s_mul_i32 s67, s66, {56 * 4096}")
        e("s_lshl_b32 s74, s62, 8")
        e("s_add_u32 s67, s67, s74")
        e(f"s_add_u32 s67, s67, {hex(WS_YP + sl * 2048)}")
        for i in range(14):
            e(f"buffer_load_dwordx4 {vr(64 + 4 * i, 4)}, v18, s[44:47], s67 offen sc1")
            e("s_add_u32 s67, s67, 16384")
        e("s_waitcnt vmcnt(0)")
        for i in range(1, 14):
            for c in range(4):
                e(f"v_add_f32 v{64 + c}, v{64 + c}, v{64 + 4 * i + c}")
        swap_add(e, 64, 65)
        swap_add(e, 66, 67)
        e("s_nop 1")
        e("v_permlane16_swap_b32 v64, v66")
        e("s_nop 1")
        e("v_add_f32 v64, v64, v66")
        e("v_and_b32 v19, 1, v9")
        e("v_lshrrev_b32 v20, 1, v9")
        e("v_lshl_add_u32 v19, v19, 1, v20")
        e("v_lshl_add_u32 v19, v8, 2, v19")
        e("v_lshlrev_b32 v19, 2, v19")
        e("s_lshl_b32 s67, s66, 8")
        e("v_add_u32 v19, s67, v19")
        e(f"ds_write_b32 v19, v64 offset:{L_YS + sl * 1024}")
        e.label(f"K2_H_NOCONS{sl}")
    e("v_mov_b32 v2, v14")
    e("v_add_u32 v3, s65, v4")
    for r in range(72, 104):
        e(f"v_mov_b32 v{r}, 0")
    stamp(e, 9)
    e("s_waitcnt vmcnt(0) lgkmcnt(0)")
    stamp(e, 8)
    e("s_setprio 0")
    e("s_branch K2_BAR1")

    e.label("K2_H2")
    e("s_lshl_b32 s68, s75, 15")
    e("s_lshl_b32 s67, s77, 14")
    e("s_add_u32 s68, s68, s67")
    e(f"s_add_u32 s68, s68, {hex(WS_OF)}")
    OFR = lambda hd: 8 + hd * 4
    OA = [72, 88]
    G_ = 104
    e("s_mov_b32 s76, 0x10000")
    e("s_mov_b32 s74, 0")
    e("s_mov_b32 s71, s68")
    e.label("K2_H_POLL")
    for src in range(4):
        e(f"s_bitcmp1_b32 s74, {src}")
        e(f"s_cbranch_scc1 K2_H_NL{src}")
        e(f"s_add_u32 s67, s71, {src * 4096}")
        for i in range(4):
            e(f"buffer_load_dwordx4 {vr(OFR(4 * src + i), 4)}, v4, s[44:47], s67 offen offset:{i * 1024} sc1")
        e.label(f"K2_H_NL{src}")
    e.label("K2_H_CHECK")
    e("s_waitcnt vmcnt(0)")
    for src in range(4):
        e(f"s_bitcmp1_b32 s74, {src}")
        e(f"s_cbranch_scc1 K2_H_NC{src}")
        o = OFR(4 * src)
        e(f"v_max3_u32 v6, v{o}, v{o + 1}, v{o + 2}")
        for r in range(o + 3, o + 15, 2):
            e(f"v_max3_u32 v6, v{r}, v{r + 1}, v6")
        e(f"v_max_u32 v6, v{o + 15}, v6")
        e("v_cmp_eq_u32 vcc, -1, v6")
        e("s_cmp_eq_u32 s76, 1")
        e("s_cselect_b64 vcc, 0, vcc")
        e("s_cmp_eq_u64 vcc, 0")
        e(f"s_cbranch_scc0 K2_H_NC{src}")
        for i in range(4):
            for nt in range(2):
                mfma32(e, OA[nt], WOF(4 * src + i, nt), OFR(4 * src + i), OA[nt])
        e(f"s_bitset1_b32 s74, {src}")
        e.label(f"K2_H_NC{src}")
    e("s_sub_u32 s76, s76, 1")
    e("s_and_b32 s67, s76, 1")
    e(f"s_cmp_gt_u32 s76, {0x10000 - 8}")
    e("s_cselect_b32 s67, 0, s67")
    e(f"s_mul_i32 s67, s67, {WS_OF2 - WS_OF}")
    e("s_add_u32 s71, s68, s67")
    e("s_cmp_lg_u32 s74, 15")
    e("s_cbranch_scc1 K2_H_POLL")
    stamp(e, 6)
    e("s_lshl_b32 s67, s66, 12")
    e(f"s_add_u32 s67, s67, {L_REDB}")
    e("v_add_u32 v6, s67, v4")
    e("s_xor_b32 s67, s67, 4096")
    e("v_add_u32 v7, s67, v4")
    for dw in range(8):
        e(f"v_lshlrev_b32 v{8 + 2 * dw}, 16, v{120 + dw}")
        e(f"v_and_b32 v{9 + 2 * dw}, 0xffff0000, v{120 + dw}")
    for i in range(4):
        e(f"ds_write_b128 v6, {vr(OA[1] + 4 * i, 4)} offset:{i * 1024}")
    e("s_waitcnt lgkmcnt(0)")
    e("s_barrier")
    for i in range(4):
        e(f"ds_read_b128 {vr(24 + 4 * i, 4)}, v7 offset:{i * 1024}")
        e(f"ds_read_b128 {vr(G_ + 4 * i, 4)}, v3 offset:{i * 1024}")
    e("s_waitcnt lgkmcnt(0)")
    for r in range(16):
        e(f"v_add_f32 v{24 + r}, v{24 + r}, v{OA[0] + r}")
        e(f"v_fma_f32 v{8 + r}, v{24 + r}, v{G_ + r}, v{8 + r}")
        if r & 1:
            e(f"v_cvt_pk_bf16_f32 v{40 + r // 2}, v{7 + r}, v{8 + r}")
    e("buffer_store_dwordx4 v[40:43], v2, s[40:43], s58 offen")
    e("buffer_store_dwordx4 v[44:47], v2, s[40:43], s58 offen offset:16")
    stamp(e, 7)
    stamp_flush(e, 1, 44, 60)
    e.label("K2_END")
    e("s_endpgm")
    return kn, 256, LDS_SIZE


def kd(name, nv, ns=96):
    return f""".p2align 6
.amdhsa_kernel {name}
  .amdhsa_next_free_vgpr {nv}
  .amdhsa_next_free_sgpr {ns}
  .amdhsa_accum_offset {(nv + 3) // 4 * 4}
  .amdhsa_group_segment_fixed_size 0
  .amdhsa_kernarg_size 104
  .amdhsa_user_sgpr_count 2
  .amdhsa_user_sgpr_kernarg_segment_ptr 1
  .amdhsa_system_sgpr_workgroup_id_x 1
  .amdhsa_float_denorm_mode_32 3
.end_amdhsa_kernel
"""


def main():
    e = Asm()
    k1, nv1, lds1 = gen_k1(e)
    k2, nv2, lds2 = gen_k2(e)
    head = f"""; MQA attention + mixture-of-depths FFN, generated by gen/gen2.py (hand-written generator)
; @launch kernel={k1} grid=(256,1,1) block=(256,1,1) lds={lds1}
; @launch kernel={k2} grid=(256,1,1) block=(512,1,1) lds={lds2}
.amdgcn_target "amdgcn-amd-amdhsa--gfx950"
.text
"""
    tail = '.section .rodata,"a"\n' + kd(k1, nv1) + kd(k2, nv2)
    args = [a for a in sys.argv[1:] if not a.startswith("--")]
    out = args[0] if args else f"cdna_kernels/{NAME}.s"
    with open(out, "w") as f:
        f.write(head + e.text() + tail)


if __name__ == "__main__":
    main()
```

```python
import sys

NAME = "recurrent_scan__grouped_kv_mqa__moe_arch_mod__prompt"

WS_QF = 0x000000
WS_KV = 0x200000
WS_KEYS = 0x220000
WS_STATS = 0x221000
WS_FLAGS = 0x226000
WS_PG = 0x240000
WS_OF = 0x300000
WS_YP = 0x500000
WS_OF2 = 0x600000
WS_PROF = 0x800000
WS_SIZE = 0x900000

QSCALE = 0x3eb8aa3b
NLOG2E = 0xbfb8aa3b
ONES = 0x3f803f80
EPS = 0x3727c5ac
INV512 = 0x3b000000

PROF = "--prof" in sys.argv
XNOFFN = "--xnoffn" in sys.argv
DBGOUT = "--dbgout" in sys.argv
PF1 = "--nopf1" not in sys.argv
PF2 = "--pf2" in sys.argv
PF0 = 0 if "--nopf0" in sys.argv else 4
UNR = 4 if "--unr4" in sys.argv else 2
FFNLIM = 0 if XNOFFN else 28


class Asm:
    def __init__(self):
        self.lines = []
        self.vm = []

    def __call__(self, s):
        self.lines.append("    " + s)

    def label(self, l):
        self.lines.append(l + ":")

    def raw(self, s):
        self.lines.append(s)

    def vmem(self, s, tag=None):
        self(s)
        self.vm.append(tag)
        assert len(self.vm) <= 63, "too many outstanding vmem ops"

    def vwait(self, tag=None):
        if tag is None:
            self("s_waitcnt vmcnt(0)")
            self.vm = []
            return
        idx = max(i for i, t in enumerate(self.vm) if t == tag)
        n = len(self.vm) - 1 - idx
        self(f"s_waitcnt vmcnt({n})")
        self.vm = self.vm[idx + 1:]

    def text(self):
        return "\n".join(self.lines) + "\n"


def stamp(e, i):
    if not PROF:
        return
    e("s_memrealtime s[78:79]")
    e("s_waitcnt lgkmcnt(0)")
    e(f"s_mov_b32 s{80 + i}, s78")


def cstamp(e, i):
    if not PROF:
        return
    e("s_memtime s[78:79]")
    e("s_waitcnt lgkmcnt(0)")
    e(f"s_mov_b32 s{80 + i}, s78")


def stamp_init(e):
    if PROF:
        for i in range(12):
            e(f"s_mov_b32 s{80 + i}, 0")
    stamp(e, 0)


def stamp_flush(e, kidx, wsrd, wave_sgpr):
    if not PROF:
        return
    stamp(e, 11)
    e("s_mov_b64 exec, 1")
    e("s_lshl_b32 s78, s2, 3")
    e(f"s_add_u32 s78, s78, s{wave_sgpr}")
    e("s_lshl_b32 s78, s78, 6")
    e(f"s_add_u32 s78, s78, {hex(WS_PROF + kidx * 320 * 8 * 64)}")
    e("v_mov_b32 v220, 0")
    for b in range(3):
        for i in range(4):
            e(f"v_mov_b32 v{216 + i}, s{80 + 4 * b + i}")
        e(f"buffer_store_dwordx4 v[216:219], v220, s[{wsrd}:{wsrd + 3}], s78 offen offset:{16 * b}")
        e("s_nop 1")


def vr(a, n=1):
    return f"v{a}" if n == 1 else f"v[{a}:{a + n - 1}]"


def srd(e, d, base, size):
    e(f"s_mov_b32 s{d}, s{base}")
    e(f"s_and_b32 s{d + 1}, s{base + 1}, 0xffff")
    e(f"s_mov_b32 s{d + 2}, {hex(size)}")
    e(f"s_mov_b32 s{d + 3}, 0x00020000")


def rbf(e, d, s):
    e(f"v_cvt_pk_bf16_f32 v{d}, v{s}, v{s}")
    e(f"v_and_b32 v{d}, 0xffff0000, v{d}")


def mfma32(e, d, a, b, c=None):
    cs = "0" if c is None else vr(c, 16)
    e(f"v_mfma_f32_32x32x16_bf16 {vr(d, 16)}, {vr(a, 4)}, {vr(b, 4)}, {cs}")


def mfma16(e, d, a, b, c=None):
    cs = "0" if c is None else vr(c, 4)
    e(f"v_mfma_f32_16x16x32_bf16 {vr(d, 4)}, {vr(a, 4)}, {vr(b, 4)}, {cs}")


def dpp_umax_reduce(e, v):
    for mod in ("row_shr:1 row_mask:0xf bank_mask:0xf bound_ctrl:0",
                "row_shr:2 row_mask:0xf bank_mask:0xf bound_ctrl:0",
                "row_shr:4 row_mask:0xf bank_mask:0xf bound_ctrl:0",
                "row_shr:8 row_mask:0xf bank_mask:0xf bound_ctrl:0",
                "row_bcast:15 row_mask:0xa bank_mask:0xf",
                "row_bcast:31 row_mask:0xc bank_mask:0xf"):
        e("s_nop 1")
        e(f"v_max_u32_dpp v{v}, v{v}, v{v} {mod}")
    e("s_nop 1")


def token_stats(e, sx, sq, mb, db, inv, t0, t1):
    e(f"v_mul_f32 v{t0}, {hex(INV512)}, v{sx}")
    e(f"v_mul_f32 v{t1}, {hex(INV512)}, v{sq}")
    rbf(e, mb, t0)
    e(f"v_fma_f32 v{t1}, -v{t0}, v{t0}, v{t1}")
    e(f"v_max_f32 v{t1}, 0, v{t1}")
    rbf(e, t1, t1)
    e(f"v_add_f32 v{t1}, {hex(EPS)}, v{t1}")
    rbf(e, t1, t1)
    e(f"v_sqrt_f32 v{t1}, v{t1}")
    e("s_nop 0")
    rbf(e, db, t1)
    e(f"v_rcp_f32 v{inv}, v{db}")
    e("s_nop 0")


def swap_add(e, a, b):
    e("s_nop 1")
    e(f"v_permlane32_swap_b32 v{a}, v{b}")
    e("s_nop 1")
    e(f"v_add_f32 v{a}, v{a}, v{b}")


def sum4(e, d, a, b, c, dd):
    e(f"v_add_f32 v{a}, v{a}, v{b}")
    e(f"v_add_f32 v{c}, v{c}, v{dd}")
    e(f"v_add_f32 v{d}, v{a}, v{c}")


def gen_k1(e):
    kn = "mqa_proj_kernel"
    RSZ = 40960
    O_X, O_W, O_KV = 0, 16384, 32768
    e.raw(".p2align 8")
    e.raw(f".globl {kn}")
    e.raw(f".type {kn},@function")
    e.label(kn)
    e("s_cmp_ge_u32 s2, 256")
    e("s_cbranch_scc1 K1_END")
    stamp_init(e)
    e("s_load_dwordx4 s[4:7], s[0:1], 0")
    e("s_load_dwordx4 s[8:11], s[0:1], 16")
    e("s_load_dwordx2 s[12:13], s[0:1], 48")
    e("s_load_dwordx2 s[14:15], s[0:1], 96")
    e("v_and_b32 v1, 63, v0")
    e("v_lshrrev_b32 v6, 6, v0")
    e("v_and_b32 v2, 31, v1")
    e("v_lshrrev_b32 v3, 5, v1")
    e("v_readfirstlane_b32 s55, v6")
    e("v_lshlrev_b32 v4, 4, v1")
    if PF0:
        e("s_getpc_b64 s[42:43]")
        e("v_lshlrev_b32 v5, 4, v0")
        for i in range(2):
            e(f"v_add_u32 v6, {1024 + i * 8192}, v5")
            e(f"global_load_dwordx4 v[248:251], v6, s[42:43]")
    e("s_and_b32 s60, s55, 3")
    e(f"v_mov_b32 v5, {hex(ONES)}")
    e("s_and_b32 s56, s2, 7")
    e("s_lshr_b32 s57, s2, 3")
    e("s_lshr_b32 s58, s57, 3")
    e("s_lshl_b32 s61, s56, 2")
    e("s_add_u32 s61, s61, s58")
    e("s_and_b32 s62, s57, 7")
    e("s_and_b32 s59, s62, 1")
    e(f"s_mul_i32 s63, s60, {RSZ}")
    e("v_lshrrev_b32 v6, 4, v1")
    e("v_and_b32 v7, 15, v1")
    e("v_xor_b32 v7, v7, v6")
    for v in range(4):
        e(f"v_xor_b32 v{8 + v}, {4 * v}, v7")
        e(f"v_lshlrev_b32 v{8 + v}, 4, v{8 + v}")
        e(f"v_lshl_add_u32 v{8 + v}, v6, 10, v{8 + v}")
    e("v_lshrrev_b32 v6, 3, v1")
    e("v_and_b32 v12, 7, v1")
    e("v_lshlrev_b32 v12, 4, v12")
    e("v_lshl_add_u32 v12, v6, 10, v12")
    e("s_lshl_b32 s64, s61, 16")
    e("s_lshl_b32 s65, s60, 8")
    e("s_add_u32 s64, s64, s65")
    e("s_lshl_b32 s67, s59, 15")
    e("s_add_u32 s72, s64, s67")
    e("s_xor_b32 s67, s67, 32768")
    e("s_add_u32 s73, s64, s67")
    e("s_lshl_b32 s66, s60, 17")
    e("s_lshl_b32 s67, s62, 7")
    e("s_add_u32 s66, s66, s67")
    e("v_lshlrev_b32 v13, 4, v3")
    e("s_waitcnt lgkmcnt(0)")
    stamp(e, 1)
    srd(e, 16, 4, 2048 * 512 * 2)
    srd(e, 20, 6, 512 * 512 * 2)
    srd(e, 24, 14, WS_SIZE)
    srd(e, 28, 12, 512 * 2)
    e("s_cmp_lt_u32 s62, 2")
    e("s_cselect_b32 s32, s8, s10")
    e("s_cselect_b32 s33, s9, s11")
    e("s_and_b32 s33, s33, 0xffff")
    e(f"s_mov_b32 s34, {hex(512 * 16 * 2)}")
    e("s_mov_b32 s35, 0x00020000")

    def dma_x(n):
        if n % 4 == 0:
            e(f"s_add_u32 m0, s63, {O_X + (n >> 2) * 4096}")
        e(f"s_add_u32 s67, s{72 + (n >> 3)}, {(n & 7) * 4096 - (n & 3) * 1024}")
        e.vmem(f"buffer_load_dwordx4 v{8 + (n & 3)}, s[16:19], s67 offen offset:{(n & 3) * 1024} lds", ("x", n))

    def dma_w(kc):
        e(f"s_add_u32 m0, s63, {O_W + kc * 4096}")
        for i in range(4):
            n = kc * 4 + i
            e(f"s_add_u32 s67, s66, {n * 8192 - i * 1024}")
            e.vmem(f"buffer_load_dwordx4 v12, s[20:23], s67 offen offset:{i * 1024} lds", ("c", kc))

    WR = lambda ks: 200 + 4 * ks
    e("s_cmp_lt_u32 s55, 4")
    e("s_cbranch_scc1 K1_COMPUTE")
    e("s_cmp_ge_u32 s62, 4")
    e("s_cbranch_scc1 K1_NOKVDMA")
    e("s_lshl_b32 s67, s60, 12")
    e(f"s_add_u32 m0, s63, {O_KV}")
    e("s_nop 0")
    for i in range(4):
        e(f"buffer_load_dwordx4 v4, s[32:35], s67 offen offset:{i * 1024} lds")
    e.label("K1_NOKVDMA")
    for n in range(16):
        dma_x(n)
    dma_w(0)
    dma_w(1)
    e("s_waitcnt vmcnt(8)")
    e("s_barrier")
    dma_w(2)
    dma_w(3)
    for kc in range(4):
        e(f"s_waitcnt vmcnt({12 - 4 * kc})")
        e("s_barrier")
    e.vm = []
    if PF1:
        e("s_lshl_b32 s67, s57, 2")
        e("s_add_u32 s67, s67, s60")
        e("s_and_b32 s67, s67, 31")
        e("s_min_u32 s67, s67, 17")
        e("s_getpc_b64 s[40:41]")
        e.label("K1_PC")
        e("s_add_u32 s40, s40, mqa_attn_kernel-K1_PC")
        e("s_addc_u32 s41, s41, 0")
        e("s_lshl_b32 s67, s67, 10")
        e("v_add_u32 v14, s67, v4")
        e("global_load_dwordx4 v[248:251], v14, s[40:41]")
    e("v_mov_b32 v16, -1")
    e("v_mov_b32 v17, -1")
    e("v_mov_b32 v18, -1")
    e("v_mov_b32 v19, -1")
    e("v_and_b32 v14, 255, v0")
    e("v_lshlrev_b32 v14, 4, v14")
    e("s_lshl_b32 s69, s2, 13")
    e(f"s_add_u32 s69, s69, {hex(WS_OF)}")
    for off in (0, 4096, WS_OF2 - WS_OF, WS_OF2 - WS_OF + 4096):
        e(f"s_add_u32 s70, s69, {off}")
        e("buffer_store_dwordx4 v[16:19], v14, s[24:27], s70 offen sc1")
    e("s_branch K1_BAR6")
    e.label("K1_COMPUTE")
    e("s_cmp_lg_u32 s62, 4")
    e("s_cbranch_scc1 K1_NOWR")
    for ks in range(8):
        e(f"buffer_load_dwordx4 {vr(WR(ks), 4)}, v13, s[28:31], s65 offen offset:{32 * ks}")
    e.label("K1_NOWR")
    e("v_and_b32 v6, 15, v2")
    e("v_xor_b32 v6, v6, v3")
    e("v_lshlrev_b32 v7, 8, v2")
    e("v_add_u32 v7, s63, v7")
    for ks in range(8):
        e(f"v_xor_b32 v{24 + ks}, {2 * ks}, v6")
        e(f"v_lshl_add_u32 v{24 + ks}, v{24 + ks}, 4, v7")
    e("v_bfe_u32 v6, v1, 2, 2")
    e("v_lshl_add_u32 v6, v3, 3, v6")
    e("v_and_b32 v7, 1, v1")
    e("v_bfe_u32 v15, v1, 1, 1")
    e("v_lshl_add_u32 v7, v7, 1, v15")
    e("v_bfe_u32 v15, v1, 4, 1")
    e("v_lshlrev_b32 v20, 7, v6")
    e("v_lshl_add_u32 v20, v15, 5, v20")
    e("v_lshl_add_u32 v20, v7, 3, v20")
    e("v_add_u32 v20, s63, v20")
    e("v_lshlrev_b32 v6, 5, v6")
    e("v_add_u32 v6, s63, v6")
    e("v_lshl_add_u32 v21, v7, 3, v6")
    e("v_and_b32 v22, 3, v1")
    e("v_lshl_add_u32 v22, v22, 3, v6")
    e("s_cmp_lt_u32 s62, 2")
    e("s_cbranch_scc1 K1_KADDR")
    e("v_mov_b32 v21, v22")
    e.label("K1_KADDR")
    SX, SQ, CS = [32, 33], [34, 35], [36, 37]
    SR, CSR, CSK = [38, 39], 40, 41
    for r in range(32, 42):
        e(f"v_mov_b32 v{r}, 0")
    XF = lambda ks, tt: 48 + (ks * 2 + tt) * 4
    ACC = lambda tt, ct: 112 + (tt * 2 + ct) * 16
    WF = lambda kk, ct: 176 + (kk * 2 + ct) * 4
    KFR = lambda ks: 200 + 4 * ks
    AK = 232
    e("s_waitcnt vmcnt(0)")
    e("s_barrier")
    stamp(e, 2)
    for ks in range(8):
        for tt in range(2):
            e(f"ds_read_b128 {vr(XF(ks, tt), 4)}, v{24 + ks} offset:{O_X + tt * 8192}")
        if ks >= 5:
            e("s_waitcnt lgkmcnt(10)")
    e("s_cmp_ge_u32 s62, 4")
    e("s_cbranch_scc1 K1_NOKF")
    for ks in range(8):
        e("s_waitcnt lgkmcnt(12)")
        for u in range(2):
            e(f"ds_read_b64_tr_b16 {vr(KFR(ks) + 2 * u, 2)}, v21 offset:{O_KV + (16 * ks + 4 * u) * 32}")
    e.label("K1_NOKF")
    e("s_waitcnt lgkmcnt(0)")
    for ks in range(8):
        for c in range(4):
            for tt in range(2):
                x = XF(ks, tt) + c
                e(f"v_dot2_f32_bf16 v{SX[tt]}, v{x}, v5, v{SX[tt]}")
                e(f"v_dot2_f32_bf16 v{SQ[tt]}, v{x}, v{x}, v{SQ[tt]}")
    e("s_cmp_gt_u32 s62, 4")
    e("s_cbranch_scc1 K1_XDONE")
    e("s_cmp_eq_u32 s62, 4")
    e("s_cbranch_scc1 K1_XR")
    for ks in range(8):
        for c in range(4):
            e(f"v_dot2_f32_bf16 v{CSK if c & 1 else CSR}, v{KFR(ks) + c}, v5, v{CSK if c & 1 else CSR}")
    e("s_nop 2")
    e(f"v_add_f32 v{CSK}, v{CSK}, v{CSR}")
    e("s_cmp_lt_u32 s62, 2")
    e("s_cbranch_scc1 K1_XK")
    for ks in range(8):
        mfma32(e, AK, XF(ks, 0), KFR(ks), None if ks == 0 else AK)
    e("s_branch K1_XDONE")
    e.label("K1_XK")
    for ks in range(8):
        mfma32(e, AK, KFR(ks), XF(ks, 0), None if ks == 0 else AK)
    e("s_branch K1_XDONE")
    e.label("K1_XR")
    for ks in range(8):
        for c in range(4):
            e(f"v_dot2_f32_bf16 v{SR[0]}, v{XF(ks, 0) + c}, v{WR(ks) + c}, v{SR[0]}")
            e(f"v_dot2_f32_bf16 v{SR[1]}, v{XF(ks, 1) + c}, v{WR(ks) + c}, v{SR[1]}")
            e(f"v_dot2_f32_bf16 v{CSR}, v{WR(ks) + c}, v5, v{CSR}")
    e.label("K1_XDONE")
    for kc in range(4):
        e("s_barrier")
        for kk in range(2):
            ks = 2 * kc + kk
            for ct in range(2):
                for u in range(2):
                    e(f"ds_read_b64_tr_b16 {vr(WF(kk, ct) + 2 * u, 2)}, v20 offset:{O_W + (16 * ks + 4 * u) * 128 + 64 * ct}")
        e("s_waitcnt lgkmcnt(0)")
        for kk in range(2):
            for c in range(4):
                for ct in range(2):
                    e(f"v_dot2_f32_bf16 v{CS[ct]}, v{WF(kk, ct) + c}, v5, v{CS[ct]}")
        for kk in range(2):
            ks = 2 * kc + kk
            for tt in range(2):
                for ct in range(2):
                    mfma32(e, ACC(tt, ct), WF(kk, ct), XF(ks, tt), None if ks == 0 else ACC(tt, ct))
    stamp(e, 3)
    swap_add(e, SX[0], SX[1])
    swap_add(e, SQ[0], SQ[1])
    swap_add(e, CS[0], CS[1])
    swap_add(e, SR[0], SR[1])
    swap_add(e, CSR, CSK)
    e("v_lshl_add_u32 v6, v1, 2, s63")
    for q, r in enumerate((32, 34, 36, 38, 40)):
        e(f"ds_write_b32 v6, v{r} offset:{O_W + q * 256}")
    e("v_add_u32 v7, s63, v4")
    for tt in range(2):
        for ct in range(2):
            for rq in range(4):
                e(f"ds_write_b128 v7, {vr(ACC(tt, ct) + 4 * rq, 4)} offset:{O_X + ((tt * 2 + ct) * 4 + rq) * 1024}")
            e("s_waitcnt lgkmcnt(8)")
    e("s_cmp_ge_u32 s62, 4")
    e("s_cbranch_scc1 K1_NOKVW")
    for rq in range(4):
        e(f"ds_write_b128 v7, {vr(AK + 4 * rq, 4)} offset:{O_KV + rq * 1024}")
    e.label("K1_NOKVW")
    e("s_waitcnt lgkmcnt(0)")
    e.label("K1_BAR6")
    e("s_barrier")
    stamp(e, 4)
    e("s_lshr_b32 s68, s60, 1")
    e("s_and_b32 s69, s60, 1")
    e("s_lshr_b32 s54, s55, 2")
    e("v_lshlrev_b32 v6, 2, v1")
    e(f"v_add_u32 v7, {2 * RSZ}, v6")
    for q in range(5):
        for wp in range(4):
            a = 6 if wp < 2 else 7
            e(f"ds_read_b32 v{44 + q * 4 + wp}, v{a} offset:{(wp & 1) * RSZ + O_W + q * 256}")
        if q == 2:
            e("s_waitcnt lgkmcnt(4)")
    e("s_lshl_b32 s67, s60, 12")
    e("s_lshl_b32 s70, s54, 11")
    e("s_add_u32 s67, s67, s70")
    e("v_add_u32 v8, s67, v4")
    e(f"v_add_u32 v9, {2 * RSZ}, v8")
    AR = lambda wp, rr: 96 + (wp * 2 + rr) * 4
    e("s_lshl_b32 s70, s54, 10")
    e("s_add_u32 s63, s63, s70")
    e("s_waitcnt lgkmcnt(6)")
    for wp in range(4):
        a = 8 if wp < 2 else 9
        for rr in range(2):
            e(f"ds_read_b128 {vr(AR(wp, rr), 4)}, v{a} offset:{(wp & 1) * RSZ + O_X + rr * 1024}")
    e("s_waitcnt lgkmcnt(8)")
    for q in range(5):
        b = 44 + q * 4
        sum4(e, b, b, b + 1, b + 2, b + 3)
    MB, DB, INV = 64, 65, 66
    PV = O_W + 2048
    e("v_lshl_add_u32 v10, v1, 2, s63")
    e(f"ds_write_b32 v10, v52 offset:{PV}")
    e(f"ds_write_b32 v10, v60 offset:{PV + 768}")
    e("s_lshl_b32 s67, s69, 7")
    e("s_lshl_b32 s70, s54, 6")
    e("s_add_u32 s67, s67, s70")
    e("s_add_u32 s67, s67, s63")
    e("v_lshl_add_u32 v11, v3, 4, s67")
    for g in range(2):
        e(f"ds_read_b128 {vr(72 + 4 * g, 4)}, v11 offset:{PV + 32 * g}")
    token_stats(e, 44, 48, MB, DB, INV, 67, 68)
    e(f"ds_write_b32 v10, v{MB} offset:{PV + 256}")
    e(f"ds_write_b32 v10, v{INV} offset:{PV + 512}")
    e("s_lshl_b32 s67, s68, 7")
    e("s_add_u32 s67, s67, s63")
    e("v_lshl_add_u32 v11, v2, 2, s67")
    e("s_waitcnt lgkmcnt(4)")
    e(f"ds_read_b32 v69, v11 offset:{PV + 256}")
    e(f"ds_read_b32 v70, v11 offset:{PV + 512}")
    for r in range(8):
        a = 96 + r
        sum4(e, a, a, a + 8, a + 16, a + 24)
    e("s_lshl_b32 s67, s62, 2")
    e("s_lshl_b32 s70, s69, 1")
    e("s_add_u32 s67, s67, s70")
    e("s_add_u32 s67, s67, s54")
    e("s_lshl_b32 s67, s67, 6")
    e("s_lshl_b32 s70, s61, 1")
    e("s_add_u32 s67, s67, s70")
    e("s_xor_b32 s70, s68, s59")
    e("s_add_u32 s67, s67, s70")
    e("s_lshl_b32 s67, s67, 10")
    e("s_waitcnt lgkmcnt(0)")
    e(f"v_mul_f32 v70, {hex(QSCALE)}, v70")
    for r in range(8):
        a = 96 + r
        e(f"v_fma_f32 v{a}, -v69, v{72 + r}, v{a}")
        e(f"v_mul_f32 v{a}, v70, v{a}")
        if r & 1:
            e(f"v_cvt_pk_bf16_f32 v{88 + r // 2}, v{a - 1}, v{a}")
    e("buffer_store_dwordx4 v[88:91], v4, s[24:27], s67 offen")
    e("s_cmp_lt_u32 s55, 4")
    e("s_cbranch_scc1 K1_FIN")
    e("s_cmp_gt_u32 s62, 5")
    e("s_cbranch_scc1 K1_FIN")
    e("s_cmp_eq_u32 s62, 5")
    e("s_cbranch_scc1 K1_FLAGS")
    e("s_cmp_eq_u32 s62, 4")
    e("s_cbranch_scc1 K1_ROUTER")
    e("s_lshl_b32 s70, s61, 1")
    e("s_add_u32 s70, s70, s59")
    e("s_lshl_b32 s70, s70, 11")
    e(f"s_add_u32 s70, s70, {hex(WS_KV)}")
    e(f"v_add_u32 v8, {O_KV}, v4")
    e(f"v_add_u32 v9, {2 * RSZ + O_KV}, v4")
    e("s_cmp_lt_u32 s62, 2")
    e("s_cbranch_scc1 K1_KV_K")
    e("s_cmp_ge_u32 s60, 2")
    e("s_cbranch_scc1 K1_FIN")
    e("s_lshl_b32 s67, s60, 11")
    e("v_add_u32 v8, s67, v8")
    e("v_add_u32 v9, s67, v9")
    for wp in range(4):
        a = 8 if wp < 2 else 9
        for rr in range(2):
            e(f"ds_read_b128 {vr(96 + (wp * 2 + rr) * 4, 4)}, v{a} offset:{(wp & 1) * RSZ + rr * 1024}")
    e("s_lshl_b32 s67, s60, 6")
    e("s_add_u32 s67, s67, s63")
    e("v_lshl_add_u32 v11, v3, 4, s67")
    for rr in range(2):
        e(f"ds_read_b128 {vr(72 + rr * 4, 4)}, v11 offset:{PV + 256 + rr * 32}")
        e(f"ds_read_b128 {vr(80 + rr * 4, 4)}, v11 offset:{PV + 512 + rr * 32}")
    e("v_lshl_add_u32 v11, v2, 2, s63")
    e(f"ds_read_b32 v69, v11 offset:{PV + 768 + 128}")
    e("v_lshlrev_b32 v10, 4, v2")
    e("v_lshl_add_u32 v10, v3, 8, v10")
    e("s_lshl_b32 s67, s60, 9")
    e("s_add_u32 s67, s67, s70")
    e("s_waitcnt lgkmcnt(0)")
    for i in range(8):
        a = 96 + i
        sum4(e, a, a, a + 8, a + 16, a + 24)
        e(f"v_fma_f32 v{a}, -v{72 + i}, v69, v{a}")
        e(f"v_mul_f32 v{a}, v{80 + i}, v{a}")
    for c in range(4):
        e(f"v_cvt_pk_bf16_f32 v{84 + c}, v{96 + 2 * c}, v{97 + 2 * c}")
    e("s_mov_b32 exec_lo, 0x0000ffff")
    e("s_mov_b32 exec_hi, 0x0000ffff")
    e("buffer_store_dwordx4 v[84:87], v10, s[24:27], s67 offen offset:1024")
    e("s_branch K1_FIN")
    e.label("K1_KV_K")
    e("s_cmp_lg_u32 s60, 0")
    e("s_cbranch_scc1 K1_FIN")
    for wp in range(4):
        a = 8 if wp < 2 else 9
        for rr in range(2):
            e(f"ds_read_b128 {vr(96 + (wp * 2 + rr) * 4, 4)}, v{a} offset:{(wp & 1) * RSZ + rr * 1024}")
    e("v_lshl_add_u32 v11, v3, 4, s63")
    for rr in range(2):
        e(f"ds_read_b128 {vr(72 + rr * 4, 4)}, v11 offset:{PV + 768 + 128 + rr * 32}")
    e("v_lshl_add_u32 v11, v2, 2, s63")
    e(f"ds_read_b32 v69, v11 offset:{PV + 256}")
    e(f"ds_read_b32 v70, v11 offset:{PV + 512}")
    e("s_waitcnt lgkmcnt(0)")
    for i in range(8):
        a = 96 + i
        sum4(e, a, a, a + 8, a + 16, a + 24)
        e(f"v_fma_f32 v{a}, -v69, v{72 + i}, v{a}")
        e(f"v_mul_f32 v{a}, v70, v{a}")
    for c in range(4):
        e(f"v_cvt_pk_bf16_f32 v{84 + c}, v{96 + 2 * c}, v{97 + 2 * c}")
    e("buffer_store_dwordx4 v[84:87], v4, s[24:27], s70 offen")
    e("s_branch K1_FIN")
    e.label("K1_FLAGS")
    e("s_cmp_lg_u32 s60, 0")
    e("s_cbranch_scc1 K1_FIN")
    e("v_mov_b32 v8, 0")
    e("v_lshlrev_b32 v9, 2, v1")
    e("s_lshl_b32 s67, s61, 8")
    e(f"s_add_u32 s67, s67, {hex(WS_FLAGS)}")
    e("buffer_store_dword v8, v9, s[24:27], s67 offen sc1")
    e("s_branch K1_FIN")
    e.label("K1_ROUTER")
    e("s_cmp_lg_u32 s60, 0")
    e("s_cbranch_scc1 K1_FIN")
    e("v_readlane_b32 s67, v60, 0")
    e("s_nop 1")
    e(f"v_mul_f32 v8, s67, v{MB}")
    e("v_sub_f32 v56, v56, v8")
    e(f"v_mul_f32 v56, v{INV}, v56")
    rbf(e, 56, 56)
    e("v_ashrrev_i32 v8, 31, v56")
    e("v_or_b32 v8, 0x80000000, v8")
    e("v_xor_b32 v56, v56, v8")
    e("v_and_b32 v56, 0xffff0000, v56")
    e("s_lshl_b32 s67, s61, 6")
    e("v_add_u32 v9, s67, v1")
    e("v_sub_u32 v8, 0xffff, v9")
    e("v_or_b32 v56, v56, v8")
    e("v_lshlrev_b32 v9, 3, v9")
    e(f"s_mov_b32 s67, {hex(WS_STATS)}")
    e(f"buffer_store_dwordx2 v[{MB}:{DB}], v9, s[24:27], s67 offen")
    e("v_mov_b32 v10, v56")
    dpp_umax_reduce(e, 10)
    e("v_readlane_b32 s70, v10, 63")
    e("s_nop 1")
    e("v_cmp_ne_u32 vcc, s70, v56")
    e("s_nop 1")
    e("v_cndmask_b32 v10, 0, v56, vcc")
    dpp_umax_reduce(e, 10)
    e("v_readlane_b32 s71, v10, 63")
    e("s_nop 1")
    e("v_mov_b32 v12, s70")
    e("v_mov_b32 v13, s71")
    e("s_lshl_b32 s67, s61, 3")
    e(f"s_add_u32 s67, s67, {hex(WS_KEYS)}")
    e("v_mov_b32 v8, 0")
    e("s_mov_b64 exec, 1")
    e("buffer_store_dwordx2 v[12:13], v8, s[24:27], s67 offen")
    e.label("K1_FIN")
    stamp_flush(e, 0, 24, 55)
    e.label("K1_END")
    e("s_endpgm")
    e.vm = []
    return kn, 256, 4 * RSZ


def gen_k2(e):
    kn = "mqa_attn_kernel"
    L_XS = 0
    L_YS = 512
    L_SEL = L_YS + 2048
    L_CNT = L_SEL + 16
    L_MX = L_CNT + 16
    L_STG = 8192
    assert L_MX + 4096 <= L_STG
    L_KV = 32768
    L_REDB = 32768
    LDS_SIZE = 163840

    e.raw(".p2align 8")
    e.raw(f".globl {kn}")
    e.raw(f".type {kn},@function")
    e.label(kn)
    e("s_cmp_ge_u32 s2, 256")
    e("s_cbranch_scc1 K2_END")
    stamp_init(e)
    e("s_load_dwordx2 s[4:5], s[0:1], 0")
    e("s_load_dwordx2 s[6:7], s[0:1], 32")
    e("s_load_dwordx4 s[8:11], s[0:1], 56")
    e("s_load_dwordx4 s[12:15], s[0:1], 72")
    e("s_load_dwordx2 s[18:19], s[0:1], 96")
    e("v_and_b32 v1, 63, v0")
    e("v_lshrrev_b32 v6, 6, v0")
    e("v_and_b32 v2, 31, v1")
    e("v_lshrrev_b32 v3, 5, v1")
    e("v_readfirstlane_b32 s60, v6")
    e("v_lshlrev_b32 v4, 4, v1")
    e("s_and_b32 s56, s2, 7")
    e("s_lshr_b32 s57, s2, 3")
    e("s_lshr_b32 s58, s57, 3")
    e("s_lshl_b32 s61, s56, 2")
    e("s_add_u32 s61, s61, s58")
    e("s_and_b32 s62, s57, 7")
    e("s_mov_b32 s63, 0")
    e("s_mov_b32 s59, 0")
    e("v_and_b32 v5, 15, v2")
    e("v_lshlrev_b32 v5, 4, v5")
    e("v_lshl_add_u32 v5, v3, 8, v5")
    e("v_add_u32 v5, 1024, v5")
    e("s_waitcnt lgkmcnt(0)")
    stamp(e, 1)
    srd(e, 20, 4, 2048 * 512 * 2)
    srd(e, 24, 6, 512 * 512 * 2)
    srd(e, 28, 8, 512 * 1792 * 2)
    srd(e, 32, 10, 512 * 1792 * 2)
    srd(e, 36, 12, 512 * 1792 * 2)
    srd(e, 40, 14, 2048 * 512 * 2)
    srd(e, 44, 18, WS_SIZE)
    e("s_cmp_ge_u32 s60, 4")
    e("s_cbranch_scc1 K2_H")

    ACC = lambda q: 128 + 16 * q
    Q = lambda q: 96 + 4 * q
    S = [64, 80]
    P = 56
    KB = [8, 12]
    VB = [24, 32]
    NB = 2
    e("s_lshl_b32 s66, s62, 8")
    e("s_lshl_b32 s67, s61, 1")
    e("s_add_u32 s66, s66, s67")
    e("s_lshl_b32 s66, s66, 10")
    e("s_lshl_b32 s71, s60, 15")
    e(f"s_add_u32 s68, s71, {hex(WS_KV)}")
    e(f"s_add_u32 s71, s71, {L_KV}")
    e("s_mov_b32 s50, 0x0000ffff")
    e("s_mov_b32 s51, 0x0000ffff")

    def load_q():
        for q in range(8):
            hl, tt = q >> 1, q & 1
            e(f"s_add_u32 s67, s66, {hl * 65536 + tt * 1024}")
            e.vmem(f"buffer_load_dwordx4 {vr(Q(q), 4)}, v4, s[44:47], s67 offen", "q")

    def init_v():
        e("v_and_b32 v6, 27, v2")
        e("v_cmp_eq_u32 vcc, 16, v6")
        e(f"v_mov_b32 v7, {hex(ONES)}")
        e("s_nop 0")
        e("v_cndmask_b32 v7, 0, v7, vcc")
        for r in range(24, 40):
            e(f"v_mov_b32 v{r}, v7")

    def load_kv(buf, soff, imm=0, tag="kv"):
        e.vmem(f"buffer_load_dwordx4 {vr(KB[buf], 4)}, v4, s[44:47], {soff} offen offset:{imm}", tag + "k")
        e("s_mov_b64 exec, s[50:51]")
        e.vmem(f"buffer_load_dwordx4 {vr(VB[buf], 4)}, v5, s[44:47], {soff} offen offset:{imm}", tag + "v")
        e.vmem(f"buffer_load_dwordx4 {vr(VB[buf] + 4, 4)}, v5, s[44:47], {soff} offen offset:{imm + 512}", tag + "v")
        e("s_mov_b64 exec, -1")

    def read_kv(buf, imm):
        e(f"ds_read_b128 {vr(KB[buf], 4)}, v40 offset:{imm}")
        e("s_mov_b64 exec, s[50:51]")
        e(f"ds_read_b128 {vr(VB[buf], 4)}, v41 offset:{imm}")
        e(f"ds_read_b128 {vr(VB[buf] + 4, 4)}, v41 offset:{imm + 512}")
        e("s_mov_b64 exec, -1")

    def kv_dma(n):
        if n % 4 == 0:
            e(f"s_add_u32 m0, s71, {n * 1024}")
            e(f"s_add_u32 s69, s68, {n * 1024}")
        e.vmem(f"buffer_load_dwordx4 v4, s[44:47], s69 offen offset:{(n & 3) * 1024} lds", ("kv", n))
    for n in range(2):
        kv_dma(n)
    load_q()
    for n in range(2, 10):
        if n == 2:
            pass
        kv_dma(n)
    init_v()
    e("v_add_u32 v40, s71, v4")
    e("v_add_u32 v41, s71, v5")
    for r in range(P, P + 8):
        e(f"v_mov_b32 v{r}, 0")
    for r in range(128, 256):
        e(f"v_mov_b32 v{r}, 0")
    e.vwait("q")
    read_kv(0, 0)
    stamp(e, 2)
    cstamp(e, 8)
    e("s_waitcnt lgkmcnt(0)")
    mfma32(e, S[0], KB[0], Q(0))
    e(f"s_mov_b32 s70, {16 // UNR}")
    e("s_nop 7")
    e("s_nop 2")

    def slot(tb, q):
        kb = tb & 1
        t = q
        Sc, Sn = S[t & 1], S[(t + 1) & 1]
        if q < 7:
            mfma32(e, Sn, KB[kb], Q(q + 1))
        else:
            mfma32(e, Sn, KB[kb ^ 1], Q(0))
        for i in range(6):
            e(f"v_exp_f32 v{Sc + i}, v{Sc + i}")
            if q == 5 and i == 0:
                e(f"s_waitcnt vmcnt({2 - 2 * tb})")
        if q == 0:
            mfma32(e, ACC(7), VB[kb ^ 1] + 4, P + 4, ACC(7))
        else:
            mfma32(e, ACC(q - 1), VB[kb] + 4, P + 4, ACC(q - 1))
        for i in range(6, 8):
            e(f"v_exp_f32 v{Sc + i}, v{Sc + i}")
        if q == 5:
            read_kv(kb ^ 1, 2048 * (tb + 1))
        for c in range(4):
            e(f"v_cvt_pk_bf16_f32 v{P + c}, v{Sc + 2 * c}, v{Sc + 2 * c + 1}")
        e(f"v_exp_f32 v{Sc + 8}, v{Sc + 8}")
        e(f"v_exp_f32 v{Sc + 9}, v{Sc + 9}")
        mfma32(e, ACC(q), VB[kb], P, ACC(q))
        for i in range(10, 16):
            e(f"v_exp_f32 v{Sc + i}, v{Sc + i}")
            if q == 6 and i == 15:
                e("s_waitcnt lgkmcnt(0)")
        for c in range(4, 8):
            e(f"v_cvt_pk_bf16_f32 v{P + c}, v{Sc + 2 * c}, v{Sc + 2 * c + 1}")
        if q == 7 and tb == UNR - 1:
            e(f"v_add_u32 v40, {2048 * UNR}, v40")
            e(f"v_add_u32 v41, {2048 * UNR}, v41")

    e.raw(".p2align 6")
    e.label("K2_LOOP")
    for tb in range(UNR):
        for q in range(8):
            e.vm = []
            slot(tb, q)
    e("s_sub_u32 s70, s70, 1")
    e("s_cmp_lg_u32 s70, 6")
    e("s_cbranch_scc1 K2_LOOP_NB")
    e("s_barrier")
    e.label("K2_LOOP_NB")
    e("s_cmp_lg_u32 s70, 0")
    e("s_cbranch_scc1 K2_LOOP")
    mfma32(e, ACC(7), VB[1] + 4, P + 4, ACC(7))
    e.vm = []
    stamp(e, 3)
    cstamp(e, 9)
    e.label("K2_DUMP")
    e("s_lshr_b32 s71, s60, 1")
    e("s_and_b32 s72, s60, 1")
    e("s_lshl_b32 s73, s61, 6")
    e("s_lshl_b32 s67, s71, 5")
    e("s_add_u32 s73, s73, s67")
    e("v_add_u32 v56, s73, v2")
    e("v_lshlrev_b32 v57, 10, v56")
    e("v_lshl_add_u32 v57, v3, 5, v57")
    e("s_lshl_b32 s74, s62, 7")
    e("s_lshl_b32 s67, s72, 6")
    e("s_add_u32 s74, s74, s67")
    e("buffer_load_dwordx4 v[48:51], v57, s[20:23], s74 offen")
    e("buffer_load_dwordx4 v[52:55], v57, s[20:23], s74 offen offset:16")
    e("v_lshlrev_b32 v58, 3, v56")
    e(f"s_mov_b32 s67, {hex(WS_STATS)}")
    e("buffer_load_dwordx2 v[46:47], v58, s[44:47], s67 offen")
    e("s_lshl_b32 s67, s60, 15")
    e(f"s_add_u32 s67, s67, {L_REDB}")
    e("v_add_u32 v6, s67, v4")
    e("v_lshl_add_u32 v7, v1, 2, s67")
    for q in range(8):
        e(f"ds_write_b128 v6, {vr(ACC(q), 4)} offset:{q * 2304}")
        e(f"ds_write_b128 v6, {vr(ACC(q) + 4, 4)} offset:{q * 2304 + 1024}")
        e(f"ds_write_b32 v7, v{ACC(q) + 8} offset:{q * 2304 + 2048}")
        if q >= 3:
            e("s_waitcnt lgkmcnt(9)")
    e("s_waitcnt lgkmcnt(0)")
    e.label("K2_BAR1")
    e("s_barrier")
    stamp(e, 4)
    e("s_mul_i32 s67, s60, 2304")
    e(f"s_add_u32 s67, s67, {L_REDB}")
    e("v_add_u32 v6, s67, v4")
    e("v_lshl_add_u32 v7, v1, 2, s67")
    e("v_add_u32 v44, 65536, v6")
    e("v_add_u32 v45, 65536, v7")
    for wp in range(4):
        a, b = (6, 7) if wp < 2 else (44, 45)
        e(f"ds_read_b128 {vr(8 + wp * 8, 4)}, v{a} offset:{(wp & 1) * 32768}")
        e(f"ds_read_b128 {vr(12 + wp * 8, 4)}, v{a} offset:{(wp & 1) * 32768 + 1024}")
        e(f"ds_read_b32 v{40 + wp}, v{b} offset:{(wp & 1) * 32768 + 2048}")
    e("s_and_b32 s67, s60, 1")
    e("s_lshl_b32 s71, s61, 1")
    e("s_add_u32 s67, s67, s71")
    e("s_lshl_b32 s67, s67, 5")
    e("s_lshl_b32 s71, s62, 2")
    e("s_add_u32 s67, s67, s71")
    e("s_lshr_b32 s71, s60, 1")
    e("s_add_u32 s67, s67, s71")
    e("s_lshl_b32 s67, s67, 10")
    e(f"s_add_u32 s67, s67, {hex(WS_OF)}")
    e("v_mov_b32 v45, 0x37800000")
    e("v_mov_b32 v44, 0x5f800000")
    e("s_waitcnt lgkmcnt(0)")
    sum4(e, 40, 40, 41, 42, 43)
    e("v_rcp_f32 v41, v40")
    for i in range(8):
        sum4(e, 8 + i, 8 + i, 16 + i, 24 + i, 32 + i)
    e("v_fma_f32 v42, v8, 0, v40")
    for i in range(1, 8):
        e(f"v_fma_f32 v42, v{8 + i}, 0, v42")
    for i in range(8):
        e(f"v_mul_f32 v{8 + i}, v41, v{8 + i}")
    e("v_cmp_nle_f32 vcc, v45, v42")
    e("v_cmp_nle_f32 s[72:73], v42, v44")
    for c in range(4):
        e(f"v_cvt_pk_bf16_f32 v{16 + c}, v{8 + 2 * c}, v{9 + 2 * c}")
    e("s_or_b64 vcc, vcc, s[72:73]")
    e("s_waitcnt vmcnt(0)")
    e("s_cmp_lg_u32 s59, 0")
    e("s_cbranch_scc1 K2_STORED")
    e("s_cmp_lg_u32 s63, 0")
    e("s_cbranch_scc1 K2_DOSTORE")
    e("s_cmp_eq_u64 vcc, 0")
    e("s_cbranch_scc1 K2_DOSTORE")
    e("v_mov_b32 v6, 1")
    e(f"v_mov_b32 v7, {L_CNT + 4}")
    e("ds_write_b32 v7, v6")
    e("s_branch K2_STORED")
    e.label("K2_DOSTORE")
    e("buffer_store_dwordx4 v[16:19], v4, s[44:47], s67 offen")
    e(f"s_add_u32 s67, s67, {WS_OF2 - WS_OF}")
    e("buffer_store_dwordx4 v[16:19], v4, s[44:47], s67 offen sc1")
    e("s_mov_b32 s59, 1")
    e.label("K2_STORED")
    e("s_waitcnt lgkmcnt(0)")
    e("s_barrier")
    stamp(e, 5)
    e("s_cmp_lg_u32 s63, 0")
    e("s_cbranch_scc1 K2_POST")
    e(f"v_mov_b32 v7, {L_CNT + 4}")
    e("ds_read_b32 v6, v7")
    e("s_waitcnt lgkmcnt(0)")
    e("v_readfirstlane_b32 s67, v6")
    e("s_nop 3")
    e("s_cmp_lg_u32 s67, 0")
    e("s_cbranch_scc1 K2_SLOW")
    e.label("K2_POST")
    e("s_cmp_ge_u32 s60, 4")
    e("s_cbranch_scc1 K2_H2")
    e("s_mul_i32 s67, s60, 6144")
    e(f"s_add_u32 s67, s67, {L_STG}")
    e("v_add_u32 v10, s67, v4")
    e(f"v_mov_b32 v7, {L_SEL}")
    e("ds_read_b128 v[28:31], v7")
    for i in range(16):
        e(f"v_mov_b32 v{64 + i}, 0")
    e("s_and_b32 s72, s60, 1")
    e("v_lshlrev_b32 v11, 6, v3")
    e("s_lshl_b32 s67, s72, 7")
    e("v_add_u32 v11, s67, v11")
    e("v_rcp_f32 v47, v47")
    e("s_waitcnt lgkmcnt(0)")
    for sl in range(2):
        e(f"v_cmp_eq_u32 vcc, v{28 + sl}, v56")
        e("s_and_saveexec_b64 s[76:77], vcc")
        e(f"s_cbranch_execz K2_NOY{sl}")
        for hq in range(4):
            for i in range(4):
                e(f"ds_read_b128 {vr(64 + hq * 16 + 4 * i, 4)}, v11 offset:{L_YS + sl * 1024 + hq * 256 + i * 16}")
            if hq == 2:
                e("s_waitcnt lgkmcnt(4)")
        e("s_waitcnt lgkmcnt(0)")
        for i in range(16):
            sum4(e, 64 + i, 64 + i, 80 + i, 96 + i, 112 + i)
            rbf(e, 64 + i, 64 + i)
            e(f"v_mul_f32 v{64 + i}, v{30 + sl}, v{64 + i}")
            rbf(e, 64 + i, 64 + i)
        e.label(f"K2_NOY{sl}")
        e("s_mov_b64 exec, -1")
    for dw in range(8):
        a, b = 64 + 2 * dw, 65 + 2 * dw
        e(f"v_lshlrev_b32 v22, 16, v{48 + dw}")
        e(f"v_and_b32 v23, 0xffff0000, v{48 + dw}")
        e("v_sub_f32 v22, v22, v46")
        e("v_sub_f32 v23, v23, v46")
        e("v_cvt_pk_bf16_f32 v24, v22, v23")
        e("v_lshlrev_b32 v22, 16, v24")
        e("v_and_b32 v23, 0xffff0000, v24")
        e("v_mul_f32 v22, v47, v22")
        e("v_mul_f32 v23, v47, v23")
        e("v_cvt_pk_bf16_f32 v24, v22, v23")
        e("v_lshlrev_b32 v22, 16, v24")
        e("v_and_b32 v23, 0xffff0000, v24")
        e(f"v_add_f32 v22, v22, v{a}")
        e(f"v_add_f32 v23, v23, v{b}")
        e("v_cvt_pk_bf16_f32 v24, v22, v23")
        e("v_lshlrev_b32 v22, 16, v24")
        e("v_and_b32 v23, 0xffff0000, v24")
        e(f"v_mul_f32 v25, {hex(NLOG2E)}, v22")
        e(f"v_mul_f32 v26, {hex(NLOG2E)}, v23")
        e("v_exp_f32 v25, v25")
        e("v_exp_f32 v26, v26")
        e("s_nop 0")
        e("v_add_f32 v25, 1.0, v25")
        e("v_add_f32 v26, 1.0, v26")
        e("v_rcp_f32 v25, v25")
        e("v_rcp_f32 v26, v26")
        e("s_nop 0")
        e("v_mul_f32 v22, v25, v22")
        e("v_mul_f32 v23, v26, v23")
        e("v_cvt_pk_bf16_f32 v24, v22, v23")
        e(f"v_lshlrev_b32 v{a}, 16, v24")
        e(f"v_and_b32 v{b}, 0xffff0000, v24")
        if dw & 1:
            e(f"ds_write_b128 v10, {vr(64 + 4 * (dw >> 1), 4)} offset:{(dw >> 1) * 1024}")
    e("s_waitcnt lgkmcnt(0)")
    stamp(e, 6)
    e("s_barrier")
    stamp_flush(e, 1, 44, 60)
    e("s_endpgm")

    e.label("K2_SLOW")
    e("s_mov_b32 s63, 1")
    e("s_cmp_ge_u32 s60, 4")
    e("s_cbranch_scc1 K2_SLOW_H")
    e.vm = []
    init_v()
    load_q()
    MXR = 16
    for q in range(8):
        e(f"v_mov_b32 v{MXR + q}, 0xff7fffff")
    for r in range(128, 256):
        e(f"v_mov_b32 v{r}, 0")
    e("s_mov_b32 s69, s68")
    e("s_mov_b32 s70, 16")
    e.label("K2_SLOW_P1")
    e.vmem(f"buffer_load_dwordx4 {vr(KB[1], 4)}, v4, s[44:47], s69 offen", "k")
    e.vwait(None)
    for q in range(8):
        mfma32(e, S[0], KB[1], Q(q))
        e("s_nop 15")
        for i in range(8):
            e(f"v_max3_f32 v{MXR + q}, v{S[0] + 2 * i}, v{S[0] + 2 * i + 1}, v{MXR + q}")
    e("s_add_u32 s69, s69, 2048")
    e("s_sub_u32 s70, s70, 1")
    e("s_cmp_lg_u32 s70, 0")
    e("s_cbranch_scc1 K2_SLOW_P1")
    for q in range(8):
        e(f"v_mov_b32 v42, v{MXR + q}")
        e("s_nop 1")
        e(f"v_permlane32_swap_b32 v{MXR + q}, v42")
        e("s_nop 1")
        e(f"v_max_f32 v{MXR + q}, v{MXR + q}, v42")
    e("s_lshl_b32 s67, s60, 10")
    e("v_lshl_add_u32 v6, v2, 2, s67")
    for q in range(8):
        e(f"ds_write_b32 v6, v{MXR + q} offset:{L_MX + q * 128}")
    e("s_waitcnt lgkmcnt(0)")
    e("s_barrier")
    e("v_lshlrev_b32 v6, 2, v2")
    for q in range(8):
        for wp in range(4):
            e(f"ds_read_b32 v{42 + wp}, v6 offset:{L_MX + wp * 1024 + q * 128}")
        e("s_waitcnt lgkmcnt(0)")
        e(f"v_max3_f32 v{MXR + q}, v42, v43, v44")
        e(f"v_max_f32 v{MXR + q}, v{MXR + q}, v45")
    e("s_mov_b32 s69, s68")
    e("s_mov_b32 s70, 16")
    e.label("K2_SLOW_P2")
    load_kv(1, "s69", 0, "s")
    e.vwait(None)
    for q in range(8):
        mfma32(e, S[0], KB[1], Q(q))
        e("s_nop 15")
        for i in range(16):
            e(f"v_sub_f32 v{S[0] + i}, v{S[0] + i}, v{MXR + q}")
        for i in range(16):
            e(f"v_exp_f32 v{S[0] + i}, v{S[0] + i}")
        e("s_nop 0")
        for c in range(8):
            e(f"v_cvt_pk_bf16_f32 v{P + c}, v{S[0] + 2 * c}, v{S[0] + 2 * c + 1}")
        e("s_nop 1")
        mfma32(e, ACC(q), VB[1], P, ACC(q))
        mfma32(e, ACC(q), VB[1] + 4, P + 4, ACC(q))
    e("s_add_u32 s69, s69, 2048")
    e("s_sub_u32 s70, s70, 1")
    e("s_cmp_lg_u32 s70, 0")
    e("s_cbranch_scc1 K2_SLOW_P2")
    e("s_nop 3")
    e("s_branch K2_DUMP")
    e.label("K2_SLOW_H")
    e("s_barrier")
    e("s_branch K2_BAR1")

    e.label("K2_H")
    e.vm = []
    e("s_setprio 2")
    e("s_sub_u32 s66, s60, 4")
    e("v_and_b32 v8, 15, v1")
    e("v_lshrrev_b32 v9, 4, v1")
    e("v_lshlrev_b32 v6, 3, v2")
    e(f"s_mov_b32 s67, {hex(WS_KEYS)}")
    e("buffer_load_dwordx2 v[10:11], v6, s[44:47], s67 offen")
    e("s_mul_i32 s64, s56, 28")
    e("s_add_u32 s64, s64, s57")
    e("s_mul_i32 s65, s66, 6144")
    e(f"s_add_u32 s65, s65, {L_STG}")
    e("s_cmp_lt_u32 s66, 2")
    e("s_cselect_b32 s52, s28, s32")
    e("s_cselect_b32 s53, s29, s33")
    e(f"s_mov_b32 s54, {hex(512 * 1792 * 2)}")
    e("s_mov_b32 s55, 0x00020000")
    e("s_lshr_b32 s48, s64, 3")
    e("s_and_b32 s49, s64, 7")
    e("s_lshl_b32 s49, s49, 1")
    e("s_and_b32 s67, s66, 1")
    e("s_add_u32 s49, s49, s67")
    e("v_lshrrev_b32 v6, 3, v1")
    e("v_and_b32 v12, 7, v1")
    e("v_lshlrev_b32 v12, 4, v12")
    e("s_movk_i32 s67, 3584")
    e("v_mad_u32_u24 v16, v6, s67, v12")
    e("v_lshlrev_b32 v17, 10, v9")
    e("v_lshl_add_u32 v17, v8, 4, v17")
    e("v_lshl_add_u32 v12, v6, 10, v12")
    e("v_bfe_u32 v13, v1, 2, 2")
    e("v_lshl_add_u32 v13, v3, 2, v13")
    e("v_lshlrev_b32 v13, 7, v13")
    e("v_and_b32 v14, 1, v1")
    e("v_lshl_add_u32 v13, v14, 5, v13")
    e("v_bfe_u32 v14, v1, 4, 1")
    e("v_lshl_add_u32 v13, v14, 4, v13")
    e("v_bfe_u32 v14, v1, 1, 1")
    e("v_lshl_add_u32 v13, v14, 3, v13")
    e("v_add_u32 v13, s65, v13")
    e("s_and_b32 s77, s66, 1")
    e("s_lshl_b32 s67, s77, 6")
    e("v_add_u32 v13, s67, v13")
    e("v_xor_b32 v29, 64, v13")
    e("s_lshl_b32 s69, s77, 18")
    e("s_lshl_b32 s67, s62, 7")
    e("s_add_u32 s69, s69, s67")
    e("s_cmp_lg_u32 s66, 0")
    e("s_cbranch_scc1 K2_H_NOINIT")
    e("v_mov_b32 v6, 0")
    e("v_mov_b32 v7, 0")
    e(f"v_mov_b32 v18, {L_CNT}")
    e("ds_write_b64 v18, v[6:7]")
    e("s_waitcnt lgkmcnt(0)")
    e.label("K2_H_NOINIT")
    e("s_lshl_b32 s74, s66, 15")
    e(f"s_add_u32 s75, s74, {hex(WS_KV)}")
    e(f"s_add_u32 s74, s74, {L_KV}")
    e("s_waitcnt vmcnt(0)")
    for n in range(10, 32):
        if n == 10 or n % 4 == 0:
            e(f"s_add_u32 m0, s74, {(n & ~3) * 1024}")
            e(f"s_add_u32 s67, s75, {(n & ~3) * 1024}")
        e(f"buffer_load_dwordx4 v4, s[44:47], s67 offen offset:{(n & 3) * 1024} lds")
    e("v_mov_b32 v18, v10")
    dpp_umax_reduce(e, 18)
    e("v_readlane_b32 s70, v18, 63")
    e("s_nop 1")
    e("v_cmp_eq_u32 vcc, s70, v10")
    e("s_nop 1")
    e("v_cndmask_b32 v18, v10, v11, vcc")
    dpp_umax_reduce(e, 18)
    e("v_readlane_b32 s71, v18, 63")
    e("s_nop 3")
    e("s_and_b32 s72, s70, 0xffff")
    e("s_sub_u32 s72, 0xffff, s72")
    e("s_and_b32 s73, s71, 0xffff")
    e("s_sub_u32 s73, 0xffff, s73")
    e("s_and_b32 s72, s72, 2047")
    e("s_and_b32 s73, s73, 2047")
    stamp(e, 2)

    WOF = lambda hd, nt: 128 + (hd * 2 + nt) * 4

    def wo_rounds(h0, h1):
        hd = h0
        while hd < h1:
            n = min(3, h1 - hd)
            for i in range(2 * n):
                if i % 4 == 0:
                    e(f"s_add_u32 m0, s65, {i * 1024}")
                e(f"s_add_u32 s67, s69, {(2 * hd + i) * 8192 - (i & 3) * 1024}")
                e(f"buffer_load_dwordx4 v12, s[24:27], s67 offen offset:{(i & 3) * 1024} lds")
            e("s_waitcnt vmcnt(0)")
            for i in range(n):
                for nt in range(2):
                    for u in range(2):
                        e(f"ds_read_b64_tr_b16 {vr(WOF(hd + i, nt) + 2 * u, 2)}, v{13 if nt == 0 else 29} offset:{(16 * i + 8 * u) * 128}")
            e("s_waitcnt lgkmcnt(0)")
            hd += n

    e(f"s_cmp_lt_u32 s57, {FFNLIM}")
    e("s_cbranch_scc1 K2_H_FFN")
    e("s_waitcnt vmcnt(0)")
    e("s_barrier")
    wo_rounds(0, 6)
    e("s_branch K2_H_NOFFN1")
    e.label("K2_H_FFN")
    e("v_mov_b32 v18, s72")
    e("v_mov_b32 v19, s73")
    e("v_cmp_eq_u32 vcc, 0, v3")
    e("s_lshl_b32 s67, s49, 6")
    e("s_nop 0")
    e("v_cndmask_b32 v18, v19, v18, vcc")
    e("v_lshlrev_b32 v19, 10, v18")
    e("v_lshl_add_u32 v19, v2, 1, v19")
    e("buffer_load_ushort v20, v19, s[20:23], s67 offen")
    e("v_lshlrev_b32 v19, 3, v18")
    e(f"s_mov_b32 s67, {hex(WS_STATS)}")
    e("buffer_load_dwordx2 v[22:23], v19, s[44:47], s67 offen")
    e(f"s_mul_i32 s68, s49, {32 * 3584}")
    e("s_lshl_b32 s67, s48, 7")
    e("s_add_u32 s68, s68, s67")
    for n in range(4):
        e(f"s_add_u32 m0, s65, {n * 1024}")
        e(f"s_add_u32 s67, s68, {n * 8 * 3584}")
        e("buffer_load_dwordx4 v16, s[52:55], s67 offen lds")
    e("s_lshl_b32 s68, s64, 13")
    e("s_lshl_b32 s67, s66, 8")
    e("s_add_u32 s68, s68, s67")
    for n in range(2):
        e(f"s_add_u32 m0, s65, {4096 + n * 1024}")
        e(f"s_add_u32 s67, s68, {n * 4096}")
        e("buffer_load_dwordx4 v17, s[36:39], s67 offen lds")
    e("v_bfe_u32 v24, v1, 2, 2")
    e("v_lshl_add_u32 v25, v9, 3, v24")
    e("v_lshlrev_b32 v25, 7, v25")
    e("v_and_b32 v26, 3, v1")
    e("v_lshl_add_u32 v25, v26, 3, v25")
    e("v_add_u32 v25, s65, v25")
    e("v_and_b32 v24, 1, v24")
    e("v_lshl_add_u32 v24, v9, 1, v24")
    e("v_lshlrev_b32 v24, 8, v24")
    e("v_lshl_add_u32 v24, v26, 3, v24")
    e("v_add_u32 v24, s65, v24")
    e("s_lshl_b32 s67, s66, 7")
    e("v_lshl_add_u32 v27, v1, 1, s67")
    e("v_and_b32 v28, 1, v8")
    e("v_lshlrev_b32 v28, 6, v28")
    e("v_lshl_add_u32 v28, v9, 4, v28")
    e("v_add_u32 v28, s67, v28")
    e("s_waitcnt vmcnt(6)")
    e("v_rcp_f32 v23, v23")
    e("v_lshlrev_b32 v20, 16, v20")
    e("v_sub_f32 v20, v20, v22")
    rbf(e, 20, 20)
    e("v_mul_f32 v20, v23, v20")
    e("v_cvt_pk_bf16_f32 v20, v20, v20")
    e(f"ds_write_b16 v27, v20 offset:{L_XS}")
    e(f"ds_read_b128 v[80:83], v28 offset:{L_XS}")
    e("s_waitcnt vmcnt(2)")
    GA = lambda ft: 64 + 4 * ft
    for ft in range(4):
        for u in range(2):
            e(f"ds_read_b64_tr_b16 {vr(GA(ft) + 2 * u, 2)}, v25 offset:{4 * u * 128 + ft * 32}")
    e("s_movk_i32 s67, 7168")
    e("v_mul_lo_u32 v19, v8, s67")
    e("v_lshl_add_u32 v19, v9, 4, v19")
    e("s_lshl_b32 s67, s49, 1")
    e("s_lshr_b32 s74, s66, 1")
    e("s_add_u32 s67, s67, s74")
    e(f"s_mul_i32 s67, s67, {2 * 7168}")
    e("s_lshl_b32 s74, s48, 8")
    e("s_add_u32 s67, s67, s74")
    e(f"s_add_u32 s75, s67, {hex(WS_PG)}")
    e("v_mov_b32 v26, 1")
    e("v_mov_b32 v18, 0")
    e("s_waitcnt lgkmcnt(0)")
    for ft in range(4):
        mfma16(e, 48 + 4 * ft, GA(ft), 80)
    e("s_mov_b32 exec_lo, 0x00030003")
    e("s_mov_b32 exec_hi, 0x00030003")
    e("s_nop 5")
    for ft in range(4):
        e(f"buffer_store_dwordx4 {vr(48 + 4 * ft, 4)}, v19, s[44:47], s75 offen offset:{64 * ft} sc1")
    e("s_mov_b64 exec, -1")
    DF = lambda ee: 96 + 4 * ee
    e("s_waitcnt vmcnt(4)")
    for ee in range(8):
        e(f"ds_read_b64_tr_b16 {vr(DF(ee), 2)}, v24 offset:{4096 + 32 * ee}")
        e(f"v_mov_b32 v{DF(ee) + 2}, 0")
        e(f"v_mov_b32 v{DF(ee) + 3}, 0")
    e("s_lshl_b32 s67, s64, 4")
    e("s_lshl_b32 s74, s66, 2")
    e("s_add_u32 s67, s67, s74")
    e(f"s_add_u32 s67, s67, {hex(WS_FLAGS + 4096)}")
    e("s_waitcnt vmcnt(0)")
    e("s_mov_b64 exec, 1")
    e("buffer_store_dword v26, v18, s[44:47], s67 offen sc1")
    e("s_mov_b64 exec, -1")
    e("s_waitcnt lgkmcnt(0)")
    e("s_barrier")
    wo_rounds(0, 6)
    e("s_mov_b32 exec_hi, 0")
    e("v_lshlrev_b32 v18, 2, v1")
    e("s_lshl_b32 s67, s48, 7")
    e(f"s_add_u32 s67, s67, {hex(WS_FLAGS + 4096)}")
    e("s_mov_b32 s76, 0x40000")
    e.label("K2_H_SPIN1")
    e("buffer_load_dword v19, v18, s[44:47], s67 offen sc1")
    e("s_waitcnt vmcnt(0)")
    e("v_cmp_ne_u32 vcc, 1, v19")
    e("s_cmp_eq_u64 vcc, 0")
    e("s_cbranch_scc1 K2_H_SPIN1_DONE")
    e("s_sleep 8")
    e("s_sub_u32 s76, s76, 1")
    e("s_cmp_lg_u32 s76, 0")
    e("s_cbranch_scc1 K2_H_SPIN1")
    e.label("K2_H_SPIN1_DONE")
    e("s_mov_b64 exec, -1")
    e("v_lshrrev_b32 v18, 1, v8")
    e(f"s_mov_b32 s67, {8 * 7168}")
    e("v_mul_lo_u32 v18, v18, s67")
    e("v_and_b32 v19, 1, v8")
    e("s_movk_i32 s67, 7168")
    e("v_mad_u32_u24 v18, v19, s67, v18")
    e("v_lshl_add_u32 v18, v9, 3, v18")
    e("s_lshl_b32 s74, s64, 5")
    e(f"s_add_u32 s74, s74, {hex(WS_PG)}")
    for kl in range(2):
        for m in range(2):
            e(f"s_add_u32 s67, s74, {(kl * 2 + m) * 2 * 7168}")
            e(f"buffer_load_dwordx2 {vr(64 + (kl * 2 + m) * 2, 2)}, v18, s[44:47], s67 offen sc1")
    e("v_mov_b32 v41, 0")
    e("v_mov_b32 v42, 0")
    e("v_mov_b32 v43, 0")
    e("s_waitcnt vmcnt(0) lgkmcnt(0)")
    for i in range(4):
        e(f"v_add_f32 v{64 + i}, v{64 + i}, v{68 + i}")
    for rot in (2, 4, 8):
        e("s_nop 0")
        for i in range(4):
            e(f"v_add_f32_dpp v{64 + i}, v{64 + i}, v{64 + i} row_ror:{rot} row_mask:0xf bank_mask:0xf")
    g0, g1, u0, u1 = 64, 65, 66, 67
    e(f"v_cvt_pk_bf16_f32 v24, v{g0}, v{g1}")
    e(f"v_cvt_pk_bf16_f32 v25, v{u0}, v{u1}")
    e(f"v_lshlrev_b32 v{g0}, 16, v24")
    e(f"v_and_b32 v{g1}, 0xffff0000, v24")
    e(f"v_lshlrev_b32 v{u0}, 16, v25")
    e(f"v_and_b32 v{u1}, 0xffff0000, v25")
    e(f"v_mul_f32 v24, {hex(NLOG2E)}, v{g0}")
    e(f"v_mul_f32 v25, {hex(NLOG2E)}, v{g1}")
    e("v_exp_f32 v24, v24")
    e("v_exp_f32 v25, v25")
    e("s_nop 0")
    e("v_add_f32 v24, 1.0, v24")
    e("v_add_f32 v25, 1.0, v25")
    e("v_rcp_f32 v24, v24")
    e("v_rcp_f32 v25, v25")
    e("s_nop 0")
    e(f"v_mul_f32 v{g0}, v24, v{g0}")
    e(f"v_mul_f32 v{g1}, v25, v{g1}")
    e(f"v_cvt_pk_bf16_f32 v24, v{g0}, v{g1}")
    e(f"v_lshlrev_b32 v{g0}, 16, v24")
    e(f"v_and_b32 v{g1}, 0xffff0000, v24")
    e(f"v_mul_f32 v{g0}, v{g0}, v{u0}")
    e(f"v_mul_f32 v{g1}, v{g1}, v{u1}")
    e(f"v_cvt_pk_bf16_f32 v40, v{g0}, v{g1}")
    e("v_lshlrev_b32 v19, 11, v8")
    e("v_lshl_add_u32 v19, v9, 4, v19")
    for ee in range(8):
        mfma16(e, 64 + 4 * ee, DF(ee), 40)
    e("s_lshl_b32 s67, s64, 12")
    e("s_lshl_b32 s74, s66, 9")
    e("s_add_u32 s67, s67, s74")
    e(f"s_add_u32 s67, s67, {hex(WS_YP)}")
    e("s_mov_b32 exec_lo, 0x00030003")
    e("s_mov_b32 exec_hi, 0x00030003")
    e("s_nop 3")
    for ee in range(8):
        e(f"buffer_store_dwordx4 {vr(64 + 4 * ee, 4)}, v19, s[44:47], s67 offen offset:{64 * ee} sc1")
    e("s_lshl_b32 s67, s66, 10")
    e("s_lshl_b32 s74, s64, 2")
    e("s_add_u32 s67, s67, s74")
    e(f"s_add_u32 s67, s67, {hex(WS_FLAGS)}")
    e("s_mov_b64 exec, 1")
    e("v_mov_b32 v18, 0")
    e("s_waitcnt vmcnt(0)")
    e("buffer_store_dword v26, v18, s[44:47], s67 offen sc1")
    e("s_mov_b64 exec, -1")
    e.label("K2_H_NOFFN1")
    stamp(e, 3)
    wo_rounds(6, 16)
    e("s_lshr_b32 s74, s66, 1")
    e("s_lshl_b32 s75, s61, 1")
    e("s_add_u32 s75, s75, s74")
    e("s_lshl_b32 s67, s75, 5")
    e("v_add_u32 v15, s67, v2")
    e("v_lshlrev_b32 v14, 10, v15")
    e("v_lshl_add_u32 v14, v3, 5, v14")
    e("s_lshl_b32 s58, s62, 7")
    e("s_lshl_b32 s67, s77, 6")
    e("s_add_u32 s58, s58, s67")
    e("buffer_load_dwordx4 v[120:123], v14, s[20:23], s58 offen")
    e("buffer_load_dwordx4 v[124:127], v14, s[20:23], s58 offen offset:16")
    e("s_cmp_lg_u32 s66, 0")
    e("s_cbranch_scc1 K2_H_NOSEL")
    for sl in range(2):
        e(f"s_and_b32 s74, s{70 + sl}, 0xffff0000")
        e("s_mov_b32 s76, 0xffff0000")
        e("s_cmp_lt_i32 s74, 0")
        e("s_cselect_b32 s76, 0x80000000, s76")
        e("s_xor_b32 s74, s74, s76")
        e(f"v_mov_b32 v{22 + sl}, s74")
        e(f"v_mul_f32 v{22 + sl}, {hex(NLOG2E)}, v{22 + sl}")
        e(f"v_exp_f32 v{22 + sl}, v{22 + sl}")
        e("s_nop 0")
        e(f"v_add_f32 v{22 + sl}, 1.0, v{22 + sl}")
        e(f"v_rcp_f32 v{22 + sl}, v{22 + sl}")
        e("s_nop 0")
        rbf(e, 22 + sl, 22 + sl)
    e("v_mov_b32 v20, s72")
    e("v_mov_b32 v21, s73")
    e(f"v_mov_b32 v18, {L_SEL}")
    e("ds_write_b128 v18, v[20:23]")
    e.label("K2_H_NOSEL")
    for sl in range(2):
        e(f"s_lshr_b32 s67, s{72 + sl}, 6")
        e("s_cmp_lg_u32 s67, s61")
        e(f"s_cbranch_scc1 K2_H_NOCONS{sl}")
        if XNOFFN:
            e(f"s_branch K2_H_NOCONS{sl}")
        e("s_lshr_b32 s67, s62, 1")
        e("s_lshl_b32 s67, s67, 10")
        e("s_mul_i32 s74, s66, 224")
        e("s_add_u32 s67, s67, s74")
        e(f"s_add_u32 s67, s67, {hex(WS_FLAGS)}")
        e("v_lshlrev_b32 v18, 2, v1")
        e("s_mov_b32 s76, 0x40000")
        e("s_mov_b32 exec_hi, 0x00ffffff")
        e.label(f"K2_H_SPIN2_{sl}")
        e("buffer_load_dword v19, v18, s[44:47], s67 offen sc1")
        e("s_waitcnt vmcnt(0)")
        e("v_cmp_ne_u32 vcc, 1, v19")
        e("s_cmp_eq_u64 vcc, 0")
        e(f"s_cbranch_scc1 K2_H_SPIN2_DONE{sl}")
        e("s_sleep 8")
        e("s_sub_u32 s76, s76, 1")
        e("s_cmp_lg_u32 s76, 0")
        e(f"s_cbranch_scc1 K2_H_SPIN2_{sl}")
        e.label(f"K2_H_SPIN2_DONE{sl}")
        e("s_mov_b64 exec, -1")
        e("v_lshlrev_b32 v18, 12, v9")
        e("v_lshl_add_u32 v18, v8, 4, v18")
        e(f"s_mul_i32 s67, s66, {56 * 4096}")
        e("s_lshl_b32 s74, s62, 8")
        e("s_add_u32 s67, s67, s74")
        e(f"s_add_u32 s67, s67, {hex(WS_YP + sl * 2048)}")
        for i in range(14):
            e(f"buffer_load_dwordx4 {vr(64 + 4 * i, 4)}, v18, s[44:47], s67 offen sc1")
            e("s_add_u32 s67, s67, 16384")
        e("s_waitcnt vmcnt(0)")
        for i in range(1, 14):
            for c in range(4):
                e(f"v_add_f32 v{64 + c}, v{64 + c}, v{64 + 4 * i + c}")
        swap_add(e, 64, 65)
        swap_add(e, 66, 67)
        e("s_nop 1")
        e("v_permlane16_swap_b32 v64, v66")
        e("s_nop 1")
        e("v_add_f32 v64, v64, v66")
        e("v_and_b32 v19, 1, v9")
        e("v_lshrrev_b32 v20, 1, v9")
        e("v_lshl_add_u32 v19, v19, 1, v20")
        e("v_lshl_add_u32 v19, v8, 2, v19")
        e("v_lshlrev_b32 v19, 2, v19")
        e("s_lshl_b32 s67, s66, 8")
        e("v_add_u32 v19, s67, v19")
        e(f"ds_write_b32 v19, v64 offset:{L_YS + sl * 1024}")
        e.label(f"K2_H_NOCONS{sl}")
    e("v_mov_b32 v2, v14")
    e("v_add_u32 v3, s65, v4")
    for r in range(72, 104):
        e(f"v_mov_b32 v{r}, 0")
    stamp(e, 9)
    e("s_waitcnt vmcnt(0) lgkmcnt(0)")
    stamp(e, 8)
    e("s_setprio 0")
    e("s_branch K2_BAR1")

    e.label("K2_H2")
    e("s_lshl_b32 s68, s75, 15")
    e("s_lshl_b32 s67, s77, 14")
    e("s_add_u32 s68, s68, s67")
    e(f"s_add_u32 s68, s68, {hex(WS_OF)}")
    OFR = lambda hd: 8 + hd * 4
    OA = [72, 88]
    G_ = 104
    e("s_mov_b32 s76, 0x10000")
    e("s_mov_b32 s74, 0")
    e("s_mov_b32 s71, s68")
    e.label("K2_H_POLL")
    for src in range(4):
        e(f"s_bitcmp1_b32 s74, {src}")
        e(f"s_cbranch_scc1 K2_H_NL{src}")
        e(f"s_add_u32 s67, s71, {src * 4096}")
        for i in range(4):
            e(f"buffer_load_dwordx4 {vr(OFR(4 * src + i), 4)}, v4, s[44:47], s67 offen offset:{i * 1024} sc1")
        e.label(f"K2_H_NL{src}")
    e.label("K2_H_CHECK")
    e("s_waitcnt vmcnt(0)")
    for src in range(4):
        e(f"s_bitcmp1_b32 s74, {src}")
        e(f"s_cbranch_scc1 K2_H_NC{src}")
        o = OFR(4 * src)
        e(f"v_max3_u32 v6, v{o}, v{o + 1}, v{o + 2}")
        for r in range(o + 3, o + 15, 2):
            e(f"v_max3_u32 v6, v{r}, v{r + 1}, v6")
        e(f"v_max_u32 v6, v{o + 15}, v6")
        e("v_cmp_eq_u32 vcc, -1, v6")
        e("s_cmp_eq_u32 s76, 1")
        e("s_cselect_b64 vcc, 0, vcc")
        e("s_cmp_eq_u64 vcc, 0")
        e(f"s_cbranch_scc0 K2_H_NC{src}")
        for i in range(4):
            for nt in range(2):
                mfma32(e, OA[nt], WOF(4 * src + i, nt), OFR(4 * src + i), OA[nt])
        e(f"s_bitset1_b32 s74, {src}")
        e.label(f"K2_H_NC{src}")
    e("s_sub_u32 s76, s76, 1")
    e("s_and_b32 s67, s76, 1")
    e(f"s_cmp_gt_u32 s76, {0x10000 - 8}")
    e("s_cselect_b32 s67, 0, s67")
    e(f"s_mul_i32 s67, s67, {WS_OF2 - WS_OF}")
    e("s_add_u32 s71, s68, s67")
    e("s_cmp_lg_u32 s74, 15")
    e("s_cbranch_scc1 K2_H_POLL")
    stamp(e, 6)
    e("s_lshl_b32 s67, s66, 12")
    e(f"s_add_u32 s67, s67, {L_REDB}")
    e("v_add_u32 v6, s67, v4")
    e("s_xor_b32 s67, s67, 4096")
    e("v_add_u32 v7, s67, v4")
    for dw in range(8):
        e(f"v_lshlrev_b32 v{8 + 2 * dw}, 16, v{120 + dw}")
        e(f"v_and_b32 v{9 + 2 * dw}, 0xffff0000, v{120 + dw}")
    for i in range(4):
        e(f"ds_write_b128 v6, {vr(OA[1] + 4 * i, 4)} offset:{i * 1024}")
    e("s_waitcnt lgkmcnt(0)")
    e("s_barrier")
    for i in range(4):
        e(f"ds_read_b128 {vr(24 + 4 * i, 4)}, v7 offset:{i * 1024}")
        e(f"ds_read_b128 {vr(G_ + 4 * i, 4)}, v3 offset:{i * 1024}")
    e("s_waitcnt lgkmcnt(0)")
    for r in range(16):
        e(f"v_add_f32 v{24 + r}, v{24 + r}, v{OA[0] + r}")
        e(f"v_fma_f32 v{8 + r}, v{24 + r}, v{G_ + r}, v{8 + r}")
        if r & 1:
            e(f"v_cvt_pk_bf16_f32 v{40 + r // 2}, v{7 + r}, v{8 + r}")
    e("buffer_store_dwordx4 v[40:43], v2, s[40:43], s58 offen")
    e("buffer_store_dwordx4 v[44:47], v2, s[40:43], s58 offen offset:16")
    stamp(e, 7)
    stamp_flush(e, 1, 44, 60)
    e.label("K2_END")
    e("s_endpgm")
    return kn, 256, LDS_SIZE


def kd(name, nv, ns=96):
    return f""".p2align 6
.amdhsa_kernel {name}
  .amdhsa_next_free_vgpr {nv}
  .amdhsa_next_free_sgpr {ns}
  .amdhsa_accum_offset {(nv + 3) // 4 * 4}
  .amdhsa_group_segment_fixed_size 0
  .amdhsa_kernarg_size 104
  .amdhsa_user_sgpr_count 2
  .amdhsa_user_sgpr_kernarg_segment_ptr 1
  .amdhsa_system_sgpr_workgroup_id_x 1
  .amdhsa_float_denorm_mode_32 3
.end_amdhsa_kernel
"""


def main():
    e = Asm()
    k1, nv1, lds1 = gen_k1(e)
    k2, nv2, lds2 = gen_k2(e)
    head = f"""; MQA attention + mixture-of-depths FFN, generated by gen/gen2.py (hand-written generator)
; @launch kernel={k1} grid=(256,1,1) block=(512,1,1) lds={lds1}
; @launch kernel={k2} grid=(256,1,1) block=(512,1,1) lds={lds2}
.amdgcn_target "amdgcn-amd-amdhsa--gfx950"
.text
"""
    tail = '.section .rodata,"a"\n' + kd(k1, nv1) + kd(k2, nv2)
    args = [a for a in sys.argv[1:] if not a.startswith("--")]
    out = args[0] if args else f"cdna_kernels/{NAME}.s"
    with open(out, "w") as f:
        f.write(head + e.text() + tail)


if __name__ == "__main__":
    main()
```

```python
import sys

NAME = "recurrent_scan__grouped_kv_mqa__moe_arch_mod__prompt"

WS_QF = 0x000000
WS_KV = 0x200000
WS_KEYS = 0x220000
WS_STATS = 0x221000
WS_FLAGS = 0x226000
WS_PG = 0x240000
WS_RDY = 0x2B0000
WS_INIT = 0x2B8000
WS_OF = 0x300000
WS_YP = 0x500000
WS_OF2 = 0x600000
WS_PROF = 0x800000
WS_SIZE = 0x900000

QSCALE = 0x3eb8aa3b
NLOG2E = 0xbfb8aa3b
ONES = 0x3f803f80
EPS = 0x3727c5ac
INV512 = 0x3b000000

PROF = "--prof" in sys.argv
XNOFFN = "--xnoffn" in sys.argv
DBGOUT = "--dbgout" in sys.argv
PF1 = "--nopf1" not in sys.argv
PF2 = "--pf2" in sys.argv
PF0 = 0 if "--nopf0" in sys.argv else 4
UNR = 4 if "--unr4" in sys.argv else 2
FFNLIM = 0 if XNOFFN else 28


class Asm:
    def __init__(self):
        self.lines = []
        self.vm = []

    def __call__(self, s):
        self.lines.append("    " + s)

    def label(self, l):
        self.lines.append(l + ":")

    def raw(self, s):
        self.lines.append(s)

    def vmem(self, s, tag=None):
        self(s)
        self.vm.append(tag)
        assert len(self.vm) <= 63, "too many outstanding vmem ops"

    def vwait(self, tag=None):
        if tag is None:
            self("s_waitcnt vmcnt(0)")
            self.vm = []
            return
        idx = max(i for i, t in enumerate(self.vm) if t == tag)
        n = len(self.vm) - 1 - idx
        self(f"s_waitcnt vmcnt({n})")
        self.vm = self.vm[idx + 1:]

    def text(self):
        return "\n".join(self.lines) + "\n"


def stamp(e, i):
    if not PROF:
        return
    e("s_memrealtime s[88:89]")
    e("s_waitcnt lgkmcnt(0)")
    e(f"s_mov_b32 s{90 + i}, s88")


def cstamp(e, i):
    if not PROF:
        return
    e("s_memtime s[88:89]")
    e("s_waitcnt lgkmcnt(0)")
    e(f"s_mov_b32 s{90 + i}, s88")


def stamp_init(e):
    if PROF:
        for i in range(12):
            e(f"s_mov_b32 s{90 + i}, 0")
    stamp(e, 0)


def stamp_flush(e, kidx, wsrd, wave_sgpr):
    if not PROF:
        return
    stamp(e, 11)
    e("s_mov_b64 exec, 1")
    e("s_lshl_b32 s88, s2, 3")
    e(f"s_add_u32 s88, s88, s{wave_sgpr}")
    e("s_lshl_b32 s88, s88, 6")
    e(f"s_add_u32 s88, s88, {hex(WS_PROF + kidx * 320 * 8 * 64)}")
    e("v_mov_b32 v220, 0")
    for b in range(3):
        for i in range(4):
            e(f"v_mov_b32 v{216 + i}, s{90 + 4 * b + i}")
        e(f"buffer_store_dwordx4 v[216:219], v220, s[{wsrd}:{wsrd + 3}], s88 offen offset:{16 * b}")
        e("s_nop 1")


def vr(a, n=1):
    return f"v{a}" if n == 1 else f"v[{a}:{a + n - 1}]"


def srd(e, d, base, size):
    e(f"s_mov_b32 s{d}, s{base}")
    e(f"s_and_b32 s{d + 1}, s{base + 1}, 0xffff")
    e(f"s_mov_b32 s{d + 2}, {hex(size)}")
    e(f"s_mov_b32 s{d + 3}, 0x00020000")


def rbf(e, d, s):
    e(f"v_cvt_pk_bf16_f32 v{d}, v{s}, v{s}")
    e(f"v_and_b32 v{d}, 0xffff0000, v{d}")


def mfma32(e, d, a, b, c=None):
    cs = "0" if c is None else vr(c, 16)
    e(f"v_mfma_f32_32x32x16_bf16 {vr(d, 16)}, {vr(a, 4)}, {vr(b, 4)}, {cs}")


def mfma16(e, d, a, b, c=None):
    cs = "0" if c is None else vr(c, 4)
    e(f"v_mfma_f32_16x16x32_bf16 {vr(d, 4)}, {vr(a, 4)}, {vr(b, 4)}, {cs}")


def dpp_umax_reduce(e, v):
    for mod in ("row_shr:1 row_mask:0xf bank_mask:0xf bound_ctrl:0",
                "row_shr:2 row_mask:0xf bank_mask:0xf bound_ctrl:0",
                "row_shr:4 row_mask:0xf bank_mask:0xf bound_ctrl:0",
                "row_shr:8 row_mask:0xf bank_mask:0xf bound_ctrl:0",
                "row_bcast:15 row_mask:0xa bank_mask:0xf",
                "row_bcast:31 row_mask:0xc bank_mask:0xf"):
        e("s_nop 1")
        e(f"v_max_u32_dpp v{v}, v{v}, v{v} {mod}")
    e("s_nop 1")


def token_stats(e, sx, sq, mb, db, inv, t0, t1):
    e(f"v_mul_f32 v{t0}, {hex(INV512)}, v{sx}")
    e(f"v_mul_f32 v{t1}, {hex(INV512)}, v{sq}")
    rbf(e, mb, t0)
    e(f"v_fma_f32 v{t1}, -v{t0}, v{t0}, v{t1}")
    e(f"v_max_f32 v{t1}, 0, v{t1}")
    rbf(e, t1, t1)
    e(f"v_add_f32 v{t1}, {hex(EPS)}, v{t1}")
    rbf(e, t1, t1)
    e(f"v_sqrt_f32 v{t1}, v{t1}")
    e("s_nop 0")
    rbf(e, db, t1)
    e(f"v_rcp_f32 v{inv}, v{db}")
    e("s_nop 0")


def swap_add(e, a, b):
    e("s_nop 1")
    e(f"v_permlane32_swap_b32 v{a}, v{b}")
    e("s_nop 1")
    e(f"v_add_f32 v{a}, v{a}, v{b}")


def sum4(e, d, a, b, c, dd):
    e(f"v_add_f32 v{a}, v{a}, v{b}")
    e(f"v_add_f32 v{c}, v{c}, v{dd}")
    e(f"v_add_f32 v{d}, v{a}, v{c}")


def gen_k(e):
    kn = NAME + "_kernel"
    L_XS = 0
    L_YS = 512
    L_SEL = L_YS + 2048
    L_CNT = L_SEL + 16
    L_MX = L_CNT + 16
    L_TS = 6912
    L_STG = 8192
    assert L_MX + 4096 <= L_TS and L_TS + 512 <= L_STG
    L_KV = 32768
    L_REDB = 32768
    LDS_SIZE = 163840
    O_KVW = L_STG
    O_ST1 = 24576
    O_ST2 = 28672
    P_PV, P_QF = 12288, 14336

    e.raw(".p2align 8")
    e.raw(f".globl {kn}")
    e.raw(f".type {kn},@function")
    e.label(kn)
    e("s_cmp_ge_u32 s2, 256")
    e("s_cbranch_scc1 K2_END")
    stamp_init(e)
    e("s_load_dwordx16 s[64:79], s[0:1], 0")
    e("s_load_dwordx8 s[80:87], s[0:1], 64")
    e("s_load_dwordx2 s[48:49], s[0:1], 96")
    e("v_and_b32 v1, 63, v0")
    e("v_lshrrev_b32 v6, 6, v0")
    e("v_and_b32 v2, 31, v1")
    e("v_lshrrev_b32 v3, 5, v1")
    e("v_readfirstlane_b32 s60, v6")
    e("v_lshlrev_b32 v4, 4, v1")
    e("s_and_b32 s56, s2, 7")
    e("s_lshr_b32 s57, s2, 3")
    e("s_getpc_b64 s[52:53]")
    e("s_and_b32 s58, s57, 3")
    e("s_lshl_b32 s58, s58, 13")
    e("s_add_u32 s58, s58, 1024")
    e("v_lshl_add_u32 v6, v0, 4, s58")
    e("global_load_dwordx4 v[252:255], v6, s[52:53]")
    e("s_lshr_b32 s58, s57, 3")
    e("s_lshl_b32 s61, s56, 2")
    e("s_add_u32 s61, s61, s58")
    e("s_and_b32 s62, s57, 7")
    e("s_and_b32 s3, s60, 3")
    e("s_and_b32 s18, s62, 1")
    e("s_lshr_b32 s19, s60, 2")
    e("s_mov_b32 s63, 0")
    e("s_mov_b32 s59, 0")
    e("v_and_b32 v5, 15, v2")
    e("v_lshlrev_b32 v5, 4, v5")
    e("v_lshl_add_u32 v5, v3, 8, v5")
    e("v_add_u32 v5, 1024, v5")
    e("s_waitcnt lgkmcnt(0)")
    srd(e, 20, 64, 2048 * 512 * 2)
    srd(e, 4, 66, 512 * 512 * 2)
    srd(e, 24, 72, 512 * 512 * 2)
    srd(e, 8, 76, 512 * 2)
    srd(e, 28, 78, 512 * 1792 * 2)
    srd(e, 32, 80, 512 * 1792 * 2)
    srd(e, 36, 82, 512 * 1792 * 2)
    srd(e, 40, 84, 2048 * 512 * 2)
    srd(e, 44, 48, WS_SIZE)
    e("s_mov_b32 s16, s86")
    e("s_mov_b32 s17, s87")
    e("s_cmp_lt_u32 s62, 2")
    e("s_cselect_b32 s12, s68, s70")
    e("s_cselect_b32 s13, s69, s71")
    e("s_and_b32 s13, s13, 0xffff")
    e(f"s_mov_b32 s14, {hex(512 * 16 * 2)}")
    e("s_mov_b32 s15, 0x00020000")
    stamp(e, 1)
    e("s_lshl_b32 s64, s3, 15")
    e(f"s_add_u32 s64, s64, {L_KV}")
    e("s_lshl_b32 s65, s3, 12")
    e(f"s_add_u32 s65, s65, {O_KVW}")
    e("s_cmp_lt_u32 s60, 4")
    e("s_cbranch_scc1 P1_C")

    e("s_add_u32 s67, s2, s3")
    e("s_cmp_lg_u32 s67, 0")
    e("s_cbranch_scc1 P1_NONCE0")
    e("s_memrealtime s[70:71]")
    e("v_mov_b32 v6, 0")
    e("s_waitcnt lgkmcnt(0)")
    e("s_or_b32 s70, s70, 1")
    e("v_mov_b32 v7, s70")
    e("s_mov_b64 exec, 1")
    e("global_store_dword v6, v7, s[16:17] sc1")
    e("s_mov_b64 exec, -1")
    e.label("P1_NONCE0")
    e("v_lshrrev_b32 v6, 4, v1")
    e("v_and_b32 v7, 15, v1")
    e("v_xor_b32 v7, v7, v6")
    for v in range(4):
        e(f"v_xor_b32 v{8 + v}, {4 * v}, v7")
        e(f"v_lshlrev_b32 v{8 + v}, 4, v{8 + v}")
        e(f"v_lshl_add_u32 v{8 + v}, v6, 10, v{8 + v}")
    e("v_lshrrev_b32 v6, 3, v1")
    e("v_and_b32 v12, 7, v1")
    e("v_lshlrev_b32 v12, 4, v12")
    e("v_lshl_add_u32 v12, v6, 10, v12")
    e("s_lshl_b32 s66, s61, 16")
    e("s_lshl_b32 s67, s3, 8")
    e("s_add_u32 s66, s66, s67")
    e("s_lshl_b32 s67, s18, 15")
    e("s_add_u32 s72, s66, s67")
    e("s_xor_b32 s67, s67, 32768")
    e("s_add_u32 s73, s66, s67")
    e("s_lshl_b32 s66, s3, 17")
    e("s_lshl_b32 s67, s62, 7")
    e("s_add_u32 s66, s66, s67")
    e("s_cmp_ge_u32 s62, 4")
    e("s_cbranch_scc1 P1_NOKVDMA")
    e("s_lshl_b32 s67, s3, 12")
    e("s_mov_b32 m0, s65")
    e("s_nop 0")
    for i in range(4):
        e(f"buffer_load_dwordx4 v4, s[12:15], s67 offen offset:{i * 1024} lds")
    e.label("P1_NOKVDMA")
    for n in range(16):
        if n % 4 == 0:
            e(f"s_add_u32 m0, s64, {(n >> 2) * 4096}")
        e(f"s_add_u32 s67, s{72 + (n >> 3)}, {(n & 7) * 4096 - (n & 3) * 1024}")
        e(f"buffer_load_dwordx4 v{8 + (n & 3)}, s[20:23], s67 offen offset:{(n & 3) * 1024} lds")

    def dma_w(kc):
        e(f"s_add_u32 m0, s64, {16384 + kc * 4096}")
        for i in range(4):
            n = kc * 4 + i
            e(f"s_add_u32 s67, s66, {n * 8192 - i * 1024}")
            e(f"buffer_load_dwordx4 v12, s[4:7], s67 offen offset:{i * 1024} lds")
    dma_w(0)
    dma_w(1)
    e("v_mov_b32 v6, 0")
    e("v_mov_b32 v7, 0")
    e(f"v_mov_b32 v20, {L_CNT}")
    e("ds_write_b64 v20, v[6:7]")
    e("s_waitcnt vmcnt(8) lgkmcnt(0)")
    e("s_barrier")
    dma_w(2)
    dma_w(3)
    e("s_barrier")
    e("s_waitcnt vmcnt(0) lgkmcnt(0)")
    e("s_barrier")
    stamp(e, 2)
    e(f"v_mov_b32 v20, {L_CNT}")
    e("s_mov_b32 s76, 0x80000")
    e("s_cmp_lg_u32 s3, 0")
    e("s_cbranch_scc1 P1_L_SPINL")
    e("v_mov_b32 v6, 0")
    e.label("P1_L_SPINN")
    e("global_load_dword v7, v6, s[16:17] sc1")
    e("s_waitcnt vmcnt(0)")
    e("v_readfirstlane_b32 s75, v7")
    e("s_nop 3")
    e("s_cmp_lg_u32 s75, 0")
    e("s_cbranch_scc1 P1_L_GOTN")
    e("s_sleep 16")
    e("s_sub_u32 s76, s76, 1")
    e("s_cmp_lg_u32 s76, 0")
    e("s_cbranch_scc1 P1_L_SPINN")
    e.label("P1_L_GOTN")
    e("s_and_b32 s67, s2, 31")
    e("s_lshl_b32 s67, s67, 10")
    e(f"s_add_u32 s67, s67, {hex(WS_RDY)}")
    e.label("P1_L_SPING")
    e("buffer_load_dwordx4 v[8:11], v4, s[44:47], s67 offen sc1")
    e("s_waitcnt vmcnt(0)")
    e("v_xor_b32 v8, v8, v7")
    e("v_xor_b32 v9, v9, v7")
    e("v_xor_b32 v10, v10, v7")
    e("v_xor_b32 v11, v11, v7")
    e("v_or3_b32 v8, v8, v9, v10")
    e("v_or_b32 v8, v8, v11")
    e("v_cmp_ne_u32 vcc, 0, v8")
    e("s_cmp_eq_u64 vcc, 0")
    e("s_cbranch_scc1 P1_L_GO")
    e("s_sleep 4")
    e("s_sub_u32 s76, s76, 1")
    e("s_cmp_lg_u32 s76, 0")
    e("s_cbranch_scc1 P1_L_SPING")
    e.label("P1_L_GO")
    e("ds_write_b32 v20, v7")
    e("s_mov_b32 s67, s75")
    e("s_branch P1_L_KV")
    e.label("P1_L_SPINL")
    e("ds_read_b32 v8, v20")
    e("s_waitcnt lgkmcnt(0)")
    e("v_readfirstlane_b32 s67, v8")
    e("s_nop 3")
    e("s_cmp_lg_u32 s67, 0")
    e("s_cbranch_scc1 P1_L_KV")
    e("s_sleep 1")
    e("s_branch P1_L_SPINL")
    e.label("P1_L_KV")
    e("s_mov_b32 s80, s67")
    stamp(e, 10)
    e("s_lshl_b32 s75, s3, 15")
    e(f"s_add_u32 s75, s75, {hex(WS_KV)}")
    for n in range(12):
        if n % 4 == 0:
            e(f"s_add_u32 m0, s64, {n * 1024}")
            e(f"s_add_u32 s67, s75, {n * 1024}")
        e(f"buffer_load_dwordx4 v4, s[44:47], s67 offen offset:{(n & 3) * 1024} sc1 lds")
    e("s_branch P1_B4")

    e.label("P1_C")
    WR = lambda ks: 200 + 4 * ks
    e(f"v_mov_b32 v47, {hex(ONES)}")
    e("v_lshlrev_b32 v13, 4, v3")
    e("s_lshl_b32 s67, s3, 8")
    e("s_cmp_lg_u32 s62, 4")
    e("s_cbranch_scc1 P1_NOWR")
    for ks in range(8):
        e(f"buffer_load_dwordx4 {vr(WR(ks), 4)}, v13, s[8:11], s67 offen offset:{32 * ks}")
    e.label("P1_NOWR")
    e("v_and_b32 v6, 15, v2")
    e("v_xor_b32 v6, v6, v3")
    e("v_lshlrev_b32 v7, 8, v2")
    e("v_add_u32 v7, s64, v7")
    for ks in range(8):
        e(f"v_xor_b32 v{24 + ks}, {2 * ks}, v6")
        e(f"v_lshl_add_u32 v{24 + ks}, v{24 + ks}, 4, v7")
    e("v_bfe_u32 v6, v1, 2, 2")
    e("v_lshl_add_u32 v6, v3, 3, v6")
    e("v_and_b32 v7, 1, v1")
    e("v_bfe_u32 v15, v1, 1, 1")
    e("v_lshl_add_u32 v7, v7, 1, v15")
    e("v_bfe_u32 v15, v1, 4, 1")
    e("v_lshlrev_b32 v20, 7, v6")
    e("v_lshl_add_u32 v20, v15, 5, v20")
    e("v_lshl_add_u32 v20, v7, 3, v20")
    e("v_add_u32 v20, s64, v20")
    e("v_lshlrev_b32 v6, 5, v6")
    e("v_add_u32 v6, s65, v6")
    e("v_lshl_add_u32 v21, v7, 3, v6")
    e("v_and_b32 v22, 3, v1")
    e("v_lshl_add_u32 v22, v22, 3, v6")
    e("s_cmp_lt_u32 s62, 2")
    e("s_cbranch_scc1 P1_KADDR")
    e("v_mov_b32 v21, v22")
    e.label("P1_KADDR")
    SX, SQ, CS = [32, 33], [34, 35], [36, 37]
    SR, CSR, CSK = [38, 39], 40, 41
    for r in range(32, 42):
        e(f"v_mov_b32 v{r}, 0")
    XF = lambda ks, tt: 48 + (ks * 2 + tt) * 4
    QA = lambda tt, ct: 112 + (tt * 2 + ct) * 16
    WF = lambda ks, ct: 176 + (ks * 2 + ct) * 4
    KFR = lambda ks: 200 + 4 * ks
    AK = 232
    e("s_waitcnt vmcnt(0)")
    e("s_barrier")
    stamp(e, 10)
    e("v_mov_b32 v6, 0")
    e("global_load_dword v46, v6, s[16:17] sc1")
    for ks in range(8):
        for tt in range(2):
            e(f"ds_read_b128 {vr(XF(ks, tt), 4)}, v{24 + ks} offset:{tt * 8192}")
        if ks >= 5:
            e("s_waitcnt lgkmcnt(10)")
    e("s_cmp_ge_u32 s62, 4")
    e("s_cbranch_scc1 P1_NOKF")
    for ks in range(8):
        e("s_waitcnt lgkmcnt(12)")
        for u in range(2):
            e(f"ds_read_b64_tr_b16 {vr(KFR(ks) + 2 * u, 2)}, v21 offset:{(16 * ks + 4 * u) * 32}")
    e.label("P1_NOKF")
    e("s_waitcnt lgkmcnt(0)")
    for ks in range(8):
        for c in range(4):
            for tt in range(2):
                x = XF(ks, tt) + c
                e(f"v_dot2_f32_bf16 v{SX[tt]}, v{x}, v47, v{SX[tt]}")
                e(f"v_dot2_f32_bf16 v{SQ[tt]}, v{x}, v{x}, v{SQ[tt]}")
    e("s_cmp_gt_u32 s62, 4")
    e("s_cbranch_scc1 P1_XDONE")
    e("s_cmp_eq_u32 s62, 4")
    e("s_cbranch_scc1 P1_XR")
    for ks in range(8):
        for c in range(4):
            e(f"v_dot2_f32_bf16 v{CSK if c & 1 else CSR}, v{KFR(ks) + c}, v47, v{CSK if c & 1 else CSR}")
    e("s_nop 2")
    e(f"v_add_f32 v{CSK}, v{CSK}, v{CSR}")
    e("s_cmp_lt_u32 s62, 2")
    e("s_cbranch_scc1 P1_XK")
    for ks in range(8):
        mfma32(e, AK, XF(ks, 0), KFR(ks), None if ks == 0 else AK)
    e("s_branch P1_XDONE")
    e.label("P1_XK")
    for ks in range(8):
        mfma32(e, AK, KFR(ks), XF(ks, 0), None if ks == 0 else AK)
    e("s_branch P1_XDONE")
    e.label("P1_XR")
    for ks in range(8):
        for c in range(4):
            e(f"v_dot2_f32_bf16 v{SR[0]}, v{XF(ks, 0) + c}, v{WR(ks) + c}, v{SR[0]}")
            e(f"v_dot2_f32_bf16 v{SR[1]}, v{XF(ks, 1) + c}, v{WR(ks) + c}, v{SR[1]}")
            e(f"v_dot2_f32_bf16 v{CSR}, v{WR(ks) + c}, v47, v{CSR}")
    e.label("P1_XDONE")
    e("s_nop 1")
    swap_add(e, SX[0], SX[1])
    swap_add(e, SQ[0], SQ[1])
    swap_add(e, SR[0], SR[1])
    swap_add(e, CSR, CSK)
    e("s_lshl_b32 s67, s3, 10")
    e("v_lshl_add_u32 v6, v1, 2, s67")
    for q, r in enumerate((32, 34, 38, 40)):
        e(f"ds_write_b32 v6, v{r} offset:{O_ST1 + q * 256}")
    e("s_cmp_ge_u32 s62, 4")
    e("s_cbranch_scc1 P1_NOAKW")
    e("v_add_u32 v7, s65, v4")
    for rq in range(4):
        e(f"ds_write_b128 v7, {vr(AK + 4 * rq, 4)} offset:{rq * 1024}")
    e.label("P1_NOAKW")
    e("s_waitcnt lgkmcnt(0)")
    e("s_barrier")
    e("s_cmp_ge_u32 s3, 2")
    e("s_cbranch_scc1 P1_C_B3")
    e("v_lshlrev_b32 v6, 2, v1")
    for q in range(4):
        for wp in range(4):
            e(f"ds_read_b32 v{112 + q * 4 + wp}, v6 offset:{O_ST1 + wp * 1024 + q * 256}")
        if q == 2:
            e("s_waitcnt lgkmcnt(4)")
    e("s_waitcnt lgkmcnt(0)")
    for q in range(4):
        b = 112 + q * 4
        sum4(e, b, b, b + 1, b + 2, b + 3)
    MB, DB, INV = 128, 129, 130
    token_stats(e, 112, 116, MB, DB, INV, 131, 132)
    e("s_cmp_eq_u32 s3, 0")
    e("s_cbranch_scc1 P1_ROLE")
    e("s_lshl_b32 s67, s18, 5")
    e("v_xor_b32 v6, s67, v1")
    e("v_lshlrev_b32 v6, 3, v6")
    e(f"v_mov_b32 v{DB}, v{INV}")
    e(f"ds_write_b64 v6, v[{MB}:{DB}] offset:{L_TS}")
    e("s_branch P1_C_B3")
    e.label("P1_ROLE")
    PVB = L_KV + P_PV
    e("s_cmp_gt_u32 s62, 4")
    e("s_cbranch_scc1 P1_C_FLAG")
    e("s_cmp_eq_u32 s62, 4")
    e("s_cbranch_scc1 P1_ROUTER")
    e("v_lshlrev_b32 v10, 2, v1")
    e(f"ds_write_b32 v10, v{MB} offset:{PVB + 256}")
    e(f"ds_write_b32 v10, v{INV} offset:{PVB + 512}")
    e(f"ds_write_b32 v10, v124 offset:{PVB + 768}")
    e("s_lshl_b32 s70, s61, 1")
    e("s_add_u32 s70, s70, s18")
    e("s_lshl_b32 s70, s70, 11")
    e(f"s_add_u32 s70, s70, {hex(WS_KV)}")
    e("v_lshlrev_b32 v11, 4, v3")
    e("v_lshlrev_b32 v13, 2, v2")
    e("s_cmp_lt_u32 s62, 2")
    e("s_cbranch_scc1 P1_KV_K")
    for wp in range(4):
        for rq in range(4):
            e(f"ds_read_b128 {vr(136 + (wp * 4 + rq) * 4, 4)}, v4 offset:{O_KVW + wp * 4096 + rq * 1024}")
        if wp >= 1:
            e("s_waitcnt lgkmcnt(6)")
    for g in range(4):
        e(f"ds_read_b128 {vr(200 + 4 * g, 4)}, v11 offset:{PVB + 256 + 32 * g}")
        e(f"ds_read_b128 {vr(216 + 4 * g, 4)}, v11 offset:{PVB + 512 + 32 * g}")
    e(f"ds_read_b32 v133, v13 offset:{PVB + 768 + 128}")
    e("v_lshlrev_b32 v10, 4, v2")
    e("v_lshl_add_u32 v10, v3, 8, v10")
    e("s_waitcnt lgkmcnt(0)")
    for r in range(16):
        a = 136 + r
        sum4(e, a, a, a + 16, a + 32, a + 48)
        e(f"v_fma_f32 v{a}, -v{200 + r}, v133, v{a}")
        e(f"v_mul_f32 v{a}, v{216 + r}, v{a}")
        if r & 1:
            e(f"v_cvt_pk_bf16_f32 v{232 + r // 2}, v{a - 1}, v{a}")
    e("s_mov_b32 exec_lo, 0x0000ffff")
    e("s_mov_b32 exec_hi, 0x0000ffff")
    e("buffer_store_dwordx4 v[232:235], v10, s[44:47], s70 offen offset:1024 sc1")
    e("buffer_store_dwordx4 v[236:239], v10, s[44:47], s70 offen offset:1536 sc1")
    e("s_mov_b64 exec, -1")
    e("s_branch P1_C_FLAG")
    e.label("P1_KV_K")
    for wp in range(4):
        for rr in range(2):
            e(f"ds_read_b128 {vr(136 + (wp * 2 + rr) * 4, 4)}, v4 offset:{O_KVW + wp * 4096 + rr * 1024}")
    for rr in range(2):
        e(f"ds_read_b128 {vr(200 + rr * 4, 4)}, v11 offset:{PVB + 768 + 128 + rr * 32}")
    e(f"ds_read_b32 v133, v13 offset:{PVB + 256}")
    e(f"ds_read_b32 v134, v13 offset:{PVB + 512}")
    e("s_waitcnt lgkmcnt(0)")
    for i in range(8):
        a = 136 + i
        sum4(e, a, a, a + 8, a + 16, a + 24)
        e(f"v_fma_f32 v{a}, -v133, v{200 + i}, v{a}")
        e(f"v_mul_f32 v{a}, v134, v{a}")
        if i & 1:
            e(f"v_cvt_pk_bf16_f32 v{232 + i // 2}, v{a - 1}, v{a}")
    e("buffer_store_dwordx4 v[232:235], v4, s[44:47], s70 offen sc1")
    e("s_branch P1_C_FLAG")
    e.label("P1_ROUTER")
    e("v_readlane_b32 s67, v124, 0")
    e("s_nop 1")
    e(f"v_mul_f32 v8, s67, v{MB}")
    e("v_sub_f32 v120, v120, v8")
    e(f"v_mul_f32 v120, v{INV}, v120")
    rbf(e, 120, 120)
    e("v_ashrrev_i32 v8, 31, v120")
    e("v_or_b32 v8, 0x80000000, v8")
    e("v_xor_b32 v120, v120, v8")
    e("v_and_b32 v120, 0xffff0000, v120")
    e("s_lshl_b32 s67, s61, 6")
    e("v_add_u32 v9, s67, v1")
    e("v_sub_u32 v8, 0xffff, v9")
    e("v_or_b32 v120, v120, v8")
    e("v_lshlrev_b32 v9, 3, v9")
    e(f"s_mov_b32 s67, {hex(WS_STATS)}")
    e(f"buffer_store_dwordx2 v[{MB}:{DB}], v9, s[44:47], s67 offen sc1")
    e("v_mov_b32 v10, v120")
    dpp_umax_reduce(e, 10)
    e("v_readlane_b32 s70, v10, 63")
    e("s_nop 1")
    e("v_cmp_ne_u32 vcc, s70, v120")
    e("s_nop 1")
    e("v_cndmask_b32 v10, 0, v120, vcc")
    dpp_umax_reduce(e, 10)
    e("v_readlane_b32 s71, v10, 63")
    e("s_nop 1")
    e("v_mov_b32 v12, s70")
    e("v_mov_b32 v13, s71")
    e("s_lshl_b32 s67, s61, 3")
    e(f"s_add_u32 s67, s67, {hex(WS_KEYS)}")
    e("v_mov_b32 v8, 0")
    e("s_mov_b64 exec, 1")
    e("buffer_store_dwordx2 v[12:13], v8, s[44:47], s67 offen sc1")
    e("s_mov_b64 exec, -1")
    e.label("P1_C_FLAG")
    e("s_mov_b32 s76, 0x80000")
    e("v_mov_b32 v6, 0")
    e.label("P1_C_SPINN")
    e("s_waitcnt vmcnt(0)")
    e("v_readfirstlane_b32 s75, v46")
    e("s_nop 3")
    e("s_cmp_lg_u32 s75, 0")
    e("s_cbranch_scc1 P1_C_GOTN")
    e("s_sleep 16")
    e("global_load_dword v46, v6, s[16:17] sc1")
    e("s_sub_u32 s76, s76, 1")
    e("s_cmp_lg_u32 s76, 0")
    e("s_cbranch_scc1 P1_C_SPINN")
    e.label("P1_C_GOTN")
    e("v_lshlrev_b32 v6, 10, v1")
    e("s_lshl_b32 s67, s2, 2")
    e(f"s_add_u32 s67, s67, {hex(WS_RDY)}")
    e("s_mov_b32 exec_hi, 0")
    e("buffer_store_dword v46, v6, s[44:47], s67 offen sc1")
    e("s_mov_b64 exec, -1")
    e.label("P1_C_B3")
    e("s_waitcnt lgkmcnt(0)")
    e("s_barrier")
    stamp(e, 6)
    for ks in range(8):
        for ct in range(2):
            for u in range(2):
                e(f"ds_read_b64_tr_b16 {vr(WF(ks, ct) + 2 * u, 2)}, v20 offset:{16384 + (16 * ks + 4 * u) * 128 + 64 * ct}")
        if ks >= 2:
            e("s_waitcnt lgkmcnt(8)")
            for c in range(4):
                for ct in range(2):
                    e(f"v_dot2_f32_bf16 v{CS[ct]}, v{WF(ks - 2, ct) + c}, v47, v{CS[ct]}")
    e("s_waitcnt lgkmcnt(0)")
    for ks in range(6, 8):
        for c in range(4):
            for ct in range(2):
                e(f"v_dot2_f32_bf16 v{CS[ct]}, v{WF(ks, ct) + c}, v47, v{CS[ct]}")
    for ks in range(8):
        for tt in range(2):
            for ct in range(2):
                mfma32(e, QA(tt, ct), WF(ks, ct), XF(ks, tt), None if ks == 0 else QA(tt, ct))
    swap_add(e, CS[0], CS[1])
    e("s_lshl_b32 s67, s3, 8")
    e("v_lshl_add_u32 v6, v1, 2, s67")
    e(f"ds_write_b32 v6, v{CS[0]} offset:{O_ST2}")
    e("v_add_u32 v7, s64, v4")
    e("s_nop 3")
    for tt in range(2):
        for ct in range(2):
            for rq in range(4):
                e(f"ds_write_b128 v7, {vr(QA(tt, ct) + 4 * rq, 4)} offset:{16384 + ((tt * 2 + ct) * 4 + rq) * 1024}")
            e("s_waitcnt lgkmcnt(8)")
    e("s_waitcnt lgkmcnt(0)")
    stamp(e, 7)
    e.label("P1_B4")
    e("s_barrier")
    e("s_lshr_b32 s68, s3, 1")
    e("s_and_b32 s69, s3, 1")
    e("v_lshlrev_b32 v6, 2, v1")
    for wp in range(4):
        e(f"ds_read_b32 v{44 + wp}, v6 offset:{O_ST2 + wp * 256}")
    e("s_xor_b32 s67, s68, s18")
    e("s_lshl_b32 s67, s67, 8")
    e("v_lshl_add_u32 v7, v2, 3, s67")
    e(f"ds_read_b64 v[68:69], v7 offset:{L_TS}")
    e("s_lshl_b32 s67, s3, 12")
    e("s_lshl_b32 s70, s19, 11")
    e("s_add_u32 s67, s67, s70")
    e(f"s_add_u32 s67, s67, {L_KV + 16384}")
    e("v_add_u32 v8, s67, v4")
    e("v_add_u32 v9, 65536, v8")
    AR = lambda wp, rr: 96 + (wp * 2 + rr) * 4
    for wp in range(4):
        a = 8 if wp < 2 else 9
        for rr in range(2):
            e(f"ds_read_b128 {vr(AR(wp, rr), 4)}, v{a} offset:{(wp & 1) * 32768 + rr * 1024}")
    e("s_lshl_b32 s70, s19, 10")
    e("s_add_u32 s71, s64, s70")
    e("v_lshl_add_u32 v10, v1, 2, s71")
    e("s_lshl_b32 s67, s69, 7")
    e("s_lshl_b32 s70, s19, 6")
    e("s_add_u32 s67, s67, s70")
    e("s_add_u32 s67, s67, s71")
    e("v_lshl_add_u32 v11, v3, 4, s67")
    e("s_waitcnt lgkmcnt(9)")
    sum4(e, 44, 44, 45, 46, 48 - 1)
    e(f"ds_write_b32 v10, v44 offset:{P_PV}")
    for g in range(2):
        e(f"ds_read_b128 {vr(72 + 4 * g, 4)}, v11 offset:{P_PV + 32 * g}")
    e("s_waitcnt lgkmcnt(3)")
    e(f"v_mul_f32 v69, {hex(QSCALE)}, v69")
    for r in range(8):
        a = 96 + r
        sum4(e, a, a, a + 8, a + 16, a + 24)
    e("v_add_u32 v10, s71, v4")
    e("s_waitcnt lgkmcnt(0)")
    for r in range(8):
        a = 96 + r
        e(f"v_fma_f32 v{a}, -v68, v{72 + r}, v{a}")
        e(f"v_mul_f32 v{a}, v69, v{a}")
        if r & 1:
            e(f"v_cvt_pk_bf16_f32 v{88 + r // 2}, v{a - 1}, v{a}")
    e(f"ds_write_b128 v10, v[88:91] offset:{P_QF}")
    e("s_waitcnt vmcnt(0) lgkmcnt(0)")
    e("s_barrier")
    e("s_cmp_ge_u32 s60, 4")
    e("s_cbranch_scc1 K2_H")

    ACC = lambda q: 128 + 16 * q
    Q = lambda q: 96 + 4 * q
    S = [64, 80]
    P = 56
    KB = [8, 12]
    VB = [24, 32]
    NB = 2
    e("s_lshl_b32 s68, s60, 15")
    e(f"s_add_u32 s68, s68, {hex(WS_KV)}")
    e("s_mov_b32 s50, 0x0000ffff")
    e("s_mov_b32 s51, 0x0000ffff")
    e("s_lshl_b32 s67, s18, 16")
    e(f"s_add_u32 s70, s67, {L_KV + P_QF}")
    e("v_add_u32 v6, s70, v4")
    e("s_xor_b32 s67, s67, 65536")
    e(f"s_add_u32 s70, s67, {L_KV + P_QF}")
    e("v_add_u32 v7, s70, v4")
    for q in range(8):
        hl, tt = q >> 1, q & 1
        e(f"ds_read_b128 {vr(Q(q), 4)}, v{6 + tt} offset:{(hl >> 1) * 32768 + (hl & 1) * 1024}")

    def init_v():
        e("v_and_b32 v6, 27, v2")
        e("v_cmp_eq_u32 vcc, 16, v6")
        e(f"v_mov_b32 v7, {hex(ONES)}")
        e("s_nop 0")
        e("v_cndmask_b32 v7, 0, v7, vcc")
        for r in range(24, 40):
            e(f"v_mov_b32 v{r}, v7")

    def load_q():
        pass

    def load_kv(buf, soff, imm=0, tag="kv"):
        e.vmem(f"buffer_load_dwordx4 {vr(KB[buf], 4)}, v4, s[44:47], {soff} offen offset:{imm} sc1", tag + "k")
        e("s_mov_b64 exec, s[50:51]")
        e.vmem(f"buffer_load_dwordx4 {vr(VB[buf], 4)}, v5, s[44:47], {soff} offen offset:{imm} sc1", tag + "v")
        e.vmem(f"buffer_load_dwordx4 {vr(VB[buf] + 4, 4)}, v5, s[44:47], {soff} offen offset:{imm + 512} sc1", tag + "v")
        e("s_mov_b64 exec, -1")

    def read_kv(buf, imm):
        e(f"ds_read_b128 {vr(KB[buf], 4)}, v40 offset:{imm}")
        e("s_mov_b64 exec, s[50:51]")
        e(f"ds_read_b128 {vr(VB[buf], 4)}, v41 offset:{imm}")
        e(f"ds_read_b128 {vr(VB[buf] + 4, 4)}, v41 offset:{imm + 512}")
        e("s_mov_b64 exec, -1")

    init_v()
    e("v_add_u32 v40, s64, v4")
    e("v_add_u32 v41, s64, v5")
    read_kv(0, 0)
    for r in range(P, P + 8):
        e(f"v_mov_b32 v{r}, 0")
    e("s_waitcnt lgkmcnt(0)")
    e("s_barrier")
    stamp(e, 2)
    cstamp(e, 8)
    mfma32(e, S[0], KB[0], Q(0))
    for r in range(128, 256):
        e(f"v_mov_b32 v{r}, 0")
    e(f"s_mov_b32 s70, {16 // UNR}")

    def slot(tb, q):
        kb = tb & 1
        t = q
        Sc, Sn = S[t & 1], S[(t + 1) & 1]
        if q < 7:
            mfma32(e, Sn, KB[kb], Q(q + 1))
        else:
            mfma32(e, Sn, KB[kb ^ 1], Q(0))
        for i in range(6):
            e(f"v_exp_f32 v{Sc + i}, v{Sc + i}")
        if q == 0:
            mfma32(e, ACC(7), VB[kb ^ 1] + 4, P + 4, ACC(7))
        else:
            mfma32(e, ACC(q - 1), VB[kb] + 4, P + 4, ACC(q - 1))
        for i in range(6, 8):
            e(f"v_exp_f32 v{Sc + i}, v{Sc + i}")
        if q == 5:
            read_kv(kb ^ 1, 2048 * (tb + 1))
        for c in range(4):
            e(f"v_cvt_pk_bf16_f32 v{P + c}, v{Sc + 2 * c}, v{Sc + 2 * c + 1}")
        e(f"v_exp_f32 v{Sc + 8}, v{Sc + 8}")
        e(f"v_exp_f32 v{Sc + 9}, v{Sc + 9}")
        mfma32(e, ACC(q), VB[kb], P, ACC(q))
        for i in range(10, 16):
            e(f"v_exp_f32 v{Sc + i}, v{Sc + i}")
            if q == 6 and i == 15:
                e("s_waitcnt lgkmcnt(0)")
        for c in range(4, 8):
            e(f"v_cvt_pk_bf16_f32 v{P + c}, v{Sc + 2 * c}, v{Sc + 2 * c + 1}")
        if q == 7 and tb == UNR - 1:
            e(f"v_add_u32 v40, {2048 * UNR}, v40")
            e(f"v_add_u32 v41, {2048 * UNR}, v41")

    e.raw(".p2align 6")
    e.label("K2_LOOP")
    for tb in range(UNR):
        for q in range(8):
            e.vm = []
            slot(tb, q)
    e("s_sub_u32 s70, s70, 1")
    e("s_cmp_lg_u32 s70, 6")
    e("s_cbranch_scc1 K2_LOOP_NB")
    e("s_barrier")
    e.label("K2_LOOP_NB")
    e("s_cmp_lg_u32 s70, 0")
    e("s_cbranch_scc1 K2_LOOP")
    mfma32(e, ACC(7), VB[1] + 4, P + 4, ACC(7))
    e.vm = []
    stamp(e, 3)
    cstamp(e, 9)
    e.label("K2_DUMP")
    e("s_lshr_b32 s71, s60, 1")
    e("s_and_b32 s72, s60, 1")
    e("s_lshl_b32 s73, s61, 6")
    e("s_lshl_b32 s67, s71, 5")
    e("s_add_u32 s73, s73, s67")
    e("v_add_u32 v56, s73, v2")
    e("v_lshlrev_b32 v57, 10, v56")
    e("v_lshl_add_u32 v57, v3, 5, v57")
    e("s_lshl_b32 s74, s62, 7")
    e("s_lshl_b32 s67, s72, 6")
    e("s_add_u32 s74, s74, s67")
    e("buffer_load_dwordx4 v[48:51], v57, s[20:23], s74 offen")
    e("buffer_load_dwordx4 v[52:55], v57, s[20:23], s74 offen offset:16")
    e("s_lshl_b32 s67, s71, 8")
    e("v_lshl_add_u32 v58, v2, 3, s67")
    e(f"ds_read_b64 v[46:47], v58 offset:{L_TS}")
    e("s_lshl_b32 s67, s60, 15")
    e(f"s_add_u32 s67, s67, {L_REDB}")
    e("v_add_u32 v6, s67, v4")
    e("v_lshl_add_u32 v7, v1, 2, s67")
    for q in range(8):
        e(f"ds_write_b128 v6, {vr(ACC(q), 4)} offset:{q * 2304}")
        e(f"ds_write_b128 v6, {vr(ACC(q) + 4, 4)} offset:{q * 2304 + 1024}")
        e(f"ds_write_b32 v7, v{ACC(q) + 8} offset:{q * 2304 + 2048}")
        if q >= 3:
            e("s_waitcnt lgkmcnt(9)")
    e("s_waitcnt lgkmcnt(0)")
    e.label("K2_BAR1")
    e("s_barrier")
    stamp(e, 4)
    e("s_mul_i32 s67, s60, 2304")
    e(f"s_add_u32 s67, s67, {L_REDB}")
    e("v_add_u32 v6, s67, v4")
    e("v_lshl_add_u32 v7, v1, 2, s67")
    e("v_add_u32 v44, 65536, v6")
    e("v_add_u32 v45, 65536, v7")
    for wp in range(4):
        a, b = (6, 7) if wp < 2 else (44, 45)
        e(f"ds_read_b128 {vr(8 + wp * 8, 4)}, v{a} offset:{(wp & 1) * 32768}")
        e(f"ds_read_b128 {vr(12 + wp * 8, 4)}, v{a} offset:{(wp & 1) * 32768 + 1024}")
        e(f"ds_read_b32 v{40 + wp}, v{b} offset:{(wp & 1) * 32768 + 2048}")
    e("s_and_b32 s67, s60, 1")
    e("s_lshl_b32 s71, s61, 1")
    e("s_add_u32 s67, s67, s71")
    e("s_lshl_b32 s67, s67, 5")
    e("s_lshl_b32 s71, s62, 2")
    e("s_add_u32 s67, s67, s71")
    e("s_lshr_b32 s71, s60, 1")
    e("s_add_u32 s67, s67, s71")
    e("s_lshl_b32 s67, s67, 10")
    e(f"s_add_u32 s67, s67, {hex(WS_OF)}")
    e("v_mov_b32 v45, 0x37800000")
    e("v_mov_b32 v44, 0x5f800000")
    e("s_waitcnt lgkmcnt(0)")
    sum4(e, 40, 40, 41, 42, 43)
    e("v_rcp_f32 v41, v40")
    for i in range(8):
        sum4(e, 8 + i, 8 + i, 16 + i, 24 + i, 32 + i)
    e("v_fma_f32 v42, v8, 0, v40")
    for i in range(1, 8):
        e(f"v_fma_f32 v42, v{8 + i}, 0, v42")
    for i in range(8):
        e(f"v_mul_f32 v{8 + i}, v41, v{8 + i}")
    e("v_cmp_nle_f32 vcc, v45, v42")
    e("v_cmp_nle_f32 s[72:73], v42, v44")
    for c in range(4):
        e(f"v_cvt_pk_bf16_f32 v{16 + c}, v{8 + 2 * c}, v{9 + 2 * c}")
    e("s_or_b64 vcc, vcc, s[72:73]")
    e("s_waitcnt vmcnt(0)")
    e("s_cmp_lg_u32 s59, 0")
    e("s_cbranch_scc1 K2_STORED")
    e("s_cmp_lg_u32 s63, 0")
    e("s_cbranch_scc1 K2_DOSTORE")
    e("s_cmp_eq_u64 vcc, 0")
    e("s_cbranch_scc1 K2_DOSTORE")
    e("v_mov_b32 v6, 1")
    e(f"v_mov_b32 v7, {L_CNT + 4}")
    e("ds_write_b32 v7, v6")
    e("s_branch K2_STORED")
    e.label("K2_DOSTORE")
    e("buffer_store_dwordx4 v[16:19], v4, s[44:47], s67 offen")
    e(f"s_add_u32 s67, s67, {WS_OF2 - WS_OF}")
    e("buffer_store_dwordx4 v[16:19], v4, s[44:47], s67 offen sc1")
    e("s_mov_b32 s59, 1")
    e.label("K2_STORED")
    e("s_waitcnt lgkmcnt(0)")
    e("s_barrier")
    stamp(e, 5)
    e("s_cmp_lg_u32 s63, 0")
    e("s_cbranch_scc1 K2_POST")
    e(f"v_mov_b32 v7, {L_CNT + 4}")
    e("ds_read_b32 v6, v7")
    e("s_waitcnt lgkmcnt(0)")
    e("v_readfirstlane_b32 s67, v6")
    e("s_nop 3")
    e("s_cmp_lg_u32 s67, 0")
    e("s_cbranch_scc1 K2_SLOW")
    e.label("K2_POST")
    e("s_cmp_ge_u32 s60, 4")
    e("s_cbranch_scc1 K2_H2")
    e("s_mul_i32 s67, s60, 6144")
    e(f"s_add_u32 s67, s67, {L_STG}")
    e("v_add_u32 v10, s67, v4")
    e(f"v_mov_b32 v7, {L_SEL}")
    e("ds_read_b128 v[28:31], v7")
    for i in range(16):
        e(f"v_mov_b32 v{64 + i}, 0")
    e("s_and_b32 s72, s60, 1")
    e("v_lshlrev_b32 v11, 6, v3")
    e("s_lshl_b32 s67, s72, 7")
    e("v_add_u32 v11, s67, v11")
    e("s_waitcnt lgkmcnt(0)")
    for sl in range(2):
        e(f"v_cmp_eq_u32 vcc, v{28 + sl}, v56")
        e("s_and_saveexec_b64 s[76:77], vcc")
        e(f"s_cbranch_execz K2_NOY{sl}")
        for hq in range(4):
            for i in range(4):
                e(f"ds_read_b128 {vr(64 + hq * 16 + 4 * i, 4)}, v11 offset:{L_YS + sl * 1024 + hq * 256 + i * 16}")
            if hq == 2:
                e("s_waitcnt lgkmcnt(4)")
        e("s_waitcnt lgkmcnt(0)")
        for i in range(16):
            sum4(e, 64 + i, 64 + i, 80 + i, 96 + i, 112 + i)
            rbf(e, 64 + i, 64 + i)
            e(f"v_mul_f32 v{64 + i}, v{30 + sl}, v{64 + i}")
            rbf(e, 64 + i, 64 + i)
        e.label(f"K2_NOY{sl}")
        e("s_mov_b64 exec, -1")
    for dw in range(8):
        a, b = 64 + 2 * dw, 65 + 2 * dw
        e(f"v_lshlrev_b32 v22, 16, v{48 + dw}")
        e(f"v_and_b32 v23, 0xffff0000, v{48 + dw}")
        e("v_sub_f32 v22, v22, v46")
        e("v_sub_f32 v23, v23, v46")
        e("v_cvt_pk_bf16_f32 v24, v22, v23")
        e("v_lshlrev_b32 v22, 16, v24")
        e("v_and_b32 v23, 0xffff0000, v24")
        e("v_mul_f32 v22, v47, v22")
        e("v_mul_f32 v23, v47, v23")
        e("v_cvt_pk_bf16_f32 v24, v22, v23")
        e("v_lshlrev_b32 v22, 16, v24")
        e("v_and_b32 v23, 0xffff0000, v24")
        e(f"v_add_f32 v22, v22, v{a}")
        e(f"v_add_f32 v23, v23, v{b}")
        e("v_cvt_pk_bf16_f32 v24, v22, v23")
        e("v_lshlrev_b32 v22, 16, v24")
        e("v_and_b32 v23, 0xffff0000, v24")
        e(f"v_mul_f32 v25, {hex(NLOG2E)}, v22")
        e(f"v_mul_f32 v26, {hex(NLOG2E)}, v23")
        e("v_exp_f32 v25, v25")
        e("v_exp_f32 v26, v26")
        e("s_nop 0")
        e("v_add_f32 v25, 1.0, v25")
        e("v_add_f32 v26, 1.0, v26")
        e("v_rcp_f32 v25, v25")
        e("v_rcp_f32 v26, v26")
        e("s_nop 0")
        e("v_mul_f32 v22, v25, v22")
        e("v_mul_f32 v23, v26, v23")
        e("v_cvt_pk_bf16_f32 v24, v22, v23")
        e(f"v_lshlrev_b32 v{a}, 16, v24")
        e(f"v_and_b32 v{b}, 0xffff0000, v24")
        if dw & 1:
            e(f"ds_write_b128 v10, {vr(64 + 4 * (dw >> 1), 4)} offset:{(dw >> 1) * 1024}")
    e("s_waitcnt lgkmcnt(0)")
    stamp(e, 6)
    e("s_barrier")
    stamp_flush(e, 1, 44, 60)
    e("s_endpgm")

    e.label("K2_SLOW")
    e("s_mov_b32 s63, 1")
    e("s_cmp_ge_u32 s60, 4")
    e("s_cbranch_scc1 K2_SLOW_H")
    e.vm = []
    init_v()
    load_q()
    MXR = 16
    for q in range(8):
        e(f"v_mov_b32 v{MXR + q}, 0xff7fffff")
    for r in range(128, 256):
        e(f"v_mov_b32 v{r}, 0")
    e("s_mov_b32 s69, s68")
    e("s_mov_b32 s70, 16")
    e.label("K2_SLOW_P1")
    e.vmem(f"buffer_load_dwordx4 {vr(KB[1], 4)}, v4, s[44:47], s69 offen sc1", "k")
    e.vwait(None)
    for q in range(8):
        mfma32(e, S[0], KB[1], Q(q))
        e("s_nop 15")
        for i in range(8):
            e(f"v_max3_f32 v{MXR + q}, v{S[0] + 2 * i}, v{S[0] + 2 * i + 1}, v{MXR + q}")
    e("s_add_u32 s69, s69, 2048")
    e("s_sub_u32 s70, s70, 1")
    e("s_cmp_lg_u32 s70, 0")
    e("s_cbranch_scc1 K2_SLOW_P1")
    for q in range(8):
        e(f"v_mov_b32 v42, v{MXR + q}")
        e("s_nop 1")
        e(f"v_permlane32_swap_b32 v{MXR + q}, v42")
        e("s_nop 1")
        e(f"v_max_f32 v{MXR + q}, v{MXR + q}, v42")
    e("s_lshl_b32 s67, s60, 10")
    e("v_lshl_add_u32 v6, v2, 2, s67")
    for q in range(8):
        e(f"ds_write_b32 v6, v{MXR + q} offset:{L_MX + q * 128}")
    e("s_waitcnt lgkmcnt(0)")
    e("s_barrier")
    e("v_lshlrev_b32 v6, 2, v2")
    for q in range(8):
        for wp in range(4):
            e(f"ds_read_b32 v{42 + wp}, v6 offset:{L_MX + wp * 1024 + q * 128}")
        e("s_waitcnt lgkmcnt(0)")
        e(f"v_max3_f32 v{MXR + q}, v42, v43, v44")
        e(f"v_max_f32 v{MXR + q}, v{MXR + q}, v45")
    e("s_mov_b32 s69, s68")
    e("s_mov_b32 s70, 16")
    e.label("K2_SLOW_P2")
    load_kv(1, "s69", 0, "s")
    e.vwait(None)
    for q in range(8):
        mfma32(e, S[0], KB[1], Q(q))
        e("s_nop 15")
        for i in range(16):
            e(f"v_sub_f32 v{S[0] + i}, v{S[0] + i}, v{MXR + q}")
        for i in range(16):
            e(f"v_exp_f32 v{S[0] + i}, v{S[0] + i}")
        e("s_nop 0")
        for c in range(8):
            e(f"v_cvt_pk_bf16_f32 v{P + c}, v{S[0] + 2 * c}, v{S[0] + 2 * c + 1}")
        e("s_nop 1")
        mfma32(e, ACC(q), VB[1], P, ACC(q))
        mfma32(e, ACC(q), VB[1] + 4, P + 4, ACC(q))
    e("s_add_u32 s69, s69, 2048")
    e("s_sub_u32 s70, s70, 1")
    e("s_cmp_lg_u32 s70, 0")
    e("s_cbranch_scc1 K2_SLOW_P2")
    e("s_nop 3")
    e("s_branch K2_DUMP")
    e.label("K2_SLOW_H")
    e("s_barrier")
    e("s_branch K2_BAR1")

    e.label("K2_H")
    e.vm = []
    e("s_setprio 2")
    e("s_sub_u32 s66, s60, 4")
    e("v_and_b32 v8, 15, v1")
    e("v_lshrrev_b32 v9, 4, v1")
    e("v_lshlrev_b32 v6, 3, v2")
    e(f"s_mov_b32 s67, {hex(WS_KEYS)}")
    e("buffer_load_dwordx2 v[10:11], v6, s[44:47], s67 offen sc1")
    e("s_mul_i32 s64, s56, 28")
    e("s_add_u32 s64, s64, s57")
    e("s_mul_i32 s65, s66, 6144")
    e(f"s_add_u32 s65, s65, {L_STG}")
    e("s_cmp_lt_u32 s66, 2")
    e("s_cselect_b32 s52, s28, s32")
    e("s_cselect_b32 s53, s29, s33")
    e(f"s_mov_b32 s54, {hex(512 * 1792 * 2)}")
    e("s_mov_b32 s55, 0x00020000")
    e("s_lshr_b32 s48, s64, 3")
    e("s_and_b32 s49, s64, 7")
    e("s_lshl_b32 s49, s49, 1")
    e("s_and_b32 s67, s66, 1")
    e("s_add_u32 s49, s49, s67")
    e("v_lshrrev_b32 v6, 3, v1")
    e("v_and_b32 v12, 7, v1")
    e("v_lshlrev_b32 v12, 4, v12")
    e("s_movk_i32 s67, 3584")
    e("v_mad_u32_u24 v16, v6, s67, v12")
    e("v_lshlrev_b32 v17, 10, v9")
    e("v_lshl_add_u32 v17, v8, 4, v17")
    e("v_lshl_add_u32 v12, v6, 10, v12")
    e("v_bfe_u32 v13, v1, 2, 2")
    e("v_lshl_add_u32 v13, v3, 2, v13")
    e("v_lshlrev_b32 v13, 7, v13")
    e("v_and_b32 v14, 1, v1")
    e("v_lshl_add_u32 v13, v14, 5, v13")
    e("v_bfe_u32 v14, v1, 4, 1")
    e("v_lshl_add_u32 v13, v14, 4, v13")
    e("v_bfe_u32 v14, v1, 1, 1")
    e("v_lshl_add_u32 v13, v14, 3, v13")
    e("v_add_u32 v13, s65, v13")
    e("s_and_b32 s77, s66, 1")
    e("s_lshl_b32 s67, s77, 6")
    e("v_add_u32 v13, s67, v13")
    e("v_xor_b32 v29, 64, v13")
    e("s_lshl_b32 s69, s77, 18")
    e("s_lshl_b32 s67, s62, 7")
    e("s_add_u32 s69, s69, s67")
    e("s_lshl_b32 s74, s66, 15")
    e(f"s_add_u32 s75, s74, {hex(WS_KV)}")
    e(f"s_add_u32 s74, s74, {L_KV}")
    e("s_barrier")
    for n in range(12, 32):
        if n % 4 == 0:
            e(f"s_add_u32 m0, s74, {(n & ~3) * 1024}")
            e(f"s_add_u32 s67, s75, {(n & ~3) * 1024}")
        e(f"buffer_load_dwordx4 v4, s[44:47], s67 offen offset:{(n & 3) * 1024} sc1 lds")
    e("s_waitcnt vmcnt(20)")
    e("v_mov_b32 v18, v10")
    dpp_umax_reduce(e, 18)
    e("v_readlane_b32 s70, v18, 63")
    e("s_nop 1")
    e("v_cmp_eq_u32 vcc, s70, v10")
    e("s_nop 1")
    e("v_cndmask_b32 v18, v10, v11, vcc")
    dpp_umax_reduce(e, 18)
    e("v_readlane_b32 s71, v18, 63")
    e("s_nop 3")
    e("s_and_b32 s72, s70, 0xffff")
    e("s_sub_u32 s72, 0xffff, s72")
    e("s_and_b32 s73, s71, 0xffff")
    e("s_sub_u32 s73, 0xffff, s73")
    e("s_and_b32 s72, s72, 2047")
    e("s_and_b32 s73, s73, 2047")

    WOF = lambda hd, nt: 128 + (hd * 2 + nt) * 4

    def wo_rounds(h0, h1):
        hd = h0
        while hd < h1:
            n = min(3, h1 - hd)
            for i in range(2 * n):
                if i % 4 == 0:
                    e(f"s_add_u32 m0, s65, {i * 1024}")
                e(f"s_add_u32 s67, s69, {(2 * hd + i) * 8192 - (i & 3) * 1024}")
                e(f"buffer_load_dwordx4 v12, s[24:27], s67 offen offset:{(i & 3) * 1024} lds")
            e("s_waitcnt vmcnt(0)")
            for i in range(n):
                for nt in range(2):
                    for u in range(2):
                        e(f"ds_read_b64_tr_b16 {vr(WOF(hd + i, nt) + 2 * u, 2)}, v{13 if nt == 0 else 29} offset:{(16 * i + 8 * u) * 128}")
            e("s_waitcnt lgkmcnt(0)")
            hd += n

    e(f"s_cmp_lt_u32 s57, {FFNLIM}")
    e("s_cbranch_scc1 K2_H_FFN")
    e("s_waitcnt vmcnt(0)")
    e("s_barrier")
    wo_rounds(0, 6)
    e("s_branch K2_H_NOFFN1")
    e.label("K2_H_FFN")
    e("v_mov_b32 v18, s72")
    e("v_mov_b32 v19, s73")
    e("v_cmp_eq_u32 vcc, 0, v3")
    e("s_lshl_b32 s67, s49, 6")
    e("s_nop 0")
    e("v_cndmask_b32 v18, v19, v18, vcc")
    e("v_lshlrev_b32 v19, 10, v18")
    e("v_lshl_add_u32 v19, v2, 1, v19")
    e("buffer_load_ushort v20, v19, s[20:23], s67 offen")
    e("v_lshlrev_b32 v19, 3, v18")
    e(f"s_mov_b32 s67, {hex(WS_STATS)}")
    e("buffer_load_dwordx2 v[22:23], v19, s[44:47], s67 offen sc1")
    e(f"s_mul_i32 s68, s49, {32 * 3584}")
    e("s_lshl_b32 s67, s48, 7")
    e("s_add_u32 s68, s68, s67")
    for n in range(4):
        e(f"s_add_u32 m0, s65, {n * 1024}")
        e(f"s_add_u32 s67, s68, {n * 8 * 3584}")
        e("buffer_load_dwordx4 v16, s[52:55], s67 offen lds")
    e("s_lshl_b32 s68, s64, 13")
    e("s_lshl_b32 s67, s66, 8")
    e("s_add_u32 s68, s68, s67")
    for n in range(2):
        e(f"s_add_u32 m0, s65, {4096 + n * 1024}")
        e(f"s_add_u32 s67, s68, {n * 4096}")
        e("buffer_load_dwordx4 v17, s[36:39], s67 offen lds")
    e("v_bfe_u32 v24, v1, 2, 2")
    e("v_lshl_add_u32 v25, v9, 3, v24")
    e("v_lshlrev_b32 v25, 7, v25")
    e("v_and_b32 v26, 3, v1")
    e("v_lshl_add_u32 v25, v26, 3, v25")
    e("v_add_u32 v25, s65, v25")
    e("v_and_b32 v24, 1, v24")
    e("v_lshl_add_u32 v24, v9, 1, v24")
    e("v_lshlrev_b32 v24, 8, v24")
    e("v_lshl_add_u32 v24, v26, 3, v24")
    e("v_add_u32 v24, s65, v24")
    e("s_lshl_b32 s67, s66, 7")
    e("v_lshl_add_u32 v27, v1, 1, s67")
    e("v_and_b32 v28, 1, v8")
    e("v_lshlrev_b32 v28, 6, v28")
    e("v_lshl_add_u32 v28, v9, 4, v28")
    e("v_add_u32 v28, s67, v28")
    e("s_waitcnt vmcnt(6)")
    e("v_rcp_f32 v23, v23")
    e("v_lshlrev_b32 v20, 16, v20")
    e("v_sub_f32 v20, v20, v22")
    rbf(e, 20, 20)
    e("v_mul_f32 v20, v23, v20")
    e("v_cvt_pk_bf16_f32 v20, v20, v20")
    e(f"ds_write_b16 v27, v20 offset:{L_XS}")
    e(f"ds_read_b128 v[80:83], v28 offset:{L_XS}")
    e("s_waitcnt vmcnt(2)")
    GA = lambda ft: 64 + 4 * ft
    for ft in range(4):
        for u in range(2):
            e(f"ds_read_b64_tr_b16 {vr(GA(ft) + 2 * u, 2)}, v25 offset:{4 * u * 128 + ft * 32}")
    e("s_movk_i32 s67, 7168")
    e("v_mul_lo_u32 v19, v8, s67")
    e("v_lshl_add_u32 v19, v9, 4, v19")
    e("s_lshl_b32 s67, s49, 1")
    e("s_lshr_b32 s74, s66, 1")
    e("s_add_u32 s67, s67, s74")
    e(f"s_mul_i32 s67, s67, {2 * 7168}")
    e("s_lshl_b32 s74, s48, 8")
    e("s_add_u32 s67, s67, s74")
    e(f"s_add_u32 s75, s67, {hex(WS_PG)}")
    e("v_mov_b32 v26, s80")
    e("v_mov_b32 v18, 0")
    e("s_waitcnt lgkmcnt(0)")
    for ft in range(4):
        mfma16(e, 48 + 4 * ft, GA(ft), 80)
    e("s_mov_b32 exec_lo, 0x00030003")
    e("s_mov_b32 exec_hi, 0x00030003")
    e("s_nop 5")
    for ft in range(4):
        e(f"buffer_store_dwordx4 {vr(48 + 4 * ft, 4)}, v19, s[44:47], s75 offen offset:{64 * ft} sc1")
    e("s_mov_b64 exec, -1")
    DF = lambda ee: 96 + 4 * ee
    e("s_waitcnt vmcnt(4)")
    for ee in range(8):
        e(f"ds_read_b64_tr_b16 {vr(DF(ee), 2)}, v24 offset:{4096 + 32 * ee}")
        e(f"v_mov_b32 v{DF(ee) + 2}, 0")
        e(f"v_mov_b32 v{DF(ee) + 3}, 0")
    e("s_lshl_b32 s67, s64, 4")
    e("s_lshl_b32 s74, s66, 2")
    e("s_add_u32 s67, s67, s74")
    e(f"s_add_u32 s67, s67, {hex(WS_FLAGS + 4096)}")
    e("s_waitcnt vmcnt(0)")
    e("s_mov_b64 exec, 1")
    e("buffer_store_dword v26, v18, s[44:47], s67 offen sc1")
    e("s_mov_b64 exec, -1")
    e("s_waitcnt lgkmcnt(0)")
    e("s_barrier")
    wo_rounds(0, 6)
    e("s_mov_b32 exec_hi, 0")
    e("v_lshlrev_b32 v18, 2, v1")
    e("s_lshl_b32 s67, s48, 7")
    e(f"s_add_u32 s67, s67, {hex(WS_FLAGS + 4096)}")
    e("s_mov_b32 s76, 0x40000")
    e.label("K2_H_SPIN1")
    e("buffer_load_dword v19, v18, s[44:47], s67 offen sc1")
    e("s_waitcnt vmcnt(0)")
    e("v_cmp_ne_u32 vcc, s80, v19")
    e("s_cmp_eq_u64 vcc, 0")
    e("s_cbranch_scc1 K2_H_SPIN1_DONE")
    e("s_sleep 8")
    e("s_sub_u32 s76, s76, 1")
    e("s_cmp_lg_u32 s76, 0")
    e("s_cbranch_scc1 K2_H_SPIN1")
    e.label("K2_H_SPIN1_DONE")
    e("s_mov_b64 exec, -1")
    e("v_lshrrev_b32 v18, 1, v8")
    e(f"s_mov_b32 s67, {8 * 7168}")
    e("v_mul_lo_u32 v18, v18, s67")
    e("v_and_b32 v19, 1, v8")
    e("s_movk_i32 s67, 7168")
    e("v_mad_u32_u24 v18, v19, s67, v18")
    e("v_lshl_add_u32 v18, v9, 3, v18")
    e("s_lshl_b32 s74, s64, 5")
    e(f"s_add_u32 s74, s74, {hex(WS_PG)}")
    for kl in range(2):
        for m in range(2):
            e(f"s_add_u32 s67, s74, {(kl * 2 + m) * 2 * 7168}")
            e(f"buffer_load_dwordx2 {vr(64 + (kl * 2 + m) * 2, 2)}, v18, s[44:47], s67 offen sc1")
    e("v_mov_b32 v41, 0")
    e("v_mov_b32 v42, 0")
    e("v_mov_b32 v43, 0")
    e("s_waitcnt vmcnt(0) lgkmcnt(0)")
    for i in range(4):
        e(f"v_add_f32 v{64 + i}, v{64 + i}, v{68 + i}")
    for rot in (2, 4, 8):
        e("s_nop 0")
        for i in range(4):
            e(f"v_add_f32_dpp v{64 + i}, v{64 + i}, v{64 + i} row_ror:{rot} row_mask:0xf bank_mask:0xf")
    g0, g1, u0, u1 = 64, 65, 66, 67
    e(f"v_cvt_pk_bf16_f32 v24, v{g0}, v{g1}")
    e(f"v_cvt_pk_bf16_f32 v25, v{u0}, v{u1}")
    e(f"v_lshlrev_b32 v{g0}, 16, v24")
    e(f"v_and_b32 v{g1}, 0xffff0000, v24")
    e(f"v_lshlrev_b32 v{u0}, 16, v25")
    e(f"v_and_b32 v{u1}, 0xffff0000, v25")
    e(f"v_mul_f32 v24, {hex(NLOG2E)}, v{g0}")
    e(f"v_mul_f32 v25, {hex(NLOG2E)}, v{g1}")
    e("v_exp_f32 v24, v24")
    e("v_exp_f32 v25, v25")
    e("s_nop 0")
    e("v_add_f32 v24, 1.0, v24")
    e("v_add_f32 v25, 1.0, v25")
    e("v_rcp_f32 v24, v24")
    e("v_rcp_f32 v25, v25")
    e("s_nop 0")
    e(f"v_mul_f32 v{g0}, v24, v{g0}")
    e(f"v_mul_f32 v{g1}, v25, v{g1}")
    e(f"v_cvt_pk_bf16_f32 v24, v{g0}, v{g1}")
    e(f"v_lshlrev_b32 v{g0}, 16, v24")
    e(f"v_and_b32 v{g1}, 0xffff0000, v24")
    e(f"v_mul_f32 v{g0}, v{g0}, v{u0}")
    e(f"v_mul_f32 v{g1}, v{g1}, v{u1}")
    e(f"v_cvt_pk_bf16_f32 v40, v{g0}, v{g1}")
    e("v_lshlrev_b32 v19, 11, v8")
    e("v_lshl_add_u32 v19, v9, 4, v19")
    for ee in range(8):
        mfma16(e, 64 + 4 * ee, DF(ee), 40)
    e("s_lshl_b32 s67, s64, 12")
    e("s_lshl_b32 s74, s66, 9")
    e("s_add_u32 s67, s67, s74")
    e(f"s_add_u32 s67, s67, {hex(WS_YP)}")
    e("s_mov_b32 exec_lo, 0x00030003")
    e("s_mov_b32 exec_hi, 0x00030003")
    e("s_nop 3")
    for ee in range(8):
        e(f"buffer_store_dwordx4 {vr(64 + 4 * ee, 4)}, v19, s[44:47], s67 offen offset:{64 * ee} sc1")
    e("s_lshl_b32 s67, s66, 10")
    e("s_lshl_b32 s74, s64, 2")
    e("s_add_u32 s67, s67, s74")
    e(f"s_add_u32 s67, s67, {hex(WS_FLAGS)}")
    e("s_mov_b64 exec, 1")
    e("v_mov_b32 v18, 0")
    e("s_waitcnt vmcnt(0)")
    e("buffer_store_dword v26, v18, s[44:47], s67 offen sc1")
    e("s_mov_b64 exec, -1")
    e.label("K2_H_NOFFN1")
    for r in range(20, 24):
        e(f"v_mov_b32 v{r}, -1")
    e("s_lshl_b32 s67, s61, 6")
    e("s_lshl_b32 s74, s62, 2")
    e("s_add_u32 s67, s67, s74")
    e("s_add_u32 s67, s67, s66")
    e("s_lshl_b32 s67, s67, 10")
    e(f"s_add_u32 s67, s67, {hex(WS_OF)}")
    for off in (0, 32768, WS_OF2 - WS_OF, WS_OF2 - WS_OF + 32768):
        e(f"s_add_u32 s74, s67, {off}")
        e("buffer_store_dwordx4 v[20:23], v4, s[44:47], s74 offen sc1")
    e("s_lshl_b32 s67, s61, 3")
    e("s_add_u32 s67, s67, s62")
    e("s_lshl_b32 s67, s67, 2")
    e("s_add_u32 s67, s67, s66")
    e("s_lshl_b32 s67, s67, 2")
    e(f"s_add_u32 s67, s67, {hex(WS_INIT)}")
    e("v_mov_b32 v18, 0")
    e("v_mov_b32 v19, s80")
    e("s_waitcnt vmcnt(0)")
    e("s_mov_b64 exec, 1")
    e("buffer_store_dword v19, v18, s[44:47], s67 offen sc1")
    e("s_mov_b64 exec, -1")
    stamp(e, 3)
    wo_rounds(6, 16)
    e("s_lshr_b32 s74, s66, 1")
    e("s_lshl_b32 s75, s61, 1")
    e("s_add_u32 s75, s75, s74")
    e("s_lshl_b32 s67, s75, 5")
    e("v_add_u32 v15, s67, v2")
    e("v_lshlrev_b32 v14, 10, v15")
    e("v_lshl_add_u32 v14, v3, 5, v14")
    e("s_lshl_b32 s58, s62, 7")
    e("s_lshl_b32 s67, s77, 6")
    e("s_add_u32 s58, s58, s67")
    e("buffer_load_dwordx4 v[120:123], v14, s[20:23], s58 offen")
    e("buffer_load_dwordx4 v[124:127], v14, s[20:23], s58 offen offset:16")
    e("s_cmp_lg_u32 s66, 0")
    e("s_cbranch_scc1 K2_H_NOSEL")
    for sl in range(2):
        e(f"s_and_b32 s74, s{70 + sl}, 0xffff0000")
        e("s_mov_b32 s76, 0xffff0000")
        e("s_cmp_lt_i32 s74, 0")
        e("s_cselect_b32 s76, 0x80000000, s76")
        e("s_xor_b32 s74, s74, s76")
        e(f"v_mov_b32 v{22 + sl}, s74")
        e(f"v_mul_f32 v{22 + sl}, {hex(NLOG2E)}, v{22 + sl}")
        e(f"v_exp_f32 v{22 + sl}, v{22 + sl}")
        e("s_nop 0")
        e(f"v_add_f32 v{22 + sl}, 1.0, v{22 + sl}")
        e(f"v_rcp_f32 v{22 + sl}, v{22 + sl}")
        e("s_nop 0")
        rbf(e, 22 + sl, 22 + sl)
    e("v_mov_b32 v20, s72")
    e("v_mov_b32 v21, s73")
    e(f"v_mov_b32 v18, {L_SEL}")
    e("ds_write_b128 v18, v[20:23]")
    e.label("K2_H_NOSEL")
    for sl in range(2):
        e(f"s_lshr_b32 s67, s{72 + sl}, 6")
        e("s_cmp_lg_u32 s67, s61")
        e(f"s_cbranch_scc1 K2_H_NOCONS{sl}")
        if XNOFFN:
            e(f"s_branch K2_H_NOCONS{sl}")
        e("s_lshr_b32 s67, s62, 1")
        e("s_lshl_b32 s67, s67, 10")
        e("s_mul_i32 s74, s66, 224")
        e("s_add_u32 s67, s67, s74")
        e(f"s_add_u32 s67, s67, {hex(WS_FLAGS)}")
        e("v_lshlrev_b32 v18, 2, v1")
        e("s_mov_b32 s76, 0x40000")
        e("s_mov_b32 exec_hi, 0x00ffffff")
        e.label(f"K2_H_SPIN2_{sl}")
        e("buffer_load_dword v19, v18, s[44:47], s67 offen sc1")
        e("s_waitcnt vmcnt(0)")
        e("v_cmp_ne_u32 vcc, s80, v19")
        e("s_cmp_eq_u64 vcc, 0")
        e(f"s_cbranch_scc1 K2_H_SPIN2_DONE{sl}")
        e("s_sleep 8")
        e("s_sub_u32 s76, s76, 1")
        e("s_cmp_lg_u32 s76, 0")
        e(f"s_cbranch_scc1 K2_H_SPIN2_{sl}")
        e.label(f"K2_H_SPIN2_DONE{sl}")
        e("s_mov_b64 exec, -1")
        e("v_lshlrev_b32 v18, 12, v9")
        e("v_lshl_add_u32 v18, v8, 4, v18")
        e(f"s_mul_i32 s67, s66, {56 * 4096}")
        e("s_lshl_b32 s74, s62, 8")
        e("s_add_u32 s67, s67, s74")
        e(f"s_add_u32 s67, s67, {hex(WS_YP + sl * 2048)}")
        for i in range(14):
            e(f"buffer_load_dwordx4 {vr(64 + 4 * i, 4)}, v18, s[44:47], s67 offen sc1")
            e("s_add_u32 s67, s67, 16384")
        e("s_waitcnt vmcnt(0)")
        for i in range(1, 14):
            for c in range(4):
                e(f"v_add_f32 v{64 + c}, v{64 + c}, v{64 + 4 * i + c}")
        swap_add(e, 64, 65)
        swap_add(e, 66, 67)
        e("s_nop 1")
        e("v_permlane16_swap_b32 v64, v66")
        e("s_nop 1")
        e("v_add_f32 v64, v64, v66")
        e("v_and_b32 v19, 1, v9")
        e("v_lshrrev_b32 v20, 1, v9")
        e("v_lshl_add_u32 v19, v19, 1, v20")
        e("v_lshl_add_u32 v19, v8, 2, v19")
        e("v_lshlrev_b32 v19, 2, v19")
        e("s_lshl_b32 s67, s66, 8")
        e("v_add_u32 v19, s67, v19")
        e(f"ds_write_b32 v19, v64 offset:{L_YS + sl * 1024}")
        e.label(f"K2_H_NOCONS{sl}")
    e("s_lshl_b32 s67, s61, 7")
    e(f"s_add_u32 s67, s67, {hex(WS_INIT)}")
    e("v_lshlrev_b32 v18, 2, v2")
    e("s_mov_b32 s76, 0x40000")
    e.label("K2_H_SPINI")
    e("buffer_load_dword v19, v18, s[44:47], s67 offen sc1")
    e("s_waitcnt vmcnt(0)")
    e("v_cmp_ne_u32 vcc, s80, v19")
    e("s_cmp_eq_u64 vcc, 0")
    e("s_cbranch_scc1 K2_H_SPINI_DONE")
    e("s_sleep 8")
    e("s_sub_u32 s76, s76, 1")
    e("s_cmp_lg_u32 s76, 0")
    e("s_cbranch_scc1 K2_H_SPINI")
    e.label("K2_H_SPINI_DONE")
    e("v_mov_b32 v2, v14")
    e("v_add_u32 v3, s65, v4")
    for r in range(72, 104):
        e(f"v_mov_b32 v{r}, 0")
    stamp(e, 9)
    e("s_waitcnt vmcnt(0) lgkmcnt(0)")
    stamp(e, 8)
    e("s_setprio 0")
    e("s_branch K2_BAR1")

    e.label("K2_H2")
    e("s_lshl_b32 s68, s75, 15")
    e("s_lshl_b32 s67, s77, 14")
    e("s_add_u32 s68, s68, s67")
    e(f"s_add_u32 s68, s68, {hex(WS_OF)}")
    OFR = lambda hd: 8 + hd * 4
    OA = [72, 88]
    G_ = 104
    e("s_mov_b32 s76, 0x10000")
    e("s_mov_b32 s74, 0")
    e("s_mov_b32 s71, s68")
    e.label("K2_H_POLL")
    for src in range(4):
        e(f"s_bitcmp1_b32 s74, {src}")
        e(f"s_cbranch_scc1 K2_H_NL{src}")
        e(f"s_add_u32 s67, s71, {src * 4096}")
        for i in range(4):
            e(f"buffer_load_dwordx4 {vr(OFR(4 * src + i), 4)}, v4, s[44:47], s67 offen offset:{i * 1024} sc1")
        e.label(f"K2_H_NL{src}")
    e.label("K2_H_CHECK")
    e("s_waitcnt vmcnt(0)")
    for src in range(4):
        e(f"s_bitcmp1_b32 s74, {src}")
        e(f"s_cbranch_scc1 K2_H_NC{src}")
        o = OFR(4 * src)
        e(f"v_max3_u32 v6, v{o}, v{o + 1}, v{o + 2}")
        for r in range(o + 3, o + 15, 2):
            e(f"v_max3_u32 v6, v{r}, v{r + 1}, v6")
        e(f"v_max_u32 v6, v{o + 15}, v6")
        e("v_cmp_eq_u32 vcc, -1, v6")
        e("s_cmp_eq_u32 s76, 1")
        e("s_cselect_b64 vcc, 0, vcc")
        e("s_cmp_eq_u64 vcc, 0")
        e(f"s_cbranch_scc0 K2_H_NC{src}")
        for i in range(4):
            for nt in range(2):
                mfma32(e, OA[nt], WOF(4 * src + i, nt), OFR(4 * src + i), OA[nt])
        e(f"s_bitset1_b32 s74, {src}")
        e.label(f"K2_H_NC{src}")
    e("s_sub_u32 s76, s76, 1")
    e("s_and_b32 s67, s76, 1")
    e(f"s_cmp_gt_u32 s76, {0x10000 - 8}")
    e("s_cselect_b32 s67, 0, s67")
    e(f"s_mul_i32 s67, s67, {WS_OF2 - WS_OF}")
    e("s_add_u32 s71, s68, s67")
    e("s_cmp_lg_u32 s74, 15")
    e("s_cbranch_scc1 K2_H_POLL")
    stamp(e, 6)
    e("s_lshl_b32 s67, s66, 12")
    e(f"s_add_u32 s67, s67, {L_REDB}")
    e("v_add_u32 v6, s67, v4")
    e("s_xor_b32 s67, s67, 4096")
    e("v_add_u32 v7, s67, v4")
    for dw in range(8):
        e(f"v_lshlrev_b32 v{8 + 2 * dw}, 16, v{120 + dw}")
        e(f"v_and_b32 v{9 + 2 * dw}, 0xffff0000, v{120 + dw}")
    for i in range(4):
        e(f"ds_write_b128 v6, {vr(OA[1] + 4 * i, 4)} offset:{i * 1024}")
    e("s_waitcnt lgkmcnt(0)")
    e("s_barrier")
    for i in range(4):
        e(f"ds_read_b128 {vr(24 + 4 * i, 4)}, v7 offset:{i * 1024}")
        e(f"ds_read_b128 {vr(G_ + 4 * i, 4)}, v3 offset:{i * 1024}")
    e("s_waitcnt lgkmcnt(0)")
    for r in range(16):
        e(f"v_add_f32 v{24 + r}, v{24 + r}, v{OA[0] + r}")
        e(f"v_fma_f32 v{8 + r}, v{24 + r}, v{G_ + r}, v{8 + r}")
        if r & 1:
            e(f"v_cvt_pk_bf16_f32 v{40 + r // 2}, v{7 + r}, v{8 + r}")
    e("buffer_store_dwordx4 v[40:43], v2, s[40:43], s58 offen")
    e("buffer_store_dwordx4 v[44:47], v2, s[40:43], s58 offen offset:16")
    stamp(e, 7)
    stamp_flush(e, 1, 44, 60)
    e.label("K2_END")
    e("s_endpgm")
    return kn, 256, LDS_SIZE


def kd(name, nv, ns=96):
    return f""".p2align 6
.amdhsa_kernel {name}
  .amdhsa_next_free_vgpr {nv}
  .amdhsa_next_free_sgpr {ns}
  .amdhsa_accum_offset {(nv + 3) // 4 * 4}
  .amdhsa_group_segment_fixed_size 0
  .amdhsa_kernarg_size 104
  .amdhsa_user_sgpr_count 2
  .amdhsa_user_sgpr_kernarg_segment_ptr 1
  .amdhsa_system_sgpr_workgroup_id_x 1
  .amdhsa_float_denorm_mode_32 3
.end_amdhsa_kernel
"""


def main():
    e = Asm()
    k, nv, lds = gen_k(e)
    head = f"""; MQA attention + mixture-of-depths FFN, single fused kernel, generated by gen/gen5.py (hand-written generator)
; @launch grid=(256,1,1) block=(512,1,1) lds={lds}
.amdgcn_target "amdgcn-amd-amdhsa--gfx950"
.text
"""
    tail = '.section .rodata,"a"\n' + kd(k, nv, 102)
    args = [a for a in sys.argv[1:] if not a.startswith("--")]
    out = args[0] if args else f"cdna_kernels/{NAME}.s"
    with open(out, "w") as f:
        f.write(head + e.text() + tail)


if __name__ == "__main__":
    main()
```

```python
import sys

NAME = "recurrent_scan__grouped_kv_mqa__moe_arch_mod__prompt"

WS_QF = 0x000000
WS_KV = 0x200000
WS_KEYS = 0x220000
WS_STATS = 0x221000
WS_FLAGS = 0x226000
WS_PG = 0x240000
WS_RDY = 0x2B0000
WS_INIT = 0x2B8000
WS_OF = 0x300000
WS_YP = 0x500000
WS_OF2 = 0x600000
WS_PROF = 0x800000
WS_SIZE = 0x900000

QSCALE = 0x3eb8aa3b
NLOG2E = 0xbfb8aa3b
ONES = 0x3f803f80
EPS = 0x3727c5ac
INV512 = 0x3b000000

PROF = "--prof" in sys.argv
XNOFFN = "--xnoffn" in sys.argv
DBGOUT = "--dbgout" in sys.argv
PF1 = "--nopf1" not in sys.argv
PF2 = "--pf2" in sys.argv
PF0 = 0 if "--nopf0" in sys.argv else 4
UNR = 4 if "--unr4" in sys.argv else 2
FFNLIM = 0 if XNOFFN else 28


class Asm:
    def __init__(self):
        self.lines = []
        self.vm = []

    def __call__(self, s):
        self.lines.append("    " + s)

    def label(self, l):
        self.lines.append(l + ":")

    def raw(self, s):
        self.lines.append(s)

    def vmem(self, s, tag=None):
        self(s)
        self.vm.append(tag)
        assert len(self.vm) <= 63, "too many outstanding vmem ops"

    def vwait(self, tag=None):
        if tag is None:
            self("s_waitcnt vmcnt(0)")
            self.vm = []
            return
        idx = max(i for i, t in enumerate(self.vm) if t == tag)
        n = len(self.vm) - 1 - idx
        self(f"s_waitcnt vmcnt({n})")
        self.vm = self.vm[idx + 1:]

    def text(self):
        return "\n".join(self.lines) + "\n"


def stamp(e, i):
    if not PROF:
        return
    e("s_memrealtime s[88:89]")
    e("s_waitcnt lgkmcnt(0)")
    e(f"s_mov_b32 s{90 + i}, s88")


def cstamp(e, i):
    if not PROF:
        return
    e("s_memtime s[88:89]")
    e("s_waitcnt lgkmcnt(0)")
    e(f"s_mov_b32 s{90 + i}, s88")


def stamp_init(e):
    if PROF:
        for i in range(12):
            e(f"s_mov_b32 s{90 + i}, 0")
    stamp(e, 0)


def stamp_flush(e, kidx, wsrd, wave_sgpr):
    if not PROF:
        return
    stamp(e, 11)
    e("s_mov_b64 exec, 1")
    e("s_lshl_b32 s88, s2, 3")
    e(f"s_add_u32 s88, s88, s{wave_sgpr}")
    e("s_lshl_b32 s88, s88, 6")
    e(f"s_add_u32 s88, s88, {hex(WS_PROF + kidx * 320 * 8 * 64)}")
    e("v_mov_b32 v220, 0")
    for b in range(3):
        for i in range(4):
            e(f"v_mov_b32 v{216 + i}, s{90 + 4 * b + i}")
        e(f"buffer_store_dwordx4 v[216:219], v220, s[{wsrd}:{wsrd + 3}], s88 offen offset:{16 * b}")
        e("s_nop 1")


def vr(a, n=1):
    return f"v{a}" if n == 1 else f"v[{a}:{a + n - 1}]"


def srd(e, d, base, size):
    e(f"s_mov_b32 s{d}, s{base}")
    e(f"s_and_b32 s{d + 1}, s{base + 1}, 0xffff")
    e(f"s_mov_b32 s{d + 2}, {hex(size)}")
    e(f"s_mov_b32 s{d + 3}, 0x00020000")


def rbf(e, d, s):
    e(f"v_cvt_pk_bf16_f32 v{d}, v{s}, v{s}")
    e(f"v_and_b32 v{d}, 0xffff0000, v{d}")


def mfma32(e, d, a, b, c=None):
    cs = "0" if c is None else vr(c, 16)
    e(f"v_mfma_f32_32x32x16_bf16 {vr(d, 16)}, {vr(a, 4)}, {vr(b, 4)}, {cs}")


def mfma16(e, d, a, b, c=None):
    cs = "0" if c is None else vr(c, 4)
    e(f"v_mfma_f32_16x16x32_bf16 {vr(d, 4)}, {vr(a, 4)}, {vr(b, 4)}, {cs}")


def dpp_umax_reduce(e, v):
    for mod in ("row_shr:1 row_mask:0xf bank_mask:0xf bound_ctrl:0",
                "row_shr:2 row_mask:0xf bank_mask:0xf bound_ctrl:0",
                "row_shr:4 row_mask:0xf bank_mask:0xf bound_ctrl:0",
                "row_shr:8 row_mask:0xf bank_mask:0xf bound_ctrl:0",
                "row_bcast:15 row_mask:0xa bank_mask:0xf",
                "row_bcast:31 row_mask:0xc bank_mask:0xf"):
        e("s_nop 1")
        e(f"v_max_u32_dpp v{v}, v{v}, v{v} {mod}")
    e("s_nop 1")


def token_stats(e, sx, sq, mb, db, inv, t0, t1):
    e(f"v_mul_f32 v{t0}, {hex(INV512)}, v{sx}")
    e(f"v_mul_f32 v{t1}, {hex(INV512)}, v{sq}")
    rbf(e, mb, t0)
    e(f"v_fma_f32 v{t1}, -v{t0}, v{t0}, v{t1}")
    e(f"v_max_f32 v{t1}, 0, v{t1}")
    rbf(e, t1, t1)
    e(f"v_add_f32 v{t1}, {hex(EPS)}, v{t1}")
    rbf(e, t1, t1)
    e(f"v_sqrt_f32 v{t1}, v{t1}")
    e("s_nop 0")
    rbf(e, db, t1)
    e(f"v_rcp_f32 v{inv}, v{db}")
    e("s_nop 0")


def swap_add(e, a, b):
    e("s_nop 1")
    e(f"v_permlane32_swap_b32 v{a}, v{b}")
    e("s_nop 1")
    e(f"v_add_f32 v{a}, v{a}, v{b}")


def sum4(e, d, a, b, c, dd):
    e(f"v_add_f32 v{a}, v{a}, v{b}")
    e(f"v_add_f32 v{c}, v{c}, v{dd}")
    e(f"v_add_f32 v{d}, v{a}, v{c}")


SLP = int([a[6:] for a in sys.argv if a.startswith("--slp=")][0]) if any(a.startswith("--slp=") for a in sys.argv) else 8


def gen_k(e):
    kn = NAME + "_kernel"
    L_XS = 0
    L_YS = 512
    L_SEL = L_YS + 2048
    L_CNT = L_SEL + 16
    L_MX = L_CNT + 16
    L_TS = 6912
    L_STG = 8192
    assert L_MX + 4096 <= L_TS and L_TS + 512 <= L_STG
    L_KV = 32768
    L_REDB = 32768
    LDS_SIZE = 163840
    O_KVW = L_STG
    O_ST1 = 24576
    O_ST2 = L_STG
    P_PV, P_QF = 12288, 14336

    e.raw(".p2align 8")
    e.raw(f".globl {kn}")
    e.raw(f".type {kn},@function")
    e.label(kn)
    e("s_cmp_ge_u32 s2, 256")
    e("s_cbranch_scc1 K2_END")
    stamp_init(e)
    e("s_load_dwordx16 s[64:79], s[0:1], 0")
    e("s_load_dwordx8 s[80:87], s[0:1], 64")
    e("s_load_dwordx2 s[48:49], s[0:1], 96")
    e("v_and_b32 v1, 63, v0")
    e("v_lshrrev_b32 v6, 6, v0")
    e("v_and_b32 v2, 31, v1")
    e("v_lshrrev_b32 v3, 5, v1")
    e("v_readfirstlane_b32 s60, v6")
    e("v_lshlrev_b32 v4, 4, v1")
    e("s_and_b32 s56, s2, 7")
    e("s_lshr_b32 s57, s2, 3")
    e("s_getpc_b64 s[52:53]")
    e("s_and_b32 s58, s57, 3")
    e("s_lshl_b32 s58, s58, 13")
    e("s_add_u32 s58, s58, 1024")
    e("v_lshl_add_u32 v6, v0, 4, s58")
    e("global_load_dwordx4 v[252:255], v6, s[52:53]")
    e("s_lshr_b32 s58, s57, 3")
    e("s_lshl_b32 s61, s56, 2")
    e("s_add_u32 s61, s61, s58")
    e("s_and_b32 s62, s57, 7")
    e("s_and_b32 s3, s60, 3")
    e("s_and_b32 s18, s62, 1")
    e("s_lshr_b32 s19, s60, 2")
    e("s_mov_b32 s63, 0")
    e("s_mov_b32 s59, 0")
    e("v_and_b32 v5, 15, v2")
    e("v_lshlrev_b32 v5, 4, v5")
    e("v_lshl_add_u32 v5, v3, 8, v5")
    e("v_add_u32 v5, 1024, v5")
    e("s_waitcnt lgkmcnt(0)")
    srd(e, 20, 64, 2048 * 512 * 2)
    srd(e, 4, 66, 512 * 512 * 2)
    srd(e, 24, 72, 512 * 512 * 2)
    srd(e, 8, 76, 512 * 2)
    srd(e, 28, 78, 512 * 1792 * 2)
    srd(e, 32, 80, 512 * 1792 * 2)
    srd(e, 36, 82, 512 * 1792 * 2)
    srd(e, 40, 84, 2048 * 512 * 2)
    srd(e, 44, 48, WS_SIZE)
    e("s_mov_b32 s16, s86")
    e("s_mov_b32 s17, s87")
    e("s_cmp_lt_u32 s62, 2")
    e("s_cselect_b32 s12, s68, s70")
    e("s_cselect_b32 s13, s69, s71")
    e("s_and_b32 s13, s13, 0xffff")
    e(f"s_mov_b32 s14, {hex(512 * 16 * 2)}")
    e("s_mov_b32 s15, 0x00020000")
    stamp(e, 1)
    e("s_lshl_b32 s64, s3, 15")
    e(f"s_add_u32 s64, s64, {L_KV}")
    e("s_lshl_b32 s65, s3, 12")
    e(f"s_add_u32 s65, s65, {O_KVW}")
    e("s_cmp_lt_u32 s60, 4")
    e("s_cbranch_scc1 P1_C")

    e("s_add_u32 s67, s2, s3")
    e("s_cmp_lg_u32 s67, 0")
    e("s_cbranch_scc1 P1_NONCE0")
    e("s_memrealtime s[70:71]")
    e("v_mov_b32 v6, 0")
    e("s_waitcnt lgkmcnt(0)")
    e("s_or_b32 s70, s70, 1")
    e("v_mov_b32 v7, s70")
    e("s_mov_b64 exec, 1")
    e("global_store_dword v6, v7, s[16:17] sc1")
    e("s_mov_b64 exec, -1")
    e.label("P1_NONCE0")
    e("v_lshrrev_b32 v6, 4, v1")
    e("v_and_b32 v7, 15, v1")
    e("v_xor_b32 v7, v7, v6")
    for v in range(4):
        e(f"v_xor_b32 v{8 + v}, {4 * v}, v7")
        e(f"v_lshlrev_b32 v{8 + v}, 4, v{8 + v}")
        e(f"v_lshl_add_u32 v{8 + v}, v6, 10, v{8 + v}")
    e("v_lshrrev_b32 v6, 3, v1")
    e("v_and_b32 v12, 7, v1")
    e("v_lshlrev_b32 v12, 4, v12")
    e("v_lshl_add_u32 v12, v6, 10, v12")
    e("s_lshl_b32 s66, s61, 16")
    e("s_lshl_b32 s67, s3, 8")
    e("s_add_u32 s66, s66, s67")
    e("s_lshl_b32 s67, s18, 15")
    e("s_add_u32 s72, s66, s67")
    e("s_xor_b32 s67, s67, 32768")
    e("s_add_u32 s73, s66, s67")
    e("s_lshl_b32 s66, s3, 17")
    e("s_lshl_b32 s67, s62, 7")
    e("s_add_u32 s66, s66, s67")
    e("s_cmp_ge_u32 s62, 4")
    e("s_cbranch_scc1 P1_NOKVDMA")
    e("s_lshl_b32 s67, s3, 12")
    e("s_mov_b32 m0, s65")
    e("s_nop 0")
    for i in range(4):
        e(f"buffer_load_dwordx4 v4, s[12:15], s67 offen offset:{i * 1024} lds")
    e.label("P1_NOKVDMA")
    for n in range(16):
        if n % 4 == 0:
            e(f"s_add_u32 m0, s64, {(n >> 2) * 4096}")
        e(f"s_add_u32 s67, s{72 + (n >> 3)}, {(n & 7) * 4096 - (n & 3) * 1024}")
        e(f"buffer_load_dwordx4 v{8 + (n & 3)}, s[20:23], s67 offen offset:{(n & 3) * 1024} lds")

    def dma_w(kc):
        e(f"s_add_u32 m0, s64, {16384 + kc * 4096}")
        for i in range(4):
            n = kc * 4 + i
            e(f"s_add_u32 s67, s66, {n * 8192 - i * 1024}")
            e(f"buffer_load_dwordx4 v12, s[4:7], s67 offen offset:{i * 1024} lds")
    e("v_mov_b32 v6, 0")
    e("v_mov_b32 v7, 0")
    e(f"v_mov_b32 v20, {L_CNT}")
    e("ds_write_b64 v20, v[6:7]")
    e("s_waitcnt vmcnt(8) lgkmcnt(0)")
    e("s_barrier")
    dma_w(0)
    dma_w(1)
    dma_w(2)
    dma_w(3)
    e("v_mov_b32 v6, 0")
    e("s_cmp_lg_u32 s3, 0")
    e("s_cbranch_scc1 P1_L_NOTAG")
    e("global_load_dword v7, v6, s[16:17] sc1")
    e.label("P1_L_NOTAG")
    e("s_barrier")
    e("s_waitcnt vmcnt(0) lgkmcnt(0)")
    e("s_barrier")
    stamp(e, 2)
    e(f"v_mov_b32 v20, {L_CNT}")
    e("s_mov_b32 s76, 0x80000")
    e("s_cmp_lg_u32 s3, 0")
    e("s_cbranch_scc1 P1_L_SPINL")
    e.label("P1_L_SPINN")
    e("s_waitcnt vmcnt(0)")
    e("v_readfirstlane_b32 s75, v7")
    e("s_nop 3")
    e("s_cmp_lg_u32 s75, 0")
    e("s_cbranch_scc1 P1_L_GOTN")
    e("s_sleep 16")
    e("global_load_dword v7, v6, s[16:17] sc1")
    e("s_sub_u32 s76, s76, 1")
    e("s_cmp_lg_u32 s76, 0")
    e("s_cbranch_scc1 P1_L_SPINN")
    e.label("P1_L_GOTN")
    e("s_and_b32 s67, s2, 31")
    e("s_lshl_b32 s67, s67, 10")
    e(f"s_add_u32 s67, s67, {hex(WS_RDY)}")
    e.label("P1_L_SPING")
    e("buffer_load_dwordx4 v[8:11], v4, s[44:47], s67 offen sc1")
    e("s_waitcnt vmcnt(0)")
    e("v_xor_b32 v8, v8, v7")
    e("v_xor_b32 v9, v9, v7")
    e("v_xor_b32 v10, v10, v7")
    e("v_xor_b32 v11, v11, v7")
    e("v_or3_b32 v8, v8, v9, v10")
    e("v_or_b32 v8, v8, v11")
    e("v_cmp_ne_u32 vcc, 0, v8")
    e("s_and_b32 vcc_lo, vcc_lo, 0x00ff00ff")
    e("s_and_b32 vcc_hi, vcc_hi, 0x00ff00ff")
    e("s_cmp_eq_u64 vcc, 0")
    e("s_cbranch_scc1 P1_L_GO")
    e(f"s_sleep {SLP}")
    e("s_sub_u32 s76, s76, 1")
    e("s_cmp_lg_u32 s76, 0")
    e("s_cbranch_scc1 P1_L_SPING")
    e.label("P1_L_GO")
    e("ds_write_b32 v20, v7")
    e("s_mov_b32 s67, s75")
    e("s_branch P1_L_KV")
    e.label("P1_L_SPINL")
    e("ds_read_b32 v8, v20")
    e("s_waitcnt lgkmcnt(0)")
    e("v_readfirstlane_b32 s67, v8")
    e("s_nop 3")
    e("s_cmp_lg_u32 s67, 0")
    e("s_cbranch_scc1 P1_L_KV")
    e("s_sleep 1")
    e("s_branch P1_L_SPINL")
    e.label("P1_L_KV")
    e("s_mov_b32 s80, s67")
    stamp(e, 10)
    e("s_lshl_b32 s75, s3, 15")
    e(f"s_add_u32 s75, s75, {hex(WS_KV)}")
    for n in range(8):
        if n % 4 == 0:
            e(f"s_add_u32 m0, s64, {n * 1024}")
            e(f"s_add_u32 s67, s75, {n * 1024}")
        e(f"buffer_load_dwordx4 v4, s[44:47], s67 offen offset:{(n & 3) * 1024} sc1 lds")
    e("s_branch P1_B4")

    e.label("P1_C")
    WR = lambda ks: 200 + 4 * ks
    e(f"v_mov_b32 v47, {hex(ONES)}")
    e("v_lshlrev_b32 v13, 4, v3")
    e("s_lshl_b32 s67, s3, 8")
    e("s_cmp_lg_u32 s62, 4")
    e("s_cbranch_scc1 P1_NOWR")
    for ks in range(8):
        e(f"buffer_load_dwordx4 {vr(WR(ks), 4)}, v13, s[8:11], s67 offen offset:{32 * ks}")
    e.label("P1_NOWR")
    e("v_and_b32 v6, 15, v2")
    e("v_xor_b32 v6, v6, v3")
    e("v_lshlrev_b32 v7, 8, v2")
    e("v_add_u32 v7, s64, v7")
    for ks in range(8):
        e(f"v_xor_b32 v{24 + ks}, {2 * ks}, v6")
        e(f"v_lshl_add_u32 v{24 + ks}, v{24 + ks}, 4, v7")
    e("v_bfe_u32 v6, v1, 2, 2")
    e("v_lshl_add_u32 v6, v3, 3, v6")
    e("v_and_b32 v7, 1, v1")
    e("v_bfe_u32 v15, v1, 1, 1")
    e("v_lshl_add_u32 v7, v7, 1, v15")
    e("v_bfe_u32 v15, v1, 4, 1")
    e("v_lshlrev_b32 v20, 7, v6")
    e("v_lshl_add_u32 v20, v15, 5, v20")
    e("v_lshl_add_u32 v20, v7, 3, v20")
    e("v_add_u32 v20, s64, v20")
    e("v_lshlrev_b32 v6, 5, v6")
    e("v_add_u32 v6, s65, v6")
    e("v_lshl_add_u32 v21, v7, 3, v6")
    e("v_and_b32 v22, 3, v1")
    e("v_lshl_add_u32 v22, v22, 3, v6")
    e("s_cmp_lt_u32 s62, 2")
    e("s_cbranch_scc1 P1_KADDR")
    e("v_mov_b32 v21, v22")
    e.label("P1_KADDR")
    SX, SQ, CS = [32, 33], [34, 35], [36, 37]
    SR, CSR, CSK = [38, 39], 40, 41
    for r in range(32, 46):
        e(f"v_mov_b32 v{r}, 0")
    XF = lambda ks, tt: 48 + (ks * 2 + tt) * 4
    QA = lambda tt, ct: 112 + (tt * 2 + ct) * 16
    WF = lambda ks, ct: 176 + (ks * 2 + ct) * 4
    KFR = lambda ks: 200 + 4 * ks
    AK = 232
    e("s_waitcnt vmcnt(0)")
    e("s_barrier")
    stamp(e, 10)
    e("v_mov_b32 v6, 0")
    e("s_cmp_lg_u32 s3, 0")
    e("s_cbranch_scc1 P1_C_NOTAG")
    e("global_load_dword v46, v6, s[16:17] sc1")
    e.label("P1_C_NOTAG")
    MB, DB, INV = 128, 129, 130
    PVB = 28672 - 256
    for ks in range(8):
        e(f"ds_read_b128 {vr(XF(ks, 0), 4)}, v{24 + ks}")
    e("s_cmp_ge_u32 s62, 4")
    e("s_cbranch_scc1 P1_NOKF")
    for ks in range(8):
        e("s_waitcnt lgkmcnt(12)")
        for u in range(2):
            e(f"ds_read_b64_tr_b16 {vr(KFR(ks) + 2 * u, 2)}, v21 offset:{(16 * ks + 4 * u) * 32}")
    e.label("P1_NOKF")
    e("s_waitcnt lgkmcnt(0)")
    for ks in range(8):
        for c in range(4):
            x = XF(ks, 0) + c
            o = 10 if c & 1 else 0
            e(f"v_dot2_f32_bf16 v{SX[0] + o}, v{x}, v47, v{SX[0] + o}")
            e(f"v_dot2_f32_bf16 v{SQ[0] + o}, v{x}, v{x}, v{SQ[0] + o}")
    e("s_cmp_ge_u32 s62, 4")
    e("s_cbranch_scc1 P1_C_B2")
    for ks in range(8):
        for c in range(4):
            e(f"v_dot2_f32_bf16 v{CSK if c & 1 else CSR}, v{KFR(ks) + c}, v47, v{CSK if c & 1 else CSR}")
    e("s_cmp_lt_u32 s62, 2")
    e("s_cbranch_scc1 P1_XK")
    for ks in range(8):
        mfma32(e, AK, XF(ks, 0), KFR(ks), None if ks == 0 else AK)
    e("s_branch P1_XDONE")
    e.label("P1_XK")
    for ks in range(8):
        mfma32(e, AK, KFR(ks), XF(ks, 0), None if ks == 0 else AK)
    e.label("P1_XDONE")
    e(f"v_add_f32 v112, v{SX[0]}, v42")
    e(f"v_add_f32 v113, v{SQ[0]}, v44")
    e(f"v_add_f32 v114, v{CSK}, v{CSR}")
    e("v_mov_b32 v115, v114")
    swap_add(e, 112, 113)
    swap_add(e, 114, 115)
    e("s_lshl_b32 s67, s3, 10")
    e("v_lshl_add_u32 v6, v1, 2, s67")
    e(f"ds_write_b32 v6, v112 offset:{O_ST1}")
    e(f"ds_write_b32 v6, v114 offset:{O_ST1 + 256}")
    e("v_add_u32 v7, s65, v4")
    for rq in range(4):
        e(f"ds_write_b128 v7, {vr(AK + 4 * rq, 4)} offset:{rq * 1024}")
    e("s_waitcnt lgkmcnt(0)")
    e.label("P1_C_B2")
    e("s_barrier")
    e("s_cmp_ge_u32 s62, 4")
    e("s_cbranch_scc1 P1_C_B3")
    e("s_cmp_lg_u32 s3, 0")
    e("s_cbranch_scc1 P1_C_B3")
    e("v_lshlrev_b32 v13, 2, v2")
    for wp in range(4):
        e(f"ds_read_b32 v{112 + wp}, v13 offset:{O_ST1 + wp * 1024}")
        e(f"ds_read_b32 v{116 + wp}, v13 offset:{O_ST1 + wp * 1024 + 128}")
        e(f"ds_read_b32 v{124 + wp}, v13 offset:{O_ST1 + wp * 1024 + 256}")
    e("s_waitcnt lgkmcnt(0)")
    for b in (112, 116, 124):
        sum4(e, b, b, b + 1, b + 2, b + 3)
    token_stats(e, 112, 116, MB, DB, INV, 131, 132)
    e(f"ds_write_b32 v13, v{MB} offset:{PVB + 256}")
    e(f"ds_write_b32 v13, v{INV} offset:{PVB + 512}")
    e(f"ds_write_b32 v13, v124 offset:{PVB + 768 + 128}")
    e("s_lshl_b32 s70, s61, 1")
    e("s_add_u32 s70, s70, s18")
    e("s_lshl_b32 s70, s70, 11")
    e(f"s_add_u32 s70, s70, {hex(WS_KV)}")
    e("v_lshlrev_b32 v11, 4, v3")
    e("v_lshlrev_b32 v13, 2, v2")
    e("s_cmp_lt_u32 s62, 2")
    e("s_cbranch_scc1 P1_KV_K")
    for wp in range(4):
        for rq in range(4):
            e(f"ds_read_b128 {vr(136 + (wp * 4 + rq) * 4, 4)}, v4 offset:{O_KVW + wp * 4096 + rq * 1024}")
        if wp >= 1:
            e("s_waitcnt lgkmcnt(6)")
    for g in range(4):
        e(f"ds_read_b128 {vr(200 + 4 * g, 4)}, v11 offset:{PVB + 256 + 32 * g}")
        e(f"ds_read_b128 {vr(216 + 4 * g, 4)}, v11 offset:{PVB + 512 + 32 * g}")
    e(f"ds_read_b32 v133, v13 offset:{PVB + 768 + 128}")
    e("v_lshlrev_b32 v10, 4, v2")
    e("v_lshl_add_u32 v10, v3, 8, v10")
    e("s_waitcnt lgkmcnt(0)")
    for r in range(16):
        a = 136 + r
        sum4(e, a, a, a + 16, a + 32, a + 48)
        e(f"v_fma_f32 v{a}, -v{200 + r}, v133, v{a}")
        e(f"v_mul_f32 v{a}, v{216 + r}, v{a}")
        if r & 1:
            e(f"v_cvt_pk_bf16_f32 v{232 + r // 2}, v{a - 1}, v{a}")
    e("s_mov_b32 exec_lo, 0x0000ffff")
    e("s_mov_b32 exec_hi, 0x0000ffff")
    e("buffer_store_dwordx4 v[232:235], v10, s[44:47], s70 offen offset:1024 sc1")
    e("buffer_store_dwordx4 v[236:239], v10, s[44:47], s70 offen offset:1536 sc1")
    e("s_mov_b64 exec, -1")
    e("s_branch P1_C_FLAG")
    e.label("P1_KV_K")
    for wp in range(4):
        for rr in range(2):
            e(f"ds_read_b128 {vr(136 + (wp * 2 + rr) * 4, 4)}, v4 offset:{O_KVW + wp * 4096 + rr * 1024}")
    for rr in range(2):
        e(f"ds_read_b128 {vr(200 + rr * 4, 4)}, v11 offset:{PVB + 768 + 128 + rr * 32}")
    e(f"ds_read_b32 v133, v13 offset:{PVB + 256}")
    e(f"ds_read_b32 v134, v13 offset:{PVB + 512}")
    e("s_waitcnt lgkmcnt(0)")
    for i in range(8):
        a = 136 + i
        sum4(e, a, a, a + 8, a + 16, a + 24)
        e(f"v_fma_f32 v{a}, -v133, v{200 + i}, v{a}")
        e(f"v_mul_f32 v{a}, v134, v{a}")
        if i & 1:
            e(f"v_cvt_pk_bf16_f32 v{232 + i // 2}, v{a - 1}, v{a}")
    e("buffer_store_dwordx4 v[232:235], v4, s[44:47], s70 offen sc1")
    e("s_branch P1_C_FLAG")
    e.label("P1_C_FLAG")
    e("s_mov_b32 s76, 0x80000")
    e("v_mov_b32 v6, 0")
    e.label("P1_C_SPINN")
    e("s_waitcnt vmcnt(0)")
    e("v_readfirstlane_b32 s75, v46")
    e("s_nop 3")
    e("s_cmp_lg_u32 s75, 0")
    e("s_cbranch_scc1 P1_C_GOTN")
    e("s_sleep 16")
    e("global_load_dword v46, v6, s[16:17] sc1")
    e("s_sub_u32 s76, s76, 1")
    e("s_cmp_lg_u32 s76, 0")
    e("s_cbranch_scc1 P1_C_SPINN")
    e.label("P1_C_GOTN")
    e("v_lshlrev_b32 v6, 10, v1")
    e("s_lshl_b32 s67, s2, 2")
    e(f"s_add_u32 s67, s67, {hex(WS_RDY)}")
    e("s_mov_b32 exec_hi, 0")
    e("buffer_store_dword v46, v6, s[44:47], s67 offen sc1")
    e("s_mov_b64 exec, -1")
    e.label("P1_C_B3")
    e("s_waitcnt lgkmcnt(0)")
    e("s_barrier")
    stamp(e, 6)
    for ks in range(8):
        e(f"ds_read_b128 {vr(XF(ks, 1), 4)}, v{24 + ks} offset:8192")
    e(f"v_add_f32 v{SX[0]}, v{SX[0]}, v42")
    e(f"v_add_f32 v{SQ[0]}, v{SQ[0]}, v44")
    e(f"v_mov_b32 v{CSR}, 0")
    e("v_mov_b32 v42, 0")
    e("v_mov_b32 v44, 0")
    e("s_waitcnt lgkmcnt(0)")
    for ks in range(8):
        for c in range(4):
            x = XF(ks, 1) + c
            sxr, sqr = (42, 44) if c & 1 else (SX[1], SQ[1])
            e(f"v_dot2_f32_bf16 v{sxr}, v{x}, v47, v{sxr}")
            e(f"v_dot2_f32_bf16 v{sqr}, v{x}, v{x}, v{sqr}")
    e("s_cmp_lg_u32 s62, 4")
    e("s_cbranch_scc1 P1_NOXR")
    for ks in range(8):
        for c in range(4):
            e(f"v_dot2_f32_bf16 v{SR[0]}, v{XF(ks, 0) + c}, v{WR(ks) + c}, v{SR[0]}")
            e(f"v_dot2_f32_bf16 v{SR[1]}, v{XF(ks, 1) + c}, v{WR(ks) + c}, v{SR[1]}")
            e(f"v_dot2_f32_bf16 v{CSR}, v{WR(ks) + c}, v47, v{CSR}")
    e.label("P1_NOXR")
    for ks in range(8):
        for ct in range(2):
            for u in range(2):
                e(f"ds_read_b64_tr_b16 {vr(WF(ks, ct) + 2 * u, 2)}, v20 offset:{16384 + (16 * ks + 4 * u) * 128 + 64 * ct}")
        if ks >= 2:
            e("s_waitcnt lgkmcnt(8)")
            for c in range(4):
                for ct in range(2):
                    e(f"v_dot2_f32_bf16 v{CS[ct]}, v{WF(ks - 2, ct) + c}, v47, v{CS[ct]}")
    e("s_waitcnt lgkmcnt(0)")
    for ks in range(6, 8):
        for c in range(4):
            for ct in range(2):
                e(f"v_dot2_f32_bf16 v{CS[ct]}, v{WF(ks, ct) + c}, v47, v{CS[ct]}")
    for ks in range(8):
        for tt in range(2):
            for ct in range(2):
                mfma32(e, QA(tt, ct), WF(ks, ct), XF(ks, tt), None if ks == 0 else QA(tt, ct))
    e(f"v_add_f32 v{SX[1]}, v{SX[1]}, v42")
    e(f"v_add_f32 v{SQ[1]}, v{SQ[1]}, v44")
    e(f"v_mov_b32 v{CSK}, v{CSR}")
    swap_add(e, SX[0], SX[1])
    swap_add(e, SQ[0], SQ[1])
    swap_add(e, CS[0], CS[1])
    swap_add(e, SR[0], SR[1])
    swap_add(e, CSR, CSK)
    e("s_mul_i32 s67, s3, 1280")
    e("v_lshl_add_u32 v6, v1, 2, s67")
    for q, r in enumerate((32, 34, 36, 38, 40)):
        e(f"ds_write_b32 v6, v{r} offset:{O_ST2 + q * 256}")
    e("v_add_u32 v7, s64, v4")
    for tt in range(2):
        for ct in range(2):
            for rq in range(4):
                e(f"ds_write_b128 v7, {vr(QA(tt, ct) + 4 * rq, 4)} offset:{16384 + ((tt * 2 + ct) * 4 + rq) * 1024}")
            e("s_waitcnt lgkmcnt(8)")
    e("s_waitcnt lgkmcnt(0)")
    stamp(e, 7)
    e.label("P1_B4")
    e("s_barrier")
    e("s_lshr_b32 s68, s3, 1")
    e("s_and_b32 s69, s3, 1")
    e("v_lshlrev_b32 v6, 2, v1")
    e("s_lshl_b32 s67, s68, 7")
    e("v_lshl_add_u32 v7, v2, 2, s67")
    for wp in range(4):
        e(f"ds_read_b32 v{44 + wp}, v6 offset:{O_ST2 + wp * 1280 + 512}")
        e(f"ds_read_b32 v{112 + wp}, v7 offset:{O_ST2 + wp * 1280}")
        e(f"ds_read_b32 v{116 + wp}, v7 offset:{O_ST2 + wp * 1280 + 256}")
    e("s_lshl_b32 s67, s3, 12")
    e("s_lshl_b32 s70, s19, 11")
    e("s_add_u32 s67, s67, s70")
    e(f"s_add_u32 s67, s67, {L_KV + 16384}")
    e("v_add_u32 v8, s67, v4")
    e("v_add_u32 v9, 65536, v8")
    AR = lambda wp, rr: 64 + (wp * 2 + rr) * 4
    e("s_lshl_b32 s70, s19, 10")
    e("s_add_u32 s71, s64, s70")
    e("v_lshl_add_u32 v10, v1, 2, s71")
    e("s_lshl_b32 s67, s69, 7")
    e("s_lshl_b32 s70, s19, 6")
    e("s_add_u32 s67, s67, s70")
    e("s_add_u32 s67, s67, s71")
    e("v_lshl_add_u32 v11, v3, 4, s67")
    e("s_waitcnt lgkmcnt(4)")
    for wp in range(4):
        a = 8 if wp < 2 else 9
        for rr in range(2):
            e(f"ds_read_b128 {vr(AR(wp, rr), 4)}, v{a} offset:{(wp & 1) * 32768 + rr * 1024}")
    e("s_waitcnt lgkmcnt(8)")
    for b in (44, 112, 116):
        sum4(e, b, b, b + 1, b + 2, b + 3)
    e(f"ds_write_b32 v10, v44 offset:{P_PV}")
    for g in range(2):
        e(f"ds_read_b128 {vr(56 + 4 * g, 4)}, v11 offset:{P_PV + 32 * g}")
    token_stats(e, 112, 116, MB, DB, INV, 131, 132)
    e("s_xor_b32 s67, s68, s18")
    e("s_lshl_b32 s67, s67, 8")
    e("v_lshl_add_u32 v7, v2, 3, s67")
    e(f"v_mov_b32 v131, v{INV}")
    e(f"v_mov_b32 v130, v{MB}")
    e(f"ds_write_b64 v7, v[130:131] offset:{L_TS}")
    e(f"v_mul_f32 v132, {hex(QSCALE)}, v131")
    e("s_waitcnt lgkmcnt(4)")
    for r in range(8):
        a = 64 + r
        sum4(e, a, a, a + 8, a + 16, a + 24)
    e("v_add_u32 v10, s71, v4")
    e("s_waitcnt lgkmcnt(0)")
    for r in range(8):
        a = 64 + r
        e(f"v_fma_f32 v{a}, -v{MB}, v{56 + r}, v{a}")
        e(f"v_mul_f32 v{a}, v132, v{a}")
        if r & 1:
            e(f"v_cvt_pk_bf16_f32 v{88 + r // 2}, v{a - 1}, v{a}")
    e(f"ds_write_b128 v10, v[88:91] offset:{P_QF}")
    e("s_waitcnt vmcnt(0) lgkmcnt(0)")
    e("s_barrier")
    e("s_cmp_ge_u32 s60, 4")
    e("s_cbranch_scc1 K2_H")

    ACC = lambda q: 128 + 16 * q
    Q = lambda q: 96 + 4 * q
    S = [64, 80]
    P = 56
    KB = [8, 12]
    VB = [24, 32]
    NB = 2
    e("s_lshl_b32 s68, s60, 15")
    e(f"s_add_u32 s68, s68, {hex(WS_KV)}")
    e("s_mov_b32 s50, 0x0000ffff")
    e("s_mov_b32 s51, 0x0000ffff")
    e("s_lshl_b32 s67, s18, 16")
    e(f"s_add_u32 s70, s67, {L_KV + P_QF}")
    e("v_add_u32 v6, s70, v4")
    e("s_xor_b32 s67, s67, 65536")
    e(f"s_add_u32 s70, s67, {L_KV + P_QF}")
    e("v_add_u32 v7, s70, v4")
    for q in range(8):
        hl, tt = q >> 1, q & 1
        e(f"ds_read_b128 {vr(Q(q), 4)}, v{6 + tt} offset:{(hl >> 1) * 32768 + (hl & 1) * 1024}")

    def init_v():
        e("v_and_b32 v6, 27, v2")
        e("v_cmp_eq_u32 vcc, 16, v6")
        e(f"v_mov_b32 v7, {hex(ONES)}")
        e("s_nop 0")
        e("v_cndmask_b32 v7, 0, v7, vcc")
        for r in range(24, 40):
            e(f"v_mov_b32 v{r}, v7")

    def load_q():
        pass

    def load_kv(buf, soff, imm=0, tag="kv"):
        e.vmem(f"buffer_load_dwordx4 {vr(KB[buf], 4)}, v4, s[44:47], {soff} offen offset:{imm} sc1", tag + "k")
        e("s_mov_b64 exec, s[50:51]")
        e.vmem(f"buffer_load_dwordx4 {vr(VB[buf], 4)}, v5, s[44:47], {soff} offen offset:{imm} sc1", tag + "v")
        e.vmem(f"buffer_load_dwordx4 {vr(VB[buf] + 4, 4)}, v5, s[44:47], {soff} offen offset:{imm + 512} sc1", tag + "v")
        e("s_mov_b64 exec, -1")

    def read_kv(buf, imm):
        e(f"ds_read_b128 {vr(KB[buf], 4)}, v40 offset:{imm}")
        e("s_mov_b64 exec, s[50:51]")
        e(f"ds_read_b128 {vr(VB[buf], 4)}, v41 offset:{imm}")
        e(f"ds_read_b128 {vr(VB[buf] + 4, 4)}, v41 offset:{imm + 512}")
        e("s_mov_b64 exec, -1")

    init_v()
    e("v_add_u32 v40, s64, v4")
    e("v_add_u32 v41, s64, v5")
    read_kv(0, 0)
    for r in range(P, P + 8):
        e(f"v_mov_b32 v{r}, 0")
    e("s_waitcnt lgkmcnt(0)")
    e("s_barrier")
    stamp(e, 2)
    cstamp(e, 8)
    mfma32(e, S[0], KB[0], Q(0))
    for r in range(128, 256):
        e(f"v_mov_b32 v{r}, 0")
    e(f"s_mov_b32 s70, {16 // UNR}")

    def slot(tb, q):
        kb = tb & 1
        t = q
        Sc, Sn = S[t & 1], S[(t + 1) & 1]
        if q < 7:
            mfma32(e, Sn, KB[kb], Q(q + 1))
        else:
            mfma32(e, Sn, KB[kb ^ 1], Q(0))
        for i in range(6):
            e(f"v_exp_f32 v{Sc + i}, v{Sc + i}")
        if q == 0:
            mfma32(e, ACC(7), VB[kb ^ 1] + 4, P + 4, ACC(7))
        else:
            mfma32(e, ACC(q - 1), VB[kb] + 4, P + 4, ACC(q - 1))
        for i in range(6, 8):
            e(f"v_exp_f32 v{Sc + i}, v{Sc + i}")
        if q == 5:
            read_kv(kb ^ 1, 2048 * (tb + 1))
        for c in range(4):
            e(f"v_cvt_pk_bf16_f32 v{P + c}, v{Sc + 2 * c}, v{Sc + 2 * c + 1}")
        e(f"v_exp_f32 v{Sc + 8}, v{Sc + 8}")
        e(f"v_exp_f32 v{Sc + 9}, v{Sc + 9}")
        mfma32(e, ACC(q), VB[kb], P, ACC(q))
        for i in range(10, 16):
            e(f"v_exp_f32 v{Sc + i}, v{Sc + i}")
            if q == 6 and i == 15:
                e("s_waitcnt lgkmcnt(0)")
        for c in range(4, 8):
            e(f"v_cvt_pk_bf16_f32 v{P + c}, v{Sc + 2 * c}, v{Sc + 2 * c + 1}")
        if q == 7 and tb == UNR - 1:
            e(f"v_add_u32 v40, {2048 * UNR}, v40")
            e(f"v_add_u32 v41, {2048 * UNR}, v41")

    e.raw(".p2align 6")
    e.label("K2_LOOP")
    for tb in range(UNR):
        for q in range(8):
            e.vm = []
            slot(tb, q)
    e("s_sub_u32 s70, s70, 1")
    e("s_cmp_lg_u32 s70, 7")
    e("s_cbranch_scc1 K2_LOOP_NB")
    e("s_barrier")
    e.label("K2_LOOP_NB")
    e("s_cmp_lg_u32 s70, 0")
    e("s_cbranch_scc1 K2_LOOP")
    mfma32(e, ACC(7), VB[1] + 4, P + 4, ACC(7))
    e.vm = []
    stamp(e, 3)
    cstamp(e, 9)
    e.label("K2_DUMP")
    e("s_lshr_b32 s71, s60, 1")
    e("s_and_b32 s72, s60, 1")
    e("s_lshl_b32 s73, s61, 6")
    e("s_lshl_b32 s67, s71, 5")
    e("s_add_u32 s73, s73, s67")
    e("v_add_u32 v56, s73, v2")
    e("v_lshlrev_b32 v57, 10, v56")
    e("v_lshl_add_u32 v57, v3, 5, v57")
    e("s_lshl_b32 s74, s62, 7")
    e("s_lshl_b32 s67, s72, 6")
    e("s_add_u32 s74, s74, s67")
    e("buffer_load_dwordx4 v[48:51], v57, s[20:23], s74 offen")
    e("buffer_load_dwordx4 v[52:55], v57, s[20:23], s74 offen offset:16")
    e("s_lshl_b32 s67, s71, 8")
    e("v_lshl_add_u32 v58, v2, 3, s67")
    e(f"ds_read_b64 v[46:47], v58 offset:{L_TS}")
    e("s_lshl_b32 s67, s60, 15")
    e(f"s_add_u32 s67, s67, {L_REDB}")
    e("v_add_u32 v6, s67, v4")
    e("v_lshl_add_u32 v7, v1, 2, s67")
    for q in range(8):
        e(f"ds_write_b128 v6, {vr(ACC(q), 4)} offset:{q * 2304}")
        e(f"ds_write_b128 v6, {vr(ACC(q) + 4, 4)} offset:{q * 2304 + 1024}")
        e(f"ds_write_b32 v7, v{ACC(q) + 8} offset:{q * 2304 + 2048}")
        if q >= 3:
            e("s_waitcnt lgkmcnt(9)")
    e("s_waitcnt lgkmcnt(0)")
    e.label("K2_BAR1")
    e("s_barrier")
    stamp(e, 4)
    e("s_mul_i32 s67, s60, 2304")
    e(f"s_add_u32 s67, s67, {L_REDB}")
    e("v_add_u32 v6, s67, v4")
    e("v_lshl_add_u32 v7, v1, 2, s67")
    e("v_add_u32 v44, 65536, v6")
    e("v_add_u32 v45, 65536, v7")
    for wp in range(4):
        a, b = (6, 7) if wp < 2 else (44, 45)
        e(f"ds_read_b128 {vr(8 + wp * 8, 4)}, v{a} offset:{(wp & 1) * 32768}")
        e(f"ds_read_b128 {vr(12 + wp * 8, 4)}, v{a} offset:{(wp & 1) * 32768 + 1024}")
        e(f"ds_read_b32 v{40 + wp}, v{b} offset:{(wp & 1) * 32768 + 2048}")
    e("s_and_b32 s67, s60, 1")
    e("s_lshl_b32 s71, s61, 1")
    e("s_add_u32 s67, s67, s71")
    e("s_lshl_b32 s67, s67, 5")
    e("s_lshl_b32 s71, s62, 2")
    e("s_add_u32 s67, s67, s71")
    e("s_lshr_b32 s71, s60, 1")
    e("s_add_u32 s67, s67, s71")
    e("s_lshl_b32 s67, s67, 10")
    e(f"s_add_u32 s67, s67, {hex(WS_OF)}")
    e("v_mov_b32 v45, 0x37800000")
    e("v_mov_b32 v44, 0x5f800000")
    e("s_waitcnt lgkmcnt(0)")
    sum4(e, 40, 40, 41, 42, 43)
    e("v_rcp_f32 v41, v40")
    for i in range(8):
        sum4(e, 8 + i, 8 + i, 16 + i, 24 + i, 32 + i)
    e("v_fma_f32 v42, v8, 0, v40")
    for i in range(1, 8):
        e(f"v_fma_f32 v42, v{8 + i}, 0, v42")
    for i in range(8):
        e(f"v_mul_f32 v{8 + i}, v41, v{8 + i}")
    e("v_cmp_nle_f32 vcc, v45, v42")
    e("v_cmp_nle_f32 s[72:73], v42, v44")
    for c in range(4):
        e(f"v_cvt_pk_bf16_f32 v{16 + c}, v{8 + 2 * c}, v{9 + 2 * c}")
    e("s_or_b64 vcc, vcc, s[72:73]")
    e("s_waitcnt vmcnt(0)")
    e("s_cmp_lg_u32 s59, 0")
    e("s_cbranch_scc1 K2_STORED")
    e("s_cmp_lg_u32 s63, 0")
    e("s_cbranch_scc1 K2_DOSTORE")
    e("s_cmp_eq_u64 vcc, 0")
    e("s_cbranch_scc1 K2_DOSTORE")
    e("v_mov_b32 v6, 1")
    e(f"v_mov_b32 v7, {L_CNT + 4}")
    e("ds_write_b32 v7, v6")
    e("s_branch K2_STORED")
    e.label("K2_DOSTORE")
    e("buffer_store_dwordx4 v[16:19], v4, s[44:47], s67 offen")
    e(f"s_add_u32 s67, s67, {WS_OF2 - WS_OF}")
    e("buffer_store_dwordx4 v[16:19], v4, s[44:47], s67 offen sc1")
    e("s_mov_b32 s59, 1")
    e.label("K2_STORED")
    e("s_waitcnt lgkmcnt(0)")
    e("s_barrier")
    stamp(e, 5)
    e("s_cmp_lg_u32 s63, 0")
    e("s_cbranch_scc1 K2_POST")
    e(f"v_mov_b32 v7, {L_CNT + 4}")
    e("ds_read_b32 v6, v7")
    e("s_waitcnt lgkmcnt(0)")
    e("v_readfirstlane_b32 s67, v6")
    e("s_nop 3")
    e("s_cmp_lg_u32 s67, 0")
    e("s_cbranch_scc1 K2_SLOW")
    e.label("K2_POST")
    e("s_cmp_ge_u32 s60, 4")
    e("s_cbranch_scc1 K2_H2")
    e("s_mul_i32 s67, s60, 6144")
    e(f"s_add_u32 s67, s67, {L_STG}")
    e("v_add_u32 v10, s67, v4")
    e(f"v_mov_b32 v7, {L_SEL}")
    e("ds_read_b128 v[28:31], v7")
    for i in range(16):
        e(f"v_mov_b32 v{64 + i}, 0")
    e("s_and_b32 s72, s60, 1")
    e("v_lshlrev_b32 v11, 6, v3")
    e("s_lshl_b32 s67, s72, 7")
    e("v_add_u32 v11, s67, v11")
    e("s_waitcnt lgkmcnt(0)")
    for sl in range(2):
        e(f"v_cmp_eq_u32 vcc, v{28 + sl}, v56")
        e("s_and_saveexec_b64 s[76:77], vcc")
        e(f"s_cbranch_execz K2_NOY{sl}")
        for hq in range(4):
            for i in range(4):
                e(f"ds_read_b128 {vr(64 + hq * 16 + 4 * i, 4)}, v11 offset:{L_YS + sl * 1024 + hq * 256 + i * 16}")
            if hq == 2:
                e("s_waitcnt lgkmcnt(4)")
        e("s_waitcnt lgkmcnt(0)")
        for i in range(16):
            sum4(e, 64 + i, 64 + i, 80 + i, 96 + i, 112 + i)
            rbf(e, 64 + i, 64 + i)
            e(f"v_mul_f32 v{64 + i}, v{30 + sl}, v{64 + i}")
            rbf(e, 64 + i, 64 + i)
        e.label(f"K2_NOY{sl}")
        e("s_mov_b64 exec, -1")
    for dw in range(8):
        a, b = 64 + 2 * dw, 65 + 2 * dw
        e(f"v_lshlrev_b32 v22, 16, v{48 + dw}")
        e(f"v_and_b32 v23, 0xffff0000, v{48 + dw}")
        e("v_sub_f32 v22, v22, v46")
        e("v_sub_f32 v23, v23, v46")
        e("v_cvt_pk_bf16_f32 v24, v22, v23")
        e("v_lshlrev_b32 v22, 16, v24")
        e("v_and_b32 v23, 0xffff0000, v24")
        e("v_mul_f32 v22, v47, v22")
        e("v_mul_f32 v23, v47, v23")
        e("v_cvt_pk_bf16_f32 v24, v22, v23")
        e("v_lshlrev_b32 v22, 16, v24")
        e("v_and_b32 v23, 0xffff0000, v24")
        e(f"v_add_f32 v22, v22, v{a}")
        e(f"v_add_f32 v23, v23, v{b}")
        e("v_cvt_pk_bf16_f32 v24, v22, v23")
        e("v_lshlrev_b32 v22, 16, v24")
        e("v_and_b32 v23, 0xffff0000, v24")
        e(f"v_mul_f32 v25, {hex(NLOG2E)}, v22")
        e(f"v_mul_f32 v26, {hex(NLOG2E)}, v23")
        e("v_exp_f32 v25, v25")
        e("v_exp_f32 v26, v26")
        e("s_nop 0")
        e("v_add_f32 v25, 1.0, v25")
        e("v_add_f32 v26, 1.0, v26")
        e("v_rcp_f32 v25, v25")
        e("v_rcp_f32 v26, v26")
        e("s_nop 0")
        e("v_mul_f32 v22, v25, v22")
        e("v_mul_f32 v23, v26, v23")
        e("v_cvt_pk_bf16_f32 v24, v22, v23")
        e(f"v_lshlrev_b32 v{a}, 16, v24")
        e(f"v_and_b32 v{b}, 0xffff0000, v24")
        if dw & 1:
            e(f"ds_write_b128 v10, {vr(64 + 4 * (dw >> 1), 4)} offset:{(dw >> 1) * 1024}")
    e("s_waitcnt lgkmcnt(0)")
    stamp(e, 6)
    e("s_barrier")
    stamp_flush(e, 1, 44, 60)
    e("s_endpgm")

    e.label("K2_SLOW")
    e("s_mov_b32 s63, 1")
    e("s_cmp_ge_u32 s60, 4")
    e("s_cbranch_scc1 K2_SLOW_H")
    e.vm = []
    init_v()
    load_q()
    MXR = 16
    for q in range(8):
        e(f"v_mov_b32 v{MXR + q}, 0xff7fffff")
    for r in range(128, 256):
        e(f"v_mov_b32 v{r}, 0")
    e("s_mov_b32 s69, s68")
    e("s_mov_b32 s70, 16")
    e.label("K2_SLOW_P1")
    e.vmem(f"buffer_load_dwordx4 {vr(KB[1], 4)}, v4, s[44:47], s69 offen sc1", "k")
    e.vwait(None)
    for q in range(8):
        mfma32(e, S[0], KB[1], Q(q))
        e("s_nop 15")
        for i in range(8):
            e(f"v_max3_f32 v{MXR + q}, v{S[0] + 2 * i}, v{S[0] + 2 * i + 1}, v{MXR + q}")
    e("s_add_u32 s69, s69, 2048")
    e("s_sub_u32 s70, s70, 1")
    e("s_cmp_lg_u32 s70, 0")
    e("s_cbranch_scc1 K2_SLOW_P1")
    for q in range(8):
        e(f"v_mov_b32 v42, v{MXR + q}")
        e("s_nop 1")
        e(f"v_permlane32_swap_b32 v{MXR + q}, v42")
        e("s_nop 1")
        e(f"v_max_f32 v{MXR + q}, v{MXR + q}, v42")
    e("s_lshl_b32 s67, s60, 10")
    e("v_lshl_add_u32 v6, v2, 2, s67")
    for q in range(8):
        e(f"ds_write_b32 v6, v{MXR + q} offset:{L_MX + q * 128}")
    e("s_waitcnt lgkmcnt(0)")
    e("s_barrier")
    e("v_lshlrev_b32 v6, 2, v2")
    for q in range(8):
        for wp in range(4):
            e(f"ds_read_b32 v{42 + wp}, v6 offset:{L_MX + wp * 1024 + q * 128}")
        e("s_waitcnt lgkmcnt(0)")
        e(f"v_max3_f32 v{MXR + q}, v42, v43, v44")
        e(f"v_max_f32 v{MXR + q}, v{MXR + q}, v45")
    e("s_mov_b32 s69, s68")
    e("s_mov_b32 s70, 16")
    e.label("K2_SLOW_P2")
    load_kv(1, "s69", 0, "s")
    e.vwait(None)
    for q in range(8):
        mfma32(e, S[0], KB[1], Q(q))
        e("s_nop 15")
        for i in range(16):
            e(f"v_sub_f32 v{S[0] + i}, v{S[0] + i}, v{MXR + q}")
        for i in range(16):
            e(f"v_exp_f32 v{S[0] + i}, v{S[0] + i}")
        e("s_nop 0")
        for c in range(8):
            e(f"v_cvt_pk_bf16_f32 v{P + c}, v{S[0] + 2 * c}, v{S[0] + 2 * c + 1}")
        e("s_nop 1")
        mfma32(e, ACC(q), VB[1], P, ACC(q))
        mfma32(e, ACC(q), VB[1] + 4, P + 4, ACC(q))
    e("s_add_u32 s69, s69, 2048")
    e("s_sub_u32 s70, s70, 1")
    e("s_cmp_lg_u32 s70, 0")
    e("s_cbranch_scc1 K2_SLOW_P2")
    e("s_nop 3")
    e("s_branch K2_DUMP")
    e.label("K2_SLOW_H")
    e("s_barrier")
    e("s_branch K2_BAR1")

    e.label("K2_H")
    e.vm = []
    e("s_setprio 2")
    e("s_sub_u32 s66, s60, 4")
    e("v_and_b32 v8, 15, v1")
    e("v_lshrrev_b32 v9, 4, v1")
    e("s_lshl_b32 s67, s62, 2")
    e("s_add_u32 s81, s67, s66")
    e("s_cmp_lg_u32 s81, 17")
    e("s_cbranch_scc1 K2_H_NOR1")
    e("v_lshlrev_b32 v6, 2, v1")
    for qi, q in enumerate((0, 1, 3, 4)):
        for wp in range(4):
            e(f"ds_read_b32 v{112 + qi * 4 + wp}, v6 offset:{O_ST2 + wp * 1280 + q * 256}")
        if qi == 2:
            e("s_waitcnt lgkmcnt(4)")
    e("s_waitcnt lgkmcnt(0)")
    e.label("K2_H_NOR1")
    e("s_mul_i32 s64, s56, 28")
    e("s_add_u32 s64, s64, s57")
    e("s_mul_i32 s65, s66, 6144")
    e(f"s_add_u32 s65, s65, {L_STG}")
    e("s_cmp_lt_u32 s66, 2")
    e("s_cselect_b32 s52, s28, s32")
    e("s_cselect_b32 s53, s29, s33")
    e(f"s_mov_b32 s54, {hex(512 * 1792 * 2)}")
    e("s_mov_b32 s55, 0x00020000")
    e("s_lshr_b32 s48, s64, 3")
    e("s_and_b32 s49, s64, 7")
    e("s_lshl_b32 s49, s49, 1")
    e("s_and_b32 s67, s66, 1")
    e("s_add_u32 s49, s49, s67")
    e("v_lshrrev_b32 v6, 3, v1")
    e("v_and_b32 v12, 7, v1")
    e("v_lshlrev_b32 v12, 4, v12")
    e("s_movk_i32 s67, 3584")
    e("v_mad_u32_u24 v16, v6, s67, v12")
    e("v_lshlrev_b32 v17, 10, v9")
    e("v_lshl_add_u32 v17, v8, 4, v17")
    e("v_lshl_add_u32 v12, v6, 10, v12")
    e("v_bfe_u32 v13, v1, 2, 2")
    e("v_lshl_add_u32 v13, v3, 2, v13")
    e("v_lshlrev_b32 v13, 7, v13")
    e("v_and_b32 v14, 1, v1")
    e("v_lshl_add_u32 v13, v14, 5, v13")
    e("v_bfe_u32 v14, v1, 4, 1")
    e("v_lshl_add_u32 v13, v14, 4, v13")
    e("v_bfe_u32 v14, v1, 1, 1")
    e("v_lshl_add_u32 v13, v14, 3, v13")
    e("v_add_u32 v13, s65, v13")
    e("s_and_b32 s77, s66, 1")
    e("s_lshl_b32 s67, s77, 6")
    e("v_add_u32 v13, s67, v13")
    e("v_xor_b32 v29, 64, v13")
    e("s_lshl_b32 s69, s77, 18")
    e("s_lshl_b32 s67, s62, 7")
    e("s_add_u32 s69, s69, s67")
    e("s_lshl_b32 s74, s66, 15")
    e(f"s_add_u32 s75, s74, {hex(WS_KV)}")
    e(f"s_add_u32 s74, s74, {L_KV}")
    e("s_barrier")
    for n in range(8, 32):
        if n % 4 == 0:
            e(f"s_add_u32 m0, s74, {(n & ~3) * 1024}")
            e(f"s_add_u32 s67, s75, {(n & ~3) * 1024}")
        e(f"buffer_load_dwordx4 v4, s[44:47], s67 offen offset:{(n & 3) * 1024} sc1 lds")
    e("s_cmp_lg_u32 s81, 17")
    e("s_cbranch_scc1 K2_H_NOR2")
    for b in (112, 116, 120, 124):
        sum4(e, b, b, b + 1, b + 2, b + 3)
    token_stats(e, 112, 116, MB, DB, INV, 131, 132)
    e("v_readlane_b32 s67, v124, 0")
    e("s_nop 1")
    e(f"v_mul_f32 v18, s67, v{MB}")
    e("v_sub_f32 v120, v120, v18")
    e(f"v_mul_f32 v120, v{INV}, v120")
    rbf(e, 120, 120)
    e("v_ashrrev_i32 v18, 31, v120")
    e("v_or_b32 v18, 0x80000000, v18")
    e("v_xor_b32 v120, v120, v18")
    e("v_and_b32 v120, 0xffff0000, v120")
    e("s_lshl_b32 s67, s61, 6")
    e("v_add_u32 v19, s67, v1")
    e("v_sub_u32 v18, 0xffff, v19")
    e("v_or_b32 v120, v120, v18")
    e("v_lshlrev_b32 v19, 3, v19")
    e(f"s_mov_b32 s67, {hex(WS_STATS)}")
    e(f"buffer_store_dwordx2 v[{MB}:{DB}], v19, s[44:47], s67 offen sc1")
    e("v_mov_b32 v24, v120")
    dpp_umax_reduce(e, 24)
    e("v_readlane_b32 s70, v24, 63")
    e("s_nop 1")
    e("v_cmp_ne_u32 vcc, s70, v120")
    e("s_nop 1")
    e("v_cndmask_b32 v24, 0, v120, vcc")
    dpp_umax_reduce(e, 24)
    e("v_readlane_b32 s71, v24, 63")
    e("s_nop 1")
    e("v_mov_b32 v20, s70")
    e("v_mov_b32 v21, s71")
    e("v_mov_b32 v22, s80")
    e("v_mov_b32 v23, s80")
    e("s_lshl_b32 s67, s61, 4")
    e(f"s_add_u32 s67, s67, {hex(WS_KEYS)}")
    e("v_mov_b32 v18, 0")
    e("s_waitcnt vmcnt(0)")
    e("s_mov_b64 exec, 1")
    e("buffer_store_dwordx4 v[20:23], v18, s[44:47], s67 offen sc1")
    e("s_mov_b64 exec, -1")
    e.label("K2_H_NOR2")
    e("s_waitcnt vmcnt(0)")
    e("s_barrier")
    e("v_lshlrev_b32 v6, 4, v2")
    e(f"s_mov_b32 s67, {hex(WS_KEYS)}")
    e("s_mov_b32 s76, 0x40000")
    e.label("K2_H_SPINK")
    e("buffer_load_dwordx4 v[20:23], v6, s[44:47], s67 offen sc1")
    e("s_waitcnt vmcnt(0)")
    e("v_cmp_ne_u32 vcc, s80, v22")
    e("v_cmp_ne_u32 s[72:73], s80, v23")
    e("s_or_b64 vcc, vcc, s[72:73]")
    e("s_cmp_eq_u64 vcc, 0")
    e("s_cbranch_scc1 K2_H_SPINK_DONE")
    e("s_sleep 16")
    e("s_sub_u32 s76, s76, 1")
    e("s_cmp_lg_u32 s76, 0")
    e("s_cbranch_scc1 K2_H_SPINK")
    e.label("K2_H_SPINK_DONE")
    e("v_mov_b32 v10, v20")
    e("v_mov_b32 v11, v21")
    e("v_mov_b32 v18, v10")
    dpp_umax_reduce(e, 18)
    e("v_readlane_b32 s70, v18, 63")
    e("s_nop 1")
    e("v_cmp_eq_u32 vcc, s70, v10")
    e("s_nop 1")
    e("v_cndmask_b32 v18, v10, v11, vcc")
    dpp_umax_reduce(e, 18)
    e("v_readlane_b32 s71, v18, 63")
    e("s_nop 3")
    e("s_and_b32 s72, s70, 0xffff")
    e("s_sub_u32 s72, 0xffff, s72")
    e("s_and_b32 s73, s71, 0xffff")
    e("s_sub_u32 s73, 0xffff, s73")
    e("s_and_b32 s72, s72, 2047")
    e("s_and_b32 s73, s73, 2047")

    WOF = lambda hd, nt: 128 + (hd * 2 + nt) * 4

    def wo_rounds(h0, h1):
        hd = h0
        while hd < h1:
            n = min(3, h1 - hd)
            for i in range(2 * n):
                if i % 4 == 0:
                    e(f"s_add_u32 m0, s65, {i * 1024}")
                e(f"s_add_u32 s67, s69, {(2 * hd + i) * 8192 - (i & 3) * 1024}")
                e(f"buffer_load_dwordx4 v12, s[24:27], s67 offen offset:{(i & 3) * 1024} lds")
            e("s_waitcnt vmcnt(0)")
            for i in range(n):
                for nt in range(2):
                    for u in range(2):
                        e(f"ds_read_b64_tr_b16 {vr(WOF(hd + i, nt) + 2 * u, 2)}, v{13 if nt == 0 else 29} offset:{(16 * i + 8 * u) * 128}")
            e("s_waitcnt lgkmcnt(0)")
            hd += n

    e(f"s_cmp_lt_u32 s57, {FFNLIM}")
    e("s_cbranch_scc1 K2_H_FFN")
    wo_rounds(0, 6)
    e("s_branch K2_H_NOFFN1")
    e.label("K2_H_FFN")
    e("v_mov_b32 v18, s72")
    e("v_mov_b32 v19, s73")
    e("v_cmp_eq_u32 vcc, 0, v3")
    e("s_lshl_b32 s67, s49, 6")
    e("s_nop 0")
    e("v_cndmask_b32 v18, v19, v18, vcc")
    e("v_lshlrev_b32 v19, 10, v18")
    e("v_lshl_add_u32 v19, v2, 1, v19")
    e("buffer_load_ushort v20, v19, s[20:23], s67 offen")
    e("v_lshlrev_b32 v19, 3, v18")
    e(f"s_mov_b32 s67, {hex(WS_STATS)}")
    e("buffer_load_dwordx2 v[22:23], v19, s[44:47], s67 offen sc1")
    e(f"s_mul_i32 s68, s49, {32 * 3584}")
    e("s_lshl_b32 s67, s48, 7")
    e("s_add_u32 s68, s68, s67")
    for n in range(4):
        e(f"s_add_u32 m0, s65, {n * 1024}")
        e(f"s_add_u32 s67, s68, {n * 8 * 3584}")
        e("buffer_load_dwordx4 v16, s[52:55], s67 offen lds")
    e("s_lshl_b32 s68, s64, 13")
    e("s_lshl_b32 s67, s66, 8")
    e("s_add_u32 s68, s68, s67")
    for n in range(2):
        e(f"s_add_u32 m0, s65, {4096 + n * 1024}")
        e(f"s_add_u32 s67, s68, {n * 4096}")
        e("buffer_load_dwordx4 v17, s[36:39], s67 offen lds")
    e("v_bfe_u32 v24, v1, 2, 2")
    e("v_lshl_add_u32 v25, v9, 3, v24")
    e("v_lshlrev_b32 v25, 7, v25")
    e("v_and_b32 v26, 3, v1")
    e("v_lshl_add_u32 v25, v26, 3, v25")
    e("v_add_u32 v25, s65, v25")
    e("v_and_b32 v24, 1, v24")
    e("v_lshl_add_u32 v24, v9, 1, v24")
    e("v_lshlrev_b32 v24, 8, v24")
    e("v_lshl_add_u32 v24, v26, 3, v24")
    e("v_add_u32 v24, s65, v24")
    e("s_lshl_b32 s67, s66, 7")
    e("v_lshl_add_u32 v27, v1, 1, s67")
    e("v_and_b32 v28, 1, v8")
    e("v_lshlrev_b32 v28, 6, v28")
    e("v_lshl_add_u32 v28, v9, 4, v28")
    e("v_add_u32 v28, s67, v28")
    e("s_waitcnt vmcnt(6)")
    e("v_rcp_f32 v23, v23")
    e("v_lshlrev_b32 v20, 16, v20")
    e("v_sub_f32 v20, v20, v22")
    rbf(e, 20, 20)
    e("v_mul_f32 v20, v23, v20")
    e("v_cvt_pk_bf16_f32 v20, v20, v20")
    e(f"ds_write_b16 v27, v20 offset:{L_XS}")
    e(f"ds_read_b128 v[80:83], v28 offset:{L_XS}")
    e("s_waitcnt vmcnt(2)")
    GA = lambda ft: 64 + 4 * ft
    for ft in range(4):
        for u in range(2):
            e(f"ds_read_b64_tr_b16 {vr(GA(ft) + 2 * u, 2)}, v25 offset:{4 * u * 128 + ft * 32}")
    e("s_movk_i32 s67, 7168")
    e("v_mul_lo_u32 v19, v8, s67")
    e("v_lshl_add_u32 v19, v9, 4, v19")
    e("s_lshl_b32 s67, s49, 1")
    e("s_lshr_b32 s74, s66, 1")
    e("s_add_u32 s67, s67, s74")
    e(f"s_mul_i32 s67, s67, {2 * 7168}")
    e("s_lshl_b32 s74, s48, 8")
    e("s_add_u32 s67, s67, s74")
    e(f"s_add_u32 s75, s67, {hex(WS_PG)}")
    e("v_mov_b32 v26, s80")
    e("v_mov_b32 v18, 0")
    e("s_waitcnt lgkmcnt(0)")
    for ft in range(4):
        mfma16(e, 48 + 4 * ft, GA(ft), 80)
    e("s_mov_b32 exec_lo, 0x00030003")
    e("s_mov_b32 exec_hi, 0x00030003")
    e("s_nop 5")
    for ft in range(4):
        e(f"buffer_store_dwordx4 {vr(48 + 4 * ft, 4)}, v19, s[44:47], s75 offen offset:{64 * ft} sc1")
    e("s_mov_b64 exec, -1")
    DF = lambda ee: 96 + 4 * ee
    e("s_waitcnt vmcnt(4)")
    for ee in range(8):
        e(f"ds_read_b64_tr_b16 {vr(DF(ee), 2)}, v24 offset:{4096 + 32 * ee}")
        e(f"v_mov_b32 v{DF(ee) + 2}, 0")
        e(f"v_mov_b32 v{DF(ee) + 3}, 0")
    e("s_lshl_b32 s67, s64, 4")
    e("s_lshl_b32 s74, s66, 2")
    e("s_add_u32 s67, s67, s74")
    e(f"s_add_u32 s67, s67, {hex(WS_FLAGS + 4096)}")
    e("s_waitcnt vmcnt(0)")
    e("s_mov_b64 exec, 1")
    e("buffer_store_dword v26, v18, s[44:47], s67 offen sc1")
    e("s_mov_b64 exec, -1")
    e("s_waitcnt lgkmcnt(0)")
    wo_rounds(0, 6)
    e("s_mov_b32 exec_hi, 0")
    e("v_lshlrev_b32 v18, 2, v1")
    e("s_lshl_b32 s67, s48, 7")
    e(f"s_add_u32 s67, s67, {hex(WS_FLAGS + 4096)}")
    e("s_mov_b32 s76, 0x40000")
    e.label("K2_H_SPIN1")
    e("buffer_load_dword v19, v18, s[44:47], s67 offen sc1")
    e("s_waitcnt vmcnt(0)")
    e("v_cmp_ne_u32 vcc, s80, v19")
    e("s_cmp_eq_u64 vcc, 0")
    e("s_cbranch_scc1 K2_H_SPIN1_DONE")
    e("s_sleep 8")
    e("s_sub_u32 s76, s76, 1")
    e("s_cmp_lg_u32 s76, 0")
    e("s_cbranch_scc1 K2_H_SPIN1")
    e.label("K2_H_SPIN1_DONE")
    e("s_mov_b64 exec, -1")
    e("v_lshrrev_b32 v18, 1, v8")
    e(f"s_mov_b32 s67, {8 * 7168}")
    e("v_mul_lo_u32 v18, v18, s67")
    e("v_and_b32 v19, 1, v8")
    e("s_movk_i32 s67, 7168")
    e("v_mad_u32_u24 v18, v19, s67, v18")
    e("v_lshl_add_u32 v18, v9, 3, v18")
    e("s_lshl_b32 s74, s64, 5")
    e(f"s_add_u32 s74, s74, {hex(WS_PG)}")
    for kl in range(2):
        for m in range(2):
            e(f"s_add_u32 s67, s74, {(kl * 2 + m) * 2 * 7168}")
            e(f"buffer_load_dwordx2 {vr(64 + (kl * 2 + m) * 2, 2)}, v18, s[44:47], s67 offen sc1")
    e("v_mov_b32 v41, 0")
    e("v_mov_b32 v42, 0")
    e("v_mov_b32 v43, 0")
    e("s_waitcnt vmcnt(0) lgkmcnt(0)")
    for i in range(4):
        e(f"v_add_f32 v{64 + i}, v{64 + i}, v{68 + i}")
    for rot in (2, 4, 8):
        e("s_nop 0")
        for i in range(4):
            e(f"v_add_f32_dpp v{64 + i}, v{64 + i}, v{64 + i} row_ror:{rot} row_mask:0xf bank_mask:0xf")
    g0, g1, u0, u1 = 64, 65, 66, 67
    e(f"v_cvt_pk_bf16_f32 v24, v{g0}, v{g1}")
    e(f"v_cvt_pk_bf16_f32 v25, v{u0}, v{u1}")
    e(f"v_lshlrev_b32 v{g0}, 16, v24")
    e(f"v_and_b32 v{g1}, 0xffff0000, v24")
    e(f"v_lshlrev_b32 v{u0}, 16, v25")
    e(f"v_and_b32 v{u1}, 0xffff0000, v25")
    e(f"v_mul_f32 v24, {hex(NLOG2E)}, v{g0}")
    e(f"v_mul_f32 v25, {hex(NLOG2E)}, v{g1}")
    e("v_exp_f32 v24, v24")
    e("v_exp_f32 v25, v25")
    e("s_nop 0")
    e("v_add_f32 v24, 1.0, v24")
    e("v_add_f32 v25, 1.0, v25")
    e("v_rcp_f32 v24, v24")
    e("v_rcp_f32 v25, v25")
    e("s_nop 0")
    e(f"v_mul_f32 v{g0}, v24, v{g0}")
    e(f"v_mul_f32 v{g1}, v25, v{g1}")
    e(f"v_cvt_pk_bf16_f32 v24, v{g0}, v{g1}")
    e(f"v_lshlrev_b32 v{g0}, 16, v24")
    e(f"v_and_b32 v{g1}, 0xffff0000, v24")
    e(f"v_mul_f32 v{g0}, v{g0}, v{u0}")
    e(f"v_mul_f32 v{g1}, v{g1}, v{u1}")
    e(f"v_cvt_pk_bf16_f32 v40, v{g0}, v{g1}")
    e("v_lshlrev_b32 v19, 11, v8")
    e("v_lshl_add_u32 v19, v9, 4, v19")
    for ee in range(8):
        mfma16(e, 64 + 4 * ee, DF(ee), 40)
    e("s_lshl_b32 s67, s64, 12")
    e("s_lshl_b32 s74, s66, 9")
    e("s_add_u32 s67, s67, s74")
    e(f"s_add_u32 s67, s67, {hex(WS_YP)}")
    e("s_mov_b32 exec_lo, 0x00030003")
    e("s_mov_b32 exec_hi, 0x00030003")
    e("s_nop 3")
    for ee in range(8):
        e(f"buffer_store_dwordx4 {vr(64 + 4 * ee, 4)}, v19, s[44:47], s67 offen offset:{64 * ee} sc1")
    e("s_lshl_b32 s67, s66, 10")
    e("s_lshl_b32 s74, s64, 2")
    e("s_add_u32 s67, s67, s74")
    e(f"s_add_u32 s67, s67, {hex(WS_FLAGS)}")
    e("s_mov_b64 exec, 1")
    e("v_mov_b32 v18, 0")
    e("s_waitcnt vmcnt(0)")
    e("buffer_store_dword v26, v18, s[44:47], s67 offen sc1")
    e("s_mov_b64 exec, -1")
    e.label("K2_H_NOFFN1")
    for r in range(20, 24):
        e(f"v_mov_b32 v{r}, -1")
    e("s_lshl_b32 s67, s61, 6")
    e("s_lshl_b32 s74, s62, 2")
    e("s_add_u32 s67, s67, s74")
    e("s_add_u32 s67, s67, s66")
    e("s_lshl_b32 s67, s67, 10")
    e(f"s_add_u32 s67, s67, {hex(WS_OF)}")
    for off in (0, 32768, WS_OF2 - WS_OF, WS_OF2 - WS_OF + 32768):
        e(f"s_add_u32 s74, s67, {off}")
        e("buffer_store_dwordx4 v[20:23], v4, s[44:47], s74 offen sc1")
    e("s_lshl_b32 s67, s61, 3")
    e("s_add_u32 s67, s67, s62")
    e("s_lshl_b32 s67, s67, 2")
    e("s_add_u32 s67, s67, s66")
    e("s_lshl_b32 s67, s67, 2")
    e(f"s_add_u32 s67, s67, {hex(WS_INIT)}")
    e("v_mov_b32 v18, 0")
    e("v_mov_b32 v19, s80")
    e("s_waitcnt vmcnt(0)")
    e("s_mov_b64 exec, 1")
    e("buffer_store_dword v19, v18, s[44:47], s67 offen sc1")
    e("s_mov_b64 exec, -1")
    stamp(e, 3)
    wo_rounds(6, 16)
    e("s_lshr_b32 s74, s66, 1")
    e("s_lshl_b32 s75, s61, 1")
    e("s_add_u32 s75, s75, s74")
    e("s_lshl_b32 s67, s75, 5")
    e("v_add_u32 v15, s67, v2")
    e("v_lshlrev_b32 v14, 10, v15")
    e("v_lshl_add_u32 v14, v3, 5, v14")
    e("s_lshl_b32 s58, s62, 7")
    e("s_lshl_b32 s67, s77, 6")
    e("s_add_u32 s58, s58, s67")
    e("buffer_load_dwordx4 v[120:123], v14, s[20:23], s58 offen")
    e("buffer_load_dwordx4 v[124:127], v14, s[20:23], s58 offen offset:16")
    e("s_cmp_lg_u32 s66, 0")
    e("s_cbranch_scc1 K2_H_NOSEL")
    for sl in range(2):
        e(f"s_and_b32 s74, s{70 + sl}, 0xffff0000")
        e("s_mov_b32 s76, 0xffff0000")
        e("s_cmp_lt_i32 s74, 0")
        e("s_cselect_b32 s76, 0x80000000, s76")
        e("s_xor_b32 s74, s74, s76")
        e(f"v_mov_b32 v{22 + sl}, s74")
        e(f"v_mul_f32 v{22 + sl}, {hex(NLOG2E)}, v{22 + sl}")
        e(f"v_exp_f32 v{22 + sl}, v{22 + sl}")
        e("s_nop 0")
        e(f"v_add_f32 v{22 + sl}, 1.0, v{22 + sl}")
        e(f"v_rcp_f32 v{22 + sl}, v{22 + sl}")
        e("s_nop 0")
        rbf(e, 22 + sl, 22 + sl)
    e("v_mov_b32 v20, s72")
    e("v_mov_b32 v21, s73")
    e(f"v_mov_b32 v18, {L_SEL}")
    e("ds_write_b128 v18, v[20:23]")
    e.label("K2_H_NOSEL")
    for sl in range(2):
        e(f"s_lshr_b32 s67, s{72 + sl}, 6")
        e("s_cmp_lg_u32 s67, s61")
        e(f"s_cbranch_scc1 K2_H_NOCONS{sl}")
        if XNOFFN:
            e(f"s_branch K2_H_NOCONS{sl}")
        e("s_lshr_b32 s67, s62, 1")
        e("s_lshl_b32 s67, s67, 10")
        e("s_mul_i32 s74, s66, 224")
        e("s_add_u32 s67, s67, s74")
        e(f"s_add_u32 s67, s67, {hex(WS_FLAGS)}")
        e("v_lshlrev_b32 v18, 2, v1")
        e("s_mov_b32 s76, 0x40000")
        e("s_mov_b32 exec_hi, 0x00ffffff")
        e.label(f"K2_H_SPIN2_{sl}")
        e("buffer_load_dword v19, v18, s[44:47], s67 offen sc1")
        e("s_waitcnt vmcnt(0)")
        e("v_cmp_ne_u32 vcc, s80, v19")
        e("s_cmp_eq_u64 vcc, 0")
        e(f"s_cbranch_scc1 K2_H_SPIN2_DONE{sl}")
        e("s_sleep 8")
        e("s_sub_u32 s76, s76, 1")
        e("s_cmp_lg_u32 s76, 0")
        e(f"s_cbranch_scc1 K2_H_SPIN2_{sl}")
        e.label(f"K2_H_SPIN2_DONE{sl}")
        e("s_mov_b64 exec, -1")
        e("v_lshlrev_b32 v18, 12, v9")
        e("v_lshl_add_u32 v18, v8, 4, v18")
        e(f"s_mul_i32 s67, s66, {56 * 4096}")
        e("s_lshl_b32 s74, s62, 8")
        e("s_add_u32 s67, s67, s74")
        e(f"s_add_u32 s67, s67, {hex(WS_YP + sl * 2048)}")
        for i in range(14):
            e(f"buffer_load_dwordx4 {vr(64 + 4 * i, 4)}, v18, s[44:47], s67 offen sc1")
            e("s_add_u32 s67, s67, 16384")
        e("s_waitcnt vmcnt(0)")
        for i in range(1, 14):
            for c in range(4):
                e(f"v_add_f32 v{64 + c}, v{64 + c}, v{64 + 4 * i + c}")
        swap_add(e, 64, 65)
        swap_add(e, 66, 67)
        e("s_nop 1")
        e("v_permlane16_swap_b32 v64, v66")
        e("s_nop 1")
        e("v_add_f32 v64, v64, v66")
        e("v_and_b32 v19, 1, v9")
        e("v_lshrrev_b32 v20, 1, v9")
        e("v_lshl_add_u32 v19, v19, 1, v20")
        e("v_lshl_add_u32 v19, v8, 2, v19")
        e("v_lshlrev_b32 v19, 2, v19")
        e("s_lshl_b32 s67, s66, 8")
        e("v_add_u32 v19, s67, v19")
        e(f"ds_write_b32 v19, v64 offset:{L_YS + sl * 1024}")
        e.label(f"K2_H_NOCONS{sl}")
    e("s_lshl_b32 s67, s61, 7")
    e(f"s_add_u32 s67, s67, {hex(WS_INIT)}")
    e("v_lshlrev_b32 v18, 2, v2")
    e("s_mov_b32 s76, 0x40000")
    e.label("K2_H_SPINI")
    e("buffer_load_dword v19, v18, s[44:47], s67 offen sc1")
    e("s_waitcnt vmcnt(0)")
    e("v_cmp_ne_u32 vcc, s80, v19")
    e("s_cmp_eq_u64 vcc, 0")
    e("s_cbranch_scc1 K2_H_SPINI_DONE")
    e("s_sleep 8")
    e("s_sub_u32 s76, s76, 1")
    e("s_cmp_lg_u32 s76, 0")
    e("s_cbranch_scc1 K2_H_SPINI")
    e.label("K2_H_SPINI_DONE")
    e("v_mov_b32 v2, v14")
    e("v_add_u32 v3, s65, v4")
    for r in range(72, 104):
        e(f"v_mov_b32 v{r}, 0")
    stamp(e, 9)
    e("s_waitcnt vmcnt(0) lgkmcnt(0)")
    stamp(e, 8)
    e("s_setprio 0")
    e("s_branch K2_BAR1")

    e.label("K2_H2")
    e("s_lshl_b32 s68, s75, 15")
    e("s_lshl_b32 s67, s77, 14")
    e("s_add_u32 s68, s68, s67")
    e(f"s_add_u32 s68, s68, {hex(WS_OF)}")
    OFR = lambda hd: 8 + hd * 4
    OA = [72, 88]
    G_ = 104
    e("s_mov_b32 s76, 0x10000")
    e("s_mov_b32 s74, 0")
    e("s_mov_b32 s71, s68")
    e.label("K2_H_POLL")
    for src in range(4):
        e(f"s_bitcmp1_b32 s74, {src}")
        e(f"s_cbranch_scc1 K2_H_NL{src}")
        e(f"s_add_u32 s67, s71, {src * 4096}")
        for i in range(4):
            e(f"buffer_load_dwordx4 {vr(OFR(4 * src + i), 4)}, v4, s[44:47], s67 offen offset:{i * 1024} sc1")
        e.label(f"K2_H_NL{src}")
    e.label("K2_H_CHECK")
    e("s_waitcnt vmcnt(0)")
    for src in range(4):
        e(f"s_bitcmp1_b32 s74, {src}")
        e(f"s_cbranch_scc1 K2_H_NC{src}")
        o = OFR(4 * src)
        e(f"v_max3_u32 v6, v{o}, v{o + 1}, v{o + 2}")
        for r in range(o + 3, o + 15, 2):
            e(f"v_max3_u32 v6, v{r}, v{r + 1}, v6")
        e(f"v_max_u32 v6, v{o + 15}, v6")
        e("v_cmp_eq_u32 vcc, -1, v6")
        e("s_cmp_eq_u32 s76, 1")
        e("s_cselect_b64 vcc, 0, vcc")
        e("s_cmp_eq_u64 vcc, 0")
        e(f"s_cbranch_scc0 K2_H_NC{src}")
        for i in range(4):
            for nt in range(2):
                mfma32(e, OA[nt], WOF(4 * src + i, nt), OFR(4 * src + i), OA[nt])
        e(f"s_bitset1_b32 s74, {src}")
        e.label(f"K2_H_NC{src}")
    e("s_sub_u32 s76, s76, 1")
    e("s_and_b32 s67, s76, 1")
    e(f"s_cmp_gt_u32 s76, {0x10000 - 8}")
    e("s_cselect_b32 s67, 0, s67")
    e(f"s_mul_i32 s67, s67, {WS_OF2 - WS_OF}")
    e("s_add_u32 s71, s68, s67")
    e("s_cmp_lg_u32 s74, 15")
    e("s_cbranch_scc1 K2_H_POLL")
    stamp(e, 6)
    e("s_lshl_b32 s67, s66, 12")
    e(f"s_add_u32 s67, s67, {L_REDB}")
    e("v_add_u32 v6, s67, v4")
    e("s_xor_b32 s67, s67, 4096")
    e("v_add_u32 v7, s67, v4")
    for dw in range(8):
        e(f"v_lshlrev_b32 v{8 + 2 * dw}, 16, v{120 + dw}")
        e(f"v_and_b32 v{9 + 2 * dw}, 0xffff0000, v{120 + dw}")
    for i in range(4):
        e(f"ds_write_b128 v6, {vr(OA[1] + 4 * i, 4)} offset:{i * 1024}")
    e("s_waitcnt lgkmcnt(0)")
    e("s_barrier")
    for i in range(4):
        e(f"ds_read_b128 {vr(24 + 4 * i, 4)}, v7 offset:{i * 1024}")
        e(f"ds_read_b128 {vr(G_ + 4 * i, 4)}, v3 offset:{i * 1024}")
    e("s_waitcnt lgkmcnt(0)")
    for r in range(16):
        e(f"v_add_f32 v{24 + r}, v{24 + r}, v{OA[0] + r}")
        e(f"v_fma_f32 v{8 + r}, v{24 + r}, v{G_ + r}, v{8 + r}")
        if r & 1:
            e(f"v_cvt_pk_bf16_f32 v{40 + r // 2}, v{7 + r}, v{8 + r}")
    e("buffer_store_dwordx4 v[40:43], v2, s[40:43], s58 offen")
    e("buffer_store_dwordx4 v[44:47], v2, s[40:43], s58 offen offset:16")
    stamp(e, 7)
    stamp_flush(e, 1, 44, 60)
    e.label("K2_END")
    e("s_endpgm")
    return kn, 256, LDS_SIZE


def kd(name, nv, ns=96):
    return f""".p2align 6
.amdhsa_kernel {name}
  .amdhsa_next_free_vgpr {nv}
  .amdhsa_next_free_sgpr {ns}
  .amdhsa_accum_offset {(nv + 3) // 4 * 4}
  .amdhsa_group_segment_fixed_size 0
  .amdhsa_kernarg_size 104
  .amdhsa_user_sgpr_count 2
  .amdhsa_user_sgpr_kernarg_segment_ptr 1
  .amdhsa_system_sgpr_workgroup_id_x 1
  .amdhsa_float_denorm_mode_32 3
.end_amdhsa_kernel
"""


def main():
    e = Asm()
    k, nv, lds = gen_k(e)
    head = f"""; MQA attention + mixture-of-depths FFN, single fused kernel, generated by gen/gen5.py (hand-written generator)
; @launch grid=(256,1,1) block=(512,1,1) lds={lds}
.amdgcn_target "amdgcn-amd-amdhsa--gfx950"
.text
"""
    tail = '.section .rodata,"a"\n' + kd(k, nv, 102)
    args = [a for a in sys.argv[1:] if not a.startswith("--")]
    out = args[0] if args else f"cdna_kernels/{NAME}.s"
    with open(out, "w") as f:
        f.write(head + e.text() + tail)


if __name__ == "__main__":
    main()
```

```python
import sys

NAME = "recurrent_scan__grouped_kv_mqa__moe_arch_mod__prompt"

WS_QF = 0x000000
WS_KV = 0x200000
WS_KEYS = 0x220000
WS_STATS = 0x221000
WS_FLAGS = 0x226000
WS_PG = 0x240000
WS_RDY = 0x2B0000
WS_INIT = 0x2B8000
WS_OF = 0x300000
WS_YP = 0x500000
WS_OF2 = 0x600000
WS_PROF = 0x800000
WS_SIZE = 0x900000

QSCALE = 0x3eb8aa3b
NLOG2E = 0xbfb8aa3b
ONES = 0x3f803f80
EPS = 0x3727c5ac
INV512 = 0x3b000000

PROF = "--prof" in sys.argv
XNOFFN = "--xnoffn" in sys.argv
DBGOUT = "--dbgout" in sys.argv
PF1 = "--nopf1" not in sys.argv
PF2 = "--pf2" in sys.argv
PF0 = 0 if "--nopf0" in sys.argv else 4
UNR = 4 if "--unr4" in sys.argv else 2
FFNLIM = 0 if XNOFFN else 28


class Asm:
    def __init__(self):
        self.lines = []
        self.vm = []

    def __call__(self, s):
        self.lines.append("    " + s)

    def label(self, l):
        self.lines.append(l + ":")

    def raw(self, s):
        self.lines.append(s)

    def vmem(self, s, tag=None):
        self(s)
        self.vm.append(tag)
        assert len(self.vm) <= 63, "too many outstanding vmem ops"

    def vwait(self, tag=None):
        if tag is None:
            self("s_waitcnt vmcnt(0)")
            self.vm = []
            return
        idx = max(i for i, t in enumerate(self.vm) if t == tag)
        n = len(self.vm) - 1 - idx
        self(f"s_waitcnt vmcnt({n})")
        self.vm = self.vm[idx + 1:]

    def text(self):
        return "\n".join(self.lines) + "\n"


def stamp(e, i):
    if not PROF:
        return
    e("s_memrealtime s[88:89]")
    e("s_waitcnt lgkmcnt(0)")
    e(f"s_mov_b32 s{90 + i}, s88")


def cstamp(e, i):
    if not PROF:
        return
    e("s_memtime s[88:89]")
    e("s_waitcnt lgkmcnt(0)")
    e(f"s_mov_b32 s{90 + i}, s88")


def stamp_init(e):
    if PROF:
        for i in range(12):
            e(f"s_mov_b32 s{90 + i}, 0")
    stamp(e, 0)


def stamp_flush(e, kidx, wsrd, wave_sgpr):
    if not PROF:
        return
    stamp(e, 11)
    e("s_mov_b64 exec, 1")
    e("s_lshl_b32 s88, s2, 3")
    e(f"s_add_u32 s88, s88, s{wave_sgpr}")
    e("s_lshl_b32 s88, s88, 6")
    e(f"s_add_u32 s88, s88, {hex(WS_PROF + kidx * 320 * 8 * 64)}")
    e("v_mov_b32 v220, 0")
    for b in range(3):
        for i in range(4):
            e(f"v_mov_b32 v{216 + i}, s{90 + 4 * b + i}")
        e(f"buffer_store_dwordx4 v[216:219], v220, s[{wsrd}:{wsrd + 3}], s88 offen offset:{16 * b}")
        e("s_nop 1")


def vr(a, n=1):
    return f"v{a}" if n == 1 else f"v[{a}:{a + n - 1}]"


def srd(e, d, base, size):
    e(f"s_mov_b32 s{d}, s{base}")
    e(f"s_and_b32 s{d + 1}, s{base + 1}, 0xffff")
    e(f"s_mov_b32 s{d + 2}, {hex(size)}")
    e(f"s_mov_b32 s{d + 3}, 0x00020000")


def rbf(e, d, s):
    e(f"v_cvt_pk_bf16_f32 v{d}, v{s}, v{s}")
    e(f"v_and_b32 v{d}, 0xffff0000, v{d}")


def mfma32(e, d, a, b, c=None):
    cs = "0" if c is None else vr(c, 16)
    e(f"v_mfma_f32_32x32x16_bf16 {vr(d, 16)}, {vr(a, 4)}, {vr(b, 4)}, {cs}")


def mfma16(e, d, a, b, c=None):
    cs = "0" if c is None else vr(c, 4)
    e(f"v_mfma_f32_16x16x32_bf16 {vr(d, 4)}, {vr(a, 4)}, {vr(b, 4)}, {cs}")


def dpp_umax_reduce(e, v):
    for mod in ("row_shr:1 row_mask:0xf bank_mask:0xf bound_ctrl:0",
                "row_shr:2 row_mask:0xf bank_mask:0xf bound_ctrl:0",
                "row_shr:4 row_mask:0xf bank_mask:0xf bound_ctrl:0",
                "row_shr:8 row_mask:0xf bank_mask:0xf bound_ctrl:0",
                "row_bcast:15 row_mask:0xa bank_mask:0xf",
                "row_bcast:31 row_mask:0xc bank_mask:0xf"):
        e("s_nop 1")
        e(f"v_max_u32_dpp v{v}, v{v}, v{v} {mod}")
    e("s_nop 1")


def token_stats(e, sx, sq, mb, db, inv, t0, t1):
    e(f"v_mul_f32 v{t0}, {hex(INV512)}, v{sx}")
    e(f"v_mul_f32 v{t1}, {hex(INV512)}, v{sq}")
    rbf(e, mb, t0)
    e(f"v_fma_f32 v{t1}, -v{t0}, v{t0}, v{t1}")
    e(f"v_max_f32 v{t1}, 0, v{t1}")
    rbf(e, t1, t1)
    e(f"v_add_f32 v{t1}, {hex(EPS)}, v{t1}")
    rbf(e, t1, t1)
    e(f"v_sqrt_f32 v{t1}, v{t1}")
    e("s_nop 0")
    rbf(e, db, t1)
    e(f"v_rcp_f32 v{inv}, v{db}")
    e("s_nop 0")


def swap_add(e, a, b):
    e("s_nop 1")
    e(f"v_permlane32_swap_b32 v{a}, v{b}")
    e("s_nop 1")
    e(f"v_add_f32 v{a}, v{a}, v{b}")


def sum4(e, d, a, b, c, dd):
    e(f"v_add_f32 v{a}, v{a}, v{b}")
    e(f"v_add_f32 v{c}, v{c}, v{dd}")
    e(f"v_add_f32 v{d}, v{a}, v{c}")


SLP = int([a[6:] for a in sys.argv if a.startswith("--slp=")][0]) if any(a.startswith("--slp=") for a in sys.argv) else 8


def gen_k(e):
    kn = NAME + "_kernel"
    L_XS = 0
    L_YS = 512
    L_SEL = L_YS + 2048
    L_CNT = L_SEL + 16
    L_MX = L_CNT + 16
    L_TS = 6912
    L_STG = 8192
    assert L_MX + 4096 <= L_TS and L_TS + 512 <= L_STG
    L_KV = 32768
    L_REDB = 32768
    LDS_SIZE = 163840
    O_KVW = L_STG
    O_ST1 = 24576
    O_ST2 = L_STG
    P_PV, P_QF = 12288, 14336

    e.raw(".p2align 8")
    e.raw(f".globl {kn}")
    e.raw(f".type {kn},@function")
    e.label(kn)
    e("s_cmp_ge_u32 s2, 256")
    e("s_cbranch_scc1 K2_END")
    stamp_init(e)
    e("s_load_dwordx16 s[64:79], s[0:1], 0")
    e("s_load_dwordx8 s[80:87], s[0:1], 64")
    e("s_load_dwordx2 s[48:49], s[0:1], 96")
    e("v_and_b32 v1, 63, v0")
    e("v_lshrrev_b32 v6, 6, v0")
    e("v_and_b32 v2, 31, v1")
    e("v_lshrrev_b32 v3, 5, v1")
    e("v_readfirstlane_b32 s60, v6")
    e("v_lshlrev_b32 v4, 4, v1")
    e("s_and_b32 s56, s2, 7")
    e("s_lshr_b32 s57, s2, 3")
    e("s_getpc_b64 s[52:53]")
    e("s_and_b32 s58, s57, 3")
    e("s_lshl_b32 s58, s58, 13")
    e("s_add_u32 s58, s58, 1024")
    e("v_lshl_add_u32 v6, v0, 4, s58")
    e("global_load_dwordx4 v[252:255], v6, s[52:53]")
    e("s_lshr_b32 s58, s57, 3")
    e("s_lshl_b32 s61, s56, 2")
    e("s_add_u32 s61, s61, s58")
    e("s_and_b32 s62, s57, 7")
    e("s_and_b32 s3, s60, 3")
    e("s_and_b32 s18, s62, 1")
    e("s_lshr_b32 s19, s60, 2")
    e("s_mov_b32 s63, 0")
    e("s_mov_b32 s59, 0")
    e("v_and_b32 v5, 15, v2")
    e("v_lshlrev_b32 v5, 4, v5")
    e("v_lshl_add_u32 v5, v3, 8, v5")
    e("v_add_u32 v5, 1024, v5")
    e("s_waitcnt lgkmcnt(0)")
    srd(e, 20, 64, 2048 * 512 * 2)
    srd(e, 4, 66, 512 * 512 * 2)
    srd(e, 24, 72, 512 * 512 * 2)
    srd(e, 8, 76, 512 * 2)
    srd(e, 28, 78, 512 * 1792 * 2)
    srd(e, 32, 80, 512 * 1792 * 2)
    srd(e, 36, 82, 512 * 1792 * 2)
    srd(e, 40, 84, 2048 * 512 * 2)
    srd(e, 44, 48, WS_SIZE)
    e("s_mov_b32 s16, s86")
    e("s_mov_b32 s17, s87")
    e("s_cmp_lt_u32 s62, 2")
    e("s_cselect_b32 s12, s68, s70")
    e("s_cselect_b32 s13, s69, s71")
    e("s_and_b32 s13, s13, 0xffff")
    e(f"s_mov_b32 s14, {hex(512 * 16 * 2)}")
    e("s_mov_b32 s15, 0x00020000")
    stamp(e, 1)
    e("s_lshl_b32 s64, s3, 15")
    e(f"s_add_u32 s64, s64, {L_KV}")
    e("s_lshl_b32 s65, s3, 12")
    e(f"s_add_u32 s65, s65, {O_KVW}")
    e("s_cmp_lt_u32 s60, 4")
    e("s_cbranch_scc1 P1_C")

    e("s_add_u32 s67, s2, s3")
    e("s_cmp_lg_u32 s67, 0")
    e("s_cbranch_scc1 P1_NONCE0")
    e("s_memrealtime s[70:71]")
    e("v_mov_b32 v6, 0")
    e("s_waitcnt lgkmcnt(0)")
    e("s_or_b32 s70, s70, 1")
    e("v_mov_b32 v7, s70")
    e("s_mov_b64 exec, 1")
    e("global_store_dword v6, v7, s[16:17] sc1")
    e("s_mov_b64 exec, -1")
    e.label("P1_NONCE0")
    e("v_lshrrev_b32 v6, 4, v1")
    e("v_and_b32 v7, 15, v1")
    e("v_xor_b32 v7, v7, v6")
    for v in range(4):
        e(f"v_xor_b32 v{8 + v}, {4 * v}, v7")
        e(f"v_lshlrev_b32 v{8 + v}, 4, v{8 + v}")
        e(f"v_lshl_add_u32 v{8 + v}, v6, 10, v{8 + v}")
    e("v_lshrrev_b32 v6, 3, v1")
    e("v_and_b32 v12, 7, v1")
    e("v_lshlrev_b32 v12, 4, v12")
    e("v_lshl_add_u32 v12, v6, 10, v12")
    e("s_lshl_b32 s66, s61, 16")
    e("s_lshl_b32 s67, s3, 8")
    e("s_add_u32 s66, s66, s67")
    e("s_lshl_b32 s67, s18, 15")
    e("s_add_u32 s72, s66, s67")
    e("s_xor_b32 s67, s67, 32768")
    e("s_add_u32 s73, s66, s67")
    e("s_lshl_b32 s66, s3, 17")
    e("s_lshl_b32 s67, s62, 7")
    e("s_add_u32 s66, s66, s67")
    e("s_cmp_ge_u32 s62, 4")
    e("s_cbranch_scc1 P1_NOKVDMA")
    e("s_lshl_b32 s67, s3, 12")
    e("s_mov_b32 m0, s65")
    e("s_nop 0")
    for i in range(4):
        e(f"buffer_load_dwordx4 v4, s[12:15], s67 offen offset:{i * 1024} lds")
    e.label("P1_NOKVDMA")
    for n in range(16):
        if n % 4 == 0:
            e(f"s_add_u32 m0, s64, {(n >> 2) * 4096}")
        e(f"s_add_u32 s67, s{72 + (n >> 3)}, {(n & 7) * 4096 - (n & 3) * 1024}")
        e(f"buffer_load_dwordx4 v{8 + (n & 3)}, s[20:23], s67 offen offset:{(n & 3) * 1024} lds")

    def dma_w(kc):
        e(f"s_add_u32 m0, s64, {16384 + kc * 4096}")
        for i in range(4):
            n = kc * 4 + i
            e(f"s_add_u32 s67, s66, {n * 8192 - i * 1024}")
            e(f"buffer_load_dwordx4 v12, s[4:7], s67 offen offset:{i * 1024} lds")
    e("v_mov_b32 v6, 0")
    e("v_mov_b32 v7, 0")
    e(f"v_mov_b32 v20, {L_CNT}")
    e("ds_write_b64 v20, v[6:7]")
    e("s_waitcnt vmcnt(8) lgkmcnt(0)")
    e("s_barrier")
    dma_w(0)
    dma_w(1)
    dma_w(2)
    dma_w(3)
    e("v_mov_b32 v6, 0")
    e("s_cmp_ge_u32 s3, 2")
    e("s_cbranch_scc1 P1_L_NOTAG")
    e("global_load_dword v7, v6, s[16:17] sc1")
    e.label("P1_L_NOTAG")
    e("s_barrier")
    MB, DB, INV = 128, 129, 130
    PVB = 28672 - 256
    e("s_cmp_ge_u32 s62, 4")
    e("s_cbranch_scc1 P1_L_B3")
    e("s_cmp_lg_u32 s3, 1")
    e("s_cbranch_scc1 P1_L_B3")
    e("v_lshlrev_b32 v13, 2, v2")
    for wp in range(4):
        e(f"ds_read_b32 v{112 + wp}, v13 offset:{O_ST1 + wp * 1024}")
        e(f"ds_read_b32 v{116 + wp}, v13 offset:{O_ST1 + wp * 1024 + 128}")
        e(f"ds_read_b32 v{124 + wp}, v13 offset:{O_ST1 + wp * 1024 + 256}")
    e("s_waitcnt lgkmcnt(0)")
    for b in (112, 116, 124):
        sum4(e, b, b, b + 1, b + 2, b + 3)
    token_stats(e, 112, 116, MB, DB, INV, 131, 132)
    e(f"ds_write_b32 v13, v{MB} offset:{PVB + 256}")
    e(f"ds_write_b32 v13, v{INV} offset:{PVB + 512}")
    e(f"ds_write_b32 v13, v124 offset:{PVB + 768 + 128}")
    e("s_lshl_b32 s70, s61, 1")
    e("s_add_u32 s70, s70, s18")
    e("s_lshl_b32 s70, s70, 11")
    e(f"s_add_u32 s70, s70, {hex(WS_KV)}")
    e("v_lshlrev_b32 v11, 4, v3")
    e("v_lshlrev_b32 v13, 2, v2")
    e("s_cmp_lt_u32 s62, 2")
    e("s_cbranch_scc1 P1_KV_K")
    for wp in range(4):
        for rq in range(4):
            e(f"ds_read_b128 {vr(136 + (wp * 4 + rq) * 4, 4)}, v4 offset:{O_KVW + wp * 4096 + rq * 1024}")
        if wp >= 1:
            e("s_waitcnt lgkmcnt(6)")
    for g in range(4):
        e(f"ds_read_b128 {vr(200 + 4 * g, 4)}, v11 offset:{PVB + 256 + 32 * g}")
        e(f"ds_read_b128 {vr(216 + 4 * g, 4)}, v11 offset:{PVB + 512 + 32 * g}")
    e(f"ds_read_b32 v133, v13 offset:{PVB + 768 + 128}")
    e("v_lshlrev_b32 v10, 4, v2")
    e("v_lshl_add_u32 v10, v3, 8, v10")
    e("s_waitcnt lgkmcnt(0)")
    for r in range(16):
        a = 136 + r
        sum4(e, a, a, a + 16, a + 32, a + 48)
        e(f"v_fma_f32 v{a}, -v{200 + r}, v133, v{a}")
        e(f"v_mul_f32 v{a}, v{216 + r}, v{a}")
        if r & 1:
            e(f"v_cvt_pk_bf16_f32 v{232 + r // 2}, v{a - 1}, v{a}")
    e("s_mov_b32 exec_lo, 0x0000ffff")
    e("s_mov_b32 exec_hi, 0x0000ffff")
    e("buffer_store_dwordx4 v[232:235], v10, s[44:47], s70 offen offset:1024 sc1")
    e("buffer_store_dwordx4 v[236:239], v10, s[44:47], s70 offen offset:1536 sc1")
    e("s_mov_b64 exec, -1")
    e("s_branch P1_L_B3")
    e.label("P1_KV_K")
    for wp in range(4):
        for rr in range(2):
            e(f"ds_read_b128 {vr(136 + (wp * 2 + rr) * 4, 4)}, v4 offset:{O_KVW + wp * 4096 + rr * 1024}")
    for rr in range(2):
        e(f"ds_read_b128 {vr(200 + rr * 4, 4)}, v11 offset:{PVB + 768 + 128 + rr * 32}")
    e(f"ds_read_b32 v133, v13 offset:{PVB + 256}")
    e(f"ds_read_b32 v134, v13 offset:{PVB + 512}")
    e("s_waitcnt lgkmcnt(0)")
    for i in range(8):
        a = 136 + i
        sum4(e, a, a, a + 8, a + 16, a + 24)
        e(f"v_fma_f32 v{a}, -v133, v{200 + i}, v{a}")
        e(f"v_mul_f32 v{a}, v134, v{a}")
        if i & 1:
            e(f"v_cvt_pk_bf16_f32 v{232 + i // 2}, v{a - 1}, v{a}")
    e("buffer_store_dwordx4 v[232:235], v4, s[44:47], s70 offen sc1")
    e("s_branch P1_L_B3")
    e("s_branch P1_L_B3")
    e.label("P1_L_B3")
    e("s_waitcnt vmcnt(2) lgkmcnt(0)")
    e("s_cmp_ge_u32 s62, 4")
    e("s_cbranch_scc1 P1_L_B3W")
    e("s_cmp_lg_u32 s3, 1")
    e("s_cbranch_scc1 P1_L_B3W")
    e("s_cmp_ge_u32 s62, 2")
    e("s_cbranch_scc1 P1_L_B3X")
    e("s_waitcnt vmcnt(1)")
    e("s_branch P1_L_B3X")
    e.label("P1_L_B3W")
    e("s_waitcnt vmcnt(0)")
    e.label("P1_L_B3X")
    e("s_barrier")
    e("s_cmp_ge_u32 s62, 4")
    e("s_cbranch_scc1 P1_C_NOFLAG")
    e("s_cmp_lg_u32 s3, 1")
    e("s_cbranch_scc1 P1_C_NOFLAG")
    e("s_mov_b32 s76, 0x80000")
    e("v_mov_b32 v6, 0")
    e.label("P1_C_SPINN")
    e("s_waitcnt vmcnt(0)")
    e("v_readfirstlane_b32 s75, v7")
    e("s_nop 3")
    e("s_cmp_lg_u32 s75, 0")
    e("s_cbranch_scc1 P1_C_GOTN")
    e("s_sleep 16")
    e("global_load_dword v7, v6, s[16:17] sc1")
    e("s_sub_u32 s76, s76, 1")
    e("s_cmp_lg_u32 s76, 0")
    e("s_cbranch_scc1 P1_C_SPINN")
    e.label("P1_C_GOTN")
    e("v_lshlrev_b32 v6, 10, v1")
    e("s_lshl_b32 s67, s2, 2")
    e(f"s_add_u32 s67, s67, {hex(WS_RDY)}")
    e("s_mov_b32 exec_hi, 0")
    e("buffer_store_dword v7, v6, s[44:47], s67 offen sc1")
    e("s_mov_b64 exec, -1")
    e.label("P1_C_NOFLAG")
    stamp(e, 2)
    e(f"v_mov_b32 v20, {L_CNT}")
    e("s_mov_b32 s76, 0x80000")
    e("s_cmp_lg_u32 s3, 0")
    e("s_cbranch_scc1 P1_L_SPINL")
    e.label("P1_L_SPINN")
    e("s_waitcnt vmcnt(0)")
    e("v_readfirstlane_b32 s75, v7")
    e("s_nop 3")
    e("s_cmp_lg_u32 s75, 0")
    e("s_cbranch_scc1 P1_L_GOTN")
    e("s_sleep 16")
    e("global_load_dword v7, v6, s[16:17] sc1")
    e("s_sub_u32 s76, s76, 1")
    e("s_cmp_lg_u32 s76, 0")
    e("s_cbranch_scc1 P1_L_SPINN")
    e.label("P1_L_GOTN")
    e("s_and_b32 s67, s2, 31")
    e("s_lshl_b32 s67, s67, 10")
    e(f"s_add_u32 s67, s67, {hex(WS_RDY)}")
    e.label("P1_L_SPING")
    e("buffer_load_dwordx4 v[8:11], v4, s[44:47], s67 offen sc1")
    e("s_waitcnt vmcnt(0)")
    e("v_xor_b32 v8, v8, v7")
    e("v_xor_b32 v9, v9, v7")
    e("v_xor_b32 v10, v10, v7")
    e("v_xor_b32 v11, v11, v7")
    e("v_or3_b32 v8, v8, v9, v10")
    e("v_or_b32 v8, v8, v11")
    e("v_cmp_ne_u32 vcc, 0, v8")
    e("s_and_b32 vcc_lo, vcc_lo, 0x00ff00ff")
    e("s_and_b32 vcc_hi, vcc_hi, 0x00ff00ff")
    e("s_cmp_eq_u64 vcc, 0")
    e("s_cbranch_scc1 P1_L_GO")
    e(f"s_sleep {SLP}")
    e("s_sub_u32 s76, s76, 1")
    e("s_cmp_lg_u32 s76, 0")
    e("s_cbranch_scc1 P1_L_SPING")
    e.label("P1_L_GO")
    e("ds_write_b32 v20, v7")
    e("s_mov_b32 s67, s75")
    e("s_branch P1_L_KV")
    e.label("P1_L_SPINL")
    e("ds_read_b32 v8, v20")
    e("s_waitcnt lgkmcnt(0)")
    e("v_readfirstlane_b32 s67, v8")
    e("s_nop 3")
    e("s_cmp_lg_u32 s67, 0")
    e("s_cbranch_scc1 P1_L_KV")
    e("s_sleep 1")
    e("s_branch P1_L_SPINL")
    e.label("P1_L_KV")
    e("s_mov_b32 s80, s67")
    stamp(e, 10)
    e("s_lshl_b32 s75, s3, 15")
    e(f"s_add_u32 s75, s75, {hex(WS_KV)}")
    for n in range(8):
        if n % 4 == 0:
            e(f"s_add_u32 m0, s64, {n * 1024}")
            e(f"s_add_u32 s67, s75, {n * 1024}")
        e(f"buffer_load_dwordx4 v4, s[44:47], s67 offen offset:{(n & 3) * 1024} sc1 lds")
    e("s_branch P1_B4")

    e.label("P1_C")
    WR = lambda ks: 200 + 4 * ks
    e(f"v_mov_b32 v47, {hex(ONES)}")
    e("v_lshlrev_b32 v13, 4, v3")
    e("s_lshl_b32 s67, s3, 8")
    e("s_cmp_lg_u32 s62, 4")
    e("s_cbranch_scc1 P1_NOWR")
    for ks in range(8):
        e(f"buffer_load_dwordx4 {vr(WR(ks), 4)}, v13, s[8:11], s67 offen offset:{32 * ks}")
    e.label("P1_NOWR")
    e("v_and_b32 v6, 15, v2")
    e("v_xor_b32 v6, v6, v3")
    e("v_lshlrev_b32 v7, 8, v2")
    e("v_add_u32 v7, s64, v7")
    for ks in range(8):
        e(f"v_xor_b32 v{24 + ks}, {2 * ks}, v6")
        e(f"v_lshl_add_u32 v{24 + ks}, v{24 + ks}, 4, v7")
    e("v_bfe_u32 v6, v1, 2, 2")
    e("v_lshl_add_u32 v6, v3, 3, v6")
    e("v_and_b32 v7, 1, v1")
    e("v_bfe_u32 v15, v1, 1, 1")
    e("v_lshl_add_u32 v7, v7, 1, v15")
    e("v_bfe_u32 v15, v1, 4, 1")
    e("v_lshlrev_b32 v20, 7, v6")
    e("v_lshl_add_u32 v20, v15, 5, v20")
    e("v_lshl_add_u32 v20, v7, 3, v20")
    e("v_add_u32 v20, s64, v20")
    e("v_lshlrev_b32 v6, 5, v6")
    e("v_add_u32 v6, s65, v6")
    e("v_lshl_add_u32 v21, v7, 3, v6")
    e("v_and_b32 v22, 3, v1")
    e("v_lshl_add_u32 v22, v22, 3, v6")
    e("s_cmp_lt_u32 s62, 2")
    e("s_cbranch_scc1 P1_KADDR")
    e("v_mov_b32 v21, v22")
    e.label("P1_KADDR")
    SX, SQ, CS = [32, 33], [34, 35], [36, 37]
    SR, CSR, CSK = [38, 39], 40, 41
    for r in range(32, 46):
        e(f"v_mov_b32 v{r}, 0")
    XF = lambda ks, tt: 48 + (ks * 2 + tt) * 4
    QA = lambda tt, ct: 112 + (tt * 2 + ct) * 16
    WF = lambda ks, ct: 176 + (ks * 2 + ct) * 4
    KFR = lambda ks: 200 + 4 * ks
    AK = 232
    e("s_waitcnt vmcnt(0)")
    e("s_barrier")
    stamp(e, 10)
    MB, DB, INV = 128, 129, 130
    PVB = 28672 - 256
    for ks in range(8):
        e(f"ds_read_b128 {vr(XF(ks, 0), 4)}, v{24 + ks}")
    e("s_cmp_ge_u32 s62, 4")
    e("s_cbranch_scc1 P1_NOKF")
    for ks in range(8):
        e("s_waitcnt lgkmcnt(12)")
        for u in range(2):
            e(f"ds_read_b64_tr_b16 {vr(KFR(ks) + 2 * u, 2)}, v21 offset:{(16 * ks + 4 * u) * 32}")
    e.label("P1_NOKF")
    e("s_waitcnt lgkmcnt(0)")
    for ks in range(8):
        for c in range(4):
            x = XF(ks, 0) + c
            o = 10 if c & 1 else 0
            e(f"v_dot2_f32_bf16 v{SX[0] + o}, v{x}, v47, v{SX[0] + o}")
            e(f"v_dot2_f32_bf16 v{SQ[0] + o}, v{x}, v{x}, v{SQ[0] + o}")
    e("s_cmp_ge_u32 s62, 4")
    e("s_cbranch_scc1 P1_C_B2")
    for ks in range(8):
        for c in range(4):
            e(f"v_dot2_f32_bf16 v{CSK if c & 1 else CSR}, v{KFR(ks) + c}, v47, v{CSK if c & 1 else CSR}")
    e("s_cmp_lt_u32 s62, 2")
    e("s_cbranch_scc1 P1_XK")
    for ks in range(8):
        mfma32(e, AK, XF(ks, 0), KFR(ks), None if ks == 0 else AK)
    e("s_branch P1_XDONE")
    e.label("P1_XK")
    for ks in range(8):
        mfma32(e, AK, KFR(ks), XF(ks, 0), None if ks == 0 else AK)
    e.label("P1_XDONE")
    e(f"v_add_f32 v112, v{SX[0]}, v42")
    e(f"v_add_f32 v113, v{SQ[0]}, v44")
    e(f"v_add_f32 v114, v{CSK}, v{CSR}")
    e("v_mov_b32 v115, v114")
    swap_add(e, 112, 113)
    swap_add(e, 114, 115)
    e("s_lshl_b32 s67, s3, 10")
    e("v_lshl_add_u32 v6, v1, 2, s67")
    e(f"ds_write_b32 v6, v112 offset:{O_ST1}")
    e(f"ds_write_b32 v6, v114 offset:{O_ST1 + 256}")
    e("v_add_u32 v7, s65, v4")
    for rq in range(4):
        e(f"ds_write_b128 v7, {vr(AK + 4 * rq, 4)} offset:{rq * 1024}")
    e("s_waitcnt lgkmcnt(0)")
    e.label("P1_C_B2")
    e("s_barrier")
    e.label("P1_C_B3")
    e("s_waitcnt lgkmcnt(0)")
    e("s_barrier")
    stamp(e, 6)
    for ks in range(8):
        e(f"ds_read_b128 {vr(XF(ks, 1), 4)}, v{24 + ks} offset:8192")
    e(f"v_add_f32 v{SX[0]}, v{SX[0]}, v42")
    e(f"v_add_f32 v{SQ[0]}, v{SQ[0]}, v44")
    e(f"v_mov_b32 v{CSR}, 0")
    e("v_mov_b32 v42, 0")
    e("v_mov_b32 v44, 0")
    e("s_waitcnt lgkmcnt(0)")
    for ks in range(8):
        for c in range(4):
            x = XF(ks, 1) + c
            sxr, sqr = (42, 44) if c & 1 else (SX[1], SQ[1])
            e(f"v_dot2_f32_bf16 v{sxr}, v{x}, v47, v{sxr}")
            e(f"v_dot2_f32_bf16 v{sqr}, v{x}, v{x}, v{sqr}")
    e("s_cmp_lg_u32 s62, 4")
    e("s_cbranch_scc1 P1_NOXR")
    for ks in range(8):
        for c in range(4):
            e(f"v_dot2_f32_bf16 v{SR[0]}, v{XF(ks, 0) + c}, v{WR(ks) + c}, v{SR[0]}")
            e(f"v_dot2_f32_bf16 v{SR[1]}, v{XF(ks, 1) + c}, v{WR(ks) + c}, v{SR[1]}")
            e(f"v_dot2_f32_bf16 v{CSR}, v{WR(ks) + c}, v47, v{CSR}")
    e.label("P1_NOXR")
    for ks in range(8):
        for ct in range(2):
            for u in range(2):
                e(f"ds_read_b64_tr_b16 {vr(WF(ks, ct) + 2 * u, 2)}, v20 offset:{16384 + (16 * ks + 4 * u) * 128 + 64 * ct}")
        if ks >= 2:
            e("s_waitcnt lgkmcnt(8)")
            for c in range(4):
                for ct in range(2):
                    e(f"v_dot2_f32_bf16 v{CS[ct]}, v{WF(ks - 2, ct) + c}, v47, v{CS[ct]}")
    e("s_waitcnt lgkmcnt(0)")
    for ks in range(6, 8):
        for c in range(4):
            for ct in range(2):
                e(f"v_dot2_f32_bf16 v{CS[ct]}, v{WF(ks, ct) + c}, v47, v{CS[ct]}")
    for ks in range(8):
        for tt in range(2):
            for ct in range(2):
                mfma32(e, QA(tt, ct), WF(ks, ct), XF(ks, tt), None if ks == 0 else QA(tt, ct))
    e(f"v_add_f32 v{SX[1]}, v{SX[1]}, v42")
    e(f"v_add_f32 v{SQ[1]}, v{SQ[1]}, v44")
    e(f"v_mov_b32 v{CSK}, v{CSR}")
    swap_add(e, SX[0], SX[1])
    swap_add(e, SQ[0], SQ[1])
    swap_add(e, CS[0], CS[1])
    swap_add(e, SR[0], SR[1])
    swap_add(e, CSR, CSK)
    e("s_mul_i32 s67, s3, 1280")
    e("v_lshl_add_u32 v6, v1, 2, s67")
    for q, r in enumerate((32, 34, 36, 38, 40)):
        e(f"ds_write_b32 v6, v{r} offset:{O_ST2 + q * 256}")
    e("v_add_u32 v7, s64, v4")
    for r in range(48, 52):
        e(f"v_mov_b32 v{r}, 0")
    for tt in range(2):
        for ct in range(2):
            for rq in range(4):
                e(f"ds_write_b128 v7, {vr(QA(tt, ct) + 4 * rq, 4)} offset:{16384 + ((tt * 2 + ct) * 4 + rq) * 1024}")
            e("s_waitcnt lgkmcnt(8)")
    e("s_waitcnt lgkmcnt(0)")
    for q in range(1, 8):
        mfma32(e, 128 + 16 * q, 48, 48)
    stamp(e, 7)
    e.label("P1_B4")
    e("s_barrier")
    e("s_lshr_b32 s68, s3, 1")
    e("s_and_b32 s69, s3, 1")
    e("v_lshlrev_b32 v6, 2, v1")
    e("s_lshl_b32 s67, s68, 7")
    e("v_lshl_add_u32 v7, v2, 2, s67")
    for wp in range(4):
        e(f"ds_read_b32 v{44 + wp}, v6 offset:{O_ST2 + wp * 1280 + 512}")
        e(f"ds_read_b32 v{112 + wp}, v7 offset:{O_ST2 + wp * 1280}")
        e(f"ds_read_b32 v{116 + wp}, v7 offset:{O_ST2 + wp * 1280 + 256}")
    e("s_lshl_b32 s67, s3, 12")
    e("s_lshl_b32 s70, s19, 11")
    e("s_add_u32 s67, s67, s70")
    e(f"s_add_u32 s67, s67, {L_KV + 16384}")
    e("v_add_u32 v8, s67, v4")
    e("v_add_u32 v9, 65536, v8")
    AR = lambda wp, rr: 64 + (wp * 2 + rr) * 4
    e("s_lshl_b32 s70, s19, 10")
    e("s_add_u32 s71, s64, s70")
    e("v_lshl_add_u32 v10, v1, 2, s71")
    e("s_lshl_b32 s67, s69, 7")
    e("s_lshl_b32 s70, s19, 6")
    e("s_add_u32 s67, s67, s70")
    e("s_add_u32 s67, s67, s71")
    e("v_lshl_add_u32 v11, v3, 4, s67")
    e("s_waitcnt lgkmcnt(4)")
    for wp in range(4):
        a = 8 if wp < 2 else 9
        for rr in range(2):
            e(f"ds_read_b128 {vr(AR(wp, rr), 4)}, v{a} offset:{(wp & 1) * 32768 + rr * 1024}")
    e("s_waitcnt lgkmcnt(8)")
    for b in (44, 112, 116):
        sum4(e, b, b, b + 1, b + 2, b + 3)
    e(f"ds_write_b32 v10, v44 offset:{P_PV}")
    for g in range(2):
        e(f"ds_read_b128 {vr(56 + 4 * g, 4)}, v11 offset:{P_PV + 32 * g}")
    token_stats(e, 112, 116, MB, DB, INV, 131, 132)
    e("s_xor_b32 s67, s68, s18")
    e("s_lshl_b32 s67, s67, 8")
    e("v_lshl_add_u32 v7, v2, 3, s67")
    e(f"v_mov_b32 v131, v{INV}")
    e(f"v_mov_b32 v130, v{MB}")
    e(f"ds_write_b64 v7, v[130:131] offset:{L_TS}")
    e(f"v_mul_f32 v132, {hex(QSCALE)}, v131")
    e("s_waitcnt lgkmcnt(4)")
    for r in range(8):
        a = 64 + r
        sum4(e, a, a, a + 8, a + 16, a + 24)
    e("v_add_u32 v10, s71, v4")
    e("s_waitcnt lgkmcnt(0)")
    for r in range(8):
        a = 64 + r
        e(f"v_fma_f32 v{a}, -v{MB}, v{56 + r}, v{a}")
        e(f"v_mul_f32 v{a}, v132, v{a}")
        if r & 1:
            e(f"v_cvt_pk_bf16_f32 v{88 + r // 2}, v{a - 1}, v{a}")
    e(f"ds_write_b128 v10, v[88:91] offset:{P_QF}")
    e("s_waitcnt vmcnt(0) lgkmcnt(0)")
    e("s_barrier")
    e("s_cmp_ge_u32 s60, 4")
    e("s_cbranch_scc1 K2_H")

    ACC = lambda q: 128 + 16 * q
    Q = lambda q: 96 + 4 * q
    S = [64, 80]
    P = 56
    KB = [8, 12]
    VB = [24, 32]
    NB = 2
    e("s_lshl_b32 s68, s60, 15")
    e(f"s_add_u32 s68, s68, {hex(WS_KV)}")
    e("s_mov_b32 s50, 0x0000ffff")
    e("s_mov_b32 s51, 0x0000ffff")
    e("s_lshl_b32 s67, s18, 16")
    e(f"s_add_u32 s70, s67, {L_KV + P_QF}")
    e("v_add_u32 v6, s70, v4")
    e("s_xor_b32 s67, s67, 65536")
    e(f"s_add_u32 s70, s67, {L_KV + P_QF}")
    e("v_add_u32 v7, s70, v4")
    for q in range(8):
        hl, tt = q >> 1, q & 1
        e(f"ds_read_b128 {vr(Q(q), 4)}, v{6 + tt} offset:{(hl >> 1) * 32768 + (hl & 1) * 1024}")

    def init_v():
        e("v_and_b32 v6, 27, v2")
        e("v_cmp_eq_u32 vcc, 16, v6")
        e(f"v_mov_b32 v7, {hex(ONES)}")
        e("s_nop 0")
        e("v_cndmask_b32 v7, 0, v7, vcc")
        for r in range(24, 40):
            e(f"v_mov_b32 v{r}, v7")

    def load_q():
        pass

    def load_kv(buf, soff, imm=0, tag="kv"):
        e.vmem(f"buffer_load_dwordx4 {vr(KB[buf], 4)}, v4, s[44:47], {soff} offen offset:{imm} sc1", tag + "k")
        e("s_mov_b64 exec, s[50:51]")
        e.vmem(f"buffer_load_dwordx4 {vr(VB[buf], 4)}, v5, s[44:47], {soff} offen offset:{imm} sc1", tag + "v")
        e.vmem(f"buffer_load_dwordx4 {vr(VB[buf] + 4, 4)}, v5, s[44:47], {soff} offen offset:{imm + 512} sc1", tag + "v")
        e("s_mov_b64 exec, -1")

    def read_kv(buf, imm):
        e(f"ds_read_b128 {vr(KB[buf], 4)}, v40 offset:{imm}")
        e("s_mov_b64 exec, s[50:51]")
        e(f"ds_read_b128 {vr(VB[buf], 4)}, v41 offset:{imm}")
        e(f"ds_read_b128 {vr(VB[buf] + 4, 4)}, v41 offset:{imm + 512}")
        e("s_mov_b64 exec, -1")

    init_v()
    e("v_add_u32 v40, s64, v4")
    e("v_add_u32 v41, s64, v5")
    read_kv(0, 0)
    for r in range(P, P + 8):
        e(f"v_mov_b32 v{r}, 0")
    mfma32(e, 128, 48, 48)
    e("s_waitcnt lgkmcnt(0)")
    mfma32(e, S[0], KB[0], Q(0))
    e("s_barrier")
    stamp(e, 2)
    cstamp(e, 8)
    e(f"s_mov_b32 s70, {16 // UNR}")
    e("s_nop 7")
    e("s_nop 1")

    def slot(tb, q):
        kb = tb & 1
        t = q
        Sc, Sn = S[t & 1], S[(t + 1) & 1]
        if q < 7:
            mfma32(e, Sn, KB[kb], Q(q + 1))
        else:
            mfma32(e, Sn, KB[kb ^ 1], Q(0))
        for i in range(6):
            e(f"v_exp_f32 v{Sc + i}, v{Sc + i}")
        if q == 0:
            mfma32(e, ACC(7), VB[kb ^ 1] + 4, P + 4, ACC(7))
        else:
            mfma32(e, ACC(q - 1), VB[kb] + 4, P + 4, ACC(q - 1))
        for i in range(6, 8):
            e(f"v_exp_f32 v{Sc + i}, v{Sc + i}")
        if q == 5:
            read_kv(kb ^ 1, 2048 * (tb + 1))
        for c in range(4):
            e(f"v_cvt_pk_bf16_f32 v{P + c}, v{Sc + 2 * c}, v{Sc + 2 * c + 1}")
        e(f"v_exp_f32 v{Sc + 8}, v{Sc + 8}")
        e(f"v_exp_f32 v{Sc + 9}, v{Sc + 9}")
        mfma32(e, ACC(q), VB[kb], P, ACC(q))
        for i in range(10, 16):
            e(f"v_exp_f32 v{Sc + i}, v{Sc + i}")
            if q == 6 and i == 15:
                e("s_waitcnt lgkmcnt(0)")
        for c in range(4, 8):
            e(f"v_cvt_pk_bf16_f32 v{P + c}, v{Sc + 2 * c}, v{Sc + 2 * c + 1}")
        if q == 7 and tb == UNR - 1:
            e(f"v_add_u32 v40, {2048 * UNR}, v40")
            e(f"v_add_u32 v41, {2048 * UNR}, v41")

    e.raw(".p2align 6")
    e.label("K2_LOOP")
    for tb in range(UNR):
        for q in range(8):
            e.vm = []
            slot(tb, q)
    e("s_sub_u32 s70, s70, 1")
    e("s_cmp_lg_u32 s70, 7")
    e("s_cbranch_scc1 K2_LOOP_NB")
    e("s_barrier")
    e.label("K2_LOOP_NB")
    e("s_cmp_lg_u32 s70, 0")
    e("s_cbranch_scc1 K2_LOOP")
    mfma32(e, ACC(7), VB[1] + 4, P + 4, ACC(7))
    e.vm = []
    stamp(e, 3)
    cstamp(e, 9)
    e.label("K2_DUMP")
    e("s_lshr_b32 s71, s60, 1")
    e("s_and_b32 s72, s60, 1")
    e("s_lshl_b32 s73, s61, 6")
    e("s_lshl_b32 s67, s71, 5")
    e("s_add_u32 s73, s73, s67")
    e("v_add_u32 v56, s73, v2")
    e("v_lshlrev_b32 v57, 10, v56")
    e("v_lshl_add_u32 v57, v3, 5, v57")
    e("s_lshl_b32 s74, s62, 7")
    e("s_lshl_b32 s67, s72, 6")
    e("s_add_u32 s74, s74, s67")
    e("buffer_load_dwordx4 v[48:51], v57, s[20:23], s74 offen")
    e("buffer_load_dwordx4 v[52:55], v57, s[20:23], s74 offen offset:16")
    e("s_lshl_b32 s67, s71, 8")
    e("v_lshl_add_u32 v58, v2, 3, s67")
    e(f"ds_read_b64 v[46:47], v58 offset:{L_TS}")
    e("s_lshl_b32 s67, s60, 15")
    e(f"s_add_u32 s67, s67, {L_REDB}")
    e("v_add_u32 v6, s67, v4")
    e("v_lshl_add_u32 v7, v1, 2, s67")
    for q in range(8):
        e(f"ds_write_b128 v6, {vr(ACC(q), 4)} offset:{q * 2304}")
        e(f"ds_write_b128 v6, {vr(ACC(q) + 4, 4)} offset:{q * 2304 + 1024}")
        e(f"ds_write_b32 v7, v{ACC(q) + 8} offset:{q * 2304 + 2048}")
        if q >= 3:
            e("s_waitcnt lgkmcnt(9)")
    e("s_waitcnt lgkmcnt(0)")
    e.label("K2_BAR1")
    e("s_barrier")
    stamp(e, 4)
    e("s_mul_i32 s67, s60, 2304")
    e(f"s_add_u32 s67, s67, {L_REDB}")
    e("v_add_u32 v6, s67, v4")
    e("v_lshl_add_u32 v7, v1, 2, s67")
    e("v_add_u32 v44, 65536, v6")
    e("v_add_u32 v45, 65536, v7")
    for wp in range(4):
        a, b = (6, 7) if wp < 2 else (44, 45)
        e(f"ds_read_b128 {vr(8 + wp * 8, 4)}, v{a} offset:{(wp & 1) * 32768}")
        e(f"ds_read_b128 {vr(12 + wp * 8, 4)}, v{a} offset:{(wp & 1) * 32768 + 1024}")
        e(f"ds_read_b32 v{40 + wp}, v{b} offset:{(wp & 1) * 32768 + 2048}")
    e("s_and_b32 s67, s60, 1")
    e("s_lshl_b32 s71, s61, 1")
    e("s_add_u32 s67, s67, s71")
    e("s_lshl_b32 s67, s67, 5")
    e("s_lshl_b32 s71, s62, 2")
    e("s_add_u32 s67, s67, s71")
    e("s_lshr_b32 s71, s60, 1")
    e("s_add_u32 s67, s67, s71")
    e("s_lshl_b32 s67, s67, 10")
    e(f"s_add_u32 s67, s67, {hex(WS_OF)}")
    e("v_mov_b32 v45, 0x37800000")
    e("v_mov_b32 v44, 0x5f800000")
    e("s_waitcnt lgkmcnt(0)")
    sum4(e, 40, 40, 41, 42, 43)
    e("v_rcp_f32 v41, v40")
    for i in range(8):
        sum4(e, 8 + i, 8 + i, 16 + i, 24 + i, 32 + i)
    e("v_fma_f32 v42, v8, 0, v40")
    for i in range(1, 8):
        e(f"v_fma_f32 v42, v{8 + i}, 0, v42")
    for i in range(8):
        e(f"v_mul_f32 v{8 + i}, v41, v{8 + i}")
    e("v_cmp_nle_f32 vcc, v45, v42")
    e("v_cmp_nle_f32 s[72:73], v42, v44")
    for c in range(4):
        e(f"v_cvt_pk_bf16_f32 v{16 + c}, v{8 + 2 * c}, v{9 + 2 * c}")
    e("s_or_b64 vcc, vcc, s[72:73]")
    e("s_waitcnt vmcnt(0)")
    e("s_cmp_lg_u32 s59, 0")
    e("s_cbranch_scc1 K2_STORED")
    e("s_cmp_lg_u32 s63, 0")
    e("s_cbranch_scc1 K2_DOSTORE")
    e("s_cmp_eq_u64 vcc, 0")
    e("s_cbranch_scc1 K2_DOSTORE")
    e("v_mov_b32 v6, 1")
    e(f"v_mov_b32 v7, {L_CNT + 4}")
    e("ds_write_b32 v7, v6")
    e("s_branch K2_STORED")
    e.label("K2_DOSTORE")
    e("buffer_store_dwordx4 v[16:19], v4, s[44:47], s67 offen")
    e(f"s_add_u32 s67, s67, {WS_OF2 - WS_OF}")
    e("buffer_store_dwordx4 v[16:19], v4, s[44:47], s67 offen sc1")
    e("s_mov_b32 s59, 1")
    e.label("K2_STORED")
    e("s_waitcnt lgkmcnt(0)")
    e("s_barrier")
    stamp(e, 5)
    e("s_cmp_lg_u32 s63, 0")
    e("s_cbranch_scc1 K2_POST")
    e(f"v_mov_b32 v7, {L_CNT + 4}")
    e("ds_read_b32 v6, v7")
    e("s_waitcnt lgkmcnt(0)")
    e("v_readfirstlane_b32 s67, v6")
    e("s_nop 3")
    e("s_cmp_lg_u32 s67, 0")
    e("s_cbranch_scc1 K2_SLOW")
    e.label("K2_POST")
    e("s_cmp_ge_u32 s60, 4")
    e("s_cbranch_scc1 K2_H2")
    e("s_mul_i32 s67, s60, 6144")
    e(f"s_add_u32 s67, s67, {L_STG}")
    e("v_add_u32 v10, s67, v4")
    e(f"v_mov_b32 v7, {L_SEL}")
    e("ds_read_b128 v[28:31], v7")
    for i in range(16):
        e(f"v_mov_b32 v{64 + i}, 0")
    e("s_and_b32 s72, s60, 1")
    e("v_lshlrev_b32 v11, 6, v3")
    e("s_lshl_b32 s67, s72, 7")
    e("v_add_u32 v11, s67, v11")
    e("s_waitcnt lgkmcnt(0)")
    for sl in range(2):
        e(f"v_cmp_eq_u32 vcc, v{28 + sl}, v56")
        e("s_and_saveexec_b64 s[76:77], vcc")
        e(f"s_cbranch_execz K2_NOY{sl}")
        for hq in range(4):
            for i in range(4):
                e(f"ds_read_b128 {vr(64 + hq * 16 + 4 * i, 4)}, v11 offset:{L_YS + sl * 1024 + hq * 256 + i * 16}")
            if hq == 2:
                e("s_waitcnt lgkmcnt(4)")
        e("s_waitcnt lgkmcnt(0)")
        for i in range(16):
            sum4(e, 64 + i, 64 + i, 80 + i, 96 + i, 112 + i)
            rbf(e, 64 + i, 64 + i)
            e(f"v_mul_f32 v{64 + i}, v{30 + sl}, v{64 + i}")
            rbf(e, 64 + i, 64 + i)
        e.label(f"K2_NOY{sl}")
        e("s_mov_b64 exec, -1")
    for dw in range(8):
        a, b = 64 + 2 * dw, 65 + 2 * dw
        e(f"v_lshlrev_b32 v22, 16, v{48 + dw}")
        e(f"v_and_b32 v23, 0xffff0000, v{48 + dw}")
        e("v_sub_f32 v22, v22, v46")
        e("v_sub_f32 v23, v23, v46")
        e("v_cvt_pk_bf16_f32 v24, v22, v23")
        e("v_lshlrev_b32 v22, 16, v24")
        e("v_and_b32 v23, 0xffff0000, v24")
        e("v_mul_f32 v22, v47, v22")
        e("v_mul_f32 v23, v47, v23")
        e("v_cvt_pk_bf16_f32 v24, v22, v23")
        e("v_lshlrev_b32 v22, 16, v24")
        e("v_and_b32 v23, 0xffff0000, v24")
        e(f"v_add_f32 v22, v22, v{a}")
        e(f"v_add_f32 v23, v23, v{b}")
        e("v_cvt_pk_bf16_f32 v24, v22, v23")
        e("v_lshlrev_b32 v22, 16, v24")
        e("v_and_b32 v23, 0xffff0000, v24")
        e(f"v_mul_f32 v25, {hex(NLOG2E)}, v22")
        e(f"v_mul_f32 v26, {hex(NLOG2E)}, v23")
        e("v_exp_f32 v25, v25")
        e("v_exp_f32 v26, v26")
        e("s_nop 0")
        e("v_add_f32 v25, 1.0, v25")
        e("v_add_f32 v26, 1.0, v26")
        e("v_rcp_f32 v25, v25")
        e("v_rcp_f32 v26, v26")
        e("s_nop 0")
        e("v_mul_f32 v22, v25, v22")
        e("v_mul_f32 v23, v26, v23")
        e("v_cvt_pk_bf16_f32 v24, v22, v23")
        e(f"v_lshlrev_b32 v{a}, 16, v24")
        e(f"v_and_b32 v{b}, 0xffff0000, v24")
        if dw & 1:
            e(f"ds_write_b128 v10, {vr(64 + 4 * (dw >> 1), 4)} offset:{(dw >> 1) * 1024}")
    e("s_waitcnt lgkmcnt(0)")
    stamp(e, 6)
    e("s_barrier")
    stamp_flush(e, 1, 44, 60)
    e("s_endpgm")

    e.label("K2_SLOW")
    e("s_mov_b32 s63, 1")
    e("s_cmp_ge_u32 s60, 4")
    e("s_cbranch_scc1 K2_SLOW_H")
    e.vm = []
    init_v()
    load_q()
    MXR = 16
    for q in range(8):
        e(f"v_mov_b32 v{MXR + q}, 0xff7fffff")
    for r in range(128, 256):
        e(f"v_mov_b32 v{r}, 0")
    e("s_mov_b32 s69, s68")
    e("s_mov_b32 s70, 16")
    e.label("K2_SLOW_P1")
    e.vmem(f"buffer_load_dwordx4 {vr(KB[1], 4)}, v4, s[44:47], s69 offen sc1", "k")
    e.vwait(None)
    for q in range(8):
        mfma32(e, S[0], KB[1], Q(q))
        e("s_nop 15")
        for i in range(8):
            e(f"v_max3_f32 v{MXR + q}, v{S[0] + 2 * i}, v{S[0] + 2 * i + 1}, v{MXR + q}")
    e("s_add_u32 s69, s69, 2048")
    e("s_sub_u32 s70, s70, 1")
    e("s_cmp_lg_u32 s70, 0")
    e("s_cbranch_scc1 K2_SLOW_P1")
    for q in range(8):
        e(f"v_mov_b32 v42, v{MXR + q}")
        e("s_nop 1")
        e(f"v_permlane32_swap_b32 v{MXR + q}, v42")
        e("s_nop 1")
        e(f"v_max_f32 v{MXR + q}, v{MXR + q}, v42")
    e("s_lshl_b32 s67, s60, 10")
    e("v_lshl_add_u32 v6, v2, 2, s67")
    for q in range(8):
        e(f"ds_write_b32 v6, v{MXR + q} offset:{L_MX + q * 128}")
    e("s_waitcnt lgkmcnt(0)")
    e("s_barrier")
    e("v_lshlrev_b32 v6, 2, v2")
    for q in range(8):
        for wp in range(4):
            e(f"ds_read_b32 v{42 + wp}, v6 offset:{L_MX + wp * 1024 + q * 128}")
        e("s_waitcnt lgkmcnt(0)")
        e(f"v_max3_f32 v{MXR + q}, v42, v43, v44")
        e(f"v_max_f32 v{MXR + q}, v{MXR + q}, v45")
    e("s_mov_b32 s69, s68")
    e("s_mov_b32 s70, 16")
    e.label("K2_SLOW_P2")
    load_kv(1, "s69", 0, "s")
    e.vwait(None)
    for q in range(8):
        mfma32(e, S[0], KB[1], Q(q))
        e("s_nop 15")
        for i in range(16):
            e(f"v_sub_f32 v{S[0] + i}, v{S[0] + i}, v{MXR + q}")
        for i in range(16):
            e(f"v_exp_f32 v{S[0] + i}, v{S[0] + i}")
        e("s_nop 0")
        for c in range(8):
            e(f"v_cvt_pk_bf16_f32 v{P + c}, v{S[0] + 2 * c}, v{S[0] + 2 * c + 1}")
        e("s_nop 1")
        mfma32(e, ACC(q), VB[1], P, ACC(q))
        mfma32(e, ACC(q), VB[1] + 4, P + 4, ACC(q))
    e("s_add_u32 s69, s69, 2048")
    e("s_sub_u32 s70, s70, 1")
    e("s_cmp_lg_u32 s70, 0")
    e("s_cbranch_scc1 K2_SLOW_P2")
    e("s_nop 3")
    e("s_branch K2_DUMP")
    e.label("K2_SLOW_H")
    e("s_barrier")
    e("s_branch K2_BAR1")

    e.label("K2_H")
    e.vm = []
    e("s_setprio 2")
    e("s_sub_u32 s66, s60, 4")
    e("v_and_b32 v8, 15, v1")
    e("v_lshrrev_b32 v9, 4, v1")
    e("s_lshl_b32 s67, s62, 2")
    e("s_add_u32 s81, s67, s66")
    e("s_cmp_lg_u32 s81, 17")
    e("s_cbranch_scc1 K2_H_NOR1")
    e("v_lshlrev_b32 v6, 2, v1")
    for qi, q in enumerate((0, 1, 3, 4)):
        for wp in range(4):
            e(f"ds_read_b32 v{112 + qi * 4 + wp}, v6 offset:{O_ST2 + wp * 1280 + q * 256}")
        if qi == 2:
            e("s_waitcnt lgkmcnt(4)")
    e("s_waitcnt lgkmcnt(0)")
    e.label("K2_H_NOR1")
    e("s_mul_i32 s64, s56, 28")
    e("s_add_u32 s64, s64, s57")
    e("s_mul_i32 s65, s66, 6144")
    e(f"s_add_u32 s65, s65, {L_STG}")
    e("s_cmp_lt_u32 s66, 2")
    e("s_cselect_b32 s52, s28, s32")
    e("s_cselect_b32 s53, s29, s33")
    e(f"s_mov_b32 s54, {hex(512 * 1792 * 2)}")
    e("s_mov_b32 s55, 0x00020000")
    e("s_lshr_b32 s48, s64, 3")
    e("s_and_b32 s49, s64, 7")
    e("s_lshl_b32 s49, s49, 1")
    e("s_and_b32 s67, s66, 1")
    e("s_add_u32 s49, s49, s67")
    e("v_lshrrev_b32 v6, 3, v1")
    e("v_and_b32 v12, 7, v1")
    e("v_lshlrev_b32 v12, 4, v12")
    e("s_movk_i32 s67, 3584")
    e("v_mad_u32_u24 v16, v6, s67, v12")
    e("v_lshlrev_b32 v17, 10, v9")
    e("v_lshl_add_u32 v17, v8, 4, v17")
    e("v_lshl_add_u32 v12, v6, 10, v12")
    e("v_bfe_u32 v13, v1, 2, 2")
    e("v_lshl_add_u32 v13, v3, 2, v13")
    e("v_lshlrev_b32 v13, 7, v13")
    e("v_and_b32 v14, 1, v1")
    e("v_lshl_add_u32 v13, v14, 5, v13")
    e("v_bfe_u32 v14, v1, 4, 1")
    e("v_lshl_add_u32 v13, v14, 4, v13")
    e("v_bfe_u32 v14, v1, 1, 1")
    e("v_lshl_add_u32 v13, v14, 3, v13")
    e("v_add_u32 v13, s65, v13")
    e("s_and_b32 s77, s66, 1")
    e("s_lshl_b32 s67, s77, 6")
    e("v_add_u32 v13, s67, v13")
    e("v_xor_b32 v29, 64, v13")
    e("s_lshl_b32 s69, s77, 18")
    e("s_lshl_b32 s67, s62, 7")
    e("s_add_u32 s69, s69, s67")
    e("s_lshl_b32 s74, s66, 15")
    e(f"s_add_u32 s75, s74, {hex(WS_KV)}")
    e(f"s_add_u32 s74, s74, {L_KV}")
    e("s_barrier")
    for n in range(8, 32):
        if n % 4 == 0:
            e(f"s_add_u32 m0, s74, {(n & ~3) * 1024}")
            e(f"s_add_u32 s67, s75, {(n & ~3) * 1024}")
        e(f"buffer_load_dwordx4 v4, s[44:47], s67 offen offset:{(n & 3) * 1024} sc1 lds")
    e("s_cmp_lg_u32 s81, 17")
    e("s_cbranch_scc1 K2_H_NOR2")
    for b in (112, 116, 120, 124):
        sum4(e, b, b, b + 1, b + 2, b + 3)
    token_stats(e, 112, 116, MB, DB, INV, 131, 132)
    e("v_readlane_b32 s67, v124, 0")
    e("s_nop 1")
    e(f"v_mul_f32 v18, s67, v{MB}")
    e("v_sub_f32 v120, v120, v18")
    e(f"v_mul_f32 v120, v{INV}, v120")
    rbf(e, 120, 120)
    e("v_ashrrev_i32 v18, 31, v120")
    e("v_or_b32 v18, 0x80000000, v18")
    e("v_xor_b32 v120, v120, v18")
    e("v_and_b32 v120, 0xffff0000, v120")
    e("s_lshl_b32 s67, s61, 6")
    e("v_add_u32 v19, s67, v1")
    e("v_sub_u32 v18, 0xffff, v19")
    e("v_or_b32 v120, v120, v18")
    e("v_lshlrev_b32 v19, 3, v19")
    e(f"s_mov_b32 s67, {hex(WS_STATS)}")
    e(f"buffer_store_dwordx2 v[{MB}:{DB}], v19, s[44:47], s67 offen sc1")
    e("v_mov_b32 v24, v120")
    dpp_umax_reduce(e, 24)
    e("v_readlane_b32 s70, v24, 63")
    e("s_nop 1")
    e("v_cmp_ne_u32 vcc, s70, v120")
    e("s_nop 1")
    e("v_cndmask_b32 v24, 0, v120, vcc")
    dpp_umax_reduce(e, 24)
    e("v_readlane_b32 s71, v24, 63")
    e("s_nop 1")
    e("v_mov_b32 v20, s70")
    e("v_mov_b32 v21, s71")
    e("v_mov_b32 v22, s80")
    e("v_mov_b32 v23, s80")
    e("s_lshl_b32 s67, s61, 4")
    e(f"s_add_u32 s67, s67, {hex(WS_KEYS)}")
    e("v_mov_b32 v18, 0")
    e("s_waitcnt vmcnt(0)")
    e("s_mov_b64 exec, 1")
    e("buffer_store_dwordx4 v[20:23], v18, s[44:47], s67 offen sc1")
    e("s_mov_b64 exec, -1")
    e.label("K2_H_NOR2")
    e("s_waitcnt vmcnt(0)")
    e("s_barrier")
    e("v_lshlrev_b32 v6, 4, v2")
    e(f"s_mov_b32 s67, {hex(WS_KEYS)}")
    e("s_mov_b32 s76, 0x40000")
    e.label("K2_H_SPINK")
    e("buffer_load_dwordx4 v[20:23], v6, s[44:47], s67 offen sc1")
    e("s_waitcnt vmcnt(0)")
    e("v_cmp_ne_u32 vcc, s80, v22")
    e("v_cmp_ne_u32 s[72:73], s80, v23")
    e("s_or_b64 vcc, vcc, s[72:73]")
    e("s_cmp_eq_u64 vcc, 0")
    e("s_cbranch_scc1 K2_H_SPINK_DONE")
    e("s_sleep 16")
    e("s_sub_u32 s76, s76, 1")
    e("s_cmp_lg_u32 s76, 0")
    e("s_cbranch_scc1 K2_H_SPINK")
    e.label("K2_H_SPINK_DONE")
    e("v_mov_b32 v10, v20")
    e("v_mov_b32 v11, v21")
    e("v_mov_b32 v18, v10")
    dpp_umax_reduce(e, 18)
    e("v_readlane_b32 s70, v18, 63")
    e("s_nop 1")
    e("v_cmp_eq_u32 vcc, s70, v10")
    e("s_nop 1")
    e("v_cndmask_b32 v18, v10, v11, vcc")
    dpp_umax_reduce(e, 18)
    e("v_readlane_b32 s71, v18, 63")
    e("s_nop 3")
    e("s_and_b32 s72, s70, 0xffff")
    e("s_sub_u32 s72, 0xffff, s72")
    e("s_and_b32 s73, s71, 0xffff")
    e("s_sub_u32 s73, 0xffff, s73")
    e("s_and_b32 s72, s72, 2047")
    e("s_and_b32 s73, s73, 2047")

    WOF = lambda hd, nt: 128 + (hd * 2 + nt) * 4

    def wo_rounds(h0, h1):
        hd = h0
        while hd < h1:
            n = min(3, h1 - hd)
            for i in range(2 * n):
                if i % 4 == 0:
                    e(f"s_add_u32 m0, s65, {i * 1024}")
                e(f"s_add_u32 s67, s69, {(2 * hd + i) * 8192 - (i & 3) * 1024}")
                e(f"buffer_load_dwordx4 v12, s[24:27], s67 offen offset:{(i & 3) * 1024} lds")
            e("s_waitcnt vmcnt(0)")
            for i in range(n):
                for nt in range(2):
                    for u in range(2):
                        e(f"ds_read_b64_tr_b16 {vr(WOF(hd + i, nt) + 2 * u, 2)}, v{13 if nt == 0 else 29} offset:{(16 * i + 8 * u) * 128}")
            e("s_waitcnt lgkmcnt(0)")
            hd += n

    e(f"s_cmp_lt_u32 s57, {FFNLIM}")
    e("s_cbranch_scc1 K2_H_FFN")
    wo_rounds(0, 6)
    e("s_branch K2_H_NOFFN1")
    e.label("K2_H_FFN")
    e("v_mov_b32 v18, s72")
    e("v_mov_b32 v19, s73")
    e("v_cmp_eq_u32 vcc, 0, v3")
    e("s_lshl_b32 s67, s49, 6")
    e("s_nop 0")
    e("v_cndmask_b32 v18, v19, v18, vcc")
    e("v_lshlrev_b32 v19, 10, v18")
    e("v_lshl_add_u32 v19, v2, 1, v19")
    e("buffer_load_ushort v20, v19, s[20:23], s67 offen")
    e("v_lshlrev_b32 v19, 3, v18")
    e(f"s_mov_b32 s67, {hex(WS_STATS)}")
    e("buffer_load_dwordx2 v[22:23], v19, s[44:47], s67 offen sc1")
    e(f"s_mul_i32 s68, s49, {32 * 3584}")
    e("s_lshl_b32 s67, s48, 7")
    e("s_add_u32 s68, s68, s67")
    for n in range(4):
        e(f"s_add_u32 m0, s65, {n * 1024}")
        e(f"s_add_u32 s67, s68, {n * 8 * 3584}")
        e("buffer_load_dwordx4 v16, s[52:55], s67 offen lds")
    e("s_lshl_b32 s68, s64, 13")
    e("s_lshl_b32 s67, s66, 8")
    e("s_add_u32 s68, s68, s67")
    for n in range(2):
        e(f"s_add_u32 m0, s65, {4096 + n * 1024}")
        e(f"s_add_u32 s67, s68, {n * 4096}")
        e("buffer_load_dwordx4 v17, s[36:39], s67 offen lds")
    e("v_bfe_u32 v24, v1, 2, 2")
    e("v_lshl_add_u32 v25, v9, 3, v24")
    e("v_lshlrev_b32 v25, 7, v25")
    e("v_and_b32 v26, 3, v1")
    e("v_lshl_add_u32 v25, v26, 3, v25")
    e("v_add_u32 v25, s65, v25")
    e("v_and_b32 v24, 1, v24")
    e("v_lshl_add_u32 v24, v9, 1, v24")
    e("v_lshlrev_b32 v24, 8, v24")
    e("v_lshl_add_u32 v24, v26, 3, v24")
    e("v_add_u32 v24, s65, v24")
    e("s_lshl_b32 s67, s66, 7")
    e("v_lshl_add_u32 v27, v1, 1, s67")
    e("v_and_b32 v28, 1, v8")
    e("v_lshlrev_b32 v28, 6, v28")
    e("v_lshl_add_u32 v28, v9, 4, v28")
    e("v_add_u32 v28, s67, v28")
    e("s_waitcnt vmcnt(6)")
    e("v_rcp_f32 v23, v23")
    e("v_lshlrev_b32 v20, 16, v20")
    e("v_sub_f32 v20, v20, v22")
    rbf(e, 20, 20)
    e("v_mul_f32 v20, v23, v20")
    e("v_cvt_pk_bf16_f32 v20, v20, v20")
    e(f"ds_write_b16 v27, v20 offset:{L_XS}")
    e(f"ds_read_b128 v[80:83], v28 offset:{L_XS}")
    e("s_waitcnt vmcnt(2)")
    GA = lambda ft: 64 + 4 * ft
    for ft in range(4):
        for u in range(2):
            e(f"ds_read_b64_tr_b16 {vr(GA(ft) + 2 * u, 2)}, v25 offset:{4 * u * 128 + ft * 32}")
    e("s_movk_i32 s67, 7168")
    e("v_mul_lo_u32 v19, v8, s67")
    e("v_lshl_add_u32 v19, v9, 4, v19")
    e("s_lshl_b32 s67, s49, 1")
    e("s_lshr_b32 s74, s66, 1")
    e("s_add_u32 s67, s67, s74")
    e(f"s_mul_i32 s67, s67, {2 * 7168}")
    e("s_lshl_b32 s74, s48, 8")
    e("s_add_u32 s67, s67, s74")
    e(f"s_add_u32 s75, s67, {hex(WS_PG)}")
    e("v_mov_b32 v26, s80")
    e("v_mov_b32 v18, 0")
    e("s_waitcnt lgkmcnt(0)")
    for ft in range(4):
        mfma16(e, 48 + 4 * ft, GA(ft), 80)
    e("s_mov_b32 exec_lo, 0x00030003")
    e("s_mov_b32 exec_hi, 0x00030003")
    e("s_nop 5")
    for ft in range(4):
        e(f"buffer_store_dwordx4 {vr(48 + 4 * ft, 4)}, v19, s[44:47], s75 offen offset:{64 * ft} sc1")
    e("s_mov_b64 exec, -1")
    DF = lambda ee: 96 + 4 * ee
    e("s_waitcnt vmcnt(4)")
    for ee in range(8):
        e(f"ds_read_b64_tr_b16 {vr(DF(ee), 2)}, v24 offset:{4096 + 32 * ee}")
        e(f"v_mov_b32 v{DF(ee) + 2}, 0")
        e(f"v_mov_b32 v{DF(ee) + 3}, 0")
    e("s_lshl_b32 s67, s64, 4")
    e("s_lshl_b32 s74, s66, 2")
    e("s_add_u32 s67, s67, s74")
    e(f"s_add_u32 s67, s67, {hex(WS_FLAGS + 4096)}")
    e("s_waitcnt vmcnt(0)")
    e("s_mov_b64 exec, 1")
    e("buffer_store_dword v26, v18, s[44:47], s67 offen sc1")
    e("s_mov_b64 exec, -1")
    e("s_waitcnt lgkmcnt(0)")
    wo_rounds(0, 6)
    e("s_mov_b32 exec_hi, 0")
    e("v_lshlrev_b32 v18, 2, v1")
    e("s_lshl_b32 s67, s48, 7")
    e(f"s_add_u32 s67, s67, {hex(WS_FLAGS + 4096)}")
    e("s_mov_b32 s76, 0x40000")
    e.label("K2_H_SPIN1")
    e("buffer_load_dword v19, v18, s[44:47], s67 offen sc1")
    e("s_waitcnt vmcnt(0)")
    e("v_cmp_ne_u32 vcc, s80, v19")
    e("s_cmp_eq_u64 vcc, 0")
    e("s_cbranch_scc1 K2_H_SPIN1_DONE")
    e("s_sleep 8")
    e("s_sub_u32 s76, s76, 1")
    e("s_cmp_lg_u32 s76, 0")
    e("s_cbranch_scc1 K2_H_SPIN1")
    e.label("K2_H_SPIN1_DONE")
    e("s_mov_b64 exec, -1")
    e("v_lshrrev_b32 v18, 1, v8")
    e(f"s_mov_b32 s67, {8 * 7168}")
    e("v_mul_lo_u32 v18, v18, s67")
    e("v_and_b32 v19, 1, v8")
    e("s_movk_i32 s67, 7168")
    e("v_mad_u32_u24 v18, v19, s67, v18")
    e("v_lshl_add_u32 v18, v9, 3, v18")
    e("s_lshl_b32 s74, s64, 5")
    e(f"s_add_u32 s74, s74, {hex(WS_PG)}")
    for kl in range(2):
        for m in range(2):
            e(f"s_add_u32 s67, s74, {(kl * 2 + m) * 2 * 7168}")
            e(f"buffer_load_dwordx2 {vr(64 + (kl * 2 + m) * 2, 2)}, v18, s[44:47], s67 offen sc1")
    e("v_mov_b32 v41, 0")
    e("v_mov_b32 v42, 0")
    e("v_mov_b32 v43, 0")
    e("s_waitcnt vmcnt(0) lgkmcnt(0)")
    for i in range(4):
        e(f"v_add_f32 v{64 + i}, v{64 + i}, v{68 + i}")
    for rot in (2, 4, 8):
        e("s_nop 0")
        for i in range(4):
            e(f"v_add_f32_dpp v{64 + i}, v{64 + i}, v{64 + i} row_ror:{rot} row_mask:0xf bank_mask:0xf")
    g0, g1, u0, u1 = 64, 65, 66, 67
    e(f"v_cvt_pk_bf16_f32 v24, v{g0}, v{g1}")
    e(f"v_cvt_pk_bf16_f32 v25, v{u0}, v{u1}")
    e(f"v_lshlrev_b32 v{g0}, 16, v24")
    e(f"v_and_b32 v{g1}, 0xffff0000, v24")
    e(f"v_lshlrev_b32 v{u0}, 16, v25")
    e(f"v_and_b32 v{u1}, 0xffff0000, v25")
    e(f"v_mul_f32 v24, {hex(NLOG2E)}, v{g0}")
    e(f"v_mul_f32 v25, {hex(NLOG2E)}, v{g1}")
    e("v_exp_f32 v24, v24")
    e("v_exp_f32 v25, v25")
    e("s_nop 0")
    e("v_add_f32 v24, 1.0, v24")
    e("v_add_f32 v25, 1.0, v25")
    e("v_rcp_f32 v24, v24")
    e("v_rcp_f32 v25, v25")
    e("s_nop 0")
    e(f"v_mul_f32 v{g0}, v24, v{g0}")
    e(f"v_mul_f32 v{g1}, v25, v{g1}")
    e(f"v_cvt_pk_bf16_f32 v24, v{g0}, v{g1}")
    e(f"v_lshlrev_b32 v{g0}, 16, v24")
    e(f"v_and_b32 v{g1}, 0xffff0000, v24")
    e(f"v_mul_f32 v{g0}, v{g0}, v{u0}")
    e(f"v_mul_f32 v{g1}, v{g1}, v{u1}")
    e(f"v_cvt_pk_bf16_f32 v40, v{g0}, v{g1}")
    e("v_lshlrev_b32 v19, 11, v8")
    e("v_lshl_add_u32 v19, v9, 4, v19")
    for ee in range(8):
        mfma16(e, 64 + 4 * ee, DF(ee), 40)
    e("s_lshl_b32 s67, s64, 12")
    e("s_lshl_b32 s74, s66, 9")
    e("s_add_u32 s67, s67, s74")
    e(f"s_add_u32 s67, s67, {hex(WS_YP)}")
    e("s_mov_b32 exec_lo, 0x00030003")
    e("s_mov_b32 exec_hi, 0x00030003")
    e("s_nop 3")
    for ee in range(8):
        e(f"buffer_store_dwordx4 {vr(64 + 4 * ee, 4)}, v19, s[44:47], s67 offen offset:{64 * ee} sc1")
    e("s_lshl_b32 s67, s66, 10")
    e("s_lshl_b32 s74, s64, 2")
    e("s_add_u32 s67, s67, s74")
    e(f"s_add_u32 s67, s67, {hex(WS_FLAGS)}")
    e("s_mov_b64 exec, 1")
    e("v_mov_b32 v18, 0")
    e("s_waitcnt vmcnt(0)")
    e("buffer_store_dword v26, v18, s[44:47], s67 offen sc1")
    e("s_mov_b64 exec, -1")
    e.label("K2_H_NOFFN1")
    for r in range(20, 24):
        e(f"v_mov_b32 v{r}, -1")
    e("s_lshl_b32 s67, s61, 6")
    e("s_lshl_b32 s74, s62, 2")
    e("s_add_u32 s67, s67, s74")
    e("s_add_u32 s67, s67, s66")
    e("s_lshl_b32 s67, s67, 10")
    e(f"s_add_u32 s67, s67, {hex(WS_OF)}")
    for off in (0, 32768, WS_OF2 - WS_OF, WS_OF2 - WS_OF + 32768):
        e(f"s_add_u32 s74, s67, {off}")
        e("buffer_store_dwordx4 v[20:23], v4, s[44:47], s74 offen sc1")
    e("s_lshl_b32 s67, s61, 3")
    e("s_add_u32 s67, s67, s62")
    e("s_lshl_b32 s67, s67, 2")
    e("s_add_u32 s67, s67, s66")
    e("s_lshl_b32 s67, s67, 2")
    e(f"s_add_u32 s67, s67, {hex(WS_INIT)}")
    e("v_mov_b32 v18, 0")
    e("v_mov_b32 v19, s80")
    e("s_waitcnt vmcnt(0)")
    e("s_mov_b64 exec, 1")
    e("buffer_store_dword v19, v18, s[44:47], s67 offen sc1")
    e("s_mov_b64 exec, -1")
    stamp(e, 3)
    wo_rounds(6, 16)
    e("s_lshr_b32 s74, s66, 1")
    e("s_lshl_b32 s75, s61, 1")
    e("s_add_u32 s75, s75, s74")
    e("s_lshl_b32 s67, s75, 5")
    e("v_add_u32 v15, s67, v2")
    e("v_lshlrev_b32 v14, 10, v15")
    e("v_lshl_add_u32 v14, v3, 5, v14")
    e("s_lshl_b32 s58, s62, 7")
    e("s_lshl_b32 s67, s77, 6")
    e("s_add_u32 s58, s58, s67")
    e("buffer_load_dwordx4 v[120:123], v14, s[20:23], s58 offen")
    e("buffer_load_dwordx4 v[124:127], v14, s[20:23], s58 offen offset:16")
    e("s_cmp_lg_u32 s66, 0")
    e("s_cbranch_scc1 K2_H_NOSEL")
    for sl in range(2):
        e(f"s_and_b32 s74, s{70 + sl}, 0xffff0000")
        e("s_mov_b32 s76, 0xffff0000")
        e("s_cmp_lt_i32 s74, 0")
        e("s_cselect_b32 s76, 0x80000000, s76")
        e("s_xor_b32 s74, s74, s76")
        e(f"v_mov_b32 v{22 + sl}, s74")
        e(f"v_mul_f32 v{22 + sl}, {hex(NLOG2E)}, v{22 + sl}")
        e(f"v_exp_f32 v{22 + sl}, v{22 + sl}")
        e("s_nop 0")
        e(f"v_add_f32 v{22 + sl}, 1.0, v{22 + sl}")
        e(f"v_rcp_f32 v{22 + sl}, v{22 + sl}")
        e("s_nop 0")
        rbf(e, 22 + sl, 22 + sl)
    e("v_mov_b32 v20, s72")
    e("v_mov_b32 v21, s73")
    e(f"v_mov_b32 v18, {L_SEL}")
    e("ds_write_b128 v18, v[20:23]")
    e.label("K2_H_NOSEL")
    for sl in range(2):
        e(f"s_lshr_b32 s67, s{72 + sl}, 6")
        e("s_cmp_lg_u32 s67, s61")
        e(f"s_cbranch_scc1 K2_H_NOCONS{sl}")
        if XNOFFN:
            e(f"s_branch K2_H_NOCONS{sl}")
        e("s_lshr_b32 s67, s62, 1")
        e("s_lshl_b32 s67, s67, 10")
        e("s_mul_i32 s74, s66, 224")
        e("s_add_u32 s67, s67, s74")
        e(f"s_add_u32 s67, s67, {hex(WS_FLAGS)}")
        e("v_lshlrev_b32 v18, 2, v1")
        e("s_mov_b32 s76, 0x40000")
        e("s_mov_b32 exec_hi, 0x00ffffff")
        e.label(f"K2_H_SPIN2_{sl}")
        e("buffer_load_dword v19, v18, s[44:47], s67 offen sc1")
        e("s_waitcnt vmcnt(0)")
        e("v_cmp_ne_u32 vcc, s80, v19")
        e("s_cmp_eq_u64 vcc, 0")
        e(f"s_cbranch_scc1 K2_H_SPIN2_DONE{sl}")
        e("s_sleep 8")
        e("s_sub_u32 s76, s76, 1")
        e("s_cmp_lg_u32 s76, 0")
        e(f"s_cbranch_scc1 K2_H_SPIN2_{sl}")
        e.label(f"K2_H_SPIN2_DONE{sl}")
        e("s_mov_b64 exec, -1")
        e("v_lshlrev_b32 v18, 12, v9")
        e("v_lshl_add_u32 v18, v8, 4, v18")
        e(f"s_mul_i32 s67, s66, {56 * 4096}")
        e("s_lshl_b32 s74, s62, 8")
        e("s_add_u32 s67, s67, s74")
        e(f"s_add_u32 s67, s67, {hex(WS_YP + sl * 2048)}")
        for i in range(14):
            e(f"buffer_load_dwordx4 {vr(64 + 4 * i, 4)}, v18, s[44:47], s67 offen sc1")
            e("s_add_u32 s67, s67, 16384")
        e("s_waitcnt vmcnt(0)")
        for i in range(1, 14):
            for c in range(4):
                e(f"v_add_f32 v{64 + c}, v{64 + c}, v{64 + 4 * i + c}")
        swap_add(e, 64, 65)
        swap_add(e, 66, 67)
        e("s_nop 1")
        e("v_permlane16_swap_b32 v64, v66")
        e("s_nop 1")
        e("v_add_f32 v64, v64, v66")
        e("v_and_b32 v19, 1, v9")
        e("v_lshrrev_b32 v20, 1, v9")
        e("v_lshl_add_u32 v19, v19, 1, v20")
        e("v_lshl_add_u32 v19, v8, 2, v19")
        e("v_lshlrev_b32 v19, 2, v19")
        e("s_lshl_b32 s67, s66, 8")
        e("v_add_u32 v19, s67, v19")
        e(f"ds_write_b32 v19, v64 offset:{L_YS + sl * 1024}")
        e.label(f"K2_H_NOCONS{sl}")
    e("s_lshl_b32 s67, s61, 7")
    e(f"s_add_u32 s67, s67, {hex(WS_INIT)}")
    e("v_lshlrev_b32 v18, 2, v2")
    e("s_mov_b32 s76, 0x40000")
    e.label("K2_H_SPINI")
    e("buffer_load_dword v19, v18, s[44:47], s67 offen sc1")
    e("s_waitcnt vmcnt(0)")
    e("v_cmp_ne_u32 vcc, s80, v19")
    e("s_cmp_eq_u64 vcc, 0")
    e("s_cbranch_scc1 K2_H_SPINI_DONE")
    e("s_sleep 8")
    e("s_sub_u32 s76, s76, 1")
    e("s_cmp_lg_u32 s76, 0")
    e("s_cbranch_scc1 K2_H_SPINI")
    e.label("K2_H_SPINI_DONE")
    e("v_mov_b32 v2, v14")
    e("v_add_u32 v3, s65, v4")
    for r in range(72, 104):
        e(f"v_mov_b32 v{r}, 0")
    stamp(e, 9)
    e("s_waitcnt vmcnt(0) lgkmcnt(0)")
    stamp(e, 8)
    e("s_setprio 0")
    e("s_branch K2_BAR1")

    e.label("K2_H2")
    e("s_lshl_b32 s68, s75, 15")
    e("s_lshl_b32 s67, s77, 14")
    e("s_add_u32 s68, s68, s67")
    e(f"s_add_u32 s68, s68, {hex(WS_OF)}")
    OFR = lambda hd: 8 + hd * 4
    OA = [72, 88]
    G_ = 104
    e("s_mov_b32 s76, 0x10000")
    e("s_mov_b32 s74, 0")
    e("s_mov_b32 s71, s68")
    e.label("K2_H_POLL")
    for src in range(4):
        e(f"s_bitcmp1_b32 s74, {src}")
        e(f"s_cbranch_scc1 K2_H_NL{src}")
        e(f"s_add_u32 s67, s71, {src * 4096}")
        for i in range(4):
            e(f"buffer_load_dwordx4 {vr(OFR(4 * src + i), 4)}, v4, s[44:47], s67 offen offset:{i * 1024} sc1")
        e.label(f"K2_H_NL{src}")
    e.label("K2_H_CHECK")
    e("s_waitcnt vmcnt(0)")
    for src in range(4):
        e(f"s_bitcmp1_b32 s74, {src}")
        e(f"s_cbranch_scc1 K2_H_NC{src}")
        o = OFR(4 * src)
        e(f"v_max3_u32 v6, v{o}, v{o + 1}, v{o + 2}")
        for r in range(o + 3, o + 15, 2):
            e(f"v_max3_u32 v6, v{r}, v{r + 1}, v6")
        e(f"v_max_u32 v6, v{o + 15}, v6")
        e("v_cmp_eq_u32 vcc, -1, v6")
        e("s_cmp_eq_u32 s76, 1")
        e("s_cselect_b64 vcc, 0, vcc")
        e("s_cmp_eq_u64 vcc, 0")
        e(f"s_cbranch_scc0 K2_H_NC{src}")
        for i in range(4):
            for nt in range(2):
                mfma32(e, OA[nt], WOF(4 * src + i, nt), OFR(4 * src + i), OA[nt])
        e(f"s_bitset1_b32 s74, {src}")
        e.label(f"K2_H_NC{src}")
    e("s_sub_u32 s76, s76, 1")
    e("s_and_b32 s67, s76, 1")
    e(f"s_cmp_gt_u32 s76, {0x10000 - 8}")
    e("s_cselect_b32 s67, 0, s67")
    e(f"s_mul_i32 s67, s67, {WS_OF2 - WS_OF}")
    e("s_add_u32 s71, s68, s67")
    e("s_cmp_lg_u32 s74, 15")
    e("s_cbranch_scc1 K2_H_POLL")
    stamp(e, 6)
    e("s_lshl_b32 s67, s66, 12")
    e(f"s_add_u32 s67, s67, {L_REDB}")
    e("v_add_u32 v6, s67, v4")
    e("s_xor_b32 s67, s67, 4096")
    e("v_add_u32 v7, s67, v4")
    for dw in range(8):
        e(f"v_lshlrev_b32 v{8 + 2 * dw}, 16, v{120 + dw}")
        e(f"v_and_b32 v{9 + 2 * dw}, 0xffff0000, v{120 + dw}")
    for i in range(4):
        e(f"ds_write_b128 v6, {vr(OA[1] + 4 * i, 4)} offset:{i * 1024}")
    e("s_waitcnt lgkmcnt(0)")
    e("s_barrier")
    for i in range(4):
        e(f"ds_read_b128 {vr(24 + 4 * i, 4)}, v7 offset:{i * 1024}")
        e(f"ds_read_b128 {vr(G_ + 4 * i, 4)}, v3 offset:{i * 1024}")
    e("s_waitcnt lgkmcnt(0)")
    for r in range(16):
        e(f"v_add_f32 v{24 + r}, v{24 + r}, v{OA[0] + r}")
        e(f"v_fma_f32 v{8 + r}, v{24 + r}, v{G_ + r}, v{8 + r}")
        if r & 1:
            e(f"v_cvt_pk_bf16_f32 v{40 + r // 2}, v{7 + r}, v{8 + r}")
    e("buffer_store_dwordx4 v[40:43], v2, s[40:43], s58 offen")
    e("buffer_store_dwordx4 v[44:47], v2, s[40:43], s58 offen offset:16")
    stamp(e, 7)
    stamp_flush(e, 1, 44, 60)
    e.label("K2_END")
    e("s_endpgm")
    return kn, 256, LDS_SIZE


def kd(name, nv, ns=96):
    return f""".p2align 6
.amdhsa_kernel {name}
  .amdhsa_next_free_vgpr {nv}
  .amdhsa_next_free_sgpr {ns}
  .amdhsa_accum_offset {(nv + 3) // 4 * 4}
  .amdhsa_group_segment_fixed_size 0
  .amdhsa_kernarg_size 104
  .amdhsa_user_sgpr_count 2
  .amdhsa_user_sgpr_kernarg_segment_ptr 1
  .amdhsa_system_sgpr_workgroup_id_x 1
  .amdhsa_float_denorm_mode_32 3
.end_amdhsa_kernel
"""


def main():
    e = Asm()
    k, nv, lds = gen_k(e)
    head = f"""; LayerNorm + MQA attention (32 heads, shared K/V) + top-2 mixture-of-depths SwiGLU + gated residual, one fused kernel.
; @launch grid=(256,1,1) block=(512,1,1) lds={lds}
.amdgcn_target "amdgcn-amd-amdhsa--gfx950"
.text
"""
    tail = '.section .rodata,"a"\n' + kd(k, nv, 102)
    args = [a for a in sys.argv[1:] if not a.startswith("--")]
    out = args[0] if args else f"cdna_kernels/{NAME}.s"
    with open(out, "w") as f:
        f.write(head + e.text() + tail)


if __name__ == "__main__":
    main()
```

```python
import sys

NAME = "recurrent_scan__grouped_kv_mqa__moe_arch_mod__prompt"

WS_QF = 0x000000
WS_KV = 0x200000
WS_KEYS = 0x220000
WS_STATS = 0x221000
WS_FLAGS = 0x226000
WS_PG = 0x240000
WS_RDY = 0x2B0000
WS_INIT = 0x2B8000
WS_OF = 0x300000
WS_YP = 0x500000
WS_OF2 = 0x600000
WS_PROF = 0x800000
WS_SIZE = 0x900000

QSCALE = 0x3eb8aa3b
NLOG2E = 0xbfb8aa3b
ONES = 0x3f803f80
EPS = 0x3727c5ac
INV512 = 0x3b000000

PROF = "--prof" in sys.argv
XNOFFN = "--xnoffn" in sys.argv
DBGOUT = "--dbgout" in sys.argv
PF1 = "--nopf1" not in sys.argv
PF2 = "--pf2" in sys.argv
PF0 = 0 if "--nopf0" in sys.argv else 4
UNR = 4 if "--unr4" in sys.argv else 2
FFNLIM = 0 if XNOFFN else 28


class Asm:
    def __init__(self):
        self.lines = []
        self.vm = []

    def __call__(self, s):
        self.lines.append("    " + s)

    def label(self, l):
        self.lines.append(l + ":")

    def raw(self, s):
        self.lines.append(s)

    def vmem(self, s, tag=None):
        self(s)
        self.vm.append(tag)
        assert len(self.vm) <= 63, "too many outstanding vmem ops"

    def vwait(self, tag=None):
        if tag is None:
            self("s_waitcnt vmcnt(0)")
            self.vm = []
            return
        idx = max(i for i, t in enumerate(self.vm) if t == tag)
        n = len(self.vm) - 1 - idx
        self(f"s_waitcnt vmcnt({n})")
        self.vm = self.vm[idx + 1:]

    def text(self):
        return "\n".join(self.lines) + "\n"


def stamp(e, i):
    if not PROF:
        return
    e("s_memrealtime s[88:89]")
    e("s_waitcnt lgkmcnt(0)")
    e(f"s_mov_b32 s{90 + i}, s88")


def cstamp(e, i):
    if not PROF:
        return
    e("s_memtime s[88:89]")
    e("s_waitcnt lgkmcnt(0)")
    e(f"s_mov_b32 s{90 + i}, s88")


def stamp_init(e):
    if PROF:
        for i in range(12):
            e(f"s_mov_b32 s{90 + i}, 0")
    stamp(e, 0)


def stamp_flush(e, kidx, wsrd, wave_sgpr):
    if not PROF:
        return
    stamp(e, 11)
    e("s_mov_b64 exec, 1")
    e("s_lshl_b32 s88, s2, 3")
    e(f"s_add_u32 s88, s88, s{wave_sgpr}")
    e("s_lshl_b32 s88, s88, 6")
    e(f"s_add_u32 s88, s88, {hex(WS_PROF + kidx * 320 * 8 * 64)}")
    e("v_mov_b32 v12, 0")
    for b in range(3):
        for i in range(4):
            e(f"v_mov_b32 v{8 + i}, s{90 + 4 * b + i}")
        e(f"buffer_store_dwordx4 v[8:11], v12, s[{wsrd}:{wsrd + 3}], s88 offen offset:{16 * b}")
        e("s_nop 1")


def vr(a, n=1):
    p = "v"
    if a >= 128:
        p, a = "a", a - 128
    return f"{p}{a}" if n == 1 else f"{p}[{a}:{a + n - 1}]"


def srd(e, d, base, size):
    e(f"s_mov_b32 s{d}, s{base}")
    e(f"s_and_b32 s{d + 1}, s{base + 1}, 0xffff")
    e(f"s_mov_b32 s{d + 2}, {hex(size)}")
    e(f"s_mov_b32 s{d + 3}, 0x00020000")


def rbf(e, d, s):
    e(f"v_cvt_pk_bf16_f32 v{d}, v{s}, v{s}")
    e(f"v_and_b32 v{d}, 0xffff0000, v{d}")


def mfma32(e, d, a, b, c=None):
    cs = "0" if c is None else vr(c, 16)
    e(f"v_mfma_f32_32x32x16_bf16 {vr(d, 16)}, {vr(a, 4)}, {vr(b, 4)}, {cs}")


def mfma16(e, d, a, b, c=None):
    cs = "0" if c is None else vr(c, 4)
    e(f"v_mfma_f32_16x16x32_bf16 {vr(d, 4)}, {vr(a, 4)}, {vr(b, 4)}, {cs}")


def dpp_umax_reduce(e, v):
    for mod in ("row_shr:1 row_mask:0xf bank_mask:0xf bound_ctrl:0",
                "row_shr:2 row_mask:0xf bank_mask:0xf bound_ctrl:0",
                "row_shr:4 row_mask:0xf bank_mask:0xf bound_ctrl:0",
                "row_shr:8 row_mask:0xf bank_mask:0xf bound_ctrl:0",
                "row_bcast:15 row_mask:0xa bank_mask:0xf",
                "row_bcast:31 row_mask:0xc bank_mask:0xf"):
        e("s_nop 1")
        e(f"v_max_u32_dpp v{v}, v{v}, v{v} {mod}")
    e("s_nop 1")


def token_stats(e, sx, sq, mb, db, inv, t0, t1):
    e(f"v_mul_f32 v{t0}, {hex(INV512)}, v{sx}")
    e(f"v_mul_f32 v{t1}, {hex(INV512)}, v{sq}")
    rbf(e, mb, t0)
    e(f"v_fma_f32 v{t1}, -v{t0}, v{t0}, v{t1}")
    e(f"v_max_f32 v{t1}, 0, v{t1}")
    rbf(e, t1, t1)
    e(f"v_add_f32 v{t1}, {hex(EPS)}, v{t1}")
    rbf(e, t1, t1)
    e(f"v_sqrt_f32 v{t1}, v{t1}")
    e("s_nop 0")
    rbf(e, db, t1)
    e(f"v_rcp_f32 v{inv}, v{db}")
    e("s_nop 0")


def swap_add(e, a, b):
    e("s_nop 1")
    e(f"v_permlane32_swap_b32 v{a}, v{b}")
    e("s_nop 1")
    e(f"v_add_f32 v{a}, v{a}, v{b}")


def sum4(e, d, a, b, c, dd):
    e(f"v_add_f32 v{a}, v{a}, v{b}")
    e(f"v_add_f32 v{c}, v{c}, v{dd}")
    e(f"v_add_f32 v{d}, v{a}, v{c}")


SLP = int([a[6:] for a in sys.argv if a.startswith("--slp=")][0]) if any(a.startswith("--slp=") for a in sys.argv) else 8


def gen_k(e):
    kn = NAME + "_kernel"
    L_XS = 0
    L_YS = 512
    L_SEL = L_YS + 2048
    L_CNT = L_SEL + 16
    L_MX = L_CNT + 16
    L_TS = 6912
    L_STG = 8192
    assert L_MX + 4096 <= L_TS and L_TS + 512 <= L_STG
    L_KV = 32768
    L_REDB = 32768
    LDS_SIZE = 163840
    O_KVW = L_STG
    O_ST1 = 24576
    O_ST2 = L_STG
    O_WR = 29696
    P_PV, P_QF = 12288, 14336

    e.raw(".p2align 8")
    e.raw(f".globl {kn}")
    e.raw(f".type {kn},@function")
    e.label(kn)
    e("s_cmp_ge_u32 s2, 256")
    e("s_cbranch_scc1 K2_END")
    stamp_init(e)
    e("s_load_dwordx16 s[64:79], s[0:1], 0")
    e("s_load_dwordx8 s[80:87], s[0:1], 64")
    e("s_load_dwordx2 s[48:49], s[0:1], 96")
    e("v_and_b32 v1, 63, v0")
    e("v_lshrrev_b32 v6, 6, v0")
    e("v_and_b32 v2, 31, v1")
    e("v_lshrrev_b32 v3, 5, v1")
    e("v_readfirstlane_b32 s60, v6")
    e("v_lshlrev_b32 v4, 4, v1")
    e("s_and_b32 s56, s2, 7")
    e("s_lshr_b32 s57, s2, 3")
    e("s_getpc_b64 s[52:53]")
    e("s_and_b32 s58, s57, 3")
    e("s_lshl_b32 s58, s58, 13")
    e("s_add_u32 s58, s58, 1024")
    e("v_lshl_add_u32 v6, v0, 4, s58")
    e("global_load_dwordx4 v[124:127], v6, s[52:53]")
    e("s_lshr_b32 s58, s57, 3")
    e("s_lshl_b32 s61, s56, 2")
    e("s_add_u32 s61, s61, s58")
    e("s_and_b32 s62, s57, 7")
    e("s_and_b32 s3, s60, 3")
    e("s_and_b32 s18, s62, 1")
    e("s_lshr_b32 s19, s60, 2")
    e("s_mov_b32 s63, 0")
    e("s_mov_b32 s59, 0")
    e("v_and_b32 v5, 15, v2")
    e("v_lshlrev_b32 v5, 4, v5")
    e("v_lshl_add_u32 v5, v3, 8, v5")
    e("v_add_u32 v5, 1024, v5")
    e("s_waitcnt lgkmcnt(0)")
    srd(e, 20, 64, 2048 * 512 * 2)
    srd(e, 4, 66, 512 * 512 * 2)
    srd(e, 24, 72, 512 * 512 * 2)
    srd(e, 8, 76, 512 * 2)
    srd(e, 28, 78, 512 * 1792 * 2)
    srd(e, 32, 80, 512 * 1792 * 2)
    srd(e, 36, 82, 512 * 1792 * 2)
    srd(e, 40, 84, 2048 * 512 * 2)
    srd(e, 44, 48, WS_SIZE)
    e("s_mov_b32 s16, s86")
    e("s_mov_b32 s17, s87")
    e("s_cmp_lt_u32 s62, 2")
    e("s_cselect_b32 s12, s68, s70")
    e("s_cselect_b32 s13, s69, s71")
    e("s_and_b32 s13, s13, 0xffff")
    e(f"s_mov_b32 s14, {hex(512 * 16 * 2)}")
    e("s_mov_b32 s15, 0x00020000")
    stamp(e, 1)
    e("s_lshl_b32 s64, s3, 15")
    e(f"s_add_u32 s64, s64, {L_KV}")
    e("s_lshl_b32 s65, s3, 12")
    e(f"s_add_u32 s65, s65, {O_KVW}")
    e("s_cmp_lt_u32 s60, 4")
    e("s_cbranch_scc1 P1_C")

    e("s_add_u32 s67, s2, s3")
    e("s_cmp_lg_u32 s67, 0")
    e("s_cbranch_scc1 P1_NONCE0")
    e("s_memrealtime s[70:71]")
    e("v_mov_b32 v6, 0")
    e("s_waitcnt lgkmcnt(0)")
    e("s_or_b32 s70, s70, 1")
    e("v_mov_b32 v7, s70")
    e("s_mov_b64 exec, 1")
    e("global_store_dword v6, v7, s[16:17] sc1")
    e("s_mov_b64 exec, -1")
    e.label("P1_NONCE0")
    e("v_lshrrev_b32 v6, 4, v1")
    e("v_and_b32 v7, 15, v1")
    e("v_xor_b32 v7, v7, v6")
    for v in range(4):
        e(f"v_xor_b32 v{8 + v}, {4 * v}, v7")
        e(f"v_lshlrev_b32 v{8 + v}, 4, v{8 + v}")
        e(f"v_lshl_add_u32 v{8 + v}, v6, 10, v{8 + v}")
    e("v_lshrrev_b32 v6, 3, v1")
    e("v_and_b32 v12, 7, v1")
    e("v_lshlrev_b32 v12, 4, v12")
    e("v_lshl_add_u32 v12, v6, 10, v12")
    e("s_lshl_b32 s66, s61, 16")
    e("s_lshl_b32 s67, s3, 8")
    e("s_add_u32 s66, s66, s67")
    e("s_lshl_b32 s67, s18, 15")
    e("s_add_u32 s72, s66, s67")
    e("s_xor_b32 s67, s67, 32768")
    e("s_add_u32 s73, s66, s67")
    e("s_lshl_b32 s66, s3, 17")
    e("s_lshl_b32 s67, s62, 7")
    e("s_add_u32 s66, s66, s67")
    e("s_cmp_ge_u32 s62, 4")
    e("s_cbranch_scc1 P1_NOKVDMA")
    e("s_lshl_b32 s67, s3, 12")
    e("s_mov_b32 m0, s65")
    e("s_nop 0")
    for i in range(4):
        e(f"buffer_load_dwordx4 v4, s[12:15], s67 offen offset:{i * 1024} lds")
    e.label("P1_NOKVDMA")
    e("s_cmp_lg_u32 s62, 4")
    e("s_cbranch_scc1 P1_NOWRDMA")
    e(f"s_mov_b32 m0, {O_WR}")
    e("s_nop 0")
    e("buffer_load_dwordx4 v4, s[8:11], 0 offen lds")
    e.label("P1_NOWRDMA")
    for n in range(16):
        if n % 4 == 0:
            e(f"s_add_u32 m0, s64, {(n >> 2) * 4096}")
        e(f"s_add_u32 s67, s{72 + (n >> 3)}, {(n & 7) * 4096 - (n & 3) * 1024}")
        e(f"buffer_load_dwordx4 v{8 + (n & 3)}, s[20:23], s67 offen offset:{(n & 3) * 1024} lds")

    def dma_w(kc):
        e(f"s_add_u32 m0, s64, {16384 + kc * 4096}")
        for i in range(4):
            n = kc * 4 + i
            e(f"s_add_u32 s67, s66, {n * 8192 - i * 1024}")
            e(f"buffer_load_dwordx4 v12, s[4:7], s67 offen offset:{i * 1024} lds")
    e("v_mov_b32 v6, 0")
    e("v_mov_b32 v7, 0")
    e(f"v_mov_b32 v20, {L_CNT}")
    e("ds_write_b64 v20, v[6:7]")
    e("s_waitcnt vmcnt(8) lgkmcnt(0)")
    e("s_barrier")
    dma_w(0)
    dma_w(1)
    dma_w(2)
    dma_w(3)
    e("v_mov_b32 v6, 0")
    e("s_cmp_ge_u32 s3, 2")
    e("s_cbranch_scc1 P1_L_NOTAG")
    e("global_load_dword v7, v6, s[16:17] sc1")
    e.label("P1_L_NOTAG")
    e("s_barrier")
    MB, DB, INV = 120, 121, 122
    PVB = 28672 - 256
    e("s_cmp_ge_u32 s62, 4")
    e("s_cbranch_scc1 P1_L_B3")
    e("s_cmp_lg_u32 s3, 1")
    e("s_cbranch_scc1 P1_L_B3")
    e("v_lshlrev_b32 v13, 2, v2")
    for wp in range(4):
        e(f"ds_read_b32 v{104 + wp}, v13 offset:{O_ST1 + wp * 1024}")
        e(f"ds_read_b32 v{108 + wp}, v13 offset:{O_ST1 + wp * 1024 + 128}")
        e(f"ds_read_b32 v{112 + wp}, v13 offset:{O_ST1 + wp * 1024 + 256}")
    e("s_lshl_b32 s70, s61, 1")
    e("s_add_u32 s70, s70, s18")
    e("s_lshl_b32 s70, s70, 11")
    e(f"s_add_u32 s70, s70, {hex(WS_KV)}")
    e("v_lshlrev_b32 v11, 4, v3")
    e("s_waitcnt lgkmcnt(0)")
    e("s_cmp_lt_u32 s62, 2")
    e("s_cbranch_scc1 P1_KV_K")
    for wp in range(4):
        for rq in range(4):
            e(f"ds_read_b128 {vr(24 + (wp * 4 + rq) * 4, 4)}, v4 offset:{O_KVW + wp * 4096 + rq * 1024}")
        if wp == 2:
            for b in (104, 108, 112):
                sum4(e, b, b, b + 1, b + 2, b + 3)
            token_stats(e, 104, 108, MB, DB, INV, 123, 124)
            e("s_waitcnt lgkmcnt(6)")
    e(f"ds_write_b32 v13, v{MB} offset:{PVB + 256}")
    e(f"ds_write_b32 v13, v{INV} offset:{PVB + 512}")
    e("v_lshlrev_b32 v10, 4, v2")
    e("v_lshl_add_u32 v10, v3, 8, v10")
    e("s_waitcnt lgkmcnt(2)")
    for r in range(16):
        a = 24 + r
        sum4(e, a, a, a + 16, a + 32, a + 48)
    for g in range(4):
        e(f"ds_read_b128 {vr(40 + 4 * g, 4)}, v11 offset:{PVB + 256 + 32 * g}")
        e(f"ds_read_b128 {vr(56 + 4 * g, 4)}, v11 offset:{PVB + 512 + 32 * g}")
    e("s_waitcnt lgkmcnt(0)")
    for r in range(16):
        a = 24 + r
        e(f"v_fma_f32 v{a}, -v{40 + r}, v112, v{a}")
        e(f"v_mul_f32 v{a}, v{56 + r}, v{a}")
        if r & 1:
            e(f"v_cvt_pk_bf16_f32 v{88 + r // 2}, v{a - 1}, v{a}")
    e("s_mov_b32 exec_lo, 0x0000ffff")
    e("s_mov_b32 exec_hi, 0x0000ffff")
    e("buffer_store_dwordx4 v[88:91], v10, s[44:47], s70 offen offset:1024 sc1")
    e("buffer_store_dwordx4 v[92:95], v10, s[44:47], s70 offen offset:1536 sc1")
    e("s_mov_b64 exec, -1")
    e("s_branch P1_L_B3")
    e.label("P1_KV_K")
    for wp in range(4):
        for rr in range(2):
            e(f"ds_read_b128 {vr(24 + (wp * 2 + rr) * 4, 4)}, v4 offset:{O_KVW + wp * 4096 + rr * 1024}")
    for b in (104, 108, 112):
        sum4(e, b, b, b + 1, b + 2, b + 3)
    e(f"ds_write_b32 v13, v112 offset:{PVB + 768 + 128}")
    for rr in range(2):
        e(f"ds_read_b128 {vr(56 + rr * 4, 4)}, v11 offset:{PVB + 768 + 128 + rr * 32}")
    token_stats(e, 104, 108, MB, DB, INV, 123, 124)
    e("s_waitcnt lgkmcnt(0)")
    for i in range(8):
        a = 24 + i
        sum4(e, a, a, a + 8, a + 16, a + 24)
        e(f"v_fma_f32 v{a}, -v{MB}, v{56 + i}, v{a}")
        e(f"v_mul_f32 v{a}, v{INV}, v{a}")
        if i & 1:
            e(f"v_cvt_pk_bf16_f32 v{88 + i // 2}, v{a - 1}, v{a}")
    e("buffer_store_dwordx4 v[88:91], v4, s[44:47], s70 offen sc1")
    e("s_branch P1_L_B3")
    e.label("P1_L_B3")
    e("s_waitcnt vmcnt(2) lgkmcnt(0)")
    e("s_cmp_ge_u32 s62, 4")
    e("s_cbranch_scc1 P1_L_B3W")
    e("s_cmp_lg_u32 s3, 1")
    e("s_cbranch_scc1 P1_L_B3W")
    e("s_cmp_ge_u32 s62, 2")
    e("s_cbranch_scc1 P1_L_B3X")
    e("s_waitcnt vmcnt(1)")
    e("s_branch P1_L_B3X")
    e.label("P1_L_B3W")
    e("s_waitcnt vmcnt(0)")
    e.label("P1_L_B3X")
    e("s_barrier")
    e("s_cmp_ge_u32 s62, 4")
    e("s_cbranch_scc1 P1_C_NOFLAG")
    e("s_cmp_lg_u32 s3, 1")
    e("s_cbranch_scc1 P1_C_NOFLAG")
    e("s_mov_b32 s76, 0x80000")
    e("v_mov_b32 v6, 0")
    e.label("P1_C_SPINN")
    e("s_waitcnt vmcnt(0)")
    e("v_readfirstlane_b32 s75, v7")
    e("s_nop 3")
    e("s_cmp_lg_u32 s75, 0")
    e("s_cbranch_scc1 P1_C_GOTN")
    e("s_sleep 16")
    e("global_load_dword v7, v6, s[16:17] sc1")
    e("s_sub_u32 s76, s76, 1")
    e("s_cmp_lg_u32 s76, 0")
    e("s_cbranch_scc1 P1_C_SPINN")
    e.label("P1_C_GOTN")
    e("v_lshlrev_b32 v6, 10, v1")
    e("s_lshl_b32 s67, s2, 2")
    e(f"s_add_u32 s67, s67, {hex(WS_RDY)}")
    e("s_mov_b32 exec_hi, 0")
    e("buffer_store_dword v7, v6, s[44:47], s67 offen sc1")
    e("s_mov_b64 exec, -1")
    e.label("P1_C_NOFLAG")
    stamp(e, 2)
    e(f"v_mov_b32 v20, {L_CNT}")
    e("s_mov_b32 s76, 0x80000")
    e("s_cmp_lg_u32 s3, 0")
    e("s_cbranch_scc1 P1_L_SPINL")
    e.label("P1_L_SPINN")
    e("s_waitcnt vmcnt(0)")
    e("v_readfirstlane_b32 s75, v7")
    e("s_nop 3")
    e("s_cmp_lg_u32 s75, 0")
    e("s_cbranch_scc1 P1_L_GOTN")
    e("s_sleep 16")
    e("global_load_dword v7, v6, s[16:17] sc1")
    e("s_sub_u32 s76, s76, 1")
    e("s_cmp_lg_u32 s76, 0")
    e("s_cbranch_scc1 P1_L_SPINN")
    e.label("P1_L_GOTN")
    e("s_and_b32 s67, s2, 31")
    e("s_lshl_b32 s67, s67, 10")
    e(f"s_add_u32 s67, s67, {hex(WS_RDY)}")
    e.label("P1_L_SPING")
    e("buffer_load_dwordx4 v[8:11], v4, s[44:47], s67 offen sc1")
    e("s_waitcnt vmcnt(0)")
    e("v_xor_b32 v8, v8, v7")
    e("v_xor_b32 v9, v9, v7")
    e("v_xor_b32 v10, v10, v7")
    e("v_xor_b32 v11, v11, v7")
    e("v_or3_b32 v8, v8, v9, v10")
    e("v_or_b32 v8, v8, v11")
    e("v_cmp_ne_u32 vcc, 0, v8")
    e("s_and_b32 vcc_lo, vcc_lo, 0x00ff00ff")
    e("s_and_b32 vcc_hi, vcc_hi, 0x00ff00ff")
    e("s_cmp_eq_u64 vcc, 0")
    e("s_cbranch_scc1 P1_L_GO")
    e(f"s_sleep {SLP}")
    e("s_sub_u32 s76, s76, 1")
    e("s_cmp_lg_u32 s76, 0")
    e("s_cbranch_scc1 P1_L_SPING")
    e.label("P1_L_GO")
    e("ds_write_b32 v20, v7")
    e("s_mov_b32 s67, s75")
    e("s_branch P1_L_KV")
    e.label("P1_L_SPINL")
    e("ds_read_b32 v8, v20")
    e("s_waitcnt lgkmcnt(0)")
    e("v_readfirstlane_b32 s67, v8")
    e("s_nop 3")
    e("s_cmp_lg_u32 s67, 0")
    e("s_cbranch_scc1 P1_L_KV")
    e("s_sleep 1")
    e("s_branch P1_L_SPINL")
    e.label("P1_L_KV")
    e("s_mov_b32 s80, s67")
    stamp(e, 10)
    e("s_lshl_b32 s75, s3, 15")
    e(f"s_add_u32 s75, s75, {hex(WS_KV)}")
    for n in range(8):
        if n % 4 == 0:
            e(f"s_add_u32 m0, s64, {n * 1024}")
            e(f"s_add_u32 s67, s75, {n * 1024}")
        e(f"buffer_load_dwordx4 v4, s[44:47], s67 offen offset:{(n & 3) * 1024} sc1 lds")
    e("s_branch P1_B4")

    e.label("P1_C")
    e(f"v_mov_b32 v47, {hex(ONES)}")
    e("s_lshl_b32 s67, s3, 8")
    e("v_lshl_add_u32 v13, v3, 4, s67")
    e("v_and_b32 v6, 15, v2")
    e("v_xor_b32 v6, v6, v3")
    e("v_lshlrev_b32 v7, 8, v2")
    e("v_add_u32 v7, s64, v7")
    for ks in range(8):
        e(f"v_xor_b32 v{24 + ks}, {2 * ks}, v6")
        e(f"v_lshl_add_u32 v{24 + ks}, v{24 + ks}, 4, v7")
    e("v_bfe_u32 v6, v1, 2, 2")
    e("v_lshl_add_u32 v6, v3, 3, v6")
    e("v_and_b32 v7, 1, v1")
    e("v_bfe_u32 v15, v1, 1, 1")
    e("v_lshl_add_u32 v7, v7, 1, v15")
    e("v_bfe_u32 v15, v1, 4, 1")
    e("v_lshlrev_b32 v20, 7, v6")
    e("v_lshl_add_u32 v20, v15, 5, v20")
    e("v_lshl_add_u32 v20, v7, 3, v20")
    e("v_add_u32 v20, s64, v20")
    e("v_lshlrev_b32 v6, 5, v6")
    e("v_add_u32 v6, s65, v6")
    e("v_lshl_add_u32 v21, v7, 3, v6")
    e("v_and_b32 v22, 3, v1")
    e("v_lshl_add_u32 v22, v22, 3, v6")
    e("s_cmp_lt_u32 s62, 2")
    e("s_cbranch_scc1 P1_KADDR")
    e("v_mov_b32 v21, v22")
    e.label("P1_KADDR")
    SX, SQ, CS = [32, 33], [34, 35], [36, 37]
    SR, CSR, CSK = [38, 39], 40, 41
    for r in range(32, 46):
        e(f"v_mov_b32 v{r}, 0")
    XF = lambda ks, tt: 48 + (ks * 2 + tt) * 4
    QA = lambda tt, ct: 128 + (tt * 2 + ct) * 16
    WF = lambda kk, ct: 112 + (kk * 2 + ct) * 4
    KFR = lambda ks: XF(ks, 1)
    AK = 192
    e("s_waitcnt vmcnt(0)")
    e("s_barrier")
    stamp(e, 10)
    for ks in range(8):
        e(f"ds_read_b128 {vr(XF(ks, 0), 4)}, v{24 + ks}")
    e("s_cmp_ge_u32 s62, 4")
    e("s_cbranch_scc1 P1_NOKF")
    for ks in range(8):
        e("s_waitcnt lgkmcnt(12)")
        for u in range(2):
            e(f"ds_read_b64_tr_b16 {vr(KFR(ks) + 2 * u, 2)}, v21 offset:{(16 * ks + 4 * u) * 32}")
    e.label("P1_NOKF")
    e("s_waitcnt lgkmcnt(0)")
    for ks in range(8):
        for c in range(4):
            x = XF(ks, 0) + c
            o = 10 if c & 1 else 0
            e(f"v_dot2_f32_bf16 v{SX[0] + o}, v{x}, v47, v{SX[0] + o}")
            e(f"v_dot2_f32_bf16 v{SQ[0] + o}, v{x}, v{x}, v{SQ[0] + o}")
    e("s_cmp_ge_u32 s62, 4")
    e("s_cbranch_scc1 P1_C_B2")
    for ks in range(8):
        for c in range(4):
            e(f"v_dot2_f32_bf16 v{CSK if c & 1 else CSR}, v{KFR(ks) + c}, v47, v{CSK if c & 1 else CSR}")
    e("s_cmp_lt_u32 s62, 2")
    e("s_cbranch_scc1 P1_XK")
    for ks in range(8):
        mfma32(e, AK, XF(ks, 0), KFR(ks), None if ks == 0 else AK)
    e("s_branch P1_XDONE")
    e.label("P1_XK")
    for ks in range(8):
        mfma32(e, AK, KFR(ks), XF(ks, 0), None if ks == 0 else AK)
    e.label("P1_XDONE")
    e(f"v_add_f32 v112, v{SX[0]}, v42")
    e(f"v_add_f32 v113, v{SQ[0]}, v44")
    e(f"v_add_f32 v114, v{CSK}, v{CSR}")
    e("v_mov_b32 v115, v114")
    swap_add(e, 112, 113)
    swap_add(e, 114, 115)
    e("s_lshl_b32 s67, s3, 10")
    e("v_lshl_add_u32 v6, v1, 2, s67")
    e(f"ds_write_b32 v6, v112 offset:{O_ST1}")
    e(f"ds_write_b32 v6, v114 offset:{O_ST1 + 256}")
    e("v_add_u32 v7, s65, v4")
    for rq in range(4):
        e(f"ds_write_b128 v7, {vr(AK + 4 * rq, 4)} offset:{rq * 1024}")
    e("s_waitcnt lgkmcnt(0)")
    e.label("P1_C_B2")
    e("s_barrier")
    e.label("P1_C_B3")
    e("s_waitcnt lgkmcnt(0)")
    e("s_barrier")
    stamp(e, 6)
    for ks in range(8):
        e(f"ds_read_b128 {vr(XF(ks, 1), 4)}, v{24 + ks} offset:8192")
    e(f"v_add_f32 v{SX[0]}, v{SX[0]}, v42")
    e(f"v_add_f32 v{SQ[0]}, v{SQ[0]}, v44")
    e(f"v_mov_b32 v{CSR}, 0")
    e("v_mov_b32 v42, 0")
    e("v_mov_b32 v44, 0")
    e("s_waitcnt lgkmcnt(0)")
    for ks in range(8):
        for c in range(4):
            x = XF(ks, 1) + c
            sxr, sqr = (42, 44) if c & 1 else (SX[1], SQ[1])
            e(f"v_dot2_f32_bf16 v{sxr}, v{x}, v47, v{sxr}")
            e(f"v_dot2_f32_bf16 v{sqr}, v{x}, v{x}, v{sqr}")
    e("s_cmp_lg_u32 s62, 4")
    e("s_cbranch_scc1 P1_NOXR")
    for half in range(2):
        for k4 in range(4):
            e(f"ds_read_b128 {vr(112 + 4 * k4, 4)}, v13 offset:{O_WR + 32 * (4 * half + k4)}")
        e("s_waitcnt lgkmcnt(0)")
        for k4 in range(4):
            ks = 4 * half + k4
            for c in range(4):
                e(f"v_dot2_f32_bf16 v{SR[0]}, v{XF(ks, 0) + c}, v{112 + 4 * k4 + c}, v{SR[0]}")
                e(f"v_dot2_f32_bf16 v{SR[1]}, v{XF(ks, 1) + c}, v{112 + 4 * k4 + c}, v{SR[1]}")
                e(f"v_dot2_f32_bf16 v{CSR}, v{112 + 4 * k4 + c}, v47, v{CSR}")
    e.label("P1_NOXR")
    for kc in range(4):
        for kk in range(2):
            ks = 2 * kc + kk
            for ct in range(2):
                for u in range(2):
                    e(f"ds_read_b64_tr_b16 {vr(WF(kk, ct) + 2 * u, 2)}, v20 offset:{16384 + (16 * ks + 4 * u) * 128 + 64 * ct}")
        e("s_waitcnt lgkmcnt(0)")
        for kk in range(2):
            for c in range(4):
                for ct in range(2):
                    e(f"v_dot2_f32_bf16 v{CS[ct]}, v{WF(kk, ct) + c}, v47, v{CS[ct]}")
        for kk in range(2):
            ks = 2 * kc + kk
            for tt in range(2):
                for ct in range(2):
                    mfma32(e, QA(tt, ct), WF(kk, ct), XF(ks, tt), None if ks == 0 else QA(tt, ct))
    e(f"v_add_f32 v{SX[1]}, v{SX[1]}, v42")
    e(f"v_add_f32 v{SQ[1]}, v{SQ[1]}, v44")
    e(f"v_mov_b32 v{CSK}, v{CSR}")
    swap_add(e, SX[0], SX[1])
    swap_add(e, SQ[0], SQ[1])
    swap_add(e, CS[0], CS[1])
    swap_add(e, SR[0], SR[1])
    swap_add(e, CSR, CSK)
    e("s_mul_i32 s67, s3, 1280")
    e("v_lshl_add_u32 v6, v1, 2, s67")
    for q, r in enumerate((32, 34, 36, 38, 40)):
        e(f"ds_write_b32 v6, v{r} offset:{O_ST2 + q * 256}")
    e("v_add_u32 v7, s64, v4")
    for r in range(48, 52):
        e(f"v_mov_b32 v{r}, 0")
    for tt in range(2):
        for ct in range(2):
            for rq in range(4):
                e(f"ds_write_b128 v7, {vr(QA(tt, ct) + 4 * rq, 4)} offset:{16384 + ((tt * 2 + ct) * 4 + rq) * 1024}")
            e("s_waitcnt lgkmcnt(8)")
    e("s_waitcnt lgkmcnt(0)")
    for q in range(8):
        mfma32(e, 128 + 16 * q, 48, 48)
    stamp(e, 7)
    e.label("P1_B4")
    e("s_barrier")
    e("s_lshr_b32 s68, s3, 1")
    e("s_and_b32 s69, s3, 1")
    e("v_lshlrev_b32 v6, 2, v1")
    e("s_lshl_b32 s67, s68, 7")
    e("v_lshl_add_u32 v7, v2, 2, s67")
    for wp in range(4):
        e(f"ds_read_b32 v{44 + wp}, v6 offset:{O_ST2 + wp * 1280 + 512}")
        e(f"ds_read_b32 v{112 + wp}, v7 offset:{O_ST2 + wp * 1280}")
        e(f"ds_read_b32 v{116 + wp}, v7 offset:{O_ST2 + wp * 1280 + 256}")
    e("s_lshl_b32 s67, s3, 12")
    e("s_lshl_b32 s70, s19, 11")
    e("s_add_u32 s67, s67, s70")
    e(f"s_add_u32 s67, s67, {L_KV + 16384}")
    e("v_add_u32 v8, s67, v4")
    e("v_add_u32 v9, 65536, v8")
    AR = lambda wp, rr: 64 + (wp * 2 + rr) * 4
    e("s_lshl_b32 s70, s19, 10")
    e("s_add_u32 s71, s64, s70")
    e("v_lshl_add_u32 v10, v1, 2, s71")
    e("s_lshl_b32 s67, s69, 7")
    e("s_lshl_b32 s70, s19, 6")
    e("s_add_u32 s67, s67, s70")
    e("s_add_u32 s67, s67, s71")
    e("v_lshl_add_u32 v11, v3, 4, s67")
    e("s_waitcnt lgkmcnt(4)")
    for wp in range(4):
        a = 8 if wp < 2 else 9
        for rr in range(2):
            e(f"ds_read_b128 {vr(AR(wp, rr), 4)}, v{a} offset:{(wp & 1) * 32768 + rr * 1024}")
    e("s_waitcnt lgkmcnt(8)")
    for b in (44, 112, 116):
        sum4(e, b, b, b + 1, b + 2, b + 3)
    e(f"ds_write_b32 v10, v44 offset:{P_PV}")
    for g in range(2):
        e(f"ds_read_b128 {vr(56 + 4 * g, 4)}, v11 offset:{P_PV + 32 * g}")
    token_stats(e, 112, 116, MB, DB, INV, 123, 124)
    e("s_xor_b32 s67, s68, s18")
    e("s_lshl_b32 s67, s67, 8")
    e("v_lshl_add_u32 v7, v2, 3, s67")
    e(f"v_mov_b32 v{DB}, v{INV}")
    e(f"ds_write_b64 v7, v[{MB}:{DB}] offset:{L_TS}")
    e(f"v_mul_f32 v124, {hex(QSCALE)}, v{INV}")
    e("s_waitcnt lgkmcnt(4)")
    for r in range(8):
        a = 64 + r
        sum4(e, a, a, a + 8, a + 16, a + 24)
    e("v_add_u32 v10, s71, v4")
    e("s_waitcnt lgkmcnt(0)")
    for r in range(8):
        a = 64 + r
        e(f"v_fma_f32 v{a}, -v{MB}, v{56 + r}, v{a}")
        e(f"v_mul_f32 v{a}, v124, v{a}")
        if r & 1:
            e(f"v_cvt_pk_bf16_f32 v{96 + r // 2}, v{a - 1}, v{a}")
    e(f"ds_write_b128 v10, v[96:99] offset:{P_QF}")
    e("s_waitcnt vmcnt(0) lgkmcnt(0)")
    e("s_barrier")
    e("s_cmp_ge_u32 s60, 4")
    e("s_cbranch_scc1 K2_H")

    ACC = lambda q: 128 + 16 * q
    Q = lambda q: 96 + 4 * q
    S = [64, 80]
    P = 56
    KB = [8, 12]
    VB = [24, 32]
    NB = 2
    e("s_lshl_b32 s68, s60, 15")
    e(f"s_add_u32 s68, s68, {hex(WS_KV)}")
    e("s_mov_b32 s50, 0x0000ffff")
    e("s_mov_b32 s51, 0x0000ffff")
    e("s_lshl_b32 s67, s18, 16")
    e(f"s_add_u32 s70, s67, {L_KV + P_QF}")
    e("v_add_u32 v6, s70, v4")
    e("s_xor_b32 s67, s67, 65536")
    e(f"s_add_u32 s70, s67, {L_KV + P_QF}")
    e("v_add_u32 v7, s70, v4")
    for q in range(8):
        hl, tt = q >> 1, q & 1
        e(f"ds_read_b128 {vr(Q(q), 4)}, v{6 + tt} offset:{(hl >> 1) * 32768 + (hl & 1) * 1024}")

    def init_v():
        e("v_and_b32 v6, 27, v2")
        e("v_cmp_eq_u32 vcc, 16, v6")
        e(f"v_mov_b32 v7, {hex(ONES)}")
        e("s_nop 0")
        e("v_cndmask_b32 v7, 0, v7, vcc")
        for r in range(24, 40):
            e(f"v_mov_b32 v{r}, v7")

    def load_q():
        pass

    def load_kv(buf, soff, imm=0, tag="kv"):
        e.vmem(f"buffer_load_dwordx4 {vr(KB[buf], 4)}, v4, s[44:47], {soff} offen offset:{imm} sc1", tag + "k")
        e("s_mov_b64 exec, s[50:51]")
        e.vmem(f"buffer_load_dwordx4 {vr(VB[buf], 4)}, v5, s[44:47], {soff} offen offset:{imm} sc1", tag + "v")
        e.vmem(f"buffer_load_dwordx4 {vr(VB[buf] + 4, 4)}, v5, s[44:47], {soff} offen offset:{imm + 512} sc1", tag + "v")
        e("s_mov_b64 exec, -1")

    def read_kv(buf, imm):
        e(f"ds_read_b128 {vr(KB[buf], 4)}, v40 offset:{imm}")
        e("s_mov_b64 exec, s[50:51]")
        e(f"ds_read_b128 {vr(VB[buf], 4)}, v41 offset:{imm}")
        e(f"ds_read_b128 {vr(VB[buf] + 4, 4)}, v41 offset:{imm + 512}")
        e("s_mov_b64 exec, -1")

    init_v()
    e("v_add_u32 v40, s64, v4")
    e("v_add_u32 v41, s64, v5")
    read_kv(0, 0)
    for r in range(P, P + 8):
        e(f"v_mov_b32 v{r}, 0")
    e("s_waitcnt lgkmcnt(0)")
    mfma32(e, S[0], KB[0], Q(0))
    e("s_barrier")
    stamp(e, 2)
    cstamp(e, 8)
    e(f"s_mov_b32 s70, {16 // UNR}")
    e("s_nop 7")
    e("s_nop 1")

    def slot(tb, q):
        kb = tb & 1
        t = q
        Sc, Sn = S[t & 1], S[(t + 1) & 1]
        if q < 7:
            mfma32(e, Sn, KB[kb], Q(q + 1))
        else:
            mfma32(e, Sn, KB[kb ^ 1], Q(0))
        for i in range(6):
            e(f"v_exp_f32 v{Sc + i}, v{Sc + i}")
        if q == 0:
            mfma32(e, ACC(7), VB[kb ^ 1] + 4, P + 4, ACC(7))
        else:
            mfma32(e, ACC(q - 1), VB[kb] + 4, P + 4, ACC(q - 1))
        for i in range(6, 8):
            e(f"v_exp_f32 v{Sc + i}, v{Sc + i}")
        if q == 5:
            read_kv(kb ^ 1, 2048 * (tb + 1))
        for c in range(4):
            e(f"v_cvt_pk_bf16_f32 v{P + c}, v{Sc + 2 * c}, v{Sc + 2 * c + 1}")
        e(f"v_exp_f32 v{Sc + 8}, v{Sc + 8}")
        e(f"v_exp_f32 v{Sc + 9}, v{Sc + 9}")
        mfma32(e, ACC(q), VB[kb], P, ACC(q))
        for i in range(10, 16):
            e(f"v_exp_f32 v{Sc + i}, v{Sc + i}")
            if q == 6 and i == 15:
                e("s_waitcnt lgkmcnt(0)")
        for c in range(4, 8):
            e(f"v_cvt_pk_bf16_f32 v{P + c}, v{Sc + 2 * c}, v{Sc + 2 * c + 1}")
        if q == 7 and tb == UNR - 1:
            e(f"v_add_u32 v40, {2048 * UNR}, v40")
            e(f"v_add_u32 v41, {2048 * UNR}, v41")

    e.raw(".p2align 6")
    e.label("K2_LOOP")
    for tb in range(UNR):
        for q in range(8):
            e.vm = []
            slot(tb, q)
    e("s_sub_u32 s70, s70, 1")
    e("s_cmp_lg_u32 s70, 7")
    e("s_cbranch_scc1 K2_LOOP_NB")
    e("s_barrier")
    e.label("K2_LOOP_NB")
    e("s_cmp_lg_u32 s70, 0")
    e("s_cbranch_scc1 K2_LOOP")
    mfma32(e, ACC(7), VB[1] + 4, P + 4, ACC(7))
    e.vm = []
    stamp(e, 3)
    cstamp(e, 9)
    e.label("K2_DUMP")
    e("s_lshr_b32 s71, s60, 1")
    e("s_and_b32 s72, s60, 1")
    e("s_lshl_b32 s73, s61, 6")
    e("s_lshl_b32 s67, s71, 5")
    e("s_add_u32 s73, s73, s67")
    e("v_add_u32 v56, s73, v2")
    e("v_lshlrev_b32 v57, 10, v56")
    e("v_lshl_add_u32 v57, v3, 5, v57")
    e("s_lshl_b32 s74, s62, 7")
    e("s_lshl_b32 s67, s72, 6")
    e("s_add_u32 s74, s74, s67")
    e("buffer_load_dwordx4 v[48:51], v57, s[20:23], s74 offen")
    e("buffer_load_dwordx4 v[52:55], v57, s[20:23], s74 offen offset:16")
    e("s_lshl_b32 s67, s71, 8")
    e("v_lshl_add_u32 v58, v2, 3, s67")
    e(f"ds_read_b64 v[46:47], v58 offset:{L_TS}")
    e("s_lshl_b32 s67, s60, 15")
    e(f"s_add_u32 s67, s67, {L_REDB}")
    e("v_add_u32 v6, s67, v4")
    e("v_lshl_add_u32 v7, v1, 2, s67")
    for q in range(8):
        e(f"ds_write_b128 v6, {vr(ACC(q), 4)} offset:{q * 2304}")
        e(f"ds_write_b128 v6, {vr(ACC(q) + 4, 4)} offset:{q * 2304 + 1024}")
        e(f"ds_write_b32 v7, {vr(ACC(q) + 8)} offset:{q * 2304 + 2048}")
        if q >= 3:
            e("s_waitcnt lgkmcnt(9)")
    e("s_waitcnt lgkmcnt(0)")
    e.label("K2_BAR1")
    e("s_barrier")
    stamp(e, 4)
    e("s_mul_i32 s67, s60, 2304")
    e(f"s_add_u32 s67, s67, {L_REDB}")
    e("v_add_u32 v6, s67, v4")
    e("v_lshl_add_u32 v7, v1, 2, s67")
    e("v_add_u32 v44, 65536, v6")
    e("v_add_u32 v45, 65536, v7")
    for wp in range(4):
        a, b = (6, 7) if wp < 2 else (44, 45)
        e(f"ds_read_b128 {vr(8 + wp * 8, 4)}, v{a} offset:{(wp & 1) * 32768}")
        e(f"ds_read_b128 {vr(12 + wp * 8, 4)}, v{a} offset:{(wp & 1) * 32768 + 1024}")
        e(f"ds_read_b32 v{40 + wp}, v{b} offset:{(wp & 1) * 32768 + 2048}")
    e("s_and_b32 s67, s60, 1")
    e("s_lshl_b32 s71, s61, 1")
    e("s_add_u32 s67, s67, s71")
    e("s_lshl_b32 s67, s67, 5")
    e("s_lshl_b32 s71, s62, 2")
    e("s_add_u32 s67, s67, s71")
    e("s_lshr_b32 s71, s60, 1")
    e("s_add_u32 s67, s67, s71")
    e("s_lshl_b32 s67, s67, 10")
    e(f"s_add_u32 s67, s67, {hex(WS_OF)}")
    e("v_mov_b32 v45, 0x37800000")
    e("v_mov_b32 v44, 0x5f800000")
    e("s_waitcnt lgkmcnt(0)")
    sum4(e, 40, 40, 41, 42, 43)
    e("v_rcp_f32 v41, v40")
    for i in range(8):
        sum4(e, 8 + i, 8 + i, 16 + i, 24 + i, 32 + i)
    e("v_fma_f32 v42, v8, 0, v40")
    for i in range(1, 8):
        e(f"v_fma_f32 v42, v{8 + i}, 0, v42")
    for i in range(8):
        e(f"v_mul_f32 v{8 + i}, v41, v{8 + i}")
    e("v_cmp_nle_f32 vcc, v45, v42")
    e("v_cmp_nle_f32 s[72:73], v42, v44")
    for c in range(4):
        e(f"v_cvt_pk_bf16_f32 v{16 + c}, v{8 + 2 * c}, v{9 + 2 * c}")
    e("s_or_b64 vcc, vcc, s[72:73]")
    e("s_waitcnt vmcnt(0)")
    e("s_cmp_lg_u32 s59, 0")
    e("s_cbranch_scc1 K2_STORED")
    e("s_cmp_lg_u32 s63, 0")
    e("s_cbranch_scc1 K2_DOSTORE")
    e("s_cmp_eq_u64 vcc, 0")
    e("s_cbranch_scc1 K2_DOSTORE")
    e("v_mov_b32 v6, 1")
    e(f"v_mov_b32 v7, {L_CNT + 4}")
    e("ds_write_b32 v7, v6")
    e("s_branch K2_STORED")
    e.label("K2_DOSTORE")
    e("buffer_store_dwordx4 v[16:19], v4, s[44:47], s67 offen")
    e(f"s_add_u32 s67, s67, {WS_OF2 - WS_OF}")
    e("buffer_store_dwordx4 v[16:19], v4, s[44:47], s67 offen sc1")
    e("s_mov_b32 s59, 1")
    e.label("K2_STORED")
    e("s_waitcnt lgkmcnt(0)")
    e("s_barrier")
    stamp(e, 5)
    e("s_cmp_lg_u32 s63, 0")
    e("s_cbranch_scc1 K2_POST")
    e(f"v_mov_b32 v7, {L_CNT + 4}")
    e("ds_read_b32 v6, v7")
    e("s_waitcnt lgkmcnt(0)")
    e("v_readfirstlane_b32 s67, v6")
    e("s_nop 3")
    e("s_cmp_lg_u32 s67, 0")
    e("s_cbranch_scc1 K2_SLOW")
    e.label("K2_POST")
    e("s_cmp_ge_u32 s60, 4")
    e("s_cbranch_scc1 K2_H2")
    e("s_mul_i32 s67, s60, 6144")
    e(f"s_add_u32 s67, s67, {L_STG}")
    e("v_add_u32 v10, s67, v4")
    e(f"v_mov_b32 v7, {L_SEL}")
    e("ds_read_b128 v[28:31], v7")
    for i in range(16):
        e(f"v_mov_b32 v{64 + i}, 0")
    e("s_and_b32 s72, s60, 1")
    e("v_lshlrev_b32 v11, 6, v3")
    e("s_lshl_b32 s67, s72, 7")
    e("v_add_u32 v11, s67, v11")
    e("s_waitcnt lgkmcnt(0)")
    for sl in range(2):
        e(f"v_cmp_eq_u32 vcc, v{28 + sl}, v56")
        e("s_and_saveexec_b64 s[76:77], vcc")
        e(f"s_cbranch_execz K2_NOY{sl}")
        for hq in range(4):
            for i in range(4):
                e(f"ds_read_b128 {vr(64 + hq * 16 + 4 * i, 4)}, v11 offset:{L_YS + sl * 1024 + hq * 256 + i * 16}")
            if hq == 2:
                e("s_waitcnt lgkmcnt(4)")
        e("s_waitcnt lgkmcnt(0)")
        for i in range(16):
            sum4(e, 64 + i, 64 + i, 80 + i, 96 + i, 112 + i)
            rbf(e, 64 + i, 64 + i)
            e(f"v_mul_f32 v{64 + i}, v{30 + sl}, v{64 + i}")
            rbf(e, 64 + i, 64 + i)
        e.label(f"K2_NOY{sl}")
        e("s_mov_b64 exec, -1")
    for dw in range(8):
        a, b = 64 + 2 * dw, 65 + 2 * dw
        e(f"v_lshlrev_b32 v22, 16, v{48 + dw}")
        e(f"v_and_b32 v23, 0xffff0000, v{48 + dw}")
        e("v_sub_f32 v22, v22, v46")
        e("v_sub_f32 v23, v23, v46")
        e("v_cvt_pk_bf16_f32 v24, v22, v23")
        e("v_lshlrev_b32 v22, 16, v24")
        e("v_and_b32 v23, 0xffff0000, v24")
        e("v_mul_f32 v22, v47, v22")
        e("v_mul_f32 v23, v47, v23")
        e("v_cvt_pk_bf16_f32 v24, v22, v23")
        e("v_lshlrev_b32 v22, 16, v24")
        e("v_and_b32 v23, 0xffff0000, v24")
        e(f"v_add_f32 v22, v22, v{a}")
        e(f"v_add_f32 v23, v23, v{b}")
        e("v_cvt_pk_bf16_f32 v24, v22, v23")
        e("v_lshlrev_b32 v22, 16, v24")
        e("v_and_b32 v23, 0xffff0000, v24")
        e(f"v_mul_f32 v25, {hex(NLOG2E)}, v22")
        e(f"v_mul_f32 v26, {hex(NLOG2E)}, v23")
        e("v_exp_f32 v25, v25")
        e("v_exp_f32 v26, v26")
        e("s_nop 0")
        e("v_add_f32 v25, 1.0, v25")
        e("v_add_f32 v26, 1.0, v26")
        e("v_rcp_f32 v25, v25")
        e("v_rcp_f32 v26, v26")
        e("s_nop 0")
        e("v_mul_f32 v22, v25, v22")
        e("v_mul_f32 v23, v26, v23")
        e("v_cvt_pk_bf16_f32 v24, v22, v23")
        e(f"v_lshlrev_b32 v{a}, 16, v24")
        e(f"v_and_b32 v{b}, 0xffff0000, v24")
        if dw & 1:
            e(f"ds_write_b128 v10, {vr(64 + 4 * (dw >> 1), 4)} offset:{(dw >> 1) * 1024}")
    e("s_waitcnt lgkmcnt(0)")
    stamp(e, 6)
    e("s_barrier")
    stamp_flush(e, 1, 44, 60)
    e("s_endpgm")

    e.label("K2_SLOW")
    e("s_mov_b32 s63, 1")
    e("s_cmp_ge_u32 s60, 4")
    e("s_cbranch_scc1 K2_SLOW_H")
    e.vm = []
    init_v()
    load_q()
    MXR = 16
    for q in range(8):
        e(f"v_mov_b32 v{MXR + q}, 0xff7fffff")
    for r in range(80, 84):
        e(f"v_mov_b32 v{r}, 0")
    e("s_nop 1")
    for q in range(8):
        mfma32(e, ACC(q), 80, 80)
    e("s_mov_b32 s69, s68")
    e("s_mov_b32 s70, 16")
    e.label("K2_SLOW_P1")
    e.vmem(f"buffer_load_dwordx4 {vr(KB[1], 4)}, v4, s[44:47], s69 offen sc1", "k")
    e.vwait(None)
    for q in range(8):
        mfma32(e, S[0], KB[1], Q(q))
        e("s_nop 15")
        for i in range(8):
            e(f"v_max3_f32 v{MXR + q}, v{S[0] + 2 * i}, v{S[0] + 2 * i + 1}, v{MXR + q}")
    e("s_add_u32 s69, s69, 2048")
    e("s_sub_u32 s70, s70, 1")
    e("s_cmp_lg_u32 s70, 0")
    e("s_cbranch_scc1 K2_SLOW_P1")
    for q in range(8):
        e(f"v_mov_b32 v42, v{MXR + q}")
        e("s_nop 1")
        e(f"v_permlane32_swap_b32 v{MXR + q}, v42")
        e("s_nop 1")
        e(f"v_max_f32 v{MXR + q}, v{MXR + q}, v42")
    e("s_lshl_b32 s67, s60, 10")
    e("v_lshl_add_u32 v6, v2, 2, s67")
    for q in range(8):
        e(f"ds_write_b32 v6, v{MXR + q} offset:{L_MX + q * 128}")
    e("s_waitcnt lgkmcnt(0)")
    e("s_barrier")
    e("v_lshlrev_b32 v6, 2, v2")
    for q in range(8):
        for wp in range(4):
            e(f"ds_read_b32 v{42 + wp}, v6 offset:{L_MX + wp * 1024 + q * 128}")
        e("s_waitcnt lgkmcnt(0)")
        e(f"v_max3_f32 v{MXR + q}, v42, v43, v44")
        e(f"v_max_f32 v{MXR + q}, v{MXR + q}, v45")
    e("s_mov_b32 s69, s68")
    e("s_mov_b32 s70, 16")
    e.label("K2_SLOW_P2")
    load_kv(1, "s69", 0, "s")
    e.vwait(None)
    for q in range(8):
        mfma32(e, S[0], KB[1], Q(q))
        e("s_nop 15")
        for i in range(16):
            e(f"v_sub_f32 v{S[0] + i}, v{S[0] + i}, v{MXR + q}")
        for i in range(16):
            e(f"v_exp_f32 v{S[0] + i}, v{S[0] + i}")
        e("s_nop 0")
        for c in range(8):
            e(f"v_cvt_pk_bf16_f32 v{P + c}, v{S[0] + 2 * c}, v{S[0] + 2 * c + 1}")
        e("s_nop 1")
        mfma32(e, ACC(q), VB[1], P, ACC(q))
        mfma32(e, ACC(q), VB[1] + 4, P + 4, ACC(q))
    e("s_add_u32 s69, s69, 2048")
    e("s_sub_u32 s70, s70, 1")
    e("s_cmp_lg_u32 s70, 0")
    e("s_cbranch_scc1 K2_SLOW_P2")
    e("s_nop 3")
    e("s_branch K2_DUMP")
    e.label("K2_SLOW_H")
    e("s_barrier")
    e("s_branch K2_BAR1")

    e.label("K2_H")
    e.vm = []
    e("s_setprio 2")
    e("s_sub_u32 s66, s60, 4")
    e("v_and_b32 v8, 15, v1")
    e("v_lshrrev_b32 v9, 4, v1")
    e("s_lshl_b32 s67, s62, 2")
    e("s_add_u32 s81, s67, s66")
    e("s_cmp_lg_u32 s81, 17")
    e("s_cbranch_scc1 K2_H_NOR1")
    e("v_lshlrev_b32 v6, 2, v1")
    for qi, q in enumerate((0, 1, 3, 4)):
        for wp in range(4):
            e(f"ds_read_b32 v{96 + qi * 4 + wp}, v6 offset:{O_ST2 + wp * 1280 + q * 256}")
        if qi == 2:
            e("s_waitcnt lgkmcnt(4)")
    e("s_waitcnt lgkmcnt(0)")
    e.label("K2_H_NOR1")
    e("s_mul_i32 s64, s56, 28")
    e("s_add_u32 s64, s64, s57")
    e("s_mul_i32 s65, s66, 6144")
    e(f"s_add_u32 s65, s65, {L_STG}")
    e("s_cmp_lt_u32 s66, 2")
    e("s_cselect_b32 s52, s28, s32")
    e("s_cselect_b32 s53, s29, s33")
    e(f"s_mov_b32 s54, {hex(512 * 1792 * 2)}")
    e("s_mov_b32 s55, 0x00020000")
    e("s_lshr_b32 s48, s64, 3")
    e("s_and_b32 s49, s64, 7")
    e("s_lshl_b32 s49, s49, 1")
    e("s_and_b32 s67, s66, 1")
    e("s_add_u32 s49, s49, s67")
    e("v_lshrrev_b32 v6, 3, v1")
    e("v_and_b32 v12, 7, v1")
    e("v_lshlrev_b32 v12, 4, v12")
    e("s_movk_i32 s67, 3584")
    e("v_mad_u32_u24 v16, v6, s67, v12")
    e("v_lshlrev_b32 v17, 10, v9")
    e("v_lshl_add_u32 v17, v8, 4, v17")
    e("v_lshl_add_u32 v12, v6, 10, v12")
    e("v_bfe_u32 v13, v1, 2, 2")
    e("v_lshl_add_u32 v13, v3, 2, v13")
    e("v_lshlrev_b32 v13, 7, v13")
    e("v_and_b32 v14, 1, v1")
    e("v_lshl_add_u32 v13, v14, 5, v13")
    e("v_bfe_u32 v14, v1, 4, 1")
    e("v_lshl_add_u32 v13, v14, 4, v13")
    e("v_bfe_u32 v14, v1, 1, 1")
    e("v_lshl_add_u32 v13, v14, 3, v13")
    e("v_add_u32 v13, s65, v13")
    e("s_and_b32 s77, s66, 1")
    e("s_lshl_b32 s67, s77, 6")
    e("v_add_u32 v13, s67, v13")
    e("v_xor_b32 v29, 64, v13")
    e("s_lshl_b32 s69, s77, 18")
    e("s_lshl_b32 s67, s62, 7")
    e("s_add_u32 s69, s69, s67")
    e("s_lshl_b32 s74, s66, 15")
    e(f"s_add_u32 s75, s74, {hex(WS_KV)}")
    e(f"s_add_u32 s74, s74, {L_KV}")
    e("s_barrier")
    for n in range(8, 32):
        if n % 4 == 0:
            e(f"s_add_u32 m0, s74, {(n & ~3) * 1024}")
            e(f"s_add_u32 s67, s75, {(n & ~3) * 1024}")
        e(f"buffer_load_dwordx4 v4, s[44:47], s67 offen offset:{(n & 3) * 1024} sc1 lds")
    e("s_cmp_lg_u32 s81, 17")
    e("s_cbranch_scc1 K2_H_NOR2")
    for b in (96, 100, 104, 108):
        sum4(e, b, b, b + 1, b + 2, b + 3)
    token_stats(e, 96, 100, MB, DB, INV, 123, 124)
    e("v_readlane_b32 s67, v108, 0")
    e("s_nop 1")
    e(f"v_mul_f32 v18, s67, v{MB}")
    e("v_sub_f32 v104, v104, v18")
    e(f"v_mul_f32 v104, v{INV}, v104")
    rbf(e, 104, 104)
    e("v_ashrrev_i32 v18, 31, v104")
    e("v_or_b32 v18, 0x80000000, v18")
    e("v_xor_b32 v104, v104, v18")
    e("v_and_b32 v104, 0xffff0000, v104")
    e("s_lshl_b32 s67, s61, 6")
    e("v_add_u32 v19, s67, v1")
    e("v_sub_u32 v18, 0xffff, v19")
    e("v_or_b32 v104, v104, v18")
    e("v_lshlrev_b32 v19, 3, v19")
    e(f"s_mov_b32 s67, {hex(WS_STATS)}")
    e(f"buffer_store_dwordx2 v[{MB}:{DB}], v19, s[44:47], s67 offen sc1")
    e("v_mov_b32 v24, v104")
    dpp_umax_reduce(e, 24)
    e("v_readlane_b32 s70, v24, 63")
    e("s_nop 1")
    e("v_cmp_ne_u32 vcc, s70, v104")
    e("s_nop 1")
    e("v_cndmask_b32 v24, 0, v104, vcc")
    dpp_umax_reduce(e, 24)
    e("v_readlane_b32 s71, v24, 63")
    e("s_nop 1")
    e("v_mov_b32 v20, s70")
    e("v_mov_b32 v21, s71")
    e("v_mov_b32 v22, s80")
    e("v_mov_b32 v23, s80")
    e("s_lshl_b32 s67, s61, 4")
    e(f"s_add_u32 s67, s67, {hex(WS_KEYS)}")
    e("v_mov_b32 v18, 0")
    e("s_waitcnt vmcnt(0)")
    e("s_mov_b64 exec, 1")
    e("buffer_store_dwordx4 v[20:23], v18, s[44:47], s67 offen sc1")
    e("s_mov_b64 exec, -1")
    e.label("K2_H_NOR2")
    e("s_waitcnt vmcnt(0)")
    e("s_barrier")
    e("v_lshlrev_b32 v6, 4, v2")
    e(f"s_mov_b32 s67, {hex(WS_KEYS)}")
    e("s_mov_b32 s76, 0x40000")
    e.label("K2_H_SPINK")
    e("buffer_load_dwordx4 v[20:23], v6, s[44:47], s67 offen sc1")
    e("s_waitcnt vmcnt(0)")
    e("v_cmp_ne_u32 vcc, s80, v22")
    e("v_cmp_ne_u32 s[72:73], s80, v23")
    e("s_or_b64 vcc, vcc, s[72:73]")
    e("s_cmp_eq_u64 vcc, 0")
    e("s_cbranch_scc1 K2_H_SPINK_DONE")
    e("s_sleep 16")
    e("s_sub_u32 s76, s76, 1")
    e("s_cmp_lg_u32 s76, 0")
    e("s_cbranch_scc1 K2_H_SPINK")
    e.label("K2_H_SPINK_DONE")
    e("v_mov_b32 v10, v20")
    e("v_mov_b32 v11, v21")
    e("v_mov_b32 v18, v10")
    dpp_umax_reduce(e, 18)
    e("v_readlane_b32 s70, v18, 63")
    e("s_nop 1")
    e("v_cmp_eq_u32 vcc, s70, v10")
    e("s_nop 1")
    e("v_cndmask_b32 v18, v10, v11, vcc")
    dpp_umax_reduce(e, 18)
    e("v_readlane_b32 s71, v18, 63")
    e("s_nop 3")
    e("s_and_b32 s72, s70, 0xffff")
    e("s_sub_u32 s72, 0xffff, s72")
    e("s_and_b32 s73, s71, 0xffff")
    e("s_sub_u32 s73, 0xffff, s73")
    e("s_and_b32 s72, s72, 2047")
    e("s_and_b32 s73, s73, 2047")

    WOF = lambda hd, nt: 128 + (hd * 2 + nt) * 4

    def wo_rounds(h0, h1):
        hd = h0
        while hd < h1:
            n = min(3, h1 - hd)
            for i in range(2 * n):
                if i % 4 == 0:
                    e(f"s_add_u32 m0, s65, {i * 1024}")
                e(f"s_add_u32 s67, s69, {(2 * hd + i) * 8192 - (i & 3) * 1024}")
                e(f"buffer_load_dwordx4 v12, s[24:27], s67 offen offset:{(i & 3) * 1024} lds")
            e("s_waitcnt vmcnt(0)")
            for i in range(n):
                for nt in range(2):
                    for u in range(2):
                        e(f"ds_read_b64_tr_b16 {vr(WOF(hd + i, nt) + 2 * u, 2)}, v{13 if nt == 0 else 29} offset:{(16 * i + 8 * u) * 128}")
            e("s_waitcnt lgkmcnt(0)")
            hd += n

    e(f"s_cmp_lt_u32 s57, {FFNLIM}")
    e("s_cbranch_scc1 K2_H_FFN")
    wo_rounds(0, 6)
    e("s_branch K2_H_NOFFN1")
    e.label("K2_H_FFN")
    e("v_mov_b32 v18, s72")
    e("v_mov_b32 v19, s73")
    e("v_cmp_eq_u32 vcc, 0, v3")
    e("s_lshl_b32 s67, s49, 6")
    e("s_nop 0")
    e("v_cndmask_b32 v18, v19, v18, vcc")
    e("v_lshlrev_b32 v19, 10, v18")
    e("v_lshl_add_u32 v19, v2, 1, v19")
    e("buffer_load_ushort v20, v19, s[20:23], s67 offen")
    e("v_lshlrev_b32 v19, 3, v18")
    e(f"s_mov_b32 s67, {hex(WS_STATS)}")
    e("buffer_load_dwordx2 v[22:23], v19, s[44:47], s67 offen sc1")
    e(f"s_mul_i32 s68, s49, {32 * 3584}")
    e("s_lshl_b32 s67, s48, 7")
    e("s_add_u32 s68, s68, s67")
    for n in range(4):
        e(f"s_add_u32 m0, s65, {n * 1024}")
        e(f"s_add_u32 s67, s68, {n * 8 * 3584}")
        e("buffer_load_dwordx4 v16, s[52:55], s67 offen lds")
    e("s_lshl_b32 s68, s64, 13")
    e("s_lshl_b32 s67, s66, 8")
    e("s_add_u32 s68, s68, s67")
    for n in range(2):
        e(f"s_add_u32 m0, s65, {4096 + n * 1024}")
        e(f"s_add_u32 s67, s68, {n * 4096}")
        e("buffer_load_dwordx4 v17, s[36:39], s67 offen lds")
    e("v_bfe_u32 v24, v1, 2, 2")
    e("v_lshl_add_u32 v25, v9, 3, v24")
    e("v_lshlrev_b32 v25, 7, v25")
    e("v_and_b32 v26, 3, v1")
    e("v_lshl_add_u32 v25, v26, 3, v25")
    e("v_add_u32 v25, s65, v25")
    e("v_and_b32 v24, 1, v24")
    e("v_lshl_add_u32 v24, v9, 1, v24")
    e("v_lshlrev_b32 v24, 8, v24")
    e("v_lshl_add_u32 v24, v26, 3, v24")
    e("v_add_u32 v24, s65, v24")
    e("s_lshl_b32 s67, s66, 7")
    e("v_lshl_add_u32 v27, v1, 1, s67")
    e("v_and_b32 v28, 1, v8")
    e("v_lshlrev_b32 v28, 6, v28")
    e("v_lshl_add_u32 v28, v9, 4, v28")
    e("v_add_u32 v28, s67, v28")
    e("s_waitcnt vmcnt(6)")
    e("v_rcp_f32 v23, v23")
    e("v_lshlrev_b32 v20, 16, v20")
    e("v_sub_f32 v20, v20, v22")
    rbf(e, 20, 20)
    e("v_mul_f32 v20, v23, v20")
    e("v_cvt_pk_bf16_f32 v20, v20, v20")
    e(f"ds_write_b16 v27, v20 offset:{L_XS}")
    e(f"ds_read_b128 v[80:83], v28 offset:{L_XS}")
    e("s_waitcnt vmcnt(2)")
    GA = lambda ft: 64 + 4 * ft
    for ft in range(4):
        for u in range(2):
            e(f"ds_read_b64_tr_b16 {vr(GA(ft) + 2 * u, 2)}, v25 offset:{4 * u * 128 + ft * 32}")
    e("s_movk_i32 s67, 7168")
    e("v_mul_lo_u32 v19, v8, s67")
    e("v_lshl_add_u32 v19, v9, 4, v19")
    e("s_lshl_b32 s67, s49, 1")
    e("s_lshr_b32 s74, s66, 1")
    e("s_add_u32 s67, s67, s74")
    e(f"s_mul_i32 s67, s67, {2 * 7168}")
    e("s_lshl_b32 s74, s48, 8")
    e("s_add_u32 s67, s67, s74")
    e(f"s_add_u32 s75, s67, {hex(WS_PG)}")
    e("v_mov_b32 v26, s80")
    e("v_mov_b32 v18, 0")
    e("s_waitcnt lgkmcnt(0)")
    for ft in range(4):
        mfma16(e, 48 + 4 * ft, GA(ft), 80)
    e("s_mov_b32 exec_lo, 0x00030003")
    e("s_mov_b32 exec_hi, 0x00030003")
    e("s_nop 5")
    for ft in range(4):
        e(f"buffer_store_dwordx4 {vr(48 + 4 * ft, 4)}, v19, s[44:47], s75 offen offset:{64 * ft} sc1")
    e("s_mov_b64 exec, -1")
    DF = lambda ee: 96 + 4 * ee
    e("s_waitcnt vmcnt(4)")
    for ee in range(8):
        e(f"ds_read_b64_tr_b16 {vr(DF(ee), 2)}, v24 offset:{4096 + 32 * ee}")
        e(f"v_mov_b32 v{DF(ee) + 2}, 0")
        e(f"v_mov_b32 v{DF(ee) + 3}, 0")
    e("s_lshl_b32 s67, s64, 4")
    e("s_lshl_b32 s74, s66, 2")
    e("s_add_u32 s67, s67, s74")
    e(f"s_add_u32 s67, s67, {hex(WS_FLAGS + 4096)}")
    e("s_waitcnt vmcnt(0)")
    e("s_mov_b64 exec, 1")
    e("buffer_store_dword v26, v18, s[44:47], s67 offen sc1")
    e("s_mov_b64 exec, -1")
    e("s_waitcnt lgkmcnt(0)")
    wo_rounds(0, 6)
    e("s_mov_b32 exec_hi, 0")
    e("v_lshlrev_b32 v18, 2, v1")
    e("s_lshl_b32 s67, s48, 7")
    e(f"s_add_u32 s67, s67, {hex(WS_FLAGS + 4096)}")
    e("s_mov_b32 s76, 0x40000")
    e.label("K2_H_SPIN1")
    e("buffer_load_dword v19, v18, s[44:47], s67 offen sc1")
    e("s_waitcnt vmcnt(0)")
    e("v_cmp_ne_u32 vcc, s80, v19")
    e("s_cmp_eq_u64 vcc, 0")
    e("s_cbranch_scc1 K2_H_SPIN1_DONE")
    e("s_sleep 8")
    e("s_sub_u32 s76, s76, 1")
    e("s_cmp_lg_u32 s76, 0")
    e("s_cbranch_scc1 K2_H_SPIN1")
    e.label("K2_H_SPIN1_DONE")
    e("s_mov_b64 exec, -1")
    e("v_lshrrev_b32 v18, 1, v8")
    e(f"s_mov_b32 s67, {8 * 7168}")
    e("v_mul_lo_u32 v18, v18, s67")
    e("v_and_b32 v19, 1, v8")
    e("s_movk_i32 s67, 7168")
    e("v_mad_u32_u24 v18, v19, s67, v18")
    e("v_lshl_add_u32 v18, v9, 3, v18")
    e("s_lshl_b32 s74, s64, 5")
    e(f"s_add_u32 s74, s74, {hex(WS_PG)}")
    for kl in range(2):
        for m in range(2):
            e(f"s_add_u32 s67, s74, {(kl * 2 + m) * 2 * 7168}")
            e(f"buffer_load_dwordx2 {vr(64 + (kl * 2 + m) * 2, 2)}, v18, s[44:47], s67 offen sc1")
    e("v_mov_b32 v41, 0")
    e("v_mov_b32 v42, 0")
    e("v_mov_b32 v43, 0")
    e("s_waitcnt vmcnt(0) lgkmcnt(0)")
    for i in range(4):
        e(f"v_add_f32 v{64 + i}, v{64 + i}, v{68 + i}")
    for rot in (2, 4, 8):
        e("s_nop 0")
        for i in range(4):
            e(f"v_add_f32_dpp v{64 + i}, v{64 + i}, v{64 + i} row_ror:{rot} row_mask:0xf bank_mask:0xf")
    g0, g1, u0, u1 = 64, 65, 66, 67
    e(f"v_cvt_pk_bf16_f32 v24, v{g0}, v{g1}")
    e(f"v_cvt_pk_bf16_f32 v25, v{u0}, v{u1}")
    e(f"v_lshlrev_b32 v{g0}, 16, v24")
    e(f"v_and_b32 v{g1}, 0xffff0000, v24")
    e(f"v_lshlrev_b32 v{u0}, 16, v25")
    e(f"v_and_b32 v{u1}, 0xffff0000, v25")
    e(f"v_mul_f32 v24, {hex(NLOG2E)}, v{g0}")
    e(f"v_mul_f32 v25, {hex(NLOG2E)}, v{g1}")
    e("v_exp_f32 v24, v24")
    e("v_exp_f32 v25, v25")
    e("s_nop 0")
    e("v_add_f32 v24, 1.0, v24")
    e("v_add_f32 v25, 1.0, v25")
    e("v_rcp_f32 v24, v24")
    e("v_rcp_f32 v25, v25")
    e("s_nop 0")
    e(f"v_mul_f32 v{g0}, v24, v{g0}")
    e(f"v_mul_f32 v{g1}, v25, v{g1}")
    e(f"v_cvt_pk_bf16_f32 v24, v{g0}, v{g1}")
    e(f"v_lshlrev_b32 v{g0}, 16, v24")
    e(f"v_and_b32 v{g1}, 0xffff0000, v24")
    e(f"v_mul_f32 v{g0}, v{g0}, v{u0}")
    e(f"v_mul_f32 v{g1}, v{g1}, v{u1}")
    e(f"v_cvt_pk_bf16_f32 v40, v{g0}, v{g1}")
    e("v_lshlrev_b32 v19, 11, v8")
    e("v_lshl_add_u32 v19, v9, 4, v19")
    for ee in range(8):
        mfma16(e, 64 + 4 * ee, DF(ee), 40)
    e("s_lshl_b32 s67, s64, 12")
    e("s_lshl_b32 s74, s66, 9")
    e("s_add_u32 s67, s67, s74")
    e(f"s_add_u32 s67, s67, {hex(WS_YP)}")
    e("s_mov_b32 exec_lo, 0x00030003")
    e("s_mov_b32 exec_hi, 0x00030003")
    e("s_nop 3")
    for ee in range(8):
        e(f"buffer_store_dwordx4 {vr(64 + 4 * ee, 4)}, v19, s[44:47], s67 offen offset:{64 * ee} sc1")
    e("s_lshl_b32 s67, s66, 10")
    e("s_lshl_b32 s74, s64, 2")
    e("s_add_u32 s67, s67, s74")
    e(f"s_add_u32 s67, s67, {hex(WS_FLAGS)}")
    e("s_mov_b64 exec, 1")
    e("v_mov_b32 v18, 0")
    e("s_waitcnt vmcnt(0)")
    e("buffer_store_dword v26, v18, s[44:47], s67 offen sc1")
    e("s_mov_b64 exec, -1")
    e.label("K2_H_NOFFN1")
    for r in range(20, 24):
        e(f"v_mov_b32 v{r}, -1")
    e("s_lshl_b32 s67, s61, 6")
    e("s_lshl_b32 s74, s62, 2")
    e("s_add_u32 s67, s67, s74")
    e("s_add_u32 s67, s67, s66")
    e("s_lshl_b32 s67, s67, 10")
    e(f"s_add_u32 s67, s67, {hex(WS_OF)}")
    for off in (0, 32768, WS_OF2 - WS_OF, WS_OF2 - WS_OF + 32768):
        e(f"s_add_u32 s74, s67, {off}")
        e("buffer_store_dwordx4 v[20:23], v4, s[44:47], s74 offen sc1")
    e("s_lshl_b32 s67, s61, 3")
    e("s_add_u32 s67, s67, s62")
    e("s_lshl_b32 s67, s67, 2")
    e("s_add_u32 s67, s67, s66")
    e("s_lshl_b32 s67, s67, 2")
    e(f"s_add_u32 s67, s67, {hex(WS_INIT)}")
    e("v_mov_b32 v18, 0")
    e("v_mov_b32 v19, s80")
    e("s_waitcnt vmcnt(0)")
    e("s_mov_b64 exec, 1")
    e("buffer_store_dword v19, v18, s[44:47], s67 offen sc1")
    e("s_mov_b64 exec, -1")
    stamp(e, 3)
    wo_rounds(6, 16)
    e("s_lshr_b32 s74, s66, 1")
    e("s_lshl_b32 s75, s61, 1")
    e("s_add_u32 s75, s75, s74")
    e("s_lshl_b32 s67, s75, 5")
    e("v_add_u32 v15, s67, v2")
    e("v_lshlrev_b32 v14, 10, v15")
    e("v_lshl_add_u32 v14, v3, 5, v14")
    e("s_lshl_b32 s58, s62, 7")
    e("s_lshl_b32 s67, s77, 6")
    e("s_add_u32 s58, s58, s67")
    e("buffer_load_dwordx4 v[120:123], v14, s[20:23], s58 offen")
    e("buffer_load_dwordx4 v[124:127], v14, s[20:23], s58 offen offset:16")
    e("s_cmp_lg_u32 s66, 0")
    e("s_cbranch_scc1 K2_H_NOSEL")
    for sl in range(2):
        e(f"s_and_b32 s74, s{70 + sl}, 0xffff0000")
        e("s_mov_b32 s76, 0xffff0000")
        e("s_cmp_lt_i32 s74, 0")
        e("s_cselect_b32 s76, 0x80000000, s76")
        e("s_xor_b32 s74, s74, s76")
        e(f"v_mov_b32 v{22 + sl}, s74")
        e(f"v_mul_f32 v{22 + sl}, {hex(NLOG2E)}, v{22 + sl}")
        e(f"v_exp_f32 v{22 + sl}, v{22 + sl}")
        e("s_nop 0")
        e(f"v_add_f32 v{22 + sl}, 1.0, v{22 + sl}")
        e(f"v_rcp_f32 v{22 + sl}, v{22 + sl}")
        e("s_nop 0")
        rbf(e, 22 + sl, 22 + sl)
    e("v_mov_b32 v20, s72")
    e("v_mov_b32 v21, s73")
    e(f"v_mov_b32 v18, {L_SEL}")
    e("ds_write_b128 v18, v[20:23]")
    e.label("K2_H_NOSEL")
    for sl in range(2):
        e(f"s_lshr_b32 s67, s{72 + sl}, 6")
        e("s_cmp_lg_u32 s67, s61")
        e(f"s_cbranch_scc1 K2_H_NOCONS{sl}")
        if XNOFFN:
            e(f"s_branch K2_H_NOCONS{sl}")
        e("s_lshr_b32 s67, s62, 1")
        e("s_lshl_b32 s67, s67, 10")
        e("s_mul_i32 s74, s66, 224")
        e("s_add_u32 s67, s67, s74")
        e(f"s_add_u32 s67, s67, {hex(WS_FLAGS)}")
        e("v_lshlrev_b32 v18, 2, v1")
        e("s_mov_b32 s76, 0x40000")
        e("s_mov_b32 exec_hi, 0x00ffffff")
        e.label(f"K2_H_SPIN2_{sl}")
        e("buffer_load_dword v19, v18, s[44:47], s67 offen sc1")
        e("s_waitcnt vmcnt(0)")
        e("v_cmp_ne_u32 vcc, s80, v19")
        e("s_cmp_eq_u64 vcc, 0")
        e(f"s_cbranch_scc1 K2_H_SPIN2_DONE{sl}")
        e("s_sleep 8")
        e("s_sub_u32 s76, s76, 1")
        e("s_cmp_lg_u32 s76, 0")
        e(f"s_cbranch_scc1 K2_H_SPIN2_{sl}")
        e.label(f"K2_H_SPIN2_DONE{sl}")
        e("s_mov_b64 exec, -1")
        e("v_lshlrev_b32 v18, 12, v9")
        e("v_lshl_add_u32 v18, v8, 4, v18")
        e(f"s_mul_i32 s67, s66, {56 * 4096}")
        e("s_lshl_b32 s74, s62, 8")
        e("s_add_u32 s67, s67, s74")
        e(f"s_add_u32 s67, s67, {hex(WS_YP + sl * 2048)}")
        for i in range(14):
            e(f"buffer_load_dwordx4 {vr(64 + 4 * i, 4)}, v18, s[44:47], s67 offen sc1")
            e("s_add_u32 s67, s67, 16384")
        e("s_waitcnt vmcnt(0)")
        for i in range(1, 14):
            for c in range(4):
                e(f"v_add_f32 v{64 + c}, v{64 + c}, v{64 + 4 * i + c}")
        swap_add(e, 64, 65)
        swap_add(e, 66, 67)
        e("s_nop 1")
        e("v_permlane16_swap_b32 v64, v66")
        e("s_nop 1")
        e("v_add_f32 v64, v64, v66")
        e("v_and_b32 v19, 1, v9")
        e("v_lshrrev_b32 v20, 1, v9")
        e("v_lshl_add_u32 v19, v19, 1, v20")
        e("v_lshl_add_u32 v19, v8, 2, v19")
        e("v_lshlrev_b32 v19, 2, v19")
        e("s_lshl_b32 s67, s66, 8")
        e("v_add_u32 v19, s67, v19")
        e(f"ds_write_b32 v19, v64 offset:{L_YS + sl * 1024}")
        e.label(f"K2_H_NOCONS{sl}")
    e("s_lshl_b32 s67, s61, 7")
    e(f"s_add_u32 s67, s67, {hex(WS_INIT)}")
    e("v_lshlrev_b32 v18, 2, v2")
    e("s_mov_b32 s76, 0x40000")
    e.label("K2_H_SPINI")
    e("buffer_load_dword v19, v18, s[44:47], s67 offen sc1")
    e("s_waitcnt vmcnt(0)")
    e("v_cmp_ne_u32 vcc, s80, v19")
    e("s_cmp_eq_u64 vcc, 0")
    e("s_cbranch_scc1 K2_H_SPINI_DONE")
    e("s_sleep 8")
    e("s_sub_u32 s76, s76, 1")
    e("s_cmp_lg_u32 s76, 0")
    e("s_cbranch_scc1 K2_H_SPINI")
    e.label("K2_H_SPINI_DONE")
    e("v_mov_b32 v2, v14")
    e("v_add_u32 v3, s65, v4")
    for r in range(72, 104):
        e(f"v_mov_b32 v{r}, 0")
    stamp(e, 9)
    e("s_waitcnt vmcnt(0) lgkmcnt(0)")
    stamp(e, 8)
    e("s_setprio 0")
    e("s_branch K2_BAR1")

    e.label("K2_H2")
    e("s_lshl_b32 s68, s75, 15")
    e("s_lshl_b32 s67, s77, 14")
    e("s_add_u32 s68, s68, s67")
    e(f"s_add_u32 s68, s68, {hex(WS_OF)}")
    OFR = lambda hd: 8 + hd * 4
    OA = [72, 88]
    G_ = 104
    e("s_mov_b32 s76, 0x10000")
    e("s_mov_b32 s74, 0")
    e("s_mov_b32 s71, s68")
    e.label("K2_H_POLL")
    for src in range(4):
        e(f"s_bitcmp1_b32 s74, {src}")
        e(f"s_cbranch_scc1 K2_H_NL{src}")
        e(f"s_add_u32 s67, s71, {src * 4096}")
        for i in range(4):
            e(f"buffer_load_dwordx4 {vr(OFR(4 * src + i), 4)}, v4, s[44:47], s67 offen offset:{i * 1024} sc1")
        e.label(f"K2_H_NL{src}")
    e.label("K2_H_CHECK")
    e("s_waitcnt vmcnt(0)")
    for src in range(4):
        e(f"s_bitcmp1_b32 s74, {src}")
        e(f"s_cbranch_scc1 K2_H_NC{src}")
        o = OFR(4 * src)
        e(f"v_max3_u32 v6, v{o}, v{o + 1}, v{o + 2}")
        for r in range(o + 3, o + 15, 2):
            e(f"v_max3_u32 v6, v{r}, v{r + 1}, v6")
        e(f"v_max_u32 v6, v{o + 15}, v6")
        e("v_cmp_eq_u32 vcc, -1, v6")
        e("s_cmp_eq_u32 s76, 1")
        e("s_cselect_b64 vcc, 0, vcc")
        e("s_cmp_eq_u64 vcc, 0")
        e(f"s_cbranch_scc0 K2_H_NC{src}")
        for i in range(4):
            for nt in range(2):
                mfma32(e, OA[nt], WOF(4 * src + i, nt), OFR(4 * src + i), OA[nt])
        e(f"s_bitset1_b32 s74, {src}")
        e.label(f"K2_H_NC{src}")
    e("s_sub_u32 s76, s76, 1")
    e("s_and_b32 s67, s76, 1")
    e(f"s_cmp_gt_u32 s76, {0x10000 - 8}")
    e("s_cselect_b32 s67, 0, s67")
    e(f"s_mul_i32 s67, s67, {WS_OF2 - WS_OF}")
    e("s_add_u32 s71, s68, s67")
    e("s_cmp_lg_u32 s74, 15")
    e("s_cbranch_scc1 K2_H_POLL")
    stamp(e, 6)
    e("s_lshl_b32 s67, s66, 12")
    e(f"s_add_u32 s67, s67, {L_REDB}")
    e("v_add_u32 v6, s67, v4")
    e("s_xor_b32 s67, s67, 4096")
    e("v_add_u32 v7, s67, v4")
    for dw in range(8):
        e(f"v_lshlrev_b32 v{8 + 2 * dw}, 16, v{120 + dw}")
        e(f"v_and_b32 v{9 + 2 * dw}, 0xffff0000, v{120 + dw}")
    for i in range(4):
        e(f"ds_write_b128 v6, {vr(OA[1] + 4 * i, 4)} offset:{i * 1024}")
    e("s_waitcnt lgkmcnt(0)")
    e("s_barrier")
    for i in range(4):
        e(f"ds_read_b128 {vr(24 + 4 * i, 4)}, v7 offset:{i * 1024}")
        e(f"ds_read_b128 {vr(G_ + 4 * i, 4)}, v3 offset:{i * 1024}")
    e("s_waitcnt lgkmcnt(0)")
    for r in range(16):
        e(f"v_add_f32 v{24 + r}, v{24 + r}, v{OA[0] + r}")
        e(f"v_fma_f32 v{8 + r}, v{24 + r}, v{G_ + r}, v{8 + r}")
        if r & 1:
            e(f"v_cvt_pk_bf16_f32 v{40 + r // 2}, v{7 + r}, v{8 + r}")
    e("buffer_store_dwordx4 v[40:43], v2, s[40:43], s58 offen")
    e("buffer_store_dwordx4 v[44:47], v2, s[40:43], s58 offen offset:16")
    stamp(e, 7)
    stamp_flush(e, 1, 44, 60)
    e.label("K2_END")
    e("s_endpgm")
    return kn, 256, LDS_SIZE


def kd(name, nv, ns=96):
    return f""".p2align 6
.amdhsa_kernel {name}
  .amdhsa_next_free_vgpr {nv}
  .amdhsa_next_free_sgpr {ns}
  .amdhsa_accum_offset 128
  .amdhsa_group_segment_fixed_size 0
  .amdhsa_kernarg_size 104
  .amdhsa_user_sgpr_count 2
  .amdhsa_user_sgpr_kernarg_segment_ptr 1
  .amdhsa_system_sgpr_workgroup_id_x 1
  .amdhsa_float_denorm_mode_32 3
.end_amdhsa_kernel
"""


def main():
    e = Asm()
    k, nv, lds = gen_k(e)
    head = f"""; LayerNorm + MQA attention (32 heads, shared K/V) + top-2 mixture-of-depths SwiGLU + gated residual, one fused kernel.
; @launch grid=(256,1,1) block=(512,1,1) lds={lds}
.amdgcn_target "amdgcn-amd-amdhsa--gfx950"
.text
"""
    tail = '.section .rodata,"a"\n' + kd(k, nv, 102)
    args = [a for a in sys.argv[1:] if not a.startswith("--")]
    out = args[0] if args else f"cdna_kernels/{NAME}.s"
    with open(out, "w") as f:
        f.write(head + e.text() + tail)


if __name__ == "__main__":
    main()
```

```python
import sys, os, subprocess, struct
sys.path.insert(0, "cdna_kernels")
import numpy as np

HEAD = """.amdgcn_target "amdgcn-amd-amdhsa--gfx950"
.text
.globl {name}
.p2align 8
.type {name},@function
{name}:
    s_load_dwordx2 s[4:5], s[0:1], 0
    v_lshrrev_b32 v1, 6, v0
    s_mul_i32 s3, s2, {nwaves}
    v_add_u32 v1, s3, v1
    v_lshlrev_b32 v1, 2, v1
    v_cvt_f32_u32 v2, v0
    v_mul_f32 v2, 0x3a83126f, v2
{init}
    s_waitcnt lgkmcnt(0)
    s_barrier
    s_memtime s[6:7]
    s_mov_b32 s10, {iters}
    s_waitcnt lgkmcnt(0)
L_loop:
{body}
    s_sub_u32 s10, s10, 1
    s_cmp_lg_u32 s10, 0
    s_cbranch_scc1 L_loop
    s_nop 15
    s_nop 15
    s_memtime s[8:9]
    s_waitcnt lgkmcnt(0)
    s_sub_u32 s8, s8, s6
    v_mov_b32 v3, s8
    v_and_b32 v4, 63, v0
    v_cmp_eq_u32 vcc, 0, v4
    s_and_saveexec_b64 s[12:13], vcc
    global_store_dword v1, v3, s[4:5]
    s_endpgm
.section .rodata,"a"
.p2align 6
.amdhsa_kernel {name}
  .amdhsa_next_free_vgpr {nvgpr}
  .amdhsa_next_free_sgpr 32
  .amdhsa_accum_offset {accum}
  .amdhsa_group_segment_fixed_size 0
  .amdhsa_kernarg_size 8
  .amdhsa_user_sgpr_count 2
  .amdhsa_user_sgpr_kernarg_segment_ptr 1
  .amdhsa_system_sgpr_workgroup_id_x 1
.end_amdhsa_kernel
.amdgpu_metadata
---
amdhsa.version: [1, 2]
amdhsa.kernels:
  - .name: {name}
    .symbol: {name}.kd
    .kernarg_segment_size: 8
    .kernarg_segment_align: 8
    .group_segment_fixed_size: 0
    .private_segment_fixed_size: 0
    .wavefront_size: 64
    .sgpr_count: 32
    .vgpr_count: {nvgpr}
    .max_flat_workgroup_size: 1024
    .args:
      - {{.name: kernargs, .size: 8, .offset: 0, .value_kind: by_value}}
...
.end_amdgpu_metadata
"""

def build(name, body, init="", nwaves=4, iters=1000, nvgpr=128, accum=128):
    src = HEAD.format(name=name, body=body, init=init, nwaves=nwaves, iters=iters, nvgpr=nvgpr, accum=accum)
    with open(f"mb/{name}.s", "w") as f:
        f.write(src)
    r = subprocess.run(["clang", "-x", "assembler", "-target", "amdgcn-amd-amdhsa", "-mcpu=gfx950",
                        f"mb/{name}.s", "-o", f"mb/{name}.co"], capture_output=True, text=True)
    if r.returncode != 0:
        print(r.stderr)
        raise SystemExit(1)

def run(name, nwaves, nblocks, iters, lds=0):
    from cdna_launch import AsmKernel, DeviceBuffer, _hip
    k = AsmKernel(f"mb/{name}.co", name)
    out = DeviceBuffer(nblocks * nwaves * 4 + 4096)
    ka = struct.pack("<Q", out.ptr)
    for _ in range(3):
        k.launch((nblocks, 1, 1), (64 * nwaves, 1, 1), ka, lds)
    _hip.hipDeviceSynchronize()
    r = out.to_numpy(np.uint32, (nblocks * nwaves,))
    k.unload()
    return r

def init_regs(n, start=8):
    return "\n".join(f"    v_mov_b32 v{i}, v2" for i in range(start, start + n))

TESTS = {}
def T(name, body, init=None, nvgpr=128, accum=128, n_inst=1):
    TESTS[name] = (body, init if init is not None else init_regs(100), nvgpr, accum, n_inst)

T("exp16", "\n".join(f"    v_exp_f32 v{40+i}, v{8+i}" for i in range(16)), n_inst=16)
T("fma16", "\n".join(f"    v_fma_f32 v{40+i}, v{8+i}, v{8+i}, v{8+i}" for i in range(16)), n_inst=16)
T("add16", "\n".join(f"    v_add_f32 v{40+i}, v{8+i}, v{9+i}" for i in range(16)), n_inst=16)
T("pkfma16", "\n".join(f"    v_pk_fma_f32 v[{40+2*i}:{41+2*i}], v[{8+2*i}:{9+2*i}], v[{8+2*i}:{9+2*i}], v[{8+2*i}:{9+2*i}]" for i in range(16)), n_inst=16)
T("cvt16", "\n".join(f"    v_cvt_pk_bf16_f32 v{40+i}, v{8+i}, v{9+i}" for i in range(16)), n_inst=16)
T("perm16", "\n".join(f"    v_perm_b32 v{40+i}, v{8+i}, v{9+i}, v5" for i in range(16)), n_inst=16)
T("max3_16", "\n".join(f"    v_max3_f32 v{40+i}, v{8+i}, v{9+i}, v{10+i}" for i in range(16)), n_inst=16)
T("mfma32", "\n".join(f"    v_mfma_f32_32x32x16_bf16 v[{48+16*i}:{63+16*i}], v[8:11], v[12:15], v[{48+16*i}:{63+16*i}]" for i in range(4)), n_inst=4)
T("mfma16", "\n".join(f"    v_mfma_f32_16x16x32_bf16 v[{48+4*i}:{51+4*i}], v[8:11], v[12:15], v[{48+4*i}:{51+4*i}]" for i in range(8)), n_inst=8)
T("exp16h", "\n".join(f"    v_exp_f16 v{40+i}, v{8+i}" for i in range(16)), n_inst=16)

def mixed(nm=3):
    L = []
    seq = []
    for i in range(16):
        seq.append(f"    v_exp_f32 v{24+i}, v{8+i}")
        if i % 2 == 1:
            seq.append(f"    v_cvt_pk_bf16_f32 v{40+i//2}, v{100+i}, v{101+i}")
    ms = [f"    v_mfma_f32_32x32x16_bf16 v[{48+16*j}:{63+16*j}], v[96:99], v[100:103], v[{48+16*j}:{63+16*j}]" for j in range(nm)]
    pos = [0, 8, 16][:nm]
    out = []
    for idx, s in enumerate(seq):
        if idx in pos:
            out.append(ms[pos.index(idx)])
        out.append(s)
    return "\n".join(out)
T("mixed3", mixed(3), init=init_regs(112), n_inst=1)
T("mixed0", mixed(0), init=init_regs(112), n_inst=1)

if __name__ == "__main__":
    mode = sys.argv[1]
    names = sys.argv[2:] or list(TESTS)
    iters = 2000
    for nm in names:
        body, init, nvgpr, accum, n_inst = TESTS[nm]
        for nw in (4, 8, 16):
            name = f"{nm}_w{nw}"
            if mode == "build":
                build(name, body, init, nw, iters, nvgpr, accum)
            else:
                for nb in (1, 256):
                    r = run(name, nw, nb, iters)
                    print(f"{name:16s} blocks={nb:4d} cycles/iter/wave: min {r.min()/iters:8.2f} med {np.median(r)/iters:8.2f} max {r.max()/iters:8.2f}  per-inst(SIMD) {np.median(r)/iters/n_inst/(nw/4):6.2f}")
```

```python
import sys, os, subprocess, struct
sys.path.insert(0, "cdna_kernels")
import numpy as np
import mb
HEAD = mb.HEAD.replace("""    s_memtime s[6:7]
""", """    s_memtime s[6:7]
    s_memrealtime s[14:15]
""").replace("""    s_memtime s[8:9]
    s_waitcnt lgkmcnt(0)
    s_sub_u32 s8, s8, s6
    v_mov_b32 v3, s8
""", """    s_memtime s[8:9]
    s_memrealtime s[16:17]
    s_waitcnt lgkmcnt(0)
    s_sub_u32 s8, s8, s6
    s_sub_u32 s16, s16, s14
    v_mov_b32 v6, s8
    v_mov_b32 v7, s16
    v_lshlrev_b32 v1, 1, v1
""").replace("global_store_dword v1, v3, s[4:5]", "global_store_dwordx2 v1, v[6:7], s[4:5]")
mb.HEAD = HEAD

def rnd_init(regs, scale_hex="0x3f800000"):
    out = ["    v_mov_b32 v5, 0x9e3779b1", "    v_mul_lo_u32 v4, v0, v5"]
    for r in regs:
        out.append(f"    v_add_u32 v4, 0x7f4a7c15, v4")
        out.append(f"    v_mul_lo_u32 v4, v4, v5")
        out.append(f"    v_and_b32 v{r}, 0x807f807f, v4")
        out.append(f"    v_or_b32 v{r}, 0x3f003f00, v{r}")
    return "\n".join(out)

def slot(t, do_exp=True, do_cvt=True, qk=True, pv=True):
    Sc = 8 + 16 * (t & 1)
    Sn = 8 + 16 * ((t + 1) & 1)
    acc = 64 + 16 * (t & 3)
    accp = 64 + 16 * ((t - 1) & 3)
    o = []
    ex = lambda i: o.append(f"    v_exp_f32 v{Sc+i}, v{Sc+i}") if do_exp else None
    cv = lambda c: o.append(f"    v_cvt_pk_bf16_f32 v{40+c}, v{Sc+2*c}, v{Sc+2*c+1}") if do_cvt else None
    if qk: o.append(f"    v_mfma_f32_32x32x16_bf16 v[{Sn}:{Sn+15}], v[48:51], v[60:63], 0")
    for i in range(6): ex(i)
    if pv: o.append(f"    v_mfma_f32_32x32x16_bf16 v[{accp}:{accp+15}], v[56:59], v[44:47], v[{accp}:{accp+15}]")
    for i in range(6, 8): ex(i)
    for c in range(4): cv(c)
    ex(8); ex(9)
    if pv: o.append(f"    v_mfma_f32_32x32x16_bf16 v[{acc}:{acc+15}], v[52:55], v[40:43], v[{acc}:{acc+15}]")
    for i in range(10, 16): ex(i)
    for c in range(4, 8): cv(c)
    return o

TESTS = {}
zero_acc = "\n".join(f"    v_mov_b32 v{r}, 0" for r in range(64, 128))
base_init = mb.init_regs(40) + "\n" + rnd_init(list(range(48, 64))) + "\n" + zero_acc
vz = "\n".join(["    v_and_b32 v4, 16, v0", "    v_cmp_eq_u32 vcc, 0, v4", "    s_nop 1"] + [f"    v_cndmask_b32 v{r}, 0, v{r}, vcc" for r in range(52, 60)])
TESTS["full"] = ("\n".join(sum([slot(t) for t in range(8)], [])), base_init + "\n" + vz)
TESTS["fullV"] = ("\n".join(sum([slot(t) for t in range(8)], [])), base_init)
TESTS["nopv"] = ("\n".join(sum([slot(t, pv=False) for t in range(8)], [])), base_init)
TESTS["exponly"] = ("\n".join(sum([[f"    v_exp_f32 v{64+i}, v{8+i}" for i in range(16)] for t in range(8)], [])), base_init)
TESTS["expcvt"] = ("\n".join(sum([[f"    v_exp_f32 v{64+i}, v{8+i}" for i in range(16)] + [f"    v_cvt_pk_bf16_f32 v{40+c}, v{64+2*c}, v{65+2*c}" for c in range(8)] for t in range(8)], [])), base_init)
TESTS["mfmaonly"] = ("\n".join(sum([slot(t, do_exp=False, do_cvt=False) for t in range(8)], [])), base_init)
TESTS["fma"] = ("\n".join(sum([[f"    v_fma_f32 v{64+i}, v{8+i}, v{9+i}, v{64+i}" for i in range(16)] for t in range(16)], [])), base_init)

if __name__ == "__main__":
    mode = sys.argv[1]
    for nm, (body, init) in TESTS.items():
        for iters in (16, 400):
            name = f"{nm}_{iters}"
            if mode == "build":
                mb.build(name, body, init, 4, iters, 128, 128)
            else:
                from cdna_launch import AsmKernel, DeviceBuffer, _hip
                k = AsmKernel(f"mb/{name}.co", name)
                out = DeviceBuffer(256 * 4 * 8 + 4096)
                big = DeviceBuffer(256 << 20)
                ka = struct.pack("<Q", out.ptr)
                res = []
                for rep in range(4):
                    _hip.hipMemset(big._ptr, rep, 256 << 20)
                    k.launch((256, 1, 1), (256, 1, 1), ka, 0)
                    _hip.hipDeviceSynchronize()
                    r = out.to_numpy(np.uint32, (1024, 2)).astype(np.float64)
                    res.append((np.median(r[:, 0]), np.median(r[:, 1]) * 0.01))
                k.unload()
                print(f"{name:16s} " + "  ".join(f"{c:8.0f}cyc {u:7.2f}us {c/u/1000:5.3f}GHz" for c, u in res))
```

```python
import sys

NAME = "recurrent_scan__grouped_kv_mqa__moe_arch_mod__prompt"

WS_QF = 0x000000
WS_KV = 0x200000
WS_KEYS = 0x220000
WS_STATS = 0x221000
WS_FLAGS = 0x226000
WS_PG = 0x240000
WS_RDY = 0x2B0000
WS_INIT = 0x2B8000
WS_OF = 0x300000
WS_YP = 0x500000
WS_OF2 = 0x600000
WS_PROF = 0x800000
WS_SIZE = 0x900000

QSCALE = 0x3eb8aa3b
NLOG2E = 0xbfb8aa3b
ONES = 0x3f803f80
EPS = 0x3727c5ac
INV512 = 0x3b000000

PROF = "--prof" in sys.argv
XNOFFN = "--xnoffn" in sys.argv
DBGOUT = "--dbgout" in sys.argv
PF1 = "--nopf1" not in sys.argv
PF2 = "--pf2" in sys.argv
PF0 = 0 if "--nopf0" in sys.argv else 4
UNR = 4 if "--unr4" in sys.argv else 2
FFNLIM = 0 if XNOFFN else 28


class Asm:
    def __init__(self):
        self.lines = []
        self.vm = []

    def __call__(self, s):
        self.lines.append("    " + s)

    def label(self, l):
        self.lines.append(l + ":")

    def raw(self, s):
        self.lines.append(s)

    def vmem(self, s, tag=None):
        self(s)
        self.vm.append(tag)
        assert len(self.vm) <= 63, "too many outstanding vmem ops"

    def vwait(self, tag=None):
        if tag is None:
            self("s_waitcnt vmcnt(0)")
            self.vm = []
            return
        idx = max(i for i, t in enumerate(self.vm) if t == tag)
        n = len(self.vm) - 1 - idx
        self(f"s_waitcnt vmcnt({n})")
        self.vm = self.vm[idx + 1:]

    def text(self):
        return "\n".join(self.lines) + "\n"


def stamp(e, i):
    if not PROF:
        return
    e("s_memrealtime s[88:89]")
    e("s_waitcnt lgkmcnt(0)")
    e(f"s_mov_b32 s{90 + i}, s88")


def cstamp(e, i):
    if not PROF:
        return
    e("s_memtime s[88:89]")
    e("s_waitcnt lgkmcnt(0)")
    e(f"s_mov_b32 s{90 + i}, s88")


def stamp_init(e):
    if PROF:
        for i in range(12):
            e(f"s_mov_b32 s{90 + i}, 0")
    stamp(e, 0)


def stamp_flush(e, kidx, wsrd, wave_sgpr):
    if not PROF:
        return
    stamp(e, 11)
    e("s_mov_b64 exec, 1")
    e("s_lshl_b32 s88, s2, 3")
    e(f"s_add_u32 s88, s88, s{wave_sgpr}")
    e("s_lshl_b32 s88, s88, 6")
    e(f"s_add_u32 s88, s88, {hex(WS_PROF + kidx * 320 * 8 * 64)}")
    e("v_mov_b32 v220, 0")
    for b in range(3):
        for i in range(4):
            e(f"v_mov_b32 v{216 + i}, s{90 + 4 * b + i}")
        e(f"buffer_store_dwordx4 v[216:219], v220, s[{wsrd}:{wsrd + 3}], s88 offen offset:{16 * b}")
        e("s_nop 1")


def vr(a, n=1):
    return f"v{a}" if n == 1 else f"v[{a}:{a + n - 1}]"


def srd(e, d, base, size):
    e(f"s_mov_b32 s{d}, s{base}")
    e(f"s_and_b32 s{d + 1}, s{base + 1}, 0xffff")
    e(f"s_mov_b32 s{d + 2}, {hex(size)}")
    e(f"s_mov_b32 s{d + 3}, 0x00020000")


def rbf(e, d, s):
    e(f"v_cvt_pk_bf16_f32 v{d}, v{s}, v{s}")
    e(f"v_and_b32 v{d}, 0xffff0000, v{d}")


def mfma32(e, d, a, b, c=None):
    cs = "0" if c is None else vr(c, 16)
    e(f"v_mfma_f32_32x32x16_bf16 {vr(d, 16)}, {vr(a, 4)}, {vr(b, 4)}, {cs}")


def mfma16(e, d, a, b, c=None):
    cs = "0" if c is None else vr(c, 4)
    e(f"v_mfma_f32_16x16x32_bf16 {vr(d, 4)}, {vr(a, 4)}, {vr(b, 4)}, {cs}")


def dpp_umax_reduce(e, v):
    for mod in ("row_shr:1 row_mask:0xf bank_mask:0xf bound_ctrl:0",
                "row_shr:2 row_mask:0xf bank_mask:0xf bound_ctrl:0",
                "row_shr:4 row_mask:0xf bank_mask:0xf bound_ctrl:0",
                "row_shr:8 row_mask:0xf bank_mask:0xf bound_ctrl:0",
                "row_bcast:15 row_mask:0xa bank_mask:0xf",
                "row_bcast:31 row_mask:0xc bank_mask:0xf"):
        e("s_nop 1")
        e(f"v_max_u32_dpp v{v}, v{v}, v{v} {mod}")
    e("s_nop 1")


def token_stats(e, sx, sq, mb, db, inv, t0, t1):
    e(f"v_mul_f32 v{t0}, {hex(INV512)}, v{sx}")
    e(f"v_mul_f32 v{t1}, {hex(INV512)}, v{sq}")
    rbf(e, mb, t0)
    e(f"v_fma_f32 v{t1}, -v{t0}, v{t0}, v{t1}")
    e(f"v_max_f32 v{t1}, 0, v{t1}")
    rbf(e, t1, t1)
    e(f"v_add_f32 v{t1}, {hex(EPS)}, v{t1}")
    rbf(e, t1, t1)
    e(f"v_sqrt_f32 v{t1}, v{t1}")
    e("s_nop 0")
    rbf(e, db, t1)
    e(f"v_rcp_f32 v{inv}, v{db}")
    e("s_nop 0")


def swap_add(e, a, b):
    e("s_nop 1")
    e(f"v_permlane32_swap_b32 v{a}, v{b}")
    e("s_nop 1")
    e(f"v_add_f32 v{a}, v{a}, v{b}")


def sum4(e, d, a, b, c, dd):
    e(f"v_add_f32 v{a}, v{a}, v{b}")
    e(f"v_add_f32 v{c}, v{c}, v{dd}")
    e(f"v_add_f32 v{d}, v{a}, v{c}")


SLP = int([a[6:] for a in sys.argv if a.startswith("--slp=")][0]) if any(a.startswith("--slp=") for a in sys.argv) else 8


def gen_k(e):
    kn = NAME + "_kernel"
    L_XS = 0
    L_YS = 512
    L_SEL = L_YS + 2048
    L_CNT = L_SEL + 16
    L_MX = L_CNT + 16
    L_TS = 6912
    L_STG = 8192
    assert L_MX + 4096 <= L_TS and L_TS + 512 <= L_STG
    L_KV = 32768
    L_REDB = 32768
    LDS_SIZE = 163840
    O_KVW = L_STG
    O_ST1 = 24576
    O_ST2 = L_STG
    P_PV, P_QF = 12288, 14336

    e.raw(".p2align 8")
    e.raw(f".globl {kn}")
    e.raw(f".type {kn},@function")
    e.label(kn)
    e("s_cmp_ge_u32 s2, 256")
    e("s_cbranch_scc1 K2_END")
    stamp_init(e)
    e("s_load_dwordx16 s[64:79], s[0:1], 0")
    e("s_load_dwordx8 s[80:87], s[0:1], 64")
    e("s_load_dwordx2 s[48:49], s[0:1], 96")
    e("v_and_b32 v1, 63, v0")
    e("v_lshrrev_b32 v6, 6, v0")
    e("v_and_b32 v2, 31, v1")
    e("v_lshrrev_b32 v3, 5, v1")
    e("v_readfirstlane_b32 s60, v6")
    e("v_lshlrev_b32 v4, 4, v1")
    e("s_and_b32 s56, s2, 7")
    e("s_lshr_b32 s57, s2, 3")
    e("s_getpc_b64 s[52:53]")
    e.label("K_PC")
    e("s_and_b32 s58, s57, 3")
    e("s_lshl_b32 s58, s58, 13")
    e("s_add_u32 s58, s58, 1024")
    e("v_lshl_add_u32 v6, v0, 4, s58")
    e("v_min_u32 v6, K2_END-K_PC-16, v6")
    e("global_load_dwordx4 v[252:255], v6, s[52:53]")
    e("s_lshr_b32 s58, s57, 3")
    e("s_lshl_b32 s61, s56, 2")
    e("s_add_u32 s61, s61, s58")
    e("s_and_b32 s62, s57, 7")
    e("s_and_b32 s3, s60, 3")
    e("s_and_b32 s18, s62, 1")
    e("s_lshr_b32 s19, s60, 2")
    e("s_mov_b32 s63, 0")
    e("s_mov_b32 s59, 0")
    e("v_and_b32 v5, 15, v2")
    e("v_lshlrev_b32 v5, 4, v5")
    e("v_lshl_add_u32 v5, v3, 8, v5")
    e("v_add_u32 v5, 1024, v5")
    e("s_waitcnt lgkmcnt(0)")
    srd(e, 20, 64, 2048 * 512 * 2)
    srd(e, 4, 66, 512 * 512 * 2)
    srd(e, 24, 72, 512 * 512 * 2)
    srd(e, 8, 76, 512 * 2)
    srd(e, 28, 78, 512 * 1792 * 2)
    srd(e, 32, 80, 512 * 1792 * 2)
    srd(e, 36, 82, 512 * 1792 * 2)
    srd(e, 40, 84, 2048 * 512 * 2)
    srd(e, 44, 48, WS_SIZE)
    e("s_mov_b32 s16, s86")
    e("s_mov_b32 s17, s87")
    e("s_cmp_lt_u32 s62, 2")
    e("s_cselect_b32 s12, s68, s70")
    e("s_cselect_b32 s13, s69, s71")
    e("s_and_b32 s13, s13, 0xffff")
    e(f"s_mov_b32 s14, {hex(512 * 16 * 2)}")
    e("s_mov_b32 s15, 0x00020000")
    stamp(e, 1)
    e("s_lshl_b32 s64, s3, 15")
    e(f"s_add_u32 s64, s64, {L_KV}")
    e("s_lshl_b32 s65, s3, 12")
    e(f"s_add_u32 s65, s65, {O_KVW}")
    e("s_cmp_lt_u32 s60, 4")
    e("s_cbranch_scc1 P1_C")

    e("s_add_u32 s67, s2, s3")
    e("s_cmp_lg_u32 s67, 0")
    e("s_cbranch_scc1 P1_NONCE0")
    e("s_memrealtime s[70:71]")
    e("v_mov_b32 v6, 0")
    e("s_waitcnt lgkmcnt(0)")
    e("s_or_b32 s70, s70, 1")
    e("v_mov_b32 v7, s70")
    e("s_mov_b64 exec, 1")
    e("global_store_dword v6, v7, s[16:17] sc1")
    e("s_mov_b64 exec, -1")
    e.label("P1_NONCE0")
    e("v_lshrrev_b32 v6, 4, v1")
    e("v_and_b32 v7, 15, v1")
    e("v_xor_b32 v7, v7, v6")
    for v in range(4):
        e(f"v_xor_b32 v{8 + v}, {4 * v}, v7")
        e(f"v_lshlrev_b32 v{8 + v}, 4, v{8 + v}")
        e(f"v_lshl_add_u32 v{8 + v}, v6, 10, v{8 + v}")
    e("v_lshrrev_b32 v6, 3, v1")
    e("v_and_b32 v12, 7, v1")
    e("v_lshlrev_b32 v12, 4, v12")
    e("v_lshl_add_u32 v12, v6, 10, v12")
    e("s_lshl_b32 s66, s61, 16")
    e("s_lshl_b32 s67, s3, 8")
    e("s_add_u32 s66, s66, s67")
    e("s_lshl_b32 s67, s18, 15")
    e("s_add_u32 s72, s66, s67")
    e("s_xor_b32 s67, s67, 32768")
    e("s_add_u32 s73, s66, s67")
    e("s_lshl_b32 s66, s3, 17")
    e("s_lshl_b32 s67, s62, 7")
    e("s_add_u32 s66, s66, s67")
    e("s_cmp_ge_u32 s62, 4")
    e("s_cbranch_scc1 P1_NOKVDMA")
    e("s_lshl_b32 s67, s3, 12")
    e("s_mov_b32 m0, s65")
    e("s_nop 0")
    for i in range(4):
        e(f"buffer_load_dwordx4 v4, s[12:15], s67 offen offset:{i * 1024} lds")
    e.label("P1_NOKVDMA")
    for n in range(16):
        if n % 4 == 0:
            e(f"s_add_u32 m0, s64, {(n >> 2) * 4096}")
        e(f"s_add_u32 s67, s{72 + (n >> 3)}, {(n & 7) * 4096 - (n & 3) * 1024}")
        e(f"buffer_load_dwordx4 v{8 + (n & 3)}, s[20:23], s67 offen offset:{(n & 3) * 1024} lds")

    def dma_w(kc):
        e(f"s_add_u32 m0, s64, {16384 + kc * 4096}")
        for i in range(4):
            n = kc * 4 + i
            e(f"s_add_u32 s67, s66, {n * 8192 - i * 1024}")
            e(f"buffer_load_dwordx4 v12, s[4:7], s67 offen offset:{i * 1024} lds")
    e("v_mov_b32 v6, 0")
    e("v_mov_b32 v7, 0")
    e(f"v_mov_b32 v20, {L_CNT}")
    e("ds_write_b64 v20, v[6:7]")
    e("s_waitcnt vmcnt(8) lgkmcnt(0)")
    e("s_barrier")
    dma_w(0)
    dma_w(1)
    dma_w(2)
    dma_w(3)
    e("v_mov_b32 v6, 0")
    e("s_cmp_ge_u32 s3, 2")
    e("s_cbranch_scc1 P1_L_NOTAG")
    e("global_load_dword v7, v6, s[16:17] sc1")
    e.label("P1_L_NOTAG")
    e("s_barrier")
    MB, DB, INV = 128, 129, 130
    PVB = 28672 - 256
    e("s_cmp_ge_u32 s62, 4")
    e("s_cbranch_scc1 P1_L_B3")
    e("s_cmp_lg_u32 s3, 1")
    e("s_cbranch_scc1 P1_L_B3")
    e("v_lshlrev_b32 v13, 2, v2")
    for wp in range(4):
        e(f"ds_read_b32 v{112 + wp}, v13 offset:{O_ST1 + wp * 1024}")
        e(f"ds_read_b32 v{116 + wp}, v13 offset:{O_ST1 + wp * 1024 + 128}")
        e(f"ds_read_b32 v{124 + wp}, v13 offset:{O_ST1 + wp * 1024 + 256}")
    e("s_waitcnt lgkmcnt(0)")
    for b in (112, 116, 124):
        sum4(e, b, b, b + 1, b + 2, b + 3)
    token_stats(e, 112, 116, MB, DB, INV, 131, 132)
    e(f"ds_write_b32 v13, v{MB} offset:{PVB + 256}")
    e(f"ds_write_b32 v13, v{INV} offset:{PVB + 512}")
    e(f"ds_write_b32 v13, v124 offset:{PVB + 768 + 128}")
    e("s_lshl_b32 s70, s61, 1")
    e("s_add_u32 s70, s70, s18")
    e("s_lshl_b32 s70, s70, 11")
    e(f"s_add_u32 s70, s70, {hex(WS_KV)}")
    e("v_lshlrev_b32 v11, 4, v3")
    e("v_lshlrev_b32 v13, 2, v2")
    e("s_cmp_lt_u32 s62, 2")
    e("s_cbranch_scc1 P1_KV_K")
    for wp in range(4):
        for rq in range(4):
            e(f"ds_read_b128 {vr(136 + (wp * 4 + rq) * 4, 4)}, v4 offset:{O_KVW + wp * 4096 + rq * 1024}")
        if wp >= 1:
            e("s_waitcnt lgkmcnt(6)")
    for g in range(4):
        e(f"ds_read_b128 {vr(200 + 4 * g, 4)}, v11 offset:{PVB + 256 + 32 * g}")
        e(f"ds_read_b128 {vr(216 + 4 * g, 4)}, v11 offset:{PVB + 512 + 32 * g}")
    e(f"ds_read_b32 v133, v13 offset:{PVB + 768 + 128}")
    e("v_lshlrev_b32 v10, 4, v2")
    e("v_lshl_add_u32 v10, v3, 8, v10")
    e("s_waitcnt lgkmcnt(0)")
    for r in range(16):
        a = 136 + r
        sum4(e, a, a, a + 16, a + 32, a + 48)
        e(f"v_fma_f32 v{a}, -v{200 + r}, v133, v{a}")
        e(f"v_mul_f32 v{a}, v{216 + r}, v{a}")
        if r & 1:
            e(f"v_cvt_pk_bf16_f32 v{232 + r // 2}, v{a - 1}, v{a}")
    e("s_mov_b32 exec_lo, 0x0000ffff")
    e("s_mov_b32 exec_hi, 0x0000ffff")
    e("buffer_store_dwordx4 v[232:235], v10, s[44:47], s70 offen offset:1024 sc1")
    e("buffer_store_dwordx4 v[236:239], v10, s[44:47], s70 offen offset:1536 sc1")
    e("s_mov_b64 exec, -1")
    e("s_branch P1_L_B3")
    e.label("P1_KV_K")
    for wp in range(4):
        for rr in range(2):
            e(f"ds_read_b128 {vr(136 + (wp * 2 + rr) * 4, 4)}, v4 offset:{O_KVW + wp * 4096 + rr * 1024}")
    for rr in range(2):
        e(f"ds_read_b128 {vr(200 + rr * 4, 4)}, v11 offset:{PVB + 768 + 128 + rr * 32}")
    e(f"ds_read_b32 v133, v13 offset:{PVB + 256}")
    e(f"ds_read_b32 v134, v13 offset:{PVB + 512}")
    e("s_waitcnt lgkmcnt(0)")
    for i in range(8):
        a = 136 + i
        sum4(e, a, a, a + 8, a + 16, a + 24)
        e(f"v_fma_f32 v{a}, -v133, v{200 + i}, v{a}")
        e(f"v_mul_f32 v{a}, v134, v{a}")
        if i & 1:
            e(f"v_cvt_pk_bf16_f32 v{232 + i // 2}, v{a - 1}, v{a}")
    e("buffer_store_dwordx4 v[232:235], v4, s[44:47], s70 offen sc1")
    e("s_branch P1_L_B3")
    e("s_branch P1_L_B3")
    e.label("P1_L_B3")
    e("s_waitcnt vmcnt(2) lgkmcnt(0)")
    e("s_cmp_ge_u32 s62, 4")
    e("s_cbranch_scc1 P1_L_B3W")
    e("s_cmp_lg_u32 s3, 1")
    e("s_cbranch_scc1 P1_L_B3W")
    e("s_cmp_ge_u32 s62, 2")
    e("s_cbranch_scc1 P1_L_B3X")
    e("s_waitcnt vmcnt(1)")
    e("s_branch P1_L_B3X")
    e.label("P1_L_B3W")
    e("s_waitcnt vmcnt(0)")
    e.label("P1_L_B3X")
    e("s_barrier")
    e("s_cmp_ge_u32 s62, 4")
    e("s_cbranch_scc1 P1_C_NOFLAG")
    e("s_cmp_lg_u32 s3, 1")
    e("s_cbranch_scc1 P1_C_NOFLAG")
    e("s_mov_b32 s76, 0x80000")
    e("v_mov_b32 v6, 0")
    e.label("P1_C_SPINN")
    e("s_waitcnt vmcnt(0)")
    e("v_readfirstlane_b32 s75, v7")
    e("s_nop 3")
    e("s_cmp_lg_u32 s75, 0")
    e("s_cbranch_scc1 P1_C_GOTN")
    e("s_sleep 16")
    e("global_load_dword v7, v6, s[16:17] sc1")
    e("s_sub_u32 s76, s76, 1")
    e("s_cmp_lg_u32 s76, 0")
    e("s_cbranch_scc1 P1_C_SPINN")
    e.label("P1_C_GOTN")
    e("v_lshlrev_b32 v6, 10, v1")
    e("s_lshl_b32 s67, s2, 2")
    e(f"s_add_u32 s67, s67, {hex(WS_RDY)}")
    e("s_mov_b32 exec_hi, 0")
    e("buffer_store_dword v7, v6, s[44:47], s67 offen sc1")
    e("s_mov_b64 exec, -1")
    e.label("P1_C_NOFLAG")
    stamp(e, 2)
    e(f"v_mov_b32 v20, {L_CNT}")
    e("s_mov_b32 s76, 0x80000")
    e("s_cmp_lg_u32 s3, 0")
    e("s_cbranch_scc1 P1_L_SPINL")
    e.label("P1_L_SPINN")
    e("s_waitcnt vmcnt(0)")
    e("v_readfirstlane_b32 s75, v7")
    e("s_nop 3")
    e("s_cmp_lg_u32 s75, 0")
    e("s_cbranch_scc1 P1_L_GOTN")
    e("s_sleep 16")
    e("global_load_dword v7, v6, s[16:17] sc1")
    e("s_sub_u32 s76, s76, 1")
    e("s_cmp_lg_u32 s76, 0")
    e("s_cbranch_scc1 P1_L_SPINN")
    e.label("P1_L_GOTN")
    e("s_and_b32 s67, s2, 31")
    e("s_lshl_b32 s67, s67, 10")
    e(f"s_add_u32 s67, s67, {hex(WS_RDY)}")
    e.label("P1_L_SPING")
    e("buffer_load_dwordx4 v[8:11], v4, s[44:47], s67 offen sc1")
    e("s_waitcnt vmcnt(0)")
    e("v_xor_b32 v8, v8, v7")
    e("v_xor_b32 v9, v9, v7")
    e("v_xor_b32 v10, v10, v7")
    e("v_xor_b32 v11, v11, v7")
    e("v_or3_b32 v8, v8, v9, v10")
    e("v_or_b32 v8, v8, v11")
    e("v_cmp_ne_u32 vcc, 0, v8")
    e("s_and_b32 vcc_lo, vcc_lo, 0x00ff00ff")
    e("s_and_b32 vcc_hi, vcc_hi, 0x00ff00ff")
    e("s_cmp_eq_u64 vcc, 0")
    e("s_cbranch_scc1 P1_L_GO")
    e(f"s_sleep {SLP}")
    e("s_sub_u32 s76, s76, 1")
    e("s_cmp_lg_u32 s76, 0")
    e("s_cbranch_scc1 P1_L_SPING")
    e.label("P1_L_GO")
    e("ds_write_b32 v20, v7")
    e("s_mov_b32 s67, s75")
    e("s_branch P1_L_KV")
    e.label("P1_L_SPINL")
    e("ds_read_b32 v8, v20")
    e("s_waitcnt lgkmcnt(0)")
    e("v_readfirstlane_b32 s67, v8")
    e("s_nop 3")
    e("s_cmp_lg_u32 s67, 0")
    e("s_cbranch_scc1 P1_L_KV")
    e("s_sleep 1")
    e("s_branch P1_L_SPINL")
    e.label("P1_L_KV")
    e("s_mov_b32 s80, s67")
    stamp(e, 10)
    e("s_lshl_b32 s75, s3, 15")
    e(f"s_add_u32 s75, s75, {hex(WS_KV)}")
    for n in range(8):
        if n % 4 == 0:
            e(f"s_add_u32 m0, s64, {n * 1024}")
            e(f"s_add_u32 s67, s75, {n * 1024}")
        e(f"buffer_load_dwordx4 v4, s[44:47], s67 offen offset:{(n & 3) * 1024} sc1 lds")
    e("s_branch P1_B4")

    e.label("P1_C")
    WR = lambda ks: 200 + 4 * ks
    e(f"v_mov_b32 v47, {hex(ONES)}")
    e("v_lshlrev_b32 v13, 4, v3")
    e("s_lshl_b32 s67, s3, 8")
    e("s_cmp_lg_u32 s62, 4")
    e("s_cbranch_scc1 P1_NOWR")
    for ks in range(8):
        e(f"buffer_load_dwordx4 {vr(WR(ks), 4)}, v13, s[8:11], s67 offen offset:{32 * ks}")
    e.label("P1_NOWR")
    e("v_and_b32 v6, 15, v2")
    e("v_xor_b32 v6, v6, v3")
    e("v_lshlrev_b32 v7, 8, v2")
    e("v_add_u32 v7, s64, v7")
    for ks in range(8):
        e(f"v_xor_b32 v{24 + ks}, {2 * ks}, v6")
        e(f"v_lshl_add_u32 v{24 + ks}, v{24 + ks}, 4, v7")
    e("v_bfe_u32 v6, v1, 2, 2")
    e("v_lshl_add_u32 v6, v3, 3, v6")
    e("v_and_b32 v7, 1, v1")
    e("v_bfe_u32 v15, v1, 1, 1")
    e("v_lshl_add_u32 v7, v7, 1, v15")
    e("v_bfe_u32 v15, v1, 4, 1")
    e("v_lshlrev_b32 v20, 7, v6")
    e("v_lshl_add_u32 v20, v15, 5, v20")
    e("v_lshl_add_u32 v20, v7, 3, v20")
    e("v_add_u32 v20, s64, v20")
    e("v_lshlrev_b32 v6, 5, v6")
    e("v_add_u32 v6, s65, v6")
    e("v_lshl_add_u32 v21, v7, 3, v6")
    e("v_and_b32 v22, 3, v1")
    e("v_lshl_add_u32 v22, v22, 3, v6")
    e("s_cmp_lt_u32 s62, 2")
    e("s_cbranch_scc1 P1_KADDR")
    e("v_mov_b32 v21, v22")
    e.label("P1_KADDR")
    SX, SQ, CS = [32, 33], [34, 35], [36, 37]
    SR, CSR, CSK = [38, 39], 40, 41
    for r in range(32, 46):
        e(f"v_mov_b32 v{r}, 0")
    XF = lambda ks, tt: 48 + (ks * 2 + tt) * 4
    QA = lambda tt, ct: 112 + (tt * 2 + ct) * 16
    WF = lambda ks, ct: 176 + (ks * 2 + ct) * 4
    KFR = lambda ks: 200 + 4 * ks
    AK = 232
    e("s_waitcnt vmcnt(0)")
    e("s_barrier")
    stamp(e, 10)
    MB, DB, INV = 128, 129, 130
    PVB = 28672 - 256
    for ks in range(8):
        e(f"ds_read_b128 {vr(XF(ks, 0), 4)}, v{24 + ks}")
    e("s_cmp_ge_u32 s62, 4")
    e("s_cbranch_scc1 P1_NOKF")
    for ks in range(8):
        e("s_waitcnt lgkmcnt(12)")
        for u in range(2):
            e(f"ds_read_b64_tr_b16 {vr(KFR(ks) + 2 * u, 2)}, v21 offset:{(16 * ks + 4 * u) * 32}")
    e.label("P1_NOKF")
    e("s_waitcnt lgkmcnt(0)")
    for ks in range(8):
        for c in range(4):
            x = XF(ks, 0) + c
            o = 10 if c & 1 else 0
            e(f"v_dot2_f32_bf16 v{SX[0] + o}, v{x}, v47, v{SX[0] + o}")
            e(f"v_dot2_f32_bf16 v{SQ[0] + o}, v{x}, v{x}, v{SQ[0] + o}")
    e("s_cmp_ge_u32 s62, 4")
    e("s_cbranch_scc1 P1_C_B2")
    for ks in range(8):
        for c in range(4):
            e(f"v_dot2_f32_bf16 v{CSK if c & 1 else CSR}, v{KFR(ks) + c}, v47, v{CSK if c & 1 else CSR}")
    e("s_cmp_lt_u32 s62, 2")
    e("s_cbranch_scc1 P1_XK")
    for ks in range(8):
        mfma32(e, AK, XF(ks, 0), KFR(ks), None if ks == 0 else AK)
    e("s_branch P1_XDONE")
    e.label("P1_XK")
    for ks in range(8):
        mfma32(e, AK, KFR(ks), XF(ks, 0), None if ks == 0 else AK)
    e.label("P1_XDONE")
    e(f"v_add_f32 v112, v{SX[0]}, v42")
    e(f"v_add_f32 v113, v{SQ[0]}, v44")
    e(f"v_add_f32 v114, v{CSK}, v{CSR}")
    e("v_mov_b32 v115, v114")
    swap_add(e, 112, 113)
    swap_add(e, 114, 115)
    e("s_lshl_b32 s67, s3, 10")
    e("v_lshl_add_u32 v6, v1, 2, s67")
    e(f"ds_write_b32 v6, v112 offset:{O_ST1}")
    e(f"ds_write_b32 v6, v114 offset:{O_ST1 + 256}")
    e("v_add_u32 v7, s65, v4")
    for rq in range(4):
        e(f"ds_write_b128 v7, {vr(AK + 4 * rq, 4)} offset:{rq * 1024}")
    e("s_waitcnt lgkmcnt(0)")
    e.label("P1_C_B2")
    e("s_barrier")
    e.label("P1_C_B3")
    e("s_waitcnt lgkmcnt(0)")
    e("s_barrier")
    stamp(e, 6)
    for ks in range(8):
        e(f"ds_read_b128 {vr(XF(ks, 1), 4)}, v{24 + ks} offset:8192")
    e(f"v_add_f32 v{SX[0]}, v{SX[0]}, v42")
    e(f"v_add_f32 v{SQ[0]}, v{SQ[0]}, v44")
    e(f"v_mov_b32 v{CSR}, 0")
    e("v_mov_b32 v42, 0")
    e("v_mov_b32 v44, 0")
    e("s_waitcnt lgkmcnt(0)")
    for ks in range(8):
        for c in range(4):
            x = XF(ks, 1) + c
            sxr, sqr = (42, 44) if c & 1 else (SX[1], SQ[1])
            e(f"v_dot2_f32_bf16 v{sxr}, v{x}, v47, v{sxr}")
            e(f"v_dot2_f32_bf16 v{sqr}, v{x}, v{x}, v{sqr}")
    e("s_cmp_lg_u32 s62, 4")
    e("s_cbranch_scc1 P1_NOXR")
    for ks in range(8):
        for c in range(4):
            e(f"v_dot2_f32_bf16 v{SR[0]}, v{XF(ks, 0) + c}, v{WR(ks) + c}, v{SR[0]}")
            e(f"v_dot2_f32_bf16 v{SR[1]}, v{XF(ks, 1) + c}, v{WR(ks) + c}, v{SR[1]}")
            e(f"v_dot2_f32_bf16 v{CSR}, v{WR(ks) + c}, v47, v{CSR}")
    e.label("P1_NOXR")
    for ks in range(8):
        for ct in range(2):
            for u in range(2):
                e(f"ds_read_b64_tr_b16 {vr(WF(ks, ct) + 2 * u, 2)}, v20 offset:{16384 + (16 * ks + 4 * u) * 128 + 64 * ct}")
        if ks >= 2:
            e("s_waitcnt lgkmcnt(8)")
            for c in range(4):
                for ct in range(2):
                    e(f"v_dot2_f32_bf16 v{CS[ct]}, v{WF(ks - 2, ct) + c}, v47, v{CS[ct]}")
    e("s_waitcnt lgkmcnt(0)")
    for ks in range(6, 8):
        for c in range(4):
            for ct in range(2):
                e(f"v_dot2_f32_bf16 v{CS[ct]}, v{WF(ks, ct) + c}, v47, v{CS[ct]}")
    for ks in range(8):
        for tt in range(2):
            for ct in range(2):
                mfma32(e, QA(tt, ct), WF(ks, ct), XF(ks, tt), None if ks == 0 else QA(tt, ct))
    e(f"v_add_f32 v{SX[1]}, v{SX[1]}, v42")
    e(f"v_add_f32 v{SQ[1]}, v{SQ[1]}, v44")
    e(f"v_mov_b32 v{CSK}, v{CSR}")
    swap_add(e, SX[0], SX[1])
    swap_add(e, SQ[0], SQ[1])
    swap_add(e, CS[0], CS[1])
    swap_add(e, SR[0], SR[1])
    swap_add(e, CSR, CSK)
    e("s_mul_i32 s67, s3, 1280")
    e("v_lshl_add_u32 v6, v1, 2, s67")
    for q, r in enumerate((32, 34, 36, 38, 40)):
        e(f"ds_write_b32 v6, v{r} offset:{O_ST2 + q * 256}")
    e("v_add_u32 v7, s64, v4")
    for r in range(48, 52):
        e(f"v_mov_b32 v{r}, 0")
    for tt in range(2):
        for ct in range(2):
            for rq in range(4):
                e(f"ds_write_b128 v7, {vr(QA(tt, ct) + 4 * rq, 4)} offset:{16384 + ((tt * 2 + ct) * 4 + rq) * 1024}")
            e("s_waitcnt lgkmcnt(8)")
    e("s_waitcnt lgkmcnt(0)")
    for q in range(1, 8):
        mfma32(e, 128 + 16 * q, 48, 48)
    stamp(e, 7)
    e.label("P1_B4")
    e("s_barrier")
    e("s_lshr_b32 s68, s3, 1")
    e("s_and_b32 s69, s3, 1")
    e("v_lshlrev_b32 v6, 2, v1")
    e("s_lshl_b32 s67, s68, 7")
    e("v_lshl_add_u32 v7, v2, 2, s67")
    for wp in range(4):
        e(f"ds_read_b32 v{44 + wp}, v6 offset:{O_ST2 + wp * 1280 + 512}")
        e(f"ds_read_b32 v{112 + wp}, v7 offset:{O_ST2 + wp * 1280}")
        e(f"ds_read_b32 v{116 + wp}, v7 offset:{O_ST2 + wp * 1280 + 256}")
    e("s_lshl_b32 s67, s3, 12")
    e("s_lshl_b32 s70, s19, 11")
    e("s_add_u32 s67, s67, s70")
    e(f"s_add_u32 s67, s67, {L_KV + 16384}")
    e("v_add_u32 v8, s67, v4")
    e("v_add_u32 v9, 65536, v8")
    AR = lambda wp, rr: 64 + (wp * 2 + rr) * 4
    e("s_lshl_b32 s70, s19, 10")
    e("s_add_u32 s71, s64, s70")
    e("v_lshl_add_u32 v10, v1, 2, s71")
    e("s_lshl_b32 s67, s69, 7")
    e("s_lshl_b32 s70, s19, 6")
    e("s_add_u32 s67, s67, s70")
    e("s_add_u32 s67, s67, s71")
    e("v_lshl_add_u32 v11, v3, 4, s67")
    e("s_waitcnt lgkmcnt(4)")
    for wp in range(4):
        a = 8 if wp < 2 else 9
        for rr in range(2):
            e(f"ds_read_b128 {vr(AR(wp, rr), 4)}, v{a} offset:{(wp & 1) * 32768 + rr * 1024}")
    e("s_waitcnt lgkmcnt(8)")
    for b in (44, 112, 116):
        sum4(e, b, b, b + 1, b + 2, b + 3)
    e(f"ds_write_b32 v10, v44 offset:{P_PV}")
    for g in range(2):
        e(f"ds_read_b128 {vr(56 + 4 * g, 4)}, v11 offset:{P_PV + 32 * g}")
    token_stats(e, 112, 116, MB, DB, INV, 131, 132)
    e("s_xor_b32 s67, s68, s18")
    e("s_lshl_b32 s67, s67, 8")
    e("v_lshl_add_u32 v7, v2, 3, s67")
    e(f"v_mov_b32 v131, v{INV}")
    e(f"v_mov_b32 v130, v{MB}")
    e(f"ds_write_b64 v7, v[130:131] offset:{L_TS}")
    e(f"v_mul_f32 v132, {hex(QSCALE)}, v131")
    e("s_waitcnt lgkmcnt(4)")
    for r in range(8):
        a = 64 + r
        sum4(e, a, a, a + 8, a + 16, a + 24)
    e("v_add_u32 v10, s71, v4")
    e("s_waitcnt lgkmcnt(0)")
    for r in range(8):
        a = 64 + r
        e(f"v_fma_f32 v{a}, -v{MB}, v{56 + r}, v{a}")
        e(f"v_mul_f32 v{a}, v132, v{a}")
        if r & 1:
            e(f"v_cvt_pk_bf16_f32 v{88 + r // 2}, v{a - 1}, v{a}")
    e(f"ds_write_b128 v10, v[88:91] offset:{P_QF}")
    e("s_waitcnt vmcnt(0) lgkmcnt(0)")
    e("s_barrier")
    e("s_cmp_ge_u32 s60, 4")
    e("s_cbranch_scc1 K2_H")

    ACC = lambda q: 128 + 16 * q
    Q = lambda q: 96 + 4 * q
    S = [64, 80]
    P = 56
    KB = [8, 12]
    VB = [24, 32]
    NB = 2
    e("s_lshl_b32 s68, s60, 15")
    e(f"s_add_u32 s68, s68, {hex(WS_KV)}")
    e("s_mov_b32 s50, 0x0000ffff")
    e("s_mov_b32 s51, 0x0000ffff")
    e("s_lshl_b32 s67, s18, 16")
    e(f"s_add_u32 s70, s67, {L_KV + P_QF}")
    e("v_add_u32 v6, s70, v4")
    e("s_xor_b32 s67, s67, 65536")
    e(f"s_add_u32 s70, s67, {L_KV + P_QF}")
    e("v_add_u32 v7, s70, v4")
    for q in range(8):
        hl, tt = q >> 1, q & 1
        e(f"ds_read_b128 {vr(Q(q), 4)}, v{6 + tt} offset:{(hl >> 1) * 32768 + (hl & 1) * 1024}")

    def init_v():
        e("v_and_b32 v6, 27, v2")
        e("v_cmp_eq_u32 vcc, 16, v6")
        e(f"v_mov_b32 v7, {hex(ONES)}")
        e("s_nop 0")
        e("v_cndmask_b32 v7, 0, v7, vcc")
        for r in range(24, 40):
            e(f"v_mov_b32 v{r}, v7")

    def load_q():
        pass

    def load_kv(buf, soff, imm=0, tag="kv"):
        e.vmem(f"buffer_load_dwordx4 {vr(KB[buf], 4)}, v4, s[44:47], {soff} offen offset:{imm} sc1", tag + "k")
        e("s_mov_b64 exec, s[50:51]")
        e.vmem(f"buffer_load_dwordx4 {vr(VB[buf], 4)}, v5, s[44:47], {soff} offen offset:{imm} sc1", tag + "v")
        e.vmem(f"buffer_load_dwordx4 {vr(VB[buf] + 4, 4)}, v5, s[44:47], {soff} offen offset:{imm + 512} sc1", tag + "v")
        e("s_mov_b64 exec, -1")

    def read_kv(buf, imm):
        e(f"ds_read_b128 {vr(KB[buf], 4)}, v40 offset:{imm}")
        e("s_mov_b64 exec, s[50:51]")
        e(f"ds_read_b128 {vr(VB[buf], 4)}, v41 offset:{imm}")
        e(f"ds_read_b128 {vr(VB[buf] + 4, 4)}, v41 offset:{imm + 512}")
        e("s_mov_b64 exec, -1")

    init_v()
    e("v_add_u32 v40, s64, v4")
    e("v_add_u32 v41, s64, v5")
    read_kv(0, 0)
    for r in range(P, P + 8):
        e(f"v_mov_b32 v{r}, 0")
    mfma32(e, 128, 48, 48)
    e("s_waitcnt lgkmcnt(0)")
    mfma32(e, S[0], KB[0], Q(0))
    e("s_barrier")
    stamp(e, 2)
    cstamp(e, 8)
    e(f"s_mov_b32 s70, {16 // UNR}")
    e("s_nop 7")
    e("s_nop 1")

    def slot(tb, q):
        kb = tb & 1
        t = q
        Sc, Sn = S[t & 1], S[(t + 1) & 1]
        if q < 7:
            mfma32(e, Sn, KB[kb], Q(q + 1))
        else:
            mfma32(e, Sn, KB[kb ^ 1], Q(0))
        for i in range(6):
            e(f"v_exp_f32 v{Sc + i}, v{Sc + i}")
        if q == 0:
            mfma32(e, ACC(7), VB[kb ^ 1] + 4, P + 4, ACC(7))
        else:
            mfma32(e, ACC(q - 1), VB[kb] + 4, P + 4, ACC(q - 1))
        for i in range(6, 8):
            e(f"v_exp_f32 v{Sc + i}, v{Sc + i}")
        if q == 5:
            read_kv(kb ^ 1, 2048 * (tb + 1))
        for c in range(4):
            e(f"v_cvt_pk_bf16_f32 v{P + c}, v{Sc + 2 * c}, v{Sc + 2 * c + 1}")
        e(f"v_exp_f32 v{Sc + 8}, v{Sc + 8}")
        e(f"v_exp_f32 v{Sc + 9}, v{Sc + 9}")
        mfma32(e, ACC(q), VB[kb], P, ACC(q))
        for i in range(10, 16):
            e(f"v_exp_f32 v{Sc + i}, v{Sc + i}")
            if q == 6 and i == 15:
                e("s_waitcnt lgkmcnt(0)")
        for c in range(4, 8):
            e(f"v_cvt_pk_bf16_f32 v{P + c}, v{Sc + 2 * c}, v{Sc + 2 * c + 1}")
        if q == 7 and tb == UNR - 1:
            e(f"v_add_u32 v40, {2048 * UNR}, v40")
            e(f"v_add_u32 v41, {2048 * UNR}, v41")

    e.raw(".p2align 6")
    e.label("K2_LOOP")
    for tb in range(UNR):
        for q in range(8):
            e.vm = []
            slot(tb, q)
    e("s_sub_u32 s70, s70, 1")
    e("s_cmp_lg_u32 s70, 7")
    e("s_cbranch_scc1 K2_LOOP_NB")
    e("s_barrier")
    e.label("K2_LOOP_NB")
    e("s_cmp_lg_u32 s70, 0")
    e("s_cbranch_scc1 K2_LOOP")
    mfma32(e, ACC(7), VB[1] + 4, P + 4, ACC(7))
    e.vm = []
    stamp(e, 3)
    cstamp(e, 9)
    e.label("K2_DUMP")
    e("s_lshr_b32 s71, s60, 1")
    e("s_and_b32 s72, s60, 1")
    e("s_lshl_b32 s73, s61, 6")
    e("s_lshl_b32 s67, s71, 5")
    e("s_add_u32 s73, s73, s67")
    e("v_add_u32 v56, s73, v2")
    e("v_lshlrev_b32 v57, 10, v56")
    e("v_lshl_add_u32 v57, v3, 5, v57")
    e("s_lshl_b32 s74, s62, 7")
    e("s_lshl_b32 s67, s72, 6")
    e("s_add_u32 s74, s74, s67")
    e("buffer_load_dwordx4 v[48:51], v57, s[20:23], s74 offen")
    e("buffer_load_dwordx4 v[52:55], v57, s[20:23], s74 offen offset:16")
    e("s_lshl_b32 s67, s71, 8")
    e("v_lshl_add_u32 v58, v2, 3, s67")
    e(f"ds_read_b64 v[46:47], v58 offset:{L_TS}")
    e("s_lshl_b32 s67, s60, 15")
    e(f"s_add_u32 s67, s67, {L_REDB}")
    e("v_add_u32 v6, s67, v4")
    e("v_lshl_add_u32 v7, v1, 2, s67")
    for q in range(8):
        e(f"ds_write_b128 v6, {vr(ACC(q), 4)} offset:{q * 2304}")
        e(f"ds_write_b128 v6, {vr(ACC(q) + 4, 4)} offset:{q * 2304 + 1024}")
        e(f"ds_write_b32 v7, v{ACC(q) + 8} offset:{q * 2304 + 2048}")
        if q >= 3:
            e("s_waitcnt lgkmcnt(9)")
    e("s_waitcnt lgkmcnt(0)")
    e.label("K2_BAR1")
    e("s_barrier")
    stamp(e, 4)
    e("s_mul_i32 s67, s60, 2304")
    e(f"s_add_u32 s67, s67, {L_REDB}")
    e("v_add_u32 v6, s67, v4")
    e("v_lshl_add_u32 v7, v1, 2, s67")
    e("v_add_u32 v44, 65536, v6")
    e("v_add_u32 v45, 65536, v7")
    for wp in range(4):
        a, b = (6, 7) if wp < 2 else (44, 45)
        e(f"ds_read_b128 {vr(8 + wp * 8, 4)}, v{a} offset:{(wp & 1) * 32768}")
        e(f"ds_read_b128 {vr(12 + wp * 8, 4)}, v{a} offset:{(wp & 1) * 32768 + 1024}")
        e(f"ds_read_b32 v{40 + wp}, v{b} offset:{(wp & 1) * 32768 + 2048}")
    e("s_and_b32 s67, s60, 1")
    e("s_lshl_b32 s71, s61, 1")
    e("s_add_u32 s67, s67, s71")
    e("s_lshl_b32 s67, s67, 5")
    e("s_lshl_b32 s71, s62, 2")
    e("s_add_u32 s67, s67, s71")
    e("s_lshr_b32 s71, s60, 1")
    e("s_add_u32 s67, s67, s71")
    e("s_lshl_b32 s67, s67, 10")
    e(f"s_add_u32 s67, s67, {hex(WS_OF)}")
    e("v_mov_b32 v45, 0x37800000")
    e("v_mov_b32 v44, 0x5f800000")
    e("s_waitcnt lgkmcnt(0)")
    sum4(e, 40, 40, 41, 42, 43)
    e("v_rcp_f32 v41, v40")
    for i in range(8):
        sum4(e, 8 + i, 8 + i, 16 + i, 24 + i, 32 + i)
    e("v_fma_f32 v42, v8, 0, v40")
    for i in range(1, 8):
        e(f"v_fma_f32 v42, v{8 + i}, 0, v42")
    for i in range(8):
        e(f"v_mul_f32 v{8 + i}, v41, v{8 + i}")
    e("v_cmp_nle_f32 vcc, v45, v42")
    e("v_cmp_nle_f32 s[72:73], v42, v44")
    for c in range(4):
        e(f"v_cvt_pk_bf16_f32 v{16 + c}, v{8 + 2 * c}, v{9 + 2 * c}")
    e("s_or_b64 vcc, vcc, s[72:73]")
    e("s_waitcnt vmcnt(0)")
    e("s_cmp_lg_u32 s59, 0")
    e("s_cbranch_scc1 K2_STORED")
    e("s_cmp_lg_u32 s63, 0")
    e("s_cbranch_scc1 K2_DOSTORE")
    e("s_cmp_eq_u64 vcc, 0")
    e("s_cbranch_scc1 K2_DOSTORE")
    e("v_mov_b32 v6, 1")
    e(f"v_mov_b32 v7, {L_CNT + 4}")
    e("ds_write_b32 v7, v6")
    e("s_branch K2_STORED")
    e.label("K2_DOSTORE")
    e("buffer_store_dwordx4 v[16:19], v4, s[44:47], s67 offen")
    e(f"s_add_u32 s67, s67, {WS_OF2 - WS_OF}")
    e("buffer_store_dwordx4 v[16:19], v4, s[44:47], s67 offen sc1")
    e("s_mov_b32 s59, 1")
    e.label("K2_STORED")
    e("s_waitcnt lgkmcnt(0)")
    e("s_barrier")
    stamp(e, 5)
    e("s_cmp_lg_u32 s63, 0")
    e("s_cbranch_scc1 K2_POST")
    e(f"v_mov_b32 v7, {L_CNT + 4}")
    e("ds_read_b32 v6, v7")
    e("s_waitcnt lgkmcnt(0)")
    e("v_readfirstlane_b32 s67, v6")
    e("s_nop 3")
    e("s_cmp_lg_u32 s67, 0")
    e("s_cbranch_scc1 K2_SLOW")
    e.label("K2_POST")
    e("s_cmp_ge_u32 s60, 4")
    e("s_cbranch_scc1 K2_H2")
    e("s_mul_i32 s67, s60, 6144")
    e(f"s_add_u32 s67, s67, {L_STG}")
    e("v_add_u32 v10, s67, v4")
    e(f"v_mov_b32 v7, {L_SEL}")
    e("ds_read_b128 v[28:31], v7")
    for i in range(16):
        e(f"v_mov_b32 v{64 + i}, 0")
    e("s_and_b32 s72, s60, 1")
    e("v_lshlrev_b32 v11, 6, v3")
    e("s_lshl_b32 s67, s72, 7")
    e("v_add_u32 v11, s67, v11")
    e("s_waitcnt lgkmcnt(0)")
    for sl in range(2):
        e(f"v_cmp_eq_u32 vcc, v{28 + sl}, v56")
        e("s_and_saveexec_b64 s[76:77], vcc")
        e(f"s_cbranch_execz K2_NOY{sl}")
        for hq in range(4):
            for i in range(4):
                e(f"ds_read_b128 {vr(64 + hq * 16 + 4 * i, 4)}, v11 offset:{L_YS + sl * 1024 + hq * 256 + i * 16}")
            if hq == 2:
                e("s_waitcnt lgkmcnt(4)")
        e("s_waitcnt lgkmcnt(0)")
        for i in range(16):
            sum4(e, 64 + i, 64 + i, 80 + i, 96 + i, 112 + i)
            rbf(e, 64 + i, 64 + i)
            e(f"v_mul_f32 v{64 + i}, v{30 + sl}, v{64 + i}")
            rbf(e, 64 + i, 64 + i)
        e.label(f"K2_NOY{sl}")
        e("s_mov_b64 exec, -1")
    for dw in range(8):
        a, b = 64 + 2 * dw, 65 + 2 * dw
        e(f"v_lshlrev_b32 v22, 16, v{48 + dw}")
        e(f"v_and_b32 v23, 0xffff0000, v{48 + dw}")
        e("v_sub_f32 v22, v22, v46")
        e("v_sub_f32 v23, v23, v46")
        e("v_cvt_pk_bf16_f32 v24, v22, v23")
        e("v_lshlrev_b32 v22, 16, v24")
        e("v_and_b32 v23, 0xffff0000, v24")
        e("v_mul_f32 v22, v47, v22")
        e("v_mul_f32 v23, v47, v23")
        e("v_cvt_pk_bf16_f32 v24, v22, v23")
        e("v_lshlrev_b32 v22, 16, v24")
        e("v_and_b32 v23, 0xffff0000, v24")
        e(f"v_add_f32 v22, v22, v{a}")
        e(f"v_add_f32 v23, v23, v{b}")
        e("v_cvt_pk_bf16_f32 v24, v22, v23")
        e("v_lshlrev_b32 v22, 16, v24")
        e("v_and_b32 v23, 0xffff0000, v24")
        e(f"v_mul_f32 v25, {hex(NLOG2E)}, v22")
        e(f"v_mul_f32 v26, {hex(NLOG2E)}, v23")
        e("v_exp_f32 v25, v25")
        e("v_exp_f32 v26, v26")
        e("s_nop 0")
        e("v_add_f32 v25, 1.0, v25")
        e("v_add_f32 v26, 1.0, v26")
        e("v_rcp_f32 v25, v25")
        e("v_rcp_f32 v26, v26")
        e("s_nop 0")
        e("v_mul_f32 v22, v25, v22")
        e("v_mul_f32 v23, v26, v23")
        e("v_cvt_pk_bf16_f32 v24, v22, v23")
        e(f"v_lshlrev_b32 v{a}, 16, v24")
        e(f"v_and_b32 v{b}, 0xffff0000, v24")
        if dw & 1:
            e(f"ds_write_b128 v10, {vr(64 + 4 * (dw >> 1), 4)} offset:{(dw >> 1) * 1024}")
    e("s_waitcnt lgkmcnt(0)")
    stamp(e, 6)
    e("s_barrier")
    stamp_flush(e, 1, 44, 60)
    e("s_endpgm")

    e.label("K2_SLOW")
    e("s_mov_b32 s63, 1")
    e("s_cmp_ge_u32 s60, 4")
    e("s_cbranch_scc1 K2_SLOW_H")
    e.vm = []
    init_v()
    load_q()
    MXR = 16
    for q in range(8):
        e(f"v_mov_b32 v{MXR + q}, 0xff7fffff")
    for r in range(128, 256):
        e(f"v_mov_b32 v{r}, 0")
    e("s_mov_b32 s69, s68")
    e("s_mov_b32 s70, 16")
    e.label("K2_SLOW_P1")
    e.vmem(f"buffer_load_dwordx4 {vr(KB[1], 4)}, v4, s[44:47], s69 offen sc1", "k")
    e.vwait(None)
    for q in range(8):
        mfma32(e, S[0], KB[1], Q(q))
        e("s_nop 15")
        for i in range(8):
            e(f"v_max3_f32 v{MXR + q}, v{S[0] + 2 * i}, v{S[0] + 2 * i + 1}, v{MXR + q}")
    e("s_add_u32 s69, s69, 2048")
    e("s_sub_u32 s70, s70, 1")
    e("s_cmp_lg_u32 s70, 0")
    e("s_cbranch_scc1 K2_SLOW_P1")
    for q in range(8):
        e(f"v_mov_b32 v42, v{MXR + q}")
        e("s_nop 1")
        e(f"v_permlane32_swap_b32 v{MXR + q}, v42")
        e("s_nop 1")
        e(f"v_max_f32 v{MXR + q}, v{MXR + q}, v42")
    e("s_lshl_b32 s67, s60, 10")
    e("v_lshl_add_u32 v6, v2, 2, s67")
    for q in range(8):
        e(f"ds_write_b32 v6, v{MXR + q} offset:{L_MX + q * 128}")
    e("s_waitcnt lgkmcnt(0)")
    e("s_barrier")
    e("v_lshlrev_b32 v6, 2, v2")
    for q in range(8):
        for wp in range(4):
            e(f"ds_read_b32 v{42 + wp}, v6 offset:{L_MX + wp * 1024 + q * 128}")
        e("s_waitcnt lgkmcnt(0)")
        e(f"v_max3_f32 v{MXR + q}, v42, v43, v44")
        e(f"v_max_f32 v{MXR + q}, v{MXR + q}, v45")
    e("s_mov_b32 s69, s68")
    e("s_mov_b32 s70, 16")
    e.label("K2_SLOW_P2")
    load_kv(1, "s69", 0, "s")
    e.vwait(None)
    for q in range(8):
        mfma32(e, S[0], KB[1], Q(q))
        e("s_nop 15")
        for i in range(16):
            e(f"v_sub_f32 v{S[0] + i}, v{S[0] + i}, v{MXR + q}")
        for i in range(16):
            e(f"v_exp_f32 v{S[0] + i}, v{S[0] + i}")
        e("s_nop 0")
        for c in range(8):
            e(f"v_cvt_pk_bf16_f32 v{P + c}, v{S[0] + 2 * c}, v{S[0] + 2 * c + 1}")
        e("s_nop 1")
        mfma32(e, ACC(q), VB[1], P, ACC(q))
        mfma32(e, ACC(q), VB[1] + 4, P + 4, ACC(q))
    e("s_add_u32 s69, s69, 2048")
    e("s_sub_u32 s70, s70, 1")
    e("s_cmp_lg_u32 s70, 0")
    e("s_cbranch_scc1 K2_SLOW_P2")
    e("s_nop 3")
    e("s_branch K2_DUMP")
    e.label("K2_SLOW_H")
    e("s_barrier")
    e("s_branch K2_BAR1")

    e.label("K2_H")
    e.vm = []
    e("s_setprio 2")
    e("s_sub_u32 s66, s60, 4")
    e("v_and_b32 v8, 15, v1")
    e("v_lshrrev_b32 v9, 4, v1")
    e("s_lshl_b32 s67, s62, 2")
    e("s_add_u32 s81, s67, s66")
    e("s_cmp_lg_u32 s81, 17")
    e("s_cbranch_scc1 K2_H_NOR1")
    e("v_lshlrev_b32 v6, 2, v1")
    for qi, q in enumerate((0, 1, 3, 4)):
        for wp in range(4):
            e(f"ds_read_b32 v{112 + qi * 4 + wp}, v6 offset:{O_ST2 + wp * 1280 + q * 256}")
        if qi == 2:
            e("s_waitcnt lgkmcnt(4)")
    e("s_waitcnt lgkmcnt(0)")
    e.label("K2_H_NOR1")
    e("s_mul_i32 s64, s56, 28")
    e("s_add_u32 s64, s64, s57")
    e("s_mul_i32 s65, s66, 6144")
    e(f"s_add_u32 s65, s65, {L_STG}")
    e("s_cmp_lt_u32 s66, 2")
    e("s_cselect_b32 s52, s28, s32")
    e("s_cselect_b32 s53, s29, s33")
    e(f"s_mov_b32 s54, {hex(512 * 1792 * 2)}")
    e("s_mov_b32 s55, 0x00020000")
    e("s_lshr_b32 s48, s64, 3")
    e("s_and_b32 s49, s64, 7")
    e("s_lshl_b32 s49, s49, 1")
    e("s_and_b32 s67, s66, 1")
    e("s_add_u32 s49, s49, s67")
    e("v_lshrrev_b32 v6, 3, v1")
    e("v_and_b32 v12, 7, v1")
    e("v_lshlrev_b32 v12, 4, v12")
    e("s_movk_i32 s67, 3584")
    e("v_mad_u32_u24 v16, v6, s67, v12")
    e("v_lshlrev_b32 v17, 10, v9")
    e("v_lshl_add_u32 v17, v8, 4, v17")
    e("v_lshl_add_u32 v12, v6, 10, v12")
    e("v_bfe_u32 v13, v1, 2, 2")
    e("v_lshl_add_u32 v13, v3, 2, v13")
    e("v_lshlrev_b32 v13, 7, v13")
    e("v_and_b32 v14, 1, v1")
    e("v_lshl_add_u32 v13, v14, 5, v13")
    e("v_bfe_u32 v14, v1, 4, 1")
    e("v_lshl_add_u32 v13, v14, 4, v13")
    e("v_bfe_u32 v14, v1, 1, 1")
    e("v_lshl_add_u32 v13, v14, 3, v13")
    e("v_add_u32 v13, s65, v13")
    e("s_and_b32 s77, s66, 1")
    e("s_lshl_b32 s67, s77, 6")
    e("v_add_u32 v13, s67, v13")
    e("v_xor_b32 v29, 64, v13")
    e("s_lshl_b32 s69, s77, 18")
    e("s_lshl_b32 s67, s62, 7")
    e("s_add_u32 s69, s69, s67")
    e("s_lshl_b32 s74, s66, 15")
    e(f"s_add_u32 s75, s74, {hex(WS_KV)}")
    e(f"s_add_u32 s74, s74, {L_KV}")
    e("s_barrier")
    for n in range(8, 32):
        if n % 4 == 0:
            e(f"s_add_u32 m0, s74, {(n & ~3) * 1024}")
            e(f"s_add_u32 s67, s75, {(n & ~3) * 1024}")
        e(f"buffer_load_dwordx4 v4, s[44:47], s67 offen offset:{(n & 3) * 1024} sc1 lds")
    e("s_cmp_lg_u32 s81, 17")
    e("s_cbranch_scc1 K2_H_NOR2")
    for b in (112, 116, 120, 124):
        sum4(e, b, b, b + 1, b + 2, b + 3)
    token_stats(e, 112, 116, MB, DB, INV, 131, 132)
    e("v_readlane_b32 s67, v124, 0")
    e("s_nop 1")
    e(f"v_mul_f32 v18, s67, v{MB}")
    e("v_sub_f32 v120, v120, v18")
    e(f"v_mul_f32 v120, v{INV}, v120")
    rbf(e, 120, 120)
    e("v_ashrrev_i32 v18, 31, v120")
    e("v_or_b32 v18, 0x80000000, v18")
    e("v_xor_b32 v120, v120, v18")
    e("v_and_b32 v120, 0xffff0000, v120")
    e("s_lshl_b32 s67, s61, 6")
    e("v_add_u32 v19, s67, v1")
    e("v_sub_u32 v18, 0xffff, v19")
    e("v_or_b32 v120, v120, v18")
    e("v_lshlrev_b32 v19, 3, v19")
    e(f"s_mov_b32 s67, {hex(WS_STATS)}")
    e(f"buffer_store_dwordx2 v[{MB}:{DB}], v19, s[44:47], s67 offen sc1")
    e("v_mov_b32 v24, v120")
    dpp_umax_reduce(e, 24)
    e("v_readlane_b32 s70, v24, 63")
    e("s_nop 1")
    e("v_cmp_ne_u32 vcc, s70, v120")
    e("s_nop 1")
    e("v_cndmask_b32 v24, 0, v120, vcc")
    dpp_umax_reduce(e, 24)
    e("v_readlane_b32 s71, v24, 63")
    e("s_nop 1")
    e("v_mov_b32 v20, s70")
    e("v_mov_b32 v21, s71")
    e("v_mov_b32 v22, s80")
    e("v_mov_b32 v23, s80")
    e("s_lshl_b32 s67, s61, 4")
    e(f"s_add_u32 s67, s67, {hex(WS_KEYS)}")
    e("v_mov_b32 v18, 0")
    e("s_waitcnt vmcnt(0)")
    e("s_mov_b64 exec, 1")
    e("buffer_store_dwordx4 v[20:23], v18, s[44:47], s67 offen sc1")
    e("s_mov_b64 exec, -1")
    e.label("K2_H_NOR2")
    e("s_waitcnt vmcnt(0)")
    e("s_barrier")
    e("v_lshlrev_b32 v6, 4, v2")
    e(f"s_mov_b32 s67, {hex(WS_KEYS)}")
    e("s_mov_b32 s76, 0x40000")
    e.label("K2_H_SPINK")
    e("buffer_load_dwordx4 v[20:23], v6, s[44:47], s67 offen sc1")
    e("s_waitcnt vmcnt(0)")
    e("v_cmp_ne_u32 vcc, s80, v22")
    e("v_cmp_ne_u32 s[72:73], s80, v23")
    e("s_or_b64 vcc, vcc, s[72:73]")
    e("s_cmp_eq_u64 vcc, 0")
    e("s_cbranch_scc1 K2_H_SPINK_DONE")
    e("s_sleep 16")
    e("s_sub_u32 s76, s76, 1")
    e("s_cmp_lg_u32 s76, 0")
    e("s_cbranch_scc1 K2_H_SPINK")
    e.label("K2_H_SPINK_DONE")
    e("v_mov_b32 v10, v20")
    e("v_mov_b32 v11, v21")
    e("v_mov_b32 v18, v10")
    dpp_umax_reduce(e, 18)
    e("v_readlane_b32 s70, v18, 63")
    e("s_nop 1")
    e("v_cmp_eq_u32 vcc, s70, v10")
    e("s_nop 1")
    e("v_cndmask_b32 v18, v10, v11, vcc")
    dpp_umax_reduce(e, 18)
    e("v_readlane_b32 s71, v18, 63")
    e("s_nop 3")
    e("s_and_b32 s72, s70, 0xffff")
    e("s_sub_u32 s72, 0xffff, s72")
    e("s_and_b32 s73, s71, 0xffff")
    e("s_sub_u32 s73, 0xffff, s73")
    e("s_and_b32 s72, s72, 2047")
    e("s_and_b32 s73, s73, 2047")

    WOF = lambda hd, nt: 128 + (hd * 2 + nt) * 4

    def wo_rounds(h0, h1):
        hd = h0
        while hd < h1:
            n = min(3, h1 - hd)
            for i in range(2 * n):
                if i % 4 == 0:
                    e(f"s_add_u32 m0, s65, {i * 1024}")
                e(f"s_add_u32 s67, s69, {(2 * hd + i) * 8192 - (i & 3) * 1024}")
                e(f"buffer_load_dwordx4 v12, s[24:27], s67 offen offset:{(i & 3) * 1024} lds")
            e("s_waitcnt vmcnt(0)")
            for i in range(n):
                for nt in range(2):
                    for u in range(2):
                        e(f"ds_read_b64_tr_b16 {vr(WOF(hd + i, nt) + 2 * u, 2)}, v{13 if nt == 0 else 29} offset:{(16 * i + 8 * u) * 128}")
            e("s_waitcnt lgkmcnt(0)")
            hd += n

    e(f"s_cmp_lt_u32 s57, {FFNLIM}")
    e("s_cbranch_scc1 K2_H_FFN")
    wo_rounds(0, 6)
    e("s_branch K2_H_NOFFN1")
    e.label("K2_H_FFN")
    e("v_mov_b32 v18, s72")
    e("v_mov_b32 v19, s73")
    e("v_cmp_eq_u32 vcc, 0, v3")
    e("s_lshl_b32 s67, s49, 6")
    e("s_nop 0")
    e("v_cndmask_b32 v18, v19, v18, vcc")
    e("v_lshlrev_b32 v19, 10, v18")
    e("v_lshl_add_u32 v19, v2, 1, v19")
    e("buffer_load_ushort v20, v19, s[20:23], s67 offen")
    e("v_lshlrev_b32 v19, 3, v18")
    e(f"s_mov_b32 s67, {hex(WS_STATS)}")
    e("buffer_load_dwordx2 v[22:23], v19, s[44:47], s67 offen sc1")
    e(f"s_mul_i32 s68, s49, {32 * 3584}")
    e("s_lshl_b32 s67, s48, 7")
    e("s_add_u32 s68, s68, s67")
    for n in range(4):
        e(f"s_add_u32 m0, s65, {n * 1024}")
        e(f"s_add_u32 s67, s68, {n * 8 * 3584}")
        e("buffer_load_dwordx4 v16, s[52:55], s67 offen lds")
    e("s_lshl_b32 s68, s64, 13")
    e("s_lshl_b32 s67, s66, 8")
    e("s_add_u32 s68, s68, s67")
    for n in range(2):
        e(f"s_add_u32 m0, s65, {4096 + n * 1024}")
        e(f"s_add_u32 s67, s68, {n * 4096}")
        e("buffer_load_dwordx4 v17, s[36:39], s67 offen lds")
    e("v_bfe_u32 v24, v1, 2, 2")
    e("v_lshl_add_u32 v25, v9, 3, v24")
    e("v_lshlrev_b32 v25, 7, v25")
    e("v_and_b32 v26, 3, v1")
    e("v_lshl_add_u32 v25, v26, 3, v25")
    e("v_add_u32 v25, s65, v25")
    e("v_and_b32 v24, 1, v24")
    e("v_lshl_add_u32 v24, v9, 1, v24")
    e("v_lshlrev_b32 v24, 8, v24")
    e("v_lshl_add_u32 v24, v26, 3, v24")
    e("v_add_u32 v24, s65, v24")
    e("s_lshl_b32 s67, s66, 7")
    e("v_lshl_add_u32 v27, v1, 1, s67")
    e("v_and_b32 v28, 1, v8")
    e("v_lshlrev_b32 v28, 6, v28")
    e("v_lshl_add_u32 v28, v9, 4, v28")
    e("v_add_u32 v28, s67, v28")
    e("s_waitcnt vmcnt(6)")
    e("v_rcp_f32 v23, v23")
    e("v_lshlrev_b32 v20, 16, v20")
    e("v_sub_f32 v20, v20, v22")
    rbf(e, 20, 20)
    e("v_mul_f32 v20, v23, v20")
    e("v_cvt_pk_bf16_f32 v20, v20, v20")
    e(f"ds_write_b16 v27, v20 offset:{L_XS}")
    e(f"ds_read_b128 v[80:83], v28 offset:{L_XS}")
    e("s_waitcnt vmcnt(2)")
    GA = lambda ft: 64 + 4 * ft
    for ft in range(4):
        for u in range(2):
            e(f"ds_read_b64_tr_b16 {vr(GA(ft) + 2 * u, 2)}, v25 offset:{4 * u * 128 + ft * 32}")
    e("s_movk_i32 s67, 7168")
    e("v_mul_lo_u32 v19, v8, s67")
    e("v_lshl_add_u32 v19, v9, 4, v19")
    e("s_lshl_b32 s67, s49, 1")
    e("s_lshr_b32 s74, s66, 1")
    e("s_add_u32 s67, s67, s74")
    e(f"s_mul_i32 s67, s67, {2 * 7168}")
    e("s_lshl_b32 s74, s48, 8")
    e("s_add_u32 s67, s67, s74")
    e(f"s_add_u32 s75, s67, {hex(WS_PG)}")
    e("v_mov_b32 v26, s80")
    e("v_mov_b32 v18, 0")
    e("s_waitcnt lgkmcnt(0)")
    for ft in range(4):
        mfma16(e, 48 + 4 * ft, GA(ft), 80)
    e("s_mov_b32 exec_lo, 0x00030003")
    e("s_mov_b32 exec_hi, 0x00030003")
    e("s_nop 5")
    for ft in range(4):
        e(f"buffer_store_dwordx4 {vr(48 + 4 * ft, 4)}, v19, s[44:47], s75 offen offset:{64 * ft} sc1")
    e("s_mov_b64 exec, -1")
    DF = lambda ee: 96 + 4 * ee
    e("s_waitcnt vmcnt(4)")
    for ee in range(8):
        e(f"ds_read_b64_tr_b16 {vr(DF(ee), 2)}, v24 offset:{4096 + 32 * ee}")
        e(f"v_mov_b32 v{DF(ee) + 2}, 0")
        e(f"v_mov_b32 v{DF(ee) + 3}, 0")
    e("s_lshl_b32 s67, s64, 4")
    e("s_lshl_b32 s74, s66, 2")
    e("s_add_u32 s67, s67, s74")
    e(f"s_add_u32 s67, s67, {hex(WS_FLAGS + 4096)}")
    e("s_waitcnt vmcnt(0)")
    e("s_mov_b64 exec, 1")
    e("buffer_store_dword v26, v18, s[44:47], s67 offen sc1")
    e("s_mov_b64 exec, -1")
    e("s_waitcnt lgkmcnt(0)")
    wo_rounds(0, 6)
    e("s_mov_b32 exec_hi, 0")
    e("v_lshlrev_b32 v18, 2, v1")
    e("s_lshl_b32 s67, s48, 7")
    e(f"s_add_u32 s67, s67, {hex(WS_FLAGS + 4096)}")
    e("s_mov_b32 s76, 0x40000")
    e.label("K2_H_SPIN1")
    e("buffer_load_dword v19, v18, s[44:47], s67 offen sc1")
    e("s_waitcnt vmcnt(0)")
    e("v_cmp_ne_u32 vcc, s80, v19")
    e("s_cmp_eq_u64 vcc, 0")
    e("s_cbranch_scc1 K2_H_SPIN1_DONE")
    e("s_sleep 8")
    e("s_sub_u32 s76, s76, 1")
    e("s_cmp_lg_u32 s76, 0")
    e("s_cbranch_scc1 K2_H_SPIN1")
    e.label("K2_H_SPIN1_DONE")
    e("s_mov_b64 exec, -1")
    e("v_lshrrev_b32 v18, 1, v8")
    e(f"s_mov_b32 s67, {8 * 7168}")
    e("v_mul_lo_u32 v18, v18, s67")
    e("v_and_b32 v19, 1, v8")
    e("s_movk_i32 s67, 7168")
    e("v_mad_u32_u24 v18, v19, s67, v18")
    e("v_lshl_add_u32 v18, v9, 3, v18")
    e("s_lshl_b32 s74, s64, 5")
    e(f"s_add_u32 s74, s74, {hex(WS_PG)}")
    for kl in range(2):
        for m in range(2):
            e(f"s_add_u32 s67, s74, {(kl * 2 + m) * 2 * 7168}")
            e(f"buffer_load_dwordx2 {vr(64 + (kl * 2 + m) * 2, 2)}, v18, s[44:47], s67 offen sc1")
    e("v_mov_b32 v41, 0")
    e("v_mov_b32 v42, 0")
    e("v_mov_b32 v43, 0")
    e("s_waitcnt vmcnt(0) lgkmcnt(0)")
    for i in range(4):
        e(f"v_add_f32 v{64 + i}, v{64 + i}, v{68 + i}")
    for rot in (2, 4, 8):
        e("s_nop 0")
        for i in range(4):
            e(f"v_add_f32_dpp v{64 + i}, v{64 + i}, v{64 + i} row_ror:{rot} row_mask:0xf bank_mask:0xf")
    g0, g1, u0, u1 = 64, 65, 66, 67
    e(f"v_cvt_pk_bf16_f32 v24, v{g0}, v{g1}")
    e(f"v_cvt_pk_bf16_f32 v25, v{u0}, v{u1}")
    e(f"v_lshlrev_b32 v{g0}, 16, v24")
    e(f"v_and_b32 v{g1}, 0xffff0000, v24")
    e(f"v_lshlrev_b32 v{u0}, 16, v25")
    e(f"v_and_b32 v{u1}, 0xffff0000, v25")
    e(f"v_mul_f32 v24, {hex(NLOG2E)}, v{g0}")
    e(f"v_mul_f32 v25, {hex(NLOG2E)}, v{g1}")
    e("v_exp_f32 v24, v24")
    e("v_exp_f32 v25, v25")
    e("s_nop 0")
    e("v_add_f32 v24, 1.0, v24")
    e("v_add_f32 v25, 1.0, v25")
    e("v_rcp_f32 v24, v24")
    e("v_rcp_f32 v25, v25")
    e("s_nop 0")
    e(f"v_mul_f32 v{g0}, v24, v{g0}")
    e(f"v_mul_f32 v{g1}, v25, v{g1}")
    e(f"v_cvt_pk_bf16_f32 v24, v{g0}, v{g1}")
    e(f"v_lshlrev_b32 v{g0}, 16, v24")
    e(f"v_and_b32 v{g1}, 0xffff0000, v24")
    e(f"v_mul_f32 v{g0}, v{g0}, v{u0}")
    e(f"v_mul_f32 v{g1}, v{g1}, v{u1}")
    e(f"v_cvt_pk_bf16_f32 v40, v{g0}, v{g1}")
    e("v_lshlrev_b32 v19, 11, v8")
    e("v_lshl_add_u32 v19, v9, 4, v19")
    for ee in range(8):
        mfma16(e, 64 + 4 * ee, DF(ee), 40)
    e("s_lshl_b32 s67, s64, 12")
    e("s_lshl_b32 s74, s66, 9")
    e("s_add_u32 s67, s67, s74")
    e(f"s_add_u32 s67, s67, {hex(WS_YP)}")
    e("s_mov_b32 exec_lo, 0x00030003")
    e("s_mov_b32 exec_hi, 0x00030003")
    e("s_nop 3")
    for ee in range(8):
        e(f"buffer_store_dwordx4 {vr(64 + 4 * ee, 4)}, v19, s[44:47], s67 offen offset:{64 * ee} sc1")
    e("s_lshl_b32 s67, s66, 10")
    e("s_lshl_b32 s74, s64, 2")
    e("s_add_u32 s67, s67, s74")
    e(f"s_add_u32 s67, s67, {hex(WS_FLAGS)}")
    e("s_mov_b64 exec, 1")
    e("v_mov_b32 v18, 0")
    e("s_waitcnt vmcnt(0)")
    e("buffer_store_dword v26, v18, s[44:47], s67 offen sc1")
    e("s_mov_b64 exec, -1")
    e.label("K2_H_NOFFN1")
    for r in range(20, 24):
        e(f"v_mov_b32 v{r}, -1")
    e("s_lshl_b32 s67, s61, 6")
    e("s_lshl_b32 s74, s62, 2")
    e("s_add_u32 s67, s67, s74")
    e("s_add_u32 s67, s67, s66")
    e("s_lshl_b32 s67, s67, 10")
    e(f"s_add_u32 s67, s67, {hex(WS_OF)}")
    for off in (0, 32768, WS_OF2 - WS_OF, WS_OF2 - WS_OF + 32768):
        e(f"s_add_u32 s74, s67, {off}")
        e("buffer_store_dwordx4 v[20:23], v4, s[44:47], s74 offen sc1")
    e("s_lshl_b32 s67, s61, 3")
    e("s_add_u32 s67, s67, s62")
    e("s_lshl_b32 s67, s67, 2")
    e("s_add_u32 s67, s67, s66")
    e("s_lshl_b32 s67, s67, 2")
    e(f"s_add_u32 s67, s67, {hex(WS_INIT)}")
    e("v_mov_b32 v18, 0")
    e("v_mov_b32 v19, s80")
    e("s_waitcnt vmcnt(0)")
    e("s_mov_b64 exec, 1")
    e("buffer_store_dword v19, v18, s[44:47], s67 offen sc1")
    e("s_mov_b64 exec, -1")
    stamp(e, 3)
    wo_rounds(6, 16)
    e("s_lshr_b32 s74, s66, 1")
    e("s_lshl_b32 s75, s61, 1")
    e("s_add_u32 s75, s75, s74")
    e("s_lshl_b32 s67, s75, 5")
    e("v_add_u32 v15, s67, v2")
    e("v_lshlrev_b32 v14, 10, v15")
    e("v_lshl_add_u32 v14, v3, 5, v14")
    e("s_lshl_b32 s58, s62, 7")
    e("s_lshl_b32 s67, s77, 6")
    e("s_add_u32 s58, s58, s67")
    e("buffer_load_dwordx4 v[120:123], v14, s[20:23], s58 offen")
    e("buffer_load_dwordx4 v[124:127], v14, s[20:23], s58 offen offset:16")
    e("s_cmp_lg_u32 s66, 0")
    e("s_cbranch_scc1 K2_H_NOSEL")
    for sl in range(2):
        e(f"s_and_b32 s74, s{70 + sl}, 0xffff0000")
        e("s_mov_b32 s76, 0xffff0000")
        e("s_cmp_lt_i32 s74, 0")
        e("s_cselect_b32 s76, 0x80000000, s76")
        e("s_xor_b32 s74, s74, s76")
        e(f"v_mov_b32 v{22 + sl}, s74")
        e(f"v_mul_f32 v{22 + sl}, {hex(NLOG2E)}, v{22 + sl}")
        e(f"v_exp_f32 v{22 + sl}, v{22 + sl}")
        e("s_nop 0")
        e(f"v_add_f32 v{22 + sl}, 1.0, v{22 + sl}")
        e(f"v_rcp_f32 v{22 + sl}, v{22 + sl}")
        e("s_nop 0")
        rbf(e, 22 + sl, 22 + sl)
    e("v_mov_b32 v20, s72")
    e("v_mov_b32 v21, s73")
    e(f"v_mov_b32 v18, {L_SEL}")
    e("ds_write_b128 v18, v[20:23]")
    e.label("K2_H_NOSEL")
    for sl in range(2):
        e(f"s_lshr_b32 s67, s{72 + sl}, 6")
        e("s_cmp_lg_u32 s67, s61")
        e(f"s_cbranch_scc1 K2_H_NOCONS{sl}")
        if XNOFFN:
            e(f"s_branch K2_H_NOCONS{sl}")
        e("s_lshr_b32 s67, s62, 1")
        e("s_lshl_b32 s67, s67, 10")
        e("s_mul_i32 s74, s66, 224")
        e("s_add_u32 s67, s67, s74")
        e(f"s_add_u32 s67, s67, {hex(WS_FLAGS)}")
        e("v_lshlrev_b32 v18, 2, v1")
        e("s_mov_b32 s76, 0x40000")
        e("s_mov_b32 exec_hi, 0x00ffffff")
        e.label(f"K2_H_SPIN2_{sl}")
        e("buffer_load_dword v19, v18, s[44:47], s67 offen sc1")
        e("s_waitcnt vmcnt(0)")
        e("v_cmp_ne_u32 vcc, s80, v19")
        e("s_cmp_eq_u64 vcc, 0")
        e(f"s_cbranch_scc1 K2_H_SPIN2_DONE{sl}")
        e("s_sleep 8")
        e("s_sub_u32 s76, s76, 1")
        e("s_cmp_lg_u32 s76, 0")
        e(f"s_cbranch_scc1 K2_H_SPIN2_{sl}")
        e.label(f"K2_H_SPIN2_DONE{sl}")
        e("s_mov_b64 exec, -1")
        e("v_lshlrev_b32 v18, 12, v9")
        e("v_lshl_add_u32 v18, v8, 4, v18")
        e(f"s_mul_i32 s67, s66, {56 * 4096}")
        e("s_lshl_b32 s74, s62, 8")
        e("s_add_u32 s67, s67, s74")
        e(f"s_add_u32 s67, s67, {hex(WS_YP + sl * 2048)}")
        for i in range(14):
            e(f"buffer_load_dwordx4 {vr(64 + 4 * i, 4)}, v18, s[44:47], s67 offen sc1")
            e("s_add_u32 s67, s67, 16384")
        e("s_waitcnt vmcnt(0)")
        for i in range(1, 14):
            for c in range(4):
                e(f"v_add_f32 v{64 + c}, v{64 + c}, v{64 + 4 * i + c}")
        swap_add(e, 64, 65)
        swap_add(e, 66, 67)
        e("s_nop 1")
        e("v_permlane16_swap_b32 v64, v66")
        e("s_nop 1")
        e("v_add_f32 v64, v64, v66")
        e("v_and_b32 v19, 1, v9")
        e("v_lshrrev_b32 v20, 1, v9")
        e("v_lshl_add_u32 v19, v19, 1, v20")
        e("v_lshl_add_u32 v19, v8, 2, v19")
        e("v_lshlrev_b32 v19, 2, v19")
        e("s_lshl_b32 s67, s66, 8")
        e("v_add_u32 v19, s67, v19")
        e(f"ds_write_b32 v19, v64 offset:{L_YS + sl * 1024}")
        e.label(f"K2_H_NOCONS{sl}")
    e("s_lshl_b32 s67, s61, 7")
    e(f"s_add_u32 s67, s67, {hex(WS_INIT)}")
    e("v_lshlrev_b32 v18, 2, v2")
    e("s_mov_b32 s76, 0x40000")
    e.label("K2_H_SPINI")
    e("buffer_load_dword v19, v18, s[44:47], s67 offen sc1")
    e("s_waitcnt vmcnt(0)")
    e("v_cmp_ne_u32 vcc, s80, v19")
    e("s_cmp_eq_u64 vcc, 0")
    e("s_cbranch_scc1 K2_H_SPINI_DONE")
    e("s_sleep 8")
    e("s_sub_u32 s76, s76, 1")
    e("s_cmp_lg_u32 s76, 0")
    e("s_cbranch_scc1 K2_H_SPINI")
    e.label("K2_H_SPINI_DONE")
    e("v_mov_b32 v2, v14")
    e("v_add_u32 v3, s65, v4")
    for r in range(72, 104):
        e(f"v_mov_b32 v{r}, 0")
    stamp(e, 9)
    e("s_waitcnt vmcnt(0) lgkmcnt(0)")
    stamp(e, 8)
    e("s_setprio 0")
    e("s_branch K2_BAR1")

    e.label("K2_H2")
    e("s_lshl_b32 s68, s75, 15")
    e("s_lshl_b32 s67, s77, 14")
    e("s_add_u32 s68, s68, s67")
    e(f"s_add_u32 s68, s68, {hex(WS_OF)}")
    OFR = lambda hd: 8 + hd * 4
    OA = [72, 88]
    G_ = 104
    e("s_mov_b32 s76, 0x10000")
    e("s_mov_b32 s74, 0")
    e("s_mov_b32 s71, s68")
    e.label("K2_H_POLL")
    for src in range(4):
        e(f"s_bitcmp1_b32 s74, {src}")
        e(f"s_cbranch_scc1 K2_H_NL{src}")
        e(f"s_add_u32 s67, s71, {src * 4096}")
        for i in range(4):
            e(f"buffer_load_dwordx4 {vr(OFR(4 * src + i), 4)}, v4, s[44:47], s67 offen offset:{i * 1024} sc1")
        e.label(f"K2_H_NL{src}")
    e.label("K2_H_CHECK")
    e("s_waitcnt vmcnt(0)")
    for src in range(4):
        e(f"s_bitcmp1_b32 s74, {src}")
        e(f"s_cbranch_scc1 K2_H_NC{src}")
        o = OFR(4 * src)
        e(f"v_max3_u32 v6, v{o}, v{o + 1}, v{o + 2}")
        for r in range(o + 3, o + 15, 2):
            e(f"v_max3_u32 v6, v{r}, v{r + 1}, v6")
        e(f"v_max_u32 v6, v{o + 15}, v6")
        e("v_cmp_eq_u32 vcc, -1, v6")
        e("s_cmp_eq_u32 s76, 1")
        e("s_cselect_b64 vcc, 0, vcc")
        e("s_cmp_eq_u64 vcc, 0")
        e(f"s_cbranch_scc0 K2_H_NC{src}")
        for i in range(4):
            for nt in range(2):
                mfma32(e, OA[nt], WOF(4 * src + i, nt), OFR(4 * src + i), OA[nt])
        e(f"s_bitset1_b32 s74, {src}")
        e.label(f"K2_H_NC{src}")
    e("s_sub_u32 s76, s76, 1")
    e("s_and_b32 s67, s76, 1")
    e(f"s_cmp_gt_u32 s76, {0x10000 - 8}")
    e("s_cselect_b32 s67, 0, s67")
    e(f"s_mul_i32 s67, s67, {WS_OF2 - WS_OF}")
    e("s_add_u32 s71, s68, s67")
    e("s_cmp_lg_u32 s74, 15")
    e("s_cbranch_scc1 K2_H_POLL")
    stamp(e, 6)
    e("s_lshl_b32 s67, s66, 12")
    e(f"s_add_u32 s67, s67, {L_REDB}")
    e("v_add_u32 v6, s67, v4")
    e("s_xor_b32 s67, s67, 4096")
    e("v_add_u32 v7, s67, v4")
    for dw in range(8):
        e(f"v_lshlrev_b32 v{8 + 2 * dw}, 16, v{120 + dw}")
        e(f"v_and_b32 v{9 + 2 * dw}, 0xffff0000, v{120 + dw}")
    for i in range(4):
        e(f"ds_write_b128 v6, {vr(OA[1] + 4 * i, 4)} offset:{i * 1024}")
    e("s_waitcnt lgkmcnt(0)")
    e("s_barrier")
    for i in range(4):
        e(f"ds_read_b128 {vr(24 + 4 * i, 4)}, v7 offset:{i * 1024}")
        e(f"ds_read_b128 {vr(G_ + 4 * i, 4)}, v3 offset:{i * 1024}")
    e("s_waitcnt lgkmcnt(0)")
    for r in range(16):
        e(f"v_add_f32 v{24 + r}, v{24 + r}, v{OA[0] + r}")
        e(f"v_fma_f32 v{8 + r}, v{24 + r}, v{G_ + r}, v{8 + r}")
        if r & 1:
            e(f"v_cvt_pk_bf16_f32 v{40 + r // 2}, v{7 + r}, v{8 + r}")
    e("buffer_store_dwordx4 v[40:43], v2, s[40:43], s58 offen")
    e("buffer_store_dwordx4 v[44:47], v2, s[40:43], s58 offen offset:16")
    stamp(e, 7)
    stamp_flush(e, 1, 44, 60)
    e.label("K2_END")
    e("s_endpgm")
    return kn, 256, LDS_SIZE


def kd(name, nv, ns=96):
    return f""".p2align 6
.amdhsa_kernel {name}
  .amdhsa_next_free_vgpr {nv}
  .amdhsa_next_free_sgpr {ns}
  .amdhsa_accum_offset {(nv + 3) // 4 * 4}
  .amdhsa_group_segment_fixed_size 0
  .amdhsa_kernarg_size 104
  .amdhsa_user_sgpr_count 2
  .amdhsa_user_sgpr_kernarg_segment_ptr 1
  .amdhsa_system_sgpr_workgroup_id_x 1
  .amdhsa_float_denorm_mode_32 3
.end_amdhsa_kernel
"""


def main():
    e = Asm()
    k, nv, lds = gen_k(e)
    head = f"""; LayerNorm + MQA attention (32 heads, shared K/V) + top-2 mixture-of-depths SwiGLU + gated residual, one fused kernel.
; @launch grid=(256,1,1) block=(512,1,1) lds={lds}
.amdgcn_target "amdgcn-amd-amdhsa--gfx950"
.text
"""
    tail = '.section .rodata,"a"\n' + kd(k, nv, 102)
    args = [a for a in sys.argv[1:] if not a.startswith("--")]
    out = args[0] if args else f"cdna_kernels/{NAME}.s"
    with open(out, "w") as f:
        f.write(head + e.text() + tail)


if __name__ == "__main__":
    main()
```
